```python
import torch

def _softmax(x, axis=-1):
    return torch.softmax(x, dim=axis)
def _gelu(x):
    return torch.nn.functional.gelu(x, approximate="tanh")
def _silu(x):
    return torch.nn.functional.silu(x)
def _sigmoid(x):
    return torch.sigmoid(x)
def _layernorm(x, axis=-1, eps=1e-5):
    m = x.mean(dim=axis, keepdim=True)
    v = x.var(dim=axis, keepdim=True, unbiased=False)
    return (x - m) / torch.sqrt(v + eps)
def _scatter_add(tgt, idx, src, axis=0):
    return tgt.clone().index_add_(axis, idx, src)
def _segment_sum(src, seg, n):
    out = torch.zeros((n,) + src.shape[1:], dtype=src.dtype)
    return out.index_add_(0, seg, src)
def _pad(x, pw):
    flat = tuple(v for pair in reversed(pw) for v in pair)
    return torch.nn.functional.pad(x, flat)

kernel_name = 'parallel_sum__linear_attn_block__glu_gated_reglu__prompt'

def setup_inputs():

    _w = (lambda a: (lambda t: t.to(torch.bfloat16) if t.is_floating_point() else t)(torch.as_tensor(a)))
    def _A_setup():
        B, S, D = 1, 2048, 448
        return {
            "x": _w((lambda *s: torch.randn(*s, dtype=torch.bfloat16) * 0.05)(B, S, D)),
            "wqkv": _w((lambda *s: torch.randn(*s, dtype=torch.bfloat16) * 0.1)(D, 3 * D)),
            "wo": _w((lambda *s: torch.randn(*s, dtype=torch.bfloat16) * 0.05)(D, D)),
        }
    _A_in = _A_setup()

    def _B_setup():
        B, S, D, F = 1, 2048, 448, 1792
        return {
            "x": _w((lambda *s: torch.randn(*s, dtype=torch.bfloat16) * 0.05)(B, S, D)),
            "W_gate": _w((lambda *s: torch.randn(*s, dtype=torch.bfloat16) * 0.2)(D, F) * (2.0 / D) ** 0.5),
            "W_up": _w((lambda *s: torch.randn(*s, dtype=torch.bfloat16) * 0.2)(D, F) * (2.0 / D) ** 0.5),
            "W_down": _w((lambda *s: torch.randn(*s, dtype=torch.bfloat16) * 0.2)(F, D) * (1.0 / F) ** 0.5),
        }
    _B_in = _B_setup()

    return {
        "A_x": _A_in["x"],
        "A_wqkv": _A_in["wqkv"],
        "A_wo": _A_in["wo"],
        "B_x": _B_in["x"],
        "B_W_gate": _B_in["W_gate"],
        "B_W_up": _B_in["W_up"],
        "B_W_down": _B_in["W_down"],
    }

def reference(A_x, A_wqkv, A_wo, B_x, B_W_gate, B_W_up, B_W_down):
    def _A_ref(x, wqkv, wo):
        B, S, D = x.shape
        H = 16; Dh = D // H
        qkv = (lambda x, *d: x.permute(*d))((x @ wqkv).reshape(B, S, 3, H, Dh), 2, 0, 3, 1, 4)
        q, k, v = qkv[0], qkv[1], qkv[2]
        phi = lambda t: torch.where(t > 0, t + 1, torch.exp(t)) + 1e-6
        pq, pk = phi(q), phi(k)
        kv = torch.einsum("bhsd,bhse->bhde", pk, v)
        z = torch.einsum("bhsd->bhd", pk)
        num = torch.einsum("bhqd,bhde->bhqe", pq, kv)
        den = torch.einsum("bhqd,bhd->bhq", pq, z)[..., None] + 1e-6
        o = num / den
        return (lambda x, *d: x.permute(*d))(o, 0, 2, 1, 3).reshape(B, S, D) @ wo

    def _B_ref(x, W_gate, W_up, W_down):
        gate = torch.einsum("bsd,df->bsf", x, W_gate)
        up = torch.einsum("bsd,df->bsf", x, W_up)
        gate = gate * (lambda x, dt: x.to(dt))(gate > 0, gate.dtype)
        h = gate * up
        return torch.einsum("bsf,fd->bsd", h, W_down)

    x = A_x
    xn = _layernorm(x, axis=-1)
    return x + _A_ref(xn, A_wqkv, A_wo) + _B_ref(xn, B_W_gate, B_W_up, B_W_down)
```

```python
NAME = "parallel_sum__linear_attn_block__glu_gated_reglu__prompt"
K1NAME = NAME + "_kernel"
K2NAME = NAME + "_p2_kernel"

OFF_H = 0x000000
OFF_WD = 0x700000
OFF_WO = OFF_WD + 1568 * 1024
OFF_PQ = 0x900000
OFF_KVP = 0xB80000
OFF_KVF = 0xC00000
OFF_ST = 0xC10000
WS_BYTES = 0x1000000
OFF_STAMP = 200 * 1024 * 1024

X_BYTES = 2048 * 896
Q_BYTES = 448 * 2688
G_BYTES = 448 * 3584
WD_BYTES = 1792 * 896
WO_BYTES = 448 * 896


class Asm:
    def __init__(self):
        self.lines = []
        self.uid = 0

    def raw(self, s):
        self.lines.append(s)

    def __call__(self, s):
        for l in s.split("\n"):
            l = l.strip()
            if l:
                self.lines.append("    " + l)

    def label(self, l):
        self.lines.append(l + ":")

    def newlabel(self, p="L"):
        self.uid += 1
        return f"{p}_{self.uid}"

    def c(self, s):
        self.lines.append("    ; " + s)

    def text(self):
        return "\n".join(self.lines) + "\n"


def vr(a, n=1):
    return f"v{a}" if n == 1 else f"v[{a}:{a+n-1}]"


def sr(a, n=1):
    return f"s{a}" if n == 1 else f"s[{a}:{a+n-1}]"


def ar(a, n=1):
    return f"a{a}" if n == 1 else f"a[{a}:{a+n-1}]"


def interleave(main, fill):
    out = []
    n = len(main)
    for i, m in enumerate(main):
        out.append(m)
        out.extend(fill[i * len(fill) // n:(i + 1) * len(fill) // n])
    return out


def wave_sum(A, v, tmp_s):
    A("s_nop 1")
    for sh in (1, 2, 4, 8):
        A(f"v_add_f32_dpp v{v}, v{v}, v{v} row_shr:{sh} row_mask:0xf bank_mask:0xf bound_ctrl:0")
        A("s_nop 1")
    A(f"v_add_f32_dpp v{v}, v{v}, v{v} row_bcast:15 row_mask:0xa bank_mask:0xf")
    A("s_nop 1")
    A(f"v_add_f32_dpp v{v}, v{v}, v{v} row_bcast:31 row_mask:0xc bank_mask:0xf")
    A("s_nop 1")
    A(f"v_readlane_b32 s{tmp_s}, v{v}, 63")
```

```python
from gen_common import *

STAGE = 53376
LDS_BYTES = 163840
NVGPR = 256
ACCOFF = 256
NSGPR = 96

S1 = STAGE
S2 = 2 * STAGE
M_OFF = S1
R_OFF = S1 + 1024
SP_OFF = S1 + 2048

SRD_X, SRD_Q, SRD_G, SRD_U, SRD_WS, SRD_RP, SRD_DBG = 4, 8, 12, 16, 20, 24, 28
sW, sWp, sRB, sH, sCB = 32, 33, 34, 35, 36
sXbase, sHbase, sGbase = 37, 38, 39
sLx, sLh, sLg, sLu = 40, 41, 42, 43
sI, sC, sRS, sDelta, sNext = 44, 45, 46, 47, 48
sT0, sT1, sT2, sT3, sT4, sT5 = 49, 50, 51, 52, 53, 54
sMaskP = 56
sHi = 58
sEps6 = 59
sLog2e = 60
sRPoff = 61
sRProw = 62
sMaskLo32 = 64
sMask56 = 66
sMask24 = 68
sSt0, sSt1 = 70, 71
sSt2 = 72
sKT = 76
sK2 = 78
sStg = 84

vLane = 0
vT = list(range(1, 16))
vXA = [16, 17, 18, 19]
vWA0 = [20, 21, 22, 23]
vWA1 = [24, 25, 26, 27]
vX, vH, vG = 28, 29, 30
vL16 = 31
vCS = [32, 33, 34, 35, 36, 37]
vCT = [38, 39, 40, 41]
vRP = 44
vRPL = 120
FB = [48, 68]
vSP = 88
ACC = 160

F1_448 = 0x3B124925
EPS5 = 0x3727C5AC
EPS6 = 0x358637BD
LOG2E = 0x3FB8AA3B


def acc(j, a):
    return ACC + (j * 2 + a) * 16


VARIANTS = {
    "A0": ("A", 0, ["k", "v"]),
    "A1": ("A", 1, ["f", "f", "f"]),
    "B0": ("B", 0, ["q", "f"]),
    "B1": ("B", 1, ["f", "f", "f"]),
}


def wread_list(var, t, buf):
    b = FB[buf] + 8
    if var == "A0":
        spec = [(vWA0[t], 0, 512), (vWA1[t], 0, 512)]
    elif var == "A1":
        spec = [(vWA0[t], 32 * j, 384) for j in range(3)]
    elif var == "B0":
        spec = [(vWA0[t], 0, 256), (vWA1[t], 0, 512)]
    else:
        spec = [(vWA0[t], 0, 512), (vWA1[t], 64, 512), (vWA0[t], 64, 512)]
    out = []
    for j, (reg, imm, d2) in enumerate(spec):
        out.append(f"ds_read_b64_tr_b16 {vr(b+4*j,2)}, v{reg} offset:{imm}")
        out.append(f"ds_read_b64_tr_b16 {vr(b+4*j+2,2)}, v{reg} offset:{imm+d2}")
    return out


def reads(var, t, buf):
    b = FB[buf]
    xs = [f"ds_read_b128 {vr(b,4)}, v{vXA[t]}", f"ds_read_b128 {vr(b+4,4)}, v{vXA[t]} offset:4096"]
    ws = wread_list(var, t, buf)
    return [xs[0], ws[0], ws[1], xs[1]] + ws[2:]


def mfmas(var, buf):
    tiles = VARIANTS[var][2]
    b = FB[buf]
    out = []
    for j, kind in enumerate(tiles):
        for a in range(2):
            d = acc(j, a)
            xf = vr(b + 4 * a, 4)
            wf = vr(b + 8 + 4 * j, 4)
            if kind in ("k", "v"):
                out.append(f"v_mfma_f32_32x32x16_bf16 {vr(d,16)}, {xf}, {wf}, {vr(d,16)}")
            else:
                out.append(f"v_mfma_f32_32x32x16_bf16 {vr(d,16)}, {wf}, {xf}, {vr(d,16)}")
    return out


def duty(var, buf):
    tiles = VARIANTS[var][2]
    b = FB[buf] + 8
    out = []
    q = 0
    for j in range(len(tiles)):
        for r in range(4):
            ta, tb = vCT[(q % 2) * 2], vCT[(q % 2) * 2 + 1]
            q += 1
            src = b + 4 * j + r
            out.append(f"v_lshlrev_b32 v{ta}, 16, v{src}")
            out.append(f"v_and_b32 v{tb}, s{sHi}, v{src}")
            out.append(f"v_add_f32 v{vCS[2*j]}, v{vCS[2*j]}, v{ta}")
            out.append(f"v_add_f32 v{vCS[2*j+1]}, v{vCS[2*j+1]}, v{tb}")
    return out


def dma_units(typ, sStage):
    u = []
    u.append(f"s_lshl_b32 s{sT0}, s{sC}, 7\ns_add_u32 s{sT0}, s{sT0}, s{sXbase}\ns_add_u32 m0, s{sStage}, s{sLx}\ns_mul_i32 s{sT2}, s{sC}, {64*2688}\n"
             f"buffer_load_dwordx4 v{vX}, s[{SRD_X}:{SRD_X+3}], s{sT0} offen lds")
    for j in range(1, 4):
        u.append(f"s_add_u32 m0, m0, 8192\ns_add_u32 s{sT0}, s{sT0}, {64*896}\n"
                 f"buffer_load_dwordx4 v{vX}, s[{SRD_X}:{SRD_X+3}], s{sT0} offen lds")
    head = (f"s_add_u32 m0, s{sStage}, s{sLh}\ns_add_u32 s{sT2}, s{sT2}, s{sHbase}\n")
    headld = f"buffer_load_dwordx4 v{vH}, s[{SRD_Q}:{SRD_Q+3}], s{sT2} offen lds"
    gpre = f"s_mul_i32 s{sT3}, s{sC}, {64*3584}\ns_add_u32 m0, s{sStage}, s{sLg}\ns_add_u32 s{sT3}, s{sT3}, s{sGbase}\n"
    gld = f"buffer_load_dwordx4 v{vG}, s[{SRD_G}:{SRD_G+3}], s{sT3} offen lds"
    upre = f"s_add_u32 m0, s{sStage}, s{sLu}\ns_nop 0\n"
    uld = f"buffer_load_dwordx4 v{vG}, s[{SRD_U}:{SRD_U+3}], s{sT3} offen lds"
    mon = f"s_mov_b64 exec, s[{sMaskP}:{sMaskP+1}]\n"
    moff = "\ns_mov_b64 exec, -1"
    if typ == "A":
        u.append(head + headld)
        u.append(gpre + mon + gld + moff)
        u.append(upre + mon + uld + moff)
    else:
        u.append(head + mon + headld + moff)
        u.append(gpre + gld)
        u.append(upre + uld)
    u.append(f"s_add_u32 s{sC}, s{sC}, 1\ns_cmp_eq_u32 s{sC}, 7\ns_cselect_b32 s{sC}, 0, s{sC}")
    return u


def row_stats(A, src, vm, vrr, t):
    f = t[:8]
    for i in range(4):
        A(f"v_lshlrev_b32 v{f[2*i]}, 16, v{src+i}")
        A(f"v_and_b32 v{f[2*i+1]}, s{sHi}, v{src+i}")
    s = t[8]
    A(f"v_add_f32 v{s}, v{f[0]}, v{f[1]}")
    for i in range(2, 8):
        A(f"v_add_f32 v{s}, v{s}, v{f[i]}")
    wave_sum(A, s, sKT)
    A("s_nop 1")
    A(f"v_mov_b32 v{vm}, s{sKT}")
    A(f"v_mul_f32 v{vm}, 0x{F1_448:x}, v{vm}")
    for i in range(8):
        A(f"v_sub_f32 v{f[i]}, v{f[i]}, v{vm}")
    A(f"v_mul_f32 v{s}, v{f[0]}, v{f[0]}")
    for i in range(1, 8):
        A(f"v_fmac_f32 v{s}, v{f[i]}, v{f[i]}")
    A(f"v_cndmask_b32_e64 v{s}, 0, v{s}, s[{sMask56}:{sMask56+1}]")
    wave_sum(A, s, sKT)
    A("s_nop 1")
    A(f"v_mov_b32 v{vrr}, s{sKT}")
    A(f"v_mov_b32 v{t[9]}, 0x{EPS5:x}")
    A(f"v_fmac_f32 v{t[9]}, 0x{F1_448:x}, v{vrr}")
    A(f"v_rsq_f32 v{vrr}, v{t[9]}")
    A("s_nop 0")


def stamp(A, which):
    pass


def emit(A, opts):
    stamps = opts.get("stamps", 0)
    A("s_cmp_ge_u32 s2, 256")
    A("s_cbranch_scc1 K1_end")
    if stamps:
        A(f"s_memrealtime s[{sSt0}:{sSt0+1}]")
    A(f"s_load_dwordx2 s[{SRD_X}:{SRD_X+1}], s[0:1], 0")
    A(f"s_load_dwordx2 s[{SRD_Q}:{SRD_Q+1}], s[0:1], 8")
    A(f"s_load_dwordx2 s[{SRD_G}:{SRD_G+1}], s[0:1], 32")
    A(f"s_load_dwordx2 s[{SRD_U}:{SRD_U+1}], s[0:1], 40")
    A(f"s_load_dwordx2 s[{SRD_WS}:{SRD_WS+1}], s[0:1], 72")
    A(f"s_load_dwordx2 s[80:81], s[0:1], 48")
    A(f"s_load_dwordx2 s[82:83], s[0:1], 16")
    A(f"s_load_dwordx2 s[{SRD_DBG}:{SRD_DBG+1}], s[0:1], 64")
    A("v_lshrrev_b32 v1, 6, v0")
    A("v_and_b32 v0, 63, v0")
    A(f"v_readfirstlane_b32 s{sW}, v1")
    for srd, nb in ((SRD_X, X_BYTES), (SRD_Q, Q_BYTES), (SRD_G, G_BYTES), (SRD_U, G_BYTES), (SRD_WS, WS_BYTES if not stamps else 0x10000000), (SRD_DBG, 256)):
        A(f"s_mov_b32 s{srd+2}, {nb}")
        A(f"s_mov_b32 s{srd+3}, 0x20000")
    A(f"s_and_b32 s{sT0}, s2, 7")
    A(f"s_lshr_b32 s{sT1}, s2, 3")
    A(f"s_and_b32 s{sRB}, s{sT0}, 1")
    A(f"s_lshl_b32 s{sRB}, s{sRB}, 2")
    A(f"s_and_b32 s{sT2}, s{sT1}, 3")
    A(f"s_add_u32 s{sRB}, s{sRB}, s{sT2}")
    A(f"s_lshr_b32 s{sCB}, s{sT0}, 1")
    A(f"s_lshl_b32 s{sCB}, s{sCB}, 3")
    A(f"s_lshr_b32 s{sT2}, s{sT1}, 2")
    A(f"s_add_u32 s{sCB}, s{sCB}, s{sT2}")
    A(f"s_and_b32 s{sH}, s{sCB}, 15")
    A(f"s_and_b32 s{sWp}, s{sW}, 3")
    A(f"s_mov_b32 s{sHi}, 0xffff0000")
    A(f"s_mov_b32 s{sStg}, {STAGE}")
    A(f"s_mov_b32 s{sEps6}, 0x{EPS6:x}")
    A(f"s_mov_b32 s{sLog2e}, 0x{LOG2E:x}")
    A(f"s_mov_b32 s{sMaskLo32}, -1")
    A(f"s_mov_b32 s{sMaskLo32+1}, 0")
    A(f"s_mov_b32 s{sMask56}, -1")
    A(f"s_mov_b32 s{sMask56+1}, 0x00ffffff")
    A(f"s_mov_b32 s{sMask24}, 0x01000000")
    A(f"s_mov_b32 s{sMask24+1}, 0x01000000")
    A(f"s_lshl_b32 s{sT0}, s{sRB}, 8")
    A(f"s_lshl_b32 s{sT1}, s{sW}, 3")
    A(f"s_add_u32 s{sT0}, s{sT0}, s{sT1}")
    A(f"s_mul_i32 s{sXbase}, s{sT0}, 896")
    A(f"s_lshl_b32 s{sLx}, s{sW}, 10")
    A(f"v_lshrrev_b32 v1, 3, v0")
    A(f"v_lshrrev_b32 v2, 4, v0")
    A(f"s_and_b32 s{sT1}, s{sW}, 1")
    A(f"s_lshl_b32 s{sT1}, s{sT1}, 2")
    A(f"v_add_u32 v3, s{sT1}, v2")
    A(f"v_and_b32 v4, 7, v0")
    A(f"v_xor_b32 v4, v4, v3")
    A(f"v_lshlrev_b32 v4, 4, v4")
    A(f"v_mul_u32_u24 v{vX}, 896, v1")
    A(f"v_add_u32 v{vX}, v{vX}, v4")
    A(f"v_lshlrev_b32 v{vL16}, 4, v0")
    A(f"s_cmp_eq_u32 s{sRB}, 7")
    A(f"s_cselect_b32 s{sC}, 0, s{sRB}")
    if opts.get("norot"):
        A(f"s_mov_b32 s{sC}, 0")
    A(f"s_lshl_b32 s{sT0}, s2, 3")
    A(f"s_add_u32 s{sT0}, s{sT0}, s{sW}")
    A(f"s_lshl_b32 s{sRPoff}, s{sT0}, 10")
    A(f"s_add_u32 s{sRPoff}, s{sRPoff}, {OFF_WD}")
    A(f"s_cmp_ge_u32 s{sCB}, 16")
    A("s_cbranch_scc1 K1_typeB")
    for typ in ("A", "B"):
        A.label(f"K1_type{typ}")
        if typ == "A":
            A("v_lshrrev_b32 v1, 3, v0")
            A("v_lshrrev_b32 v2, 4, v0")
            A("v_and_b32 v2, 1, v2")
            A("v_lshlrev_b32 v2, 2, v2")
            A("v_and_b32 v3, 7, v0")
            A("v_xor_b32 v3, v3, v2")
            A("v_and_b32 v4, 3, v3")
            A("v_lshrrev_b32 v3, 2, v3")
            A("v_lshlrev_b32 v5, 4, v4")
            A("v_cmp_eq_u32 vcc, 3, v4")
            A("v_mul_u32_u24 v3, 896, v3")
            A("v_add_u32 v3, 896, v3")
            A("v_mov_b32 v6, 40")
            A("v_cndmask_b32 v5, v5, v6, vcc")
            A(f"v_mul_u32_u24 v{vH}, 2688, v1")
            A(f"v_add3_u32 v{vH}, v{vH}, v3, v5")
            A("v_mul_u32_u24 v1, 43, v0")
            A("v_lshrrev_b32 v1, 8, v1")
            A("v_mul_u32_u24 v2, 6, v1")
            A("v_sub_u32 v2, v0, v2")
            A("v_lshlrev_b32 v2, 4, v2")
            A(f"v_mul_u32_u24 v{vG}, 3584, v1")
            A(f"v_add_u32 v{vG}, v{vG}, v2")
            A(f"s_mov_b32 s{sMaskP}, -1")
            A(f"s_mov_b32 s{sMaskP+1}, 0xffff")
            A(f"s_mul_i32 s{sT1}, s{sH}, 96")
            A(f"s_lshl_b32 s{sLh}, s{sW}, 10")
            A(f"s_add_u32 s{sLh}, s{sLh}, 32768")
            A(f"s_mul_i32 s{sLg}, s{sW}, 768")
            A(f"s_add_u32 s{sLu}, s{sLg}, 47232")
            A(f"s_add_u32 s{sLg}, s{sLg}, 40960")
        else:
            A("v_lshrrev_b32 v1, 2, v0")
            A("v_and_b32 v4, 3, v0")
            A("v_lshlrev_b32 v5, 4, v4")
            A("v_cmp_eq_u32 vcc, 3, v4")
            A("v_mov_b32 v6, 40")
            A(f"v_mul_u32_u24 v{vH}, 2688, v1")
            A("v_cndmask_b32 v5, v5, v6, vcc")
            A(f"v_add_u32 v{vH}, v{vH}, v5")
            A("v_lshrrev_b32 v1, 3, v0")
            A("v_lshrrev_b32 v2, 4, v0")
            A("v_and_b32 v2, 1, v2")
            A("v_lshlrev_b32 v2, 1, v2")
            A("v_and_b32 v3, 7, v0")
            A("v_xor_b32 v3, v3, v2")
            A("v_lshlrev_b32 v3, 4, v3")
            A(f"v_mul_u32_u24 v{vG}, 3584, v1")
            A(f"v_add_u32 v{vG}, v{vG}, v3")
            A(f"s_mov_b32 s{sMaskP}, -1")
            A(f"s_mov_b32 s{sMaskP+1}, 0")
            A(f"s_lshl_b32 s{sT1}, s{sH}, 7")
            A(f"s_add_u32 s{sT1}, s{sT1}, 1536")
            A(f"s_lshl_b32 s{sLh}, s{sW}, 9")
            A(f"s_add_u32 s{sLh}, s{sLh}, 32768")
            A(f"s_lshl_b32 s{sLg}, s{sW}, 10")
            A(f"s_add_u32 s{sLu}, s{sLg}, 45120")
            A(f"s_add_u32 s{sLg}, s{sLg}, 36864")
        A(f"s_mul_i32 s{sGbase}, s{sW}, {8*3584}")
        A(f"s_add_u32 s{sGbase}, s{sGbase}, s{sT1}")
        A(f"s_mul_i32 s{sHbase}, s{sW}, {8*2688}")
        A(f"s_mul_i32 s{sT1}, s{sH}, 56")
        A(f"s_add_u32 s{sHbase}, s{sHbase}, s{sT1}")
        A("s_waitcnt lgkmcnt(0)")
        for st in (0, 1):
            A(f"s_mov_b32 s{sT4}, {st*STAGE}")
            for u in dma_units(typ, sT4):
                A(u)
        A(f"s_lshl_b32 s{sT0}, s2, 3")
        A(f"s_add_u32 s{sT0}, s{sT0}, s{sW}")
        A(f"s_mul_i32 s{sT1}, s{sT0}, 9363")
        A(f"s_lshr_b32 s{sT1}, s{sT1}, 20")
        A(f"s_mul_i32 s{sT2}, s{sT1}, 112")
        A(f"s_sub_u32 s{sT2}, s{sT0}, s{sT2}")
        A(f"s_lshl_b32 s{sT2}, s{sT2}, 4")
        A(f"s_sub_u32 s{sT3}, s{sT0}, 1568")
        A(f"s_lshr_b32 s{sT4}, s{sT3}, 5")
        A(f"s_lshr_b32 s{sT5}, s{sT3}, 1")
        A(f"s_and_b32 s{sT5}, s{sT5}, 15")
        A(f"s_mul_i32 s{sT5}, s{sT5}, 28")
        A(f"s_and_b32 s{sKT}, s{sT3}, 1")
        A(f"s_lshl_b32 s{sK2}, s{sKT}, 4")
        A(f"s_add_u32 s{sT5}, s{sT5}, s{sK2}")
        A(f"s_cmp_lt_u32 s{sT0}, 1568")
        A(f"s_cselect_b32 s{sT1}, s{sT1}, s{sT4}")
        A(f"s_cselect_b32 s{sT2}, s{sT2}, s{sT5}")
        A(f"s_cselect_b32 s{sKT}, 0, s{sKT}")
        A(f"s_cselect_b32 s{SRD_RP}, s80, s82")
        A(f"s_cselect_b32 s{SRD_RP+1}, s81, s83")
        A(f"s_mov_b32 s{SRD_RP+2}, {WO_BYTES}")
        A(f"s_cselect_b32 s{SRD_RP+2}, {WD_BYTES}, s{SRD_RP+2}")
        A(f"s_mov_b32 s{SRD_RP+3}, 0x20000")
        A(f"s_mul_i32 s{sRProw}, s{sT2}, 896")
        A(f"s_lshl_b32 s{sT1}, s{sT1}, 6")
        A(f"s_add_u32 s{sRProw}, s{sRProw}, s{sT1}")
        A("v_and_b32 v1, 31, v0")
        A("v_lshlrev_b32 v1, 1, v1")
        A("v_lshrrev_b32 v2, 5, v0")
        A("v_mul_u32_u24 v2, 3584, v2")
        A("v_add_u32 v2, v1, v2")
        A("v_mov_b32 v3, 0x40000000")
        A(f"v_cndmask_b32_e64 v3, v1, v3, s[{sMaskLo32}:{sMaskLo32+1}]")
        A(f"s_cmp_eq_u32 s{sKT}, 1")
        A(f"s_cselect_b64 vcc, -1, 0")
        A("s_nop 1")
        A("v_cndmask_b32 v3, v2, v3, vcc")
        lrp = A.newlabel("K1_norp")
        A(f"s_cmp_ge_u32 s{sT0}, 2016")
        A(f"s_cselect_b32 s{sRPoff}, -1, s{sRPoff}")
        A(f"s_cbranch_scc1 {lrp}")
        for j in range(8):
            ro = j if j < 4 else 8 + (j - 4)
            vo = 2 if j < 4 else 3
            A(f"s_add_u32 s{sT1}, s{sRProw}, {ro*896}")
            A(f"buffer_load_ushort v{vRPL + j}, v{vo}, s[{SRD_RP}:{SRD_RP+3}], s{sT1} offen")
        A.label(lrp)
        A(f"s_mov_b32 s{sT4}, {2*STAGE}")
        for u in dma_units(typ, sT4):
            A(u)
        for r in range(96):
            A(f"v_mov_b32 v{ACC+r}, 0")
        for r in vCS:
            A(f"v_mov_b32 v{r}, 0")
        A("v_and_b32 v1, 31, v0")
        A("v_lshrrev_b32 v2, 5, v0")
        A("v_lshrrev_b32 v3, 1, v1")
        A("v_and_b32 v3, 7, v3")
        A(f"s_lshl_b32 s{sT0}, s{sWp}, 13")
        A("v_lshlrev_b32 v4, 7, v1")
        A(f"v_add_u32 v4, s{sT0}, v4")
        for t in range(4):
            A(f"s_add_u32 s{sT1}, s{sWp}, {t}")
            A(f"s_and_b32 s{sT1}, s{sT1}, 3")
            A(f"s_lshl_b32 s{sT1}, s{sT1}, 1")
            A(f"v_add_u32 v5, s{sT1}, v2")
            A(f"v_xor_b32 v5, v5, v3")
            A(f"v_lshlrev_b32 v5, 4, v5")
            A(f"v_add_u32 v{vXA[t]}, v4, v5")
        A(f"s_cmp_ge_u32 s{sW}, 4")
        A(f"s_cbranch_scc1 K1_{typ}1")
        for g in (0, 1):
            var = f"{typ}{g}"
            A.label(f"K1_{var}")
            variant(A, var, opts)
    A.label("K1_end")
    A("s_endpgm")


def w_addr_setup(A, var):
    A("v_lshrrev_b32 v1, 2, v0")
    A("v_and_b32 v1, 3, v1")
    A("v_and_b32 v2, 3, v0")
    A("v_lshrrev_b32 v3, 5, v0")
    A("v_lshrrev_b32 v4, 4, v0")
    A("v_and_b32 v4, 1, v4")
    A("v_lshlrev_b32 v5, 3, v3")
    A("v_add_u32 v5, v5, v1")
    A("v_lshrrev_b32 v6, 1, v1")
    A("v_lshlrev_b32 v7, 3, v2")
    if var == "A0":
        A("v_lshrrev_b32 v8, 1, v2")
        A("v_lshl_add_u32 v8, v4, 1, v8")
        A("v_lshlrev_b32 v9, 2, v6")
        A("v_xor_b32 v8, v8, v9")
        A("v_lshlrev_b32 v8, 4, v8")
        A("v_and_b32 v9, 1, v2")
        A("v_lshl_add_u32 v8, v9, 3, v8")
        A("v_lshl_add_u32 v8, v5, 7, v8")
        A("v_add_u32 v8, 32768, v8")
        A("v_xor_b32 v9, 64, v8")
        p0 = p1 = 128
    elif var == "A1":
        A("v_mul_u32_u24 v8, 96, v5")
        A("v_add_u32 v8, v8, v7")
        A(f"v_mul_u32_u24 v9, {47232-40960}, v4")
        A("v_add3_u32 v8, v8, v9, 0")
        A("v_add_u32 v8, 40960, v8")
        p0 = p1 = 96
    else:
        A("v_lshl_add_u32 v10, v5, 7, v7")
        A(f"v_mul_u32_u24 v9, {45120-36864}, v4")
        A("v_add_u32 v10, v10, v9")
        A("v_add_u32 v10, 36864, v10")
        A("v_lshlrev_b32 v11, 5, v6")
        if var == "B0":
            A("v_lshl_add_u32 v8, v5, 6, v7")
            A("v_lshl_add_u32 v8, v4, 5, v8")
            A("v_add_u32 v8, 32768, v8")
            A("v_add_u32 v9, v10, v11")
            p0, p1 = 64, 128
        else:
            A("v_xor_b32 v12, 32, v11")
            A("v_add_u32 v8, v10, v12")
            A("v_add_u32 v9, v10, v11")
            p0 = p1 = 128
    for t in range(4):
        A(f"s_add_u32 s{sT1}, s{sWp}, {t}")
        A(f"s_and_b32 s{sT1}, s{sT1}, 3")
        A(f"s_mul_i32 s{sT2}, s{sT1}, {16*p0}")
        A(f"v_add_u32 v{vWA0[t]}, s{sT2}, v8")
        if var != "A1":
            A(f"s_mul_i32 s{sT2}, s{sT1}, {16*p1}")
            A(f"v_add_u32 v{vWA1[t]}, s{sT2}, v9")


def slow_row_stats(A, var):
    L = A.newlabel("K1_srs")
    A(f"v_lshlrev_b32 v{vSP}, 4, v0")
    A(f"v_mov_b32 v{vSP+1}, 0x40000000")
    A(f"v_cndmask_b32_e64 v{vSP}, v{vSP+1}, v{vSP}, s[{sMask56}:{sMask56+1}]")
    A(f"s_lshl_b32 s{sT0}, s{sRB}, 8")
    A(f"s_lshl_b32 s{sT1}, s{sW}, 5")
    A(f"s_add_u32 s{sT0}, s{sT0}, s{sT1}")
    A(f"s_mul_i32 s{sT0}, s{sT0}, 896")
    A(f"s_lshl_b32 s{sT1}, s{sW}, 7")
    A(f"s_add_u32 s{sT1}, s{sT1}, {M_OFF}")
    A(f"s_mov_b32 s{sT2}, 0")
    A.label(L)
    A(f"buffer_load_dwordx4 {vr(vSP+4,4)}, v{vSP}, s[{SRD_X}:{SRD_X+3}], s{sT0} offen")
    A("s_waitcnt vmcnt(0)")
    row_stats(A, vSP + 4, vSP + 2, vSP + 3, list(range(vSP + 8, vSP + 18)))
    A(f"v_mov_b32 v{vSP+8}, s{sT1}")
    A(f"ds_write_b32 v{vSP+8}, v{vSP+2}")
    A(f"ds_write_b32 v{vSP+8}, v{vSP+3} offset:1024")
    A(f"s_add_u32 s{sT0}, s{sT0}, 896")
    A(f"s_add_u32 s{sT1}, s{sT1}, 4")
    A(f"s_add_u32 s{sT2}, s{sT2}, 1")
    A(f"s_cmp_lt_u32 s{sT2}, 32")
    A(f"s_cbranch_scc1 {L}")


def variant(A, var, opts):
    typ, grp, tiles = VARIANTS[var]
    stamps = opts.get("stamps", 0)
    nt = len(tiles)
    nreg = 1 if var == "A1" else 2
    w_addr_setup(A, var)
    A(f"s_mov_b32 s{sI}, 0")
    A(f"s_mov_b32 s{sRS}, 0")
    lsk = A.newlabel("K1_w0")
    A(f"s_cmp_eq_u32 s{sRPoff}, -1")
    A(f"s_cbranch_scc0 {lsk}")
    A("s_waitcnt vmcnt(14)")
    A.label(lsk)
    A("s_waitcnt vmcnt(22)")
    A("s_barrier")
    if stamps:
        A(f"s_memrealtime s[{sSt2}:{sSt2+1}]")
    for s in reads(var, 0, 0):
        A(s)
    Lloop = f"K1_{var}_loop"
    A.label(Lloop)
    for t in range(3):
        A("s_waitcnt lgkmcnt(0)")
        fill = reads(var, t + 1, (t + 1) & 1)
        if (grp == 0 and t == 0) or (grp == 1 and t == 2):
            fill = fill + duty(var, t & 1)
        for s in interleave(mfmas(var, t & 1), fill):
            A(s)
    Lpre = f"K1_{var}_pre"
    Lpre_ret = f"K1_{var}_pre_ret"
    A("s_waitcnt lgkmcnt(0)")
    A("s_waitcnt vmcnt(7)")
    A(f"s_cmp_ge_u32 s{sI}, 5")
    A(f"s_cbranch_scc1 {Lpre}")
    A.label(Lpre_ret)
    A("s_barrier")
    A(f"s_add_u32 s{sNext}, s{sRS}, {STAGE}")
    A(f"s_cmp_eq_u32 s{sNext}, {3*STAGE}")
    A(f"s_cselect_b32 s{sDelta}, {-2*STAGE}, s{sStg}")
    A(f"s_cselect_b32 s{sNext}, 0, s{sNext}")
    upd0 = [f"v_add_u32 v{vXA[0]}, s{sDelta}, v{vXA[0]}", f"v_add_u32 v{vWA0[0]}, s{sDelta}, v{vWA0[0]}"]
    if nreg == 2:
        upd0.append(f"v_add_u32 v{vWA1[0]}, s{sDelta}, v{vWA1[0]}")
    for s in upd0:
        A(s)
    upd = []
    for t in range(1, 4):
        upd.append(f"v_add_u32 v{vXA[t]}, s{sDelta}, v{vXA[t]}")
        upd.append(f"v_add_u32 v{vWA0[t]}, s{sDelta}, v{vWA0[t]}")
        if nreg == 2:
            upd.append(f"v_add_u32 v{vWA1[t]}, s{sDelta}, v{vWA1[t]}")
    Lpost = f"K1_{var}_post"
    Lpost_ret = f"K1_{var}_post_ret"
    Lt3_nodma = f"K1_{var}_t3n"
    Lt3_done = f"K1_{var}_t3d"
    A(f"s_cmp_eq_u32 s{sI}, 0")
    A(f"s_cbranch_scc1 {Lpost}")
    A(f"s_cmp_ge_u32 s{sI}, 4")
    A(f"s_cbranch_scc1 {Lpost}")
    A.label(Lpost_ret)
    fill = reads(var, 0, 0) + upd + dma_units(typ, sRS)
    for s in interleave(mfmas(var, 1), fill):
        A(s)
    A.label(Lt3_done)
    A(f"s_mov_b32 s{sRS}, s{sNext}")
    A(f"s_add_u32 s{sI}, s{sI}, 1")
    A(f"s_cmp_lt_u32 s{sI}, 7")
    A(f"s_cbranch_scc1 {Lloop}")
    A(f"s_branch K1_{var}_epi")
    A.label(Lt3_nodma)
    fill = reads(var, 0, 0) + upd
    for s in interleave(mfmas(var, 1), fill):
        A(s)
    A(f"s_branch {Lt3_done}")
    A.label(Lpre)
    A("s_waitcnt vmcnt(0)")
    A(f"s_cmp_eq_u32 s{sI}, 6")
    A(f"s_cbranch_scc0 {Lpre_ret}")
    for j in range(nt):
        A(f"v_add_f32 v{vCS[2*j]}, v{vCS[2*j]}, v{vCS[2*j+1]}")
    for j in range(nt):
        A(f"v_mov_b32 v{vCS[2*j+1]}, v{vCS[2*j]}")
    A("s_nop 1")
    for j in range(nt):
        A(f"v_permlane32_swap_b32 v{vCS[2*j]}, v{vCS[2*j+1]}")
    A("s_nop 1")
    for j in range(nt):
        A(f"v_add_f32 v{vCS[2*j]}, v{vCS[2*j]}, v{vCS[2*j+1]}")
    jb = 0 if grp == 0 else 2
    A("v_and_b32 v1, 31, v0")
    A("v_lshlrev_b32 v1, 2, v1")
    A(f"s_mul_i32 s{sT0}, s{sWp}, 640")
    A(f"s_add_u32 s{sT0}, s{sT0}, {SP_OFF + jb*128}")
    A(f"v_add_u32 v1, s{sT0}, v1")
    for j in range(nt):
        A(f"ds_write_b32 v1, v{vCS[2*j]} offset:{j*128}")
    A("s_waitcnt lgkmcnt(0)")
    A(f"s_branch {Lpre_ret}")
    A.label(Lpost)
    Lp4 = A.newlabel("K1_p4")
    Lp6 = A.newlabel("K1_p6")
    A(f"s_cmp_eq_u32 s{sI}, 0")
    A(f"s_cbranch_scc0 {Lp4}")
    A(f"s_cmp_eq_u32 s{sRPoff}, -1")
    A(f"s_cbranch_scc1 {Lpost_ret}")
    for j in range(4):
        A(f"v_lshl_or_b32 v{vRP+j}, v{vRPL+2*j+1}, 16, v{vRPL+2*j}")
    A(f"buffer_store_dwordx4 {vr(vRP,4)}, v{vL16}, s[{SRD_WS}:{SRD_WS+3}], s{sRPoff} offen sc1")
    A(f"s_branch {Lpost_ret}")
    A.label(Lp4)
    A(f"s_cmp_eq_u32 s{sI}, 4")
    A(f"s_cbranch_scc0 {Lp6}")
    slow_row_stats(A, var)
    A(f"s_branch {Lt3_nodma}")
    A.label(Lp6)
    A(f"s_cmp_eq_u32 s{sI}, 6")
    A(f"s_cbranch_scc0 {Lt3_nodma}")
    vM = vSP
    vS = vSP + 2
    vR = vSP + 16
    A("v_and_b32 v1, 31, v0")
    A("v_lshlrev_b32 v1, 2, v1")
    A(f"s_lshl_b32 s{sT0}, s{sWp}, 8")
    A(f"s_add_u32 s{sT0}, s{sT0}, {M_OFF}")
    A(f"v_add_u32 v2, s{sT0}, v1")
    A(f"ds_read_b32 v{vM}, v2")
    A(f"ds_read_b32 v{vM+1}, v2 offset:128")
    A(f"v_add_u32 v3, {SP_OFF + jb*128}, v1")
    for j in range(nt):
        for p in range(4):
            A(f"ds_read_b32 v{vS+4*j+p}, v3 offset:{j*128 + p*640}")
    if var == "A0":
        A("v_lshrrev_b32 v4, 5, v0")
        A("v_lshlrev_b32 v4, 4, v4")
        A(f"v_add_u32 v4, s{sT0}, v4")
        for a in range(2):
            for j in range(4):
                A(f"ds_read_b128 {vr(vR+16*a+4*j,4)}, v4 offset:{1024 + a*128 + j*32}")
    else:
        A(f"ds_read_b32 v{vR}, v2 offset:1024")
        A(f"ds_read_b32 v{vR+1}, v2 offset:{1024+128}")
    A(f"s_branch {Lt3_nodma}")

    A.label(f"K1_{var}_epi")
    if stamps:
        A(f"s_memrealtime s[{sSt2+2}:{sSt2+3}]")
    A("s_waitcnt lgkmcnt(0)")
    XC = FB[0]
    WC = FB[0] + 8
    for a in range(2):
        m = vM + a
        A(f"v_sub_f32 v{m}, 0, v{m}")
        A(f"v_cndmask_b32_e64 v{m}, 0, v{m}, s[{sMaskLo32}:{sMaskLo32+1}]")
    for a in range(2):
        m = vM + a
        A(f"v_cvt_pk_bf16_f32 v{XC+4*a+1}, v{m}, 0")
    for a in range(2):
        A(f"v_lshlrev_b32 v{1+a}, 16, v{XC+4*a+1}")
    for a in range(2):
        A(f"v_sub_f32 v{1+a}, v{vM+a}, v{1+a}")
    for a in range(2):
        A(f"v_cvt_pk_bf16_f32 v{XC+4*a}, v{vM+a}, v{1+a}")
        A(f"v_mov_b32 v{XC+4*a+2}, 0")
        A(f"v_mov_b32 v{XC+4*a+3}, 0")
    for j in range(nt):
        s = vS + 4 * j
        A(f"v_add_f32 v{s}, v{s}, v{s+1}")
        A(f"v_add_f32 v{s+2}, v{s+2}, v{s+3}")
    for j in range(nt):
        s = vS + 4 * j
        A(f"v_add_f32 v{s}, v{s}, v{s+2}")
    for j in range(nt):
        s = vS + 4 * j
        A(f"v_cvt_pk_bf16_f32 v{WC+4*j}, v{s}, v{s}")
    for j in range(nt):
        s = vS + 4 * j
        A(f"v_lshlrev_b32 v{s+1}, 16, v{WC+4*j}")
    for j in range(nt):
        s = vS + 4 * j
        A(f"v_sub_f32 v{s+1}, v{s}, v{s+1}")
    for j in range(nt):
        s = vS + 4 * j
        A(f"v_cvt_pk_bf16_f32 v{WC+4*j+1}, v{s+1}, 0")
        A(f"v_mov_b32 v{WC+4*j+2}, 0")
        A(f"v_mov_b32 v{WC+4*j+3}, 0")
    A("s_nop 1")
    if not opts.get("nocorr"):
        for s in mfmas(var, 0):
            A(s)
    A(f"s_lshl_b32 s{sT0}, s{sRB}, 3")
    A(f"s_lshl_b32 s{sT1}, s{sWp}, 1")
    A(f"s_add_u32 s{sT0}, s{sT0}, s{sT1}")
    T = list(range(FB[1], FB[1] + 20)) + list(range(120, 160))

    def ffn_tile(j, ftexpr_sgpr):
        for a in range(2):
            d = acc(j, a)
            P = T[24 + 4 * ((j * 2 + a) % 6):][:4]
            tmp = T[:8]
            for r in range(8):
                A(f"v_max_f32 v{tmp[r]}, 0, v{d+r}")
            for r in range(8):
                A(f"v_mul_f32 v{d+8+r}, v{d+8+r}, v{vR+a}")
            for r in range(8):
                A(f"v_mul_f32 v{tmp[r]}, v{tmp[r]}, v{d+8+r}")
            for r in range(4):
                A(f"v_cvt_pk_bf16_f32 v{P[r]}, v{tmp[2*r]}, v{tmp[2*r+1]}")
            A(f"s_add_u32 s{sT2}, s{sT0}, {a}")
            A(f"s_mul_i32 s{sT2}, s{sT2}, 112")
            A(f"s_add_u32 s{sT2}, s{sT2}, s{ftexpr_sgpr}")
            A(f"s_lshl_b32 s{sT2}, s{sT2}, 10")
            if OFF_H:
                A(f"s_add_u32 s{sT2}, s{sT2}, {OFF_H}")
            A(f"buffer_store_dwordx4 {vr(P[0],4)}, v{vL16}, s[{SRD_WS}:{SRD_WS+3}], s{sT2} offen sc1")

    def phi16(d, rs, out8):
        for half in range(2):
            t1 = T[0:8]
            t2 = T[8:16]
            for r in range(8):
                A(f"v_mul_f32 v{t1[r]}, v{d+8*half+r}, v{rs[8*half+r]}")
            for r in range(8):
                A(f"v_mul_f32 v{t2[r]}, s{sLog2e}, v{t1[r]}")
            for r in range(8):
                A(f"v_exp_f32_e64 v{t2[r]}, v{t2[r]} clamp")
            for r in range(8):
                A(f"v_max_f32 v{t1[r]}, 0, v{t1[r]}")
            for r in range(8):
                A(f"v_add_f32 v{t1[r]}, v{t1[r]}, v{t2[r]}")
            for r in range(8):
                A(f"v_add_f32 v{t1[r]}, s{sEps6}, v{t1[r]}")
            yield half, t1

    A("s_nop 7")
    A("s_nop 7")
    if var == "A0":
        PK = FB[0]
        PV = 136
        vOne = 152
        T = list(range(FB[1], FB[1] + 20))
        A(f"v_mov_b32 v{vOne}, 0x3f803f80")
        for a in range(2):
            rs = [vR + 16 * a + r for r in range(16)]
            for half, t1 in phi16(acc(0, a), rs, None):
                for r in range(4):
                    A(f"v_cvt_pk_bf16_f32 v{PK+8*a+4*half+r}, v{t1[2*r]}, v{t1[2*r+1]}")
            d = acc(1, a)
            for r in range(16):
                A(f"v_mul_f32 v{d+r}, v{d+r}, v{rs[r]}")
            for r in range(8):
                A(f"v_cvt_pk_bf16_f32 v{PV+8*a+r}, v{d+2*r}, v{d+2*r+1}")
            for r in range(8):
                A(f"v_cndmask_b32_e64 v{PV+8*a+r}, v{PV+8*a+r}, v{vOne}, s[{sMask24}:{sMask24+1}]")
        KV = acc(0, 0)
        A("s_nop 1")
        for a in range(2):
            for t in range(2):
                c = "0" if (a == 0 and t == 0) else vr(KV, 16)
                A(f"v_mfma_f32_32x32x16_bf16 {vr(KV,16)}, {vr(PK+8*a+4*t,4)}, {vr(PV+8*a+4*t,4)}, {c}")
        A(f"s_lshl_b32 s{sT1}, s{sWp}, 12")
        A(f"s_add_u32 s{sT1}, s{sT1}, {S2}")
        A(f"v_add_u32 v1, s{sT1}, v{vL16}")
        A("s_nop 7")
        A("s_nop 3")
        for q in range(4):
            A(f"ds_write_b128 v1, {vr(KV+4*q,4)} offset:{q*1024}")
        A("s_waitcnt lgkmcnt(0)")
        A("s_barrier")
        A(f"s_lshl_b32 s{sT1}, s{sWp}, 10")
        A(f"s_add_u32 s{sT1}, s{sT1}, {S2}")
        A(f"v_add_u32 v1, s{sT1}, v{vL16}")
        for p in range(4):
            A(f"ds_read_b128 {vr(FB[0]+4*p,4)}, v1 offset:{p*4096}")
        A("s_waitcnt lgkmcnt(0)")
        for r in range(4):
            A(f"v_add_f32 v{FB[0]+r}, v{FB[0]+r}, v{FB[0]+4+r}")
            A(f"v_add_f32 v{FB[0]+8+r}, v{FB[0]+8+r}, v{FB[0]+12+r}")
        for r in range(4):
            A(f"v_add_f32 v{FB[0]+r}, v{FB[0]+r}, v{FB[0]+8+r}")
        A(f"s_lshl_b32 s{sT2}, s{sH}, 3")
        A(f"s_add_u32 s{sT2}, s{sT2}, s{sRB}")
        A(f"s_lshl_b32 s{sT2}, s{sT2}, 12")
        A(f"s_lshl_b32 s{sT3}, s{sWp}, 10")
        A(f"s_add_u32 s{sT2}, s{sT2}, s{sT3}")
        A(f"s_add_u32 s{sT2}, s{sT2}, {OFF_KVP}")
        A(f"buffer_store_dwordx4 {vr(FB[0],4)}, v{vL16}, s[{SRD_WS}:{SRD_WS+3}], s{sT2} offen sc1")
    else:
        if var == "B0":
            PQ = 120
            T = list(range(FB[1], FB[1] + 20)) + list(range(136, 160)) + list(range(136, 160))
            for a in range(2):
                rs = [vR + a] * 16
                for half, t1 in phi16(acc(0, a), rs, None):
                    if half == 1:
                        for r in range(4, 8):
                            A(f"v_cndmask_b32_e64 v{t1[r]}, v{t1[r]}, 0, s[{sMaskLo32}:{sMaskLo32+1}]")
                    for r in range(4):
                        A(f"v_cvt_pk_bf16_f32 v{PQ+8*a+4*half+r}, v{t1[2*r]}, v{t1[2*r+1]}")
                A(f"s_add_u32 s{sT2}, s{sT0}, {a}")
                A(f"s_lshl_b32 s{sT2}, s{sT2}, 4")
                A(f"s_add_u32 s{sT2}, s{sT2}, s{sH}")
                A(f"s_lshl_b32 s{sT2}, s{sT2}, 11")
                A(f"s_add_u32 s{sT2}, s{sT2}, {OFF_PQ}")
                A(f"buffer_store_dwordx4 {vr(PQ+8*a,4)}, v{vL16}, s[{SRD_WS}:{SRD_WS+3}], s{sT2} offen sc1")
                A(f"s_add_u32 s{sT2}, s{sT2}, 1024")
                A(f"buffer_store_dwordx4 {vr(PQ+8*a+4,4)}, v{vL16}, s[{SRD_WS}:{SRD_WS+3}], s{sT2} offen sc1")
        else:
            T = list(range(FB[1], FB[1] + 20)) + list(range(120, 160))
        A(f"v_mul_f32 v{vR}, v{vR}, v{vR}")
        A(f"v_mul_f32 v{vR+1}, v{vR+1}, v{vR+1}")
        if var == "B0":
            T = list(range(FB[1], FB[1] + 20)) + list(range(136, 160)) + [140, 141, 142, 143] * 4
        for j, kind in enumerate(tiles):
            if kind != "f":
                continue
            if typ == "A":
                A(f"s_mul_i32 s{sT3}, s{sH}, 3")
                A(f"s_add_u32 s{sT3}, s{sT3}, {j}")
            else:
                jj = 0 if grp == 0 else j + 1
                A(f"s_lshl_b32 s{sT3}, s{sH}, 2")
                A(f"s_add_u32 s{sT3}, s{sT3}, {48 + jj}")
            ffn_tile(j, sT3)
    if var == "A1":
        A("s_barrier")
    if stamps and var in ("A0", "B0"):
        L = A.newlabel("K1_st")
        A(f"s_cmp_lg_u32 s{sW}, 0")
        A(f"s_cbranch_scc1 {L}")
        A("s_waitcnt vmcnt(0)")
        A(f"s_memrealtime s[{sK2}:{sK2+1}]")
        A("s_waitcnt lgkmcnt(0)")
        A(f"v_mov_b32 v4, s{sSt0}")
        A(f"v_mov_b32 v5, s{sSt0+1}")
        A(f"v_mov_b32 v6, s{sK2}")
        A(f"v_mov_b32 v7, s{sK2+1}")
        A(f"s_lshl_b32 s{sT2}, s2, 4")
        A(f"s_add_u32 s{sT2}, s{sT2}, {OFF_STAMP}")
        A("v_mov_b32 v1, 0")
        A(f"buffer_store_dwordx4 v[4:7], v1, s[{SRD_WS}:{SRD_WS+3}], s{sT2} offen")
        A(f"v_mov_b32 v8, s{sSt2}")
        A(f"v_mov_b32 v9, s{sSt2+1}")
        A(f"v_mov_b32 v10, s{sSt2+2}")
        A(f"v_mov_b32 v11, s{sSt2+3}")
        A(f"s_add_u32 s{sT2}, s{sT2}, {2*65536}")
        A(f"buffer_store_dwordx4 v[8:11], v1, s[{SRD_WS}:{SRD_WS+3}], s{sT2} offen")
        A.label(L)
    A("s_endpgm")
```

```python
from gen_common import *

LDS_BYTES = 4 * 64 * 272
NVGPR = 512
ACCOFF = 256
NSGPR = 64

SRD_WS, SRD_X, SRD_O, SRD_DBG = 4, 8, 12, 16
sW, sRB, sCB = 20, 21, 22
sH0, sH1, sW0, sW1 = 24, 25, 26, 27
sP0, sP1, sO0, sO1 = 28, 29, 30, 31
sKV = 32
sReady = 33
sT0, sT1, sT2, sT3 = 34, 35, 36, 37
sEps6 = 38
sXo = 39
sSt0 = 40
sHi = 48

vL16 = 1
vFl = 4
vXres = 8
vKV = 16
vD = 48
vOP = 112
vTmp = 128
ACC = 192
D = 8
A_RING = 0
A_PQ = 128
A_WO = 192
EPS6 = 0x358637BD


def accr(ci, ri):
    return ACC + (ci * 2 + ri) * 16


def emit(A, opts):
    stamps = opts.get("stamps", 0)
    PATT = opts.get("patt", 24)
    forceslow = opts.get("k2slow", 0)
    A("s_cmp_ge_u32 s2, 256")
    A("s_cbranch_scc1 K2_end")
    if stamps:
        A(f"s_memrealtime s[{sSt0}:{sSt0+1}]")
    A(f"s_load_dwordx2 s[{SRD_WS}:{SRD_WS+1}], s[0:1], 72")
    A(f"s_load_dwordx2 s[{SRD_X}:{SRD_X+1}], s[0:1], 0")
    A(f"s_load_dwordx2 s[{SRD_O}:{SRD_O+1}], s[0:1], 56")
    A(f"s_load_dwordx2 s[{SRD_DBG}:{SRD_DBG+1}], s[0:1], 64")
    A("v_lshrrev_b32 v2, 6, v0")
    A("v_and_b32 v3, 63, v0")
    A(f"v_readfirstlane_b32 s{sW}, v2")
    A(f"v_lshlrev_b32 v{vL16}, 4, v3")
    for srd, nb in ((SRD_WS, WS_BYTES if not stamps else 0x10000000), (SRD_X, X_BYTES), (SRD_O, X_BYTES), (SRD_DBG, 256)):
        A(f"s_mov_b32 s{srd+2}, {nb}")
        A(f"s_mov_b32 s{srd+3}, 0x20000")
    A(f"s_mov_b32 s{sEps6}, 0x{EPS6:x}")
    A(f"s_mov_b32 s{sHi}, 0xffff0000")
    A(f"s_and_b32 s{sT0}, s2, 7")
    A(f"s_lshr_b32 s{sT1}, s2, 3")
    A(f"s_cmp_lt_u32 s{sT1}, 4")
    A("s_cbranch_scc1 K2_helper")
    A(f"s_sub_u32 s{sT1}, s{sT1}, 4")
    A(f"s_mul_i32 s{sT2}, s{sT1}, 37")
    A(f"s_lshr_b32 s{sT2}, s{sT2}, 8")
    A(f"s_mul_i32 s{sT3}, s{sT2}, 7")
    A(f"s_sub_u32 s{sCB}, s{sT1}, s{sT3}")
    A(f"s_lshl_b32 s{sRB}, s{sT0}, 2")
    A(f"s_add_u32 s{sRB}, s{sRB}, s{sT2}")
    A(f"s_mul_i32 s{sT0}, s{sW}, {28*1024}")
    A(f"s_mul_i32 s{sH0}, s{sRB}, {2*112*1024}")
    A(f"s_add_u32 s{sH0}, s{sH0}, s{sT0}")
    if OFF_H:
        A(f"s_add_u32 s{sH0}, s{sH0}, {OFF_H}")
    A(f"s_add_u32 s{sH1}, s{sH0}, {112*1024}")
    A(f"s_mul_i32 s{sW0}, s{sCB}, {2*112*1024}")
    A(f"s_add_u32 s{sW0}, s{sW0}, s{sT0}")
    A(f"s_add_u32 s{sW0}, s{sW0}, {OFF_WD}")
    A(f"s_add_u32 s{sW1}, s{sW0}, {112*1024}")
    A(f"s_lshl_b32 s{sT0}, s{sW}, 13")
    A(f"s_lshl_b32 s{sP0}, s{sRB}, 16")
    A(f"s_add_u32 s{sP0}, s{sP0}, s{sT0}")
    A(f"s_add_u32 s{sP0}, s{sP0}, {OFF_PQ}")
    A(f"s_add_u32 s{sP1}, s{sP0}, 32768")
    A(f"s_lshl_b32 s{sO0}, s{sCB}, 16")
    A(f"s_add_u32 s{sO0}, s{sO0}, s{sT0}")
    A(f"s_add_u32 s{sO0}, s{sO0}, {OFF_WO}")
    A(f"s_add_u32 s{sO1}, s{sO0}, 32768")
    A(f"s_add_u32 s{sKV}, s{sT0}, {OFF_KVF}")
    A(f"s_mov_b32 s{sReady}, 0")
    A("s_waitcnt lgkmcnt(0)")

    seq = [("f", k) for k in range(PATT)] + [("a", v) for v in range(8)] + [("f", k) for k in range(PATT, 28)]
    NPOS = len(seq)
    issued = []

    def issue_group(q):
        kind, k = seq[q]
        if kind == "f":
            base = A_RING + (k % D) * 16
            off = (k % 4) * 1024
            if k % 4 == 0 and k > 0:
                for s in (sH0, sH1, sW0, sW1):
                    A(f"s_add_u32 s{s}, s{s}, 4096")
            for j, s in enumerate((sW0, sH0, sH1, sW1)):
                A(f"buffer_load_dwordx4 {ar(base+4*j,4)}, v{vL16}, s[{SRD_WS}:{SRD_WS+3}], s{s} offen offset:{off}")
                issued.append((q, j))
        else:
            hh, t = k >> 1, k & 1
            off = (k % 4) * 1024
            if k == 4:
                for s in (sP0, sP1, sO0, sO1):
                    A(f"s_add_u32 s{s}, s{s}, 4096")
            pq = A_PQ + (hh * 2 + t) * 8
            wo = A_WO + (hh * 2 + t) * 8
            for j, (dst, s) in enumerate(((pq, sP0), (pq + 4, sP1), (wo, sO0), (wo + 4, sO1))):
                A(f"buffer_load_dwordx4 {ar(dst,4)}, v{vL16}, s[{SRD_WS}:{SRD_WS+3}], s{s} offen offset:{off}")
                issued.append((q, j))

    def wait_for(q, j):
        idx = issued.index((q, j))
        n = len(issued) - 1 - idx
        A(f"s_waitcnt vmcnt({min(63, n)})")

    def kvf_loads():
        A(f"s_add_u32 s{sT0}, s{sKV}, 4096")
        for i in range(8):
            s = sKV if i < 4 else sT0
            A(f"buffer_load_dwordx4 {vr(vKV+4*i,4)}, v{vL16}, s[{SRD_WS}:{SRD_WS+3}], s{s} offen offset:{(i%4)*1024} sc1")

    def check_flags(label_fail):
        A(f"v_and_b32 v{vFl}, v{vFl}, v{vFl+1}")
        A(f"v_and_b32 v{vFl+2}, v{vFl+2}, v{vFl+3}")
        A(f"v_and_b32 v{vFl}, v{vFl}, v{vFl+2}")
        A("s_nop 0")
        A(f"v_readfirstlane_b32 s{sT1}, v{vFl}")
        A(f"s_cmp_eq_u32 s{sT1}, 1")
        A(f"s_cbranch_scc0 {label_fail}")

    def poll_load():
        A(f"s_lshl_b32 s{sT1}, s{sW}, 4")
        A(f"v_mov_b32 v2, 0")
        A(f"buffer_load_dwordx4 {vr(vFl,4)}, v2, s[{SRD_DBG}:{SRD_DBG+3}], s{sT1} offen sc1")

    A("v_lshrrev_b32 v2, 2, v0")
    A("v_mul_u32_u24 v2, 896, v2")
    A("v_and_b32 v3, 3, v0")
    A("v_lshl_add_u32 v3, v3, 5, v2")
    A(f"s_mul_i32 s{sXo}, s{sRB}, {64*896}")
    A(f"s_lshl_b32 s{sT0}, s{sCB}, 7")
    A(f"s_add_u32 s{sXo}, s{sXo}, s{sT0}")

    for q in range(min(D, NPOS)):
        issue_group(q)
    for r in range(64):
        A(f"v_mov_b32 v{ACC+r}, 0")

    first_use = PATT + 1
    QC = opts.get("qc", first_use - D)
    PP = opts.get("ppoll", QC - D)
    assert PP >= 0
    att_done = set()

    def att_kv(hh):
        Db = vD + (hh & 1) * 32
        for ri in range(2):
            for t in range(2):
                a = vr(vKV + (hh * 2 + t) * 4, 4)
                b = ar(A_PQ + (hh * 2 + t) * 8 + 4 * ri, 4)
                c = "0" if t == 0 else vr(Db + 16 * ri, 16)
                A(f"v_mfma_f32_32x32x16_bf16 {vr(Db+16*ri,16)}, {a}, {b}, {c}")

    def att_norm(hh):
        Db = vD + (hh & 1) * 32
        for ri in range(2):
            d = Db + 16 * ri
            t0, t1 = vTmp + 2 * ri, vTmp + 2 * ri + 1
            A(f"v_mov_b32 v{t0}, v{d+12}")
            A(f"v_mov_b32 v{t1}, v{d+12}")
        A("s_nop 1")
        for ri in range(2):
            t0, t1 = vTmp + 2 * ri, vTmp + 2 * ri + 1
            A(f"v_permlane32_swap_b32 v{t0}, v{t1}")
        A("s_nop 1")
        for ri in range(2):
            t0 = vTmp + 2 * ri
            A(f"v_add_f32 v{t0}, s{sEps6}, v{t0}")
        for ri in range(2):
            t0 = vTmp + 2 * ri
            A(f"v_rcp_f32 v{t0}, v{t0}")
        A("s_nop 0")
        for ri in range(2):
            d = Db + 16 * ri
            t0 = vTmp + 2 * ri
            for r in range(16):
                A(f"v_mul_f32 v{d+r}, v{d+r}, v{t0}")
            for r in range(8):
                A(f"v_cvt_pk_bf16_f32 v{vOP+8*ri+r}, v{d+2*r}, v{d+2*r+1}")
        A("s_nop 1")

    def att_wo(hh):
        for t in range(2):
            for ci in range(2):
                for ri in range(2):
                    a = ar(A_WO + (hh * 2 + t) * 8 + 4 * ci, 4)
                    b = vr(vOP + 8 * ri + 4 * t, 4)
                    d = accr(ci, ri)
                    A(f"v_mfma_f32_32x32x16_bf16 {vr(d,16)}, {a}, {b}, {vr(d,16)}")

    first_att = True
    for q in range(NPOS):
        kind, k = seq[q]
        if q == QC:
            A(f"s_waitcnt vmcnt({min(63, len(issued) - 1 - issued.index('poll'))})")
            lab = A.newlabel("K2_nf")
            if not forceslow:
                check_flags(lab)
                A(f"s_mov_b32 s{sReady}, 1")
            A.label(lab)
            kvf_loads()
            for i in range(8):
                issued.append(("kvf", i))
        if kind == "f":
            base = A_RING + (k % D) * 16
            w0, h0, h1, w1 = base, base + 4, base + 8, base + 12
            wait_for(q, 1)
            A(f"v_mfma_f32_32x32x16_bf16 {vr(accr(0,0),16)}, {ar(w0,4)}, {ar(h0,4)}, {vr(accr(0,0),16)}")
            wait_for(q, 2)
            A(f"v_mfma_f32_32x32x16_bf16 {vr(accr(0,1),16)}, {ar(w0,4)}, {ar(h1,4)}, {vr(accr(0,1),16)}")
            wait_for(q, 3)
            A(f"v_mfma_f32_32x32x16_bf16 {vr(accr(1,0),16)}, {ar(w1,4)}, {ar(h0,4)}, {vr(accr(1,0),16)}")
            A(f"v_mfma_f32_32x32x16_bf16 {vr(accr(1,1),16)}, {ar(w1,4)}, {ar(h1,4)}, {vr(accr(1,1),16)}")
            if q == 0 and stamps:
                A(f"s_memrealtime s[{sSt0+4}:{sSt0+5}]")
        else:
            hh, t = k >> 1, k & 1
            if t == 1:
                if first_att:
                    first_att = False
                    lok = A.newlabel("K2_kvok")
                    A(f"s_cmp_eq_u32 s{sReady}, 1")
                    A(f"s_cbranch_scc0 K2_slow")
                    A.label("K2_slow_ret")
                    A(f"s_waitcnt vmcnt({min(63, len(issued) - 1 - issued.index(('kvf', 7)))})")
                wait_for(q, 3)
                att_kv(hh)
                if hh > 0:
                    att_norm(hh - 1)
                    att_wo(hh - 1)
                if hh == 3:
                    A("s_nop 7")
                    A("s_nop 3")
                    att_norm(3)
                    att_wo(3)
        nq = q + D
        if nq < NPOS:
            if q == PP:
                poll_load()
                issued.append("poll")
            issue_group(nq)
        if q == NPOS - D - 1 or (q == 0 and NPOS - D - 1 < 0):
            A(f"buffer_load_dwordx4 {vr(vXres,4)}, v3, s[{SRD_X}:{SRD_X+3}], s{sXo} offen")
            A(f"buffer_load_dwordx4 {vr(vXres+4,4)}, v3, s[{SRD_X}:{SRD_X+3}], s{sXo} offen offset:16")
            issued.append(("x", 0)); issued.append(("x", 1))
    if stamps:
        A(f"s_memrealtime s[{sSt0+6}:{sSt0+7}]")
    A("v_and_b32 v4, 31, v0")
    A("v_mul_u32_u24 v4, 272, v4")
    A("v_lshrrev_b32 v5, 5, v0")
    A("v_and_b32 v5, 1, v5")
    A("v_lshl_add_u32 v4, v5, 4, v4")
    A(f"s_mul_i32 s{sT0}, s{sW}, {64*272}")
    A(f"v_add_u32 v4, s{sT0}, v4")
    A("s_nop 7")
    A("s_nop 3")
    for ri in range(2):
        for ci in range(2):
            d = accr(ci, ri)
            for j in range(4):
                A(f"ds_write_b128 v4, {vr(d+4*j,4)} offset:{ri*32*272 + ci*128 + j*32}")
    A("v_lshrrev_b32 v5, 2, v0")
    A("v_mul_u32_u24 v5, 272, v5")
    A("v_and_b32 v6, 3, v0")
    A("v_lshl_add_u32 v5, v6, 6, v5")
    A("s_waitcnt lgkmcnt(0)")
    A("s_barrier")
    R = 128
    for p in range(4):
        for i in range(4):
            A(f"ds_read_b128 {vr(R+16*p+4*i,4)}, v5 offset:{p*64*272 + i*16}")
    A("s_waitcnt vmcnt(0)")
    for i in range(8):
        A(f"v_lshlrev_b32 v{16+2*i}, 16, v{vXres+i}")
        A(f"v_and_b32 v{17+2*i}, s{sHi}, v{vXres+i}")
    A("s_waitcnt lgkmcnt(0)")
    for r in range(16):
        A(f"v_add_f32 v{R+r}, v{R+r}, v{R+16+r}")
        A(f"v_add_f32 v{R+32+r}, v{R+32+r}, v{R+48+r}")
    for r in range(16):
        A(f"v_add_f32 v{R+r}, v{R+r}, v{R+32+r}")
    for r in range(16):
        A(f"v_add_f32 v{R+r}, v{R+r}, v{16+r}")
    for r in range(8):
        A(f"v_cvt_pk_bf16_f32 v{32+r}, v{R+2*r}, v{R+2*r+1}")
    A(f"buffer_store_dwordx4 v[32:35], v3, s[{SRD_O}:{SRD_O+3}], s{sXo} offen")
    A(f"buffer_store_dwordx4 v[36:39], v3, s[{SRD_O}:{SRD_O+3}], s{sXo} offen offset:16")
    if stamps:
        L = A.newlabel("K2_st")
        A(f"s_cmp_lg_u32 s{sW}, 0")
        A(f"s_cbranch_scc1 {L}")
        A("s_waitcnt vmcnt(0)")
        A(f"s_memrealtime s[{sSt0+2}:{sSt0+3}]")
        A("s_waitcnt lgkmcnt(0)")
        for i in range(8):
            A(f"v_mov_b32 v{4+i}, s{sSt0+i}")
        A(f"s_lshl_b32 s{sT2}, s2, 4")
        A(f"s_add_u32 s{sT2}, s{sT2}, {OFF_STAMP + 65536}")
        A("v_mov_b32 v1, 0")
        A(f"buffer_store_dwordx4 v[4:7], v1, s[{SRD_WS}:{SRD_WS+3}], s{sT2} offen")
        A(f"s_add_u32 s{sT2}, s{sT2}, {2*65536}")
        A(f"buffer_store_dwordx4 v[8:11], v1, s[{SRD_WS}:{SRD_WS+3}], s{sT2} offen")
        A.label(L)
    A("s_endpgm")

    A.label("K2_slow")
    A(f"s_mov_b32 s{sT2}, 0")
    Lsp = A.newlabel("K2_spin")
    Lnf = A.newlabel("K2_spin_nf")
    Lfb = A.newlabel("K2_fallback")
    if not forceslow:
        A.label(Lsp)
        poll_load()
        A("s_waitcnt vmcnt(0)")
        check_flags(Lnf)
        kvf_loads()
        A("s_waitcnt vmcnt(0)")
        A("s_branch K2_slow_ret")
        A.label(Lnf)
        A("s_sleep 4")
        A(f"s_add_u32 s{sT2}, s{sT2}, 1")
        A(f"s_cmp_lt_u32 s{sT2}, 200")
        A(f"s_cbranch_scc1 {Lsp}")
    A("s_waitcnt vmcnt(0)")
    for hh in range(4):
        A(f"s_lshl_b32 s{sT0}, s{sW}, 17")
        A(f"s_add_u32 s{sT0}, s{sT0}, {OFF_KVP + hh*32768}")
        S = vD
        for rb in range(8):
            dst = S if rb == 0 else S + 16
            for q4 in range(4):
                A(f"buffer_load_dwordx4 {vr(dst+4*q4,4)}, v{vL16}, s[{SRD_WS}:{SRD_WS+3}], s{sT0} offen offset:{q4*1024}")
            A(f"s_add_u32 s{sT0}, s{sT0}, 4096")
            A("s_waitcnt vmcnt(0)")
            if rb > 0:
                for r in range(16):
                    A(f"v_add_f32 v{S+r}, v{S+r}, v{S+16+r}")
        for r in range(8):
            A(f"v_cvt_pk_bf16_f32 v{vKV+hh*8+r}, v{S+2*r}, v{S+2*r+1}")
    A("s_nop 1")
    A("s_branch K2_slow_ret")

    A.label("K2_helper")
    A(f"s_lshl_b32 s{sT1}, s{sT1}, 3")
    A(f"s_add_u32 s{sT1}, s{sT1}, s{sT0}")
    A(f"s_cmp_ge_u32 s{sT1}, 16")
    A("s_cbranch_scc1 K2_end")
    A("s_waitcnt lgkmcnt(0)")
    A(f"s_lshl_b32 s{sT2}, s{sT1}, 15")
    A(f"s_lshl_b32 s{sT3}, s{sW}, 10")
    A(f"s_add_u32 s{sT2}, s{sT2}, s{sT3}")
    A(f"s_add_u32 s{sT2}, s{sT2}, {OFF_KVP}")
    for rb in range(8):
        A(f"buffer_load_dwordx4 {vr(16+4*rb,4)}, v{vL16}, s[{SRD_WS}:{SRD_WS+3}], s{sT2} offen")
        A(f"s_add_u32 s{sT2}, s{sT2}, 4096")
    A("s_waitcnt vmcnt(0)")
    for r in range(4):
        A(f"v_add_f32 v{16+r}, v{16+r}, v{20+r}")
        A(f"v_add_f32 v{24+r}, v{24+r}, v{28+r}")
        A(f"v_add_f32 v{32+r}, v{32+r}, v{36+r}")
        A(f"v_add_f32 v{40+r}, v{40+r}, v{44+r}")
    for r in range(4):
        A(f"v_add_f32 v{16+r}, v{16+r}, v{24+r}")
        A(f"v_add_f32 v{32+r}, v{32+r}, v{40+r}")
    for r in range(4):
        A(f"v_add_f32 v{16+r}, v{16+r}, v{32+r}")
    A("v_cvt_pk_bf16_f32 v20, v16, v17")
    A("v_cvt_pk_bf16_f32 v21, v18, v19")
    A(f"s_lshl_b32 s{sT2}, s{sT1}, 11")
    A(f"s_lshr_b32 s{sT3}, s{sW}, 1")
    A(f"s_lshl_b32 s{sT3}, s{sT3}, 10")
    A(f"s_add_u32 s{sT2}, s{sT2}, s{sT3}")
    A(f"s_and_b32 s{sT3}, s{sW}, 1")
    A(f"s_lshl_b32 s{sT3}, s{sT3}, 3")
    A(f"s_add_u32 s{sT2}, s{sT2}, s{sT3}")
    A(f"s_add_u32 s{sT2}, s{sT2}, {OFF_KVF}")
    A(f"buffer_store_dwordx2 v[20:21], v{vL16}, s[{SRD_WS}:{SRD_WS+3}], s{sT2} offen sc1")
    A("s_waitcnt vmcnt(0)")
    A("s_barrier")
    A(f"s_cmp_lg_u32 s{sW}, 0")
    A("s_cbranch_scc1 K2_end")
    A(f"s_lshl_b32 s{sT2}, s{sT1}, 2")
    A("v_mov_b32 v2, 0")
    A("v_mov_b32 v4, 1")
    A("v_cmp_eq_u32 vcc, 0, v0")
    A("s_and_saveexec_b64 s[50:51], vcc")
    A(f"buffer_store_dword v4, v2, s[{SRD_DBG}:{SRD_DBG+3}], s{sT2} offen sc1")
    A.label("K2_end")
    A("s_endpgm")
```

```python
import sys
from gen_common import *
import gen_k1, gen_k2

def main():
    opts = {}
    for a in sys.argv[1:]:
        if "=" in a:
            k, v = a.split("=", 1)
            opts[k] = int(v, 0) if v.lstrip("-").replace("x", "").isalnum() and v[0].isdigit() else v
        else:
            opts[a] = 1
    A = Asm()
    hdr = open("cdna_kernels/" + NAME + ".s.ref").read().split("\n")
    for l in hdr:
        if l.startswith("; Kernarg") or l.startswith(";   offset"):
            A.raw(l)
    only = opts.get("only", 0)
    ks = []
    if only in (0, 1):
        A.raw(f"; @launch kernel={K1NAME} grid=(256,1,1) block=(512,1,1) lds={gen_k1.LDS_BYTES}")
        ks.append((K1NAME, gen_k1))
    if only in (0, 2):
        A.raw(f"; @launch kernel={K2NAME} grid=(256,1,1) block=(256,1,1) lds={gen_k2.LDS_BYTES}")
        ks.append((K2NAME, gen_k2))
    A.raw('.amdgcn_target "amdgcn-amd-amdhsa--gfx950"')
    A.raw(".text")
    for name, mod in ks:
        A.raw(f".globl {name}")
        A.raw(".p2align 8")
        A.raw(f".type {name},@function")
        A.raw(f"{name}:")
        mod.emit(A, opts)
    A.raw('.section .rodata,"a"')
    for name, mod in ks:
        A.raw(".p2align 6")
        A.raw(f".amdhsa_kernel {name}")
        A.raw(f"  .amdhsa_next_free_vgpr {mod.NVGPR}")
        A.raw(f"  .amdhsa_next_free_sgpr {mod.NSGPR}")
        A.raw(f"  .amdhsa_accum_offset {mod.ACCOFF}")
        A.raw("  .amdhsa_group_segment_fixed_size 0")
        A.raw("  .amdhsa_kernarg_size 80")
        A.raw("  .amdhsa_user_sgpr_count 2")
        A.raw("  .amdhsa_user_sgpr_kernarg_segment_ptr 1")
        A.raw("  .amdhsa_system_sgpr_workgroup_id_x 1")
        A.raw(".end_amdhsa_kernel")
    print(A.text())

main()
```

```python
from gen_common import *

STAGE = 53376
LDS_BYTES = 163840
NVGPR = 256
ACCOFF = 256
NSGPR = 96

S1 = STAGE
S2 = 2 * STAGE
M_OFF = S1
R_OFF = S1 + 1024
SP_OFF = S1 + 2048

SRD_X, SRD_Q, SRD_G, SRD_U, SRD_WS, SRD_RP, SRD_DBG = 4, 8, 12, 16, 20, 24, 28
sW, sWp, sRB, sH, sCB = 32, 33, 34, 35, 36
sXbase, sHbase, sGbase = 37, 38, 39
sLx, sLh, sLg, sLu = 40, 41, 42, 43
sI, sC, sRS, sDelta, sNext = 44, 45, 46, 47, 48
sT0, sT1, sT2, sT3, sT4, sT5 = 49, 50, 51, 52, 53, 54
sMaskP = 56
sHi = 58
sEps6 = 59
sLog2e = 60
sRPoff = 61
sRProw = 62
sMaskLo32 = 64
sMask56 = 66
sMask24 = 68
sSt0, sSt1 = 70, 71
sSt2 = 72
sKT = 76
sK2 = 78
sStg = 84

vLane = 0
vT = list(range(1, 16))
vXA = [16, 17, 18, 19]
vWA0 = [20, 21, 22, 23]
vWA1 = [24, 25, 26, 27]
vX, vH, vG = 28, 29, 30
vL16 = 31
vCS = [32, 33, 34, 35, 36, 37]
vCT = [38, 39, 40, 41]
vRP = 44
vRPL = 120
FB = [48, 68]
vSP = 88
ACC = 160

F1_448 = 0x3B124925
EPS5 = 0x3727C5AC
EPS6 = 0x358637BD
LOG2E = 0x3FB8AA3B


def acc(j, a):
    return ACC + (j * 2 + a) * 16


VARIANTS = {
    "A0": ("A", 0, ["k", "v"]),
    "A1": ("A", 1, ["f", "f", "f"]),
    "B0": ("B", 0, ["q", "f"]),
    "B1": ("B", 1, ["f", "f", "f"]),
}


def wread_list(var, t, buf):
    b = FB[buf] + 8
    if var == "A0":
        spec = [(vWA0[t], 0, 512), (vWA1[t], 0, 512)]
    elif var == "A1":
        spec = [(vWA0[t], 32 * j, 384) for j in range(3)]
    elif var == "B0":
        spec = [(vWA0[t], 0, 256), (vWA1[t], 0, 512)]
    else:
        spec = [(vWA0[t], 0, 512), (vWA1[t], 64, 512), (vWA0[t], 64, 512)]
    out = []
    for j, (reg, imm, d2) in enumerate(spec):
        out.append(f"ds_read_b64_tr_b16 {vr(b+4*j,2)}, v{reg} offset:{imm}")
        out.append(f"ds_read_b64_tr_b16 {vr(b+4*j+2,2)}, v{reg} offset:{imm+d2}")
    return out


def reads(var, t, buf):
    b = FB[buf]
    xs = [f"ds_read_b128 {vr(b,4)}, v{vXA[t]}", f"ds_read_b128 {vr(b+4,4)}, v{vXA[t]} offset:4096"]
    ws = wread_list(var, t, buf)
    return [xs[0], ws[0], ws[1], xs[1]] + ws[2:]


def mfmas(var, buf):
    tiles = VARIANTS[var][2]
    b = FB[buf]
    out = []
    for j, kind in enumerate(tiles):
        for a in range(2):
            d = acc(j, a)
            xf = vr(b + 4 * a, 4)
            wf = vr(b + 8 + 4 * j, 4)
            if kind in ("k", "v"):
                out.append(f"v_mfma_f32_32x32x16_bf16 {vr(d,16)}, {xf}, {wf}, {vr(d,16)}")
            else:
                out.append(f"v_mfma_f32_32x32x16_bf16 {vr(d,16)}, {wf}, {xf}, {vr(d,16)}")
    return out


def duty(var, buf):
    tiles = VARIANTS[var][2]
    b = FB[buf] + 8
    out = []
    q = 0
    for j in range(len(tiles)):
        for r in range(4):
            ta, tb = vCT[(q % 2) * 2], vCT[(q % 2) * 2 + 1]
            q += 1
            src = b + 4 * j + r
            out.append(f"v_lshlrev_b32 v{ta}, 16, v{src}")
            out.append(f"v_and_b32 v{tb}, s{sHi}, v{src}")
            out.append(f"v_add_f32 v{vCS[2*j]}, v{vCS[2*j]}, v{ta}")
            out.append(f"v_add_f32 v{vCS[2*j+1]}, v{vCS[2*j+1]}, v{tb}")
    return out


def dma_units(typ, sStage):
    u = []
    u.append(f"s_lshl_b32 s{sT0}, s{sC}, 7\ns_add_u32 s{sT0}, s{sT0}, s{sXbase}\ns_add_u32 m0, s{sStage}, s{sLx}\ns_mul_i32 s{sT2}, s{sC}, {64*2688}\n"
             f"buffer_load_dwordx4 v{vX}, s[{SRD_X}:{SRD_X+3}], s{sT0} offen lds")
    for j in range(1, 4):
        u.append(f"s_add_u32 m0, m0, 8192\ns_add_u32 s{sT0}, s{sT0}, {64*896}\n"
                 f"buffer_load_dwordx4 v{vX}, s[{SRD_X}:{SRD_X+3}], s{sT0} offen lds")
    head = (f"s_add_u32 m0, s{sStage}, s{sLh}\ns_add_u32 s{sT2}, s{sT2}, s{sHbase}\n")
    headld = f"buffer_load_dwordx4 v{vH}, s[{SRD_Q}:{SRD_Q+3}], s{sT2} offen lds"
    gpre = f"s_mul_i32 s{sT3}, s{sC}, {64*3584}\ns_add_u32 m0, s{sStage}, s{sLg}\ns_add_u32 s{sT3}, s{sT3}, s{sGbase}\n"
    gld = f"buffer_load_dwordx4 v{vG}, s[{SRD_G}:{SRD_G+3}], s{sT3} offen lds"
    upre = f"s_add_u32 m0, s{sStage}, s{sLu}\ns_nop 0\n"
    uld = f"buffer_load_dwordx4 v{vG}, s[{SRD_U}:{SRD_U+3}], s{sT3} offen lds"
    mon = f"s_mov_b64 exec, s[{sMaskP}:{sMaskP+1}]\n"
    moff = "\ns_mov_b64 exec, -1"
    if typ == "A":
        u.append(head + headld)
        u.append(gpre + mon + gld + moff)
        u.append(upre + mon + uld + moff)
    else:
        u.append(head + mon + headld + moff)
        u.append(gpre + gld)
        u.append(upre + uld)
    u.append(f"s_add_u32 s{sC}, s{sC}, 1\ns_cmp_eq_u32 s{sC}, 7\ns_cselect_b32 s{sC}, 0, s{sC}")
    return u


def row_stats(A, src, vm, vrr, t):
    f = t[:8]
    for i in range(4):
        A(f"v_lshlrev_b32 v{f[2*i]}, 16, v{src+i}")
        A(f"v_and_b32 v{f[2*i+1]}, s{sHi}, v{src+i}")
    s = t[8]
    A(f"v_add_f32 v{s}, v{f[0]}, v{f[1]}")
    for i in range(2, 8):
        A(f"v_add_f32 v{s}, v{s}, v{f[i]}")
    wave_sum(A, s, sKT)
    A("s_nop 1")
    A(f"v_mov_b32 v{vm}, s{sKT}")
    A(f"v_mul_f32 v{vm}, 0x{F1_448:x}, v{vm}")
    for i in range(8):
        A(f"v_sub_f32 v{f[i]}, v{f[i]}, v{vm}")
    A(f"v_mul_f32 v{s}, v{f[0]}, v{f[0]}")
    for i in range(1, 8):
        A(f"v_fmac_f32 v{s}, v{f[i]}, v{f[i]}")
    A(f"v_cndmask_b32_e64 v{s}, 0, v{s}, s[{sMask56}:{sMask56+1}]")
    wave_sum(A, s, sKT)
    A("s_nop 1")
    A(f"v_mov_b32 v{vrr}, s{sKT}")
    A(f"v_mov_b32 v{t[9]}, 0x{EPS5:x}")
    A(f"v_fmac_f32 v{t[9]}, 0x{F1_448:x}, v{vrr}")
    A(f"v_rsq_f32 v{vrr}, v{t[9]}")
    A("s_nop 0")


def stamp(A, which):
    pass


def emit(A, opts):
    stamps = opts.get("stamps", 0)
    A("s_cmp_ge_u32 s2, 256")
    A("s_cbranch_scc1 K1_end")
    if stamps or opts.get("dbgst"):
        A(f"s_memrealtime s[{sSt0}:{sSt0+1}]")
    if opts.get("dbgst"):
        A(f"s_memtime s[86:87]")
    A(f"s_load_dwordx2 s[{SRD_X}:{SRD_X+1}], s[0:1], 0")
    A(f"s_load_dwordx2 s[{SRD_Q}:{SRD_Q+1}], s[0:1], 8")
    A(f"s_load_dwordx2 s[{SRD_G}:{SRD_G+1}], s[0:1], 32")
    A(f"s_load_dwordx2 s[{SRD_U}:{SRD_U+1}], s[0:1], 40")
    A(f"s_load_dwordx2 s[{SRD_WS}:{SRD_WS+1}], s[0:1], 72")
    A(f"s_load_dwordx2 s[80:81], s[0:1], 48")
    A(f"s_load_dwordx2 s[82:83], s[0:1], 16")
    A(f"s_load_dwordx2 s[{SRD_DBG}:{SRD_DBG+1}], s[0:1], 64")
    A("v_lshrrev_b32 v1, 6, v0")
    A("v_and_b32 v0, 63, v0")
    A(f"v_readfirstlane_b32 s{sW}, v1")
    for srd, nb in ((SRD_X, X_BYTES), (SRD_Q, Q_BYTES), (SRD_G, G_BYTES), (SRD_U, G_BYTES), (SRD_WS, WS_BYTES if not stamps else 0x10000000), (SRD_DBG, 256)):
        A(f"s_mov_b32 s{srd+2}, {nb}")
        A(f"s_mov_b32 s{srd+3}, 0x20000")
    A(f"s_and_b32 s{sT0}, s2, 7")
    A(f"s_lshr_b32 s{sT1}, s2, 3")
    A(f"s_and_b32 s{sRB}, s{sT0}, 1")
    A(f"s_lshl_b32 s{sRB}, s{sRB}, 2")
    A(f"s_and_b32 s{sT2}, s{sT1}, 3")
    A(f"s_add_u32 s{sRB}, s{sRB}, s{sT2}")
    A(f"s_lshr_b32 s{sCB}, s{sT0}, 1")
    A(f"s_lshl_b32 s{sCB}, s{sCB}, 3")
    A(f"s_lshr_b32 s{sT2}, s{sT1}, 2")
    A(f"s_add_u32 s{sCB}, s{sCB}, s{sT2}")
    A(f"s_and_b32 s{sH}, s{sCB}, 15")
    A(f"s_and_b32 s{sWp}, s{sW}, 3")
    A(f"s_mov_b32 s{sHi}, 0xffff0000")
    A(f"s_mov_b32 s{sStg}, {STAGE}")
    A(f"s_mov_b32 s{sEps6}, 0x{EPS6:x}")
    A(f"s_mov_b32 s{sLog2e}, 0x{LOG2E:x}")
    A(f"s_mov_b32 s{sMaskLo32}, -1")
    A(f"s_mov_b32 s{sMaskLo32+1}, 0")
    A(f"s_mov_b32 s{sMask56}, -1")
    A(f"s_mov_b32 s{sMask56+1}, 0x00ffffff")
    A(f"s_mov_b32 s{sMask24}, 0x01000000")
    A(f"s_mov_b32 s{sMask24+1}, 0x01000000")
    A(f"s_lshl_b32 s{sT0}, s{sRB}, 8")
    A(f"s_lshl_b32 s{sT1}, s{sW}, 3")
    A(f"s_add_u32 s{sT0}, s{sT0}, s{sT1}")
    A(f"s_mul_i32 s{sXbase}, s{sT0}, 896")
    A(f"s_lshl_b32 s{sLx}, s{sW}, 10")
    A(f"v_lshrrev_b32 v1, 3, v0")
    A(f"v_lshrrev_b32 v2, 4, v0")
    A(f"s_and_b32 s{sT1}, s{sW}, 1")
    A(f"s_lshl_b32 s{sT1}, s{sT1}, 2")
    A(f"v_add_u32 v3, s{sT1}, v2")
    A(f"v_and_b32 v4, 7, v0")
    A(f"v_xor_b32 v4, v4, v3")
    A(f"v_lshlrev_b32 v4, 4, v4")
    A(f"v_mul_u32_u24 v{vX}, 896, v1")
    A(f"v_add_u32 v{vX}, v{vX}, v4")
    A(f"v_lshlrev_b32 v{vL16}, 4, v0")
    A(f"s_cmp_eq_u32 s{sRB}, 7")
    A(f"s_cselect_b32 s{sC}, 0, s{sRB}")
    if opts.get("norot"):
        A(f"s_mov_b32 s{sC}, 0")
    A(f"s_lshl_b32 s{sT0}, s2, 3")
    A(f"s_add_u32 s{sT0}, s{sT0}, s{sW}")
    A(f"s_lshl_b32 s{sRPoff}, s{sT0}, 10")
    A(f"s_add_u32 s{sRPoff}, s{sRPoff}, {OFF_WD}")
    A(f"s_cmp_ge_u32 s{sCB}, 16")
    A("s_cbranch_scc1 K1_typeB")
    for typ in ("A", "B"):
        A.label(f"K1_type{typ}")
        if typ == "A":
            A("v_lshrrev_b32 v1, 3, v0")
            A("v_lshrrev_b32 v2, 4, v0")
            A("v_and_b32 v2, 1, v2")
            A("v_lshlrev_b32 v2, 2, v2")
            A("v_and_b32 v3, 7, v0")
            A("v_xor_b32 v3, v3, v2")
            A("v_and_b32 v4, 3, v3")
            A("v_lshrrev_b32 v3, 2, v3")
            A("v_lshlrev_b32 v5, 4, v4")
            A("v_cmp_eq_u32 vcc, 3, v4")
            A("v_mul_u32_u24 v3, 896, v3")
            A("v_add_u32 v3, 896, v3")
            A("v_mov_b32 v6, 40")
            A("v_cndmask_b32 v5, v5, v6, vcc")
            A(f"v_mul_u32_u24 v{vH}, 2688, v1")
            A(f"v_add3_u32 v{vH}, v{vH}, v3, v5")
            A("v_mul_u32_u24 v1, 43, v0")
            A("v_lshrrev_b32 v1, 8, v1")
            A("v_mul_u32_u24 v2, 6, v1")
            A("v_sub_u32 v2, v0, v2")
            A("v_lshlrev_b32 v2, 4, v2")
            A(f"v_mul_u32_u24 v{vG}, 3584, v1")
            A(f"v_add_u32 v{vG}, v{vG}, v2")
            A(f"s_mov_b32 s{sMaskP}, -1")
            A(f"s_mov_b32 s{sMaskP+1}, 0xffff")
            A(f"s_mul_i32 s{sT1}, s{sH}, 96")
            A(f"s_lshl_b32 s{sLh}, s{sW}, 10")
            A(f"s_add_u32 s{sLh}, s{sLh}, 32768")
            A(f"s_mul_i32 s{sLg}, s{sW}, 768")
            A(f"s_add_u32 s{sLu}, s{sLg}, 47232")
            A(f"s_add_u32 s{sLg}, s{sLg}, 40960")
        else:
            A("v_lshrrev_b32 v1, 2, v0")
            A("v_and_b32 v4, 3, v0")
            A("v_lshlrev_b32 v5, 4, v4")
            A("v_cmp_eq_u32 vcc, 3, v4")
            A("v_mov_b32 v6, 40")
            A(f"v_mul_u32_u24 v{vH}, 2688, v1")
            A("v_cndmask_b32 v5, v5, v6, vcc")
            A(f"v_add_u32 v{vH}, v{vH}, v5")
            A("v_lshrrev_b32 v1, 3, v0")
            A("v_lshrrev_b32 v2, 4, v0")
            A("v_and_b32 v2, 1, v2")
            A("v_lshlrev_b32 v2, 1, v2")
            A("v_and_b32 v3, 7, v0")
            A("v_xor_b32 v3, v3, v2")
            A("v_lshlrev_b32 v3, 4, v3")
            A(f"v_mul_u32_u24 v{vG}, 3584, v1")
            A(f"v_add_u32 v{vG}, v{vG}, v3")
            A(f"s_mov_b32 s{sMaskP}, -1")
            A(f"s_mov_b32 s{sMaskP+1}, 0")
            A(f"s_lshl_b32 s{sT1}, s{sH}, 7")
            A(f"s_add_u32 s{sT1}, s{sT1}, 1536")
            A(f"s_lshl_b32 s{sLh}, s{sW}, 9")
            A(f"s_add_u32 s{sLh}, s{sLh}, 32768")
            A(f"s_lshl_b32 s{sLg}, s{sW}, 10")
            A(f"s_add_u32 s{sLu}, s{sLg}, 45120")
            A(f"s_add_u32 s{sLg}, s{sLg}, 36864")
        A(f"s_mul_i32 s{sGbase}, s{sW}, {8*3584}")
        A(f"s_add_u32 s{sGbase}, s{sGbase}, s{sT1}")
        A(f"s_mul_i32 s{sHbase}, s{sW}, {8*2688}")
        A(f"s_mul_i32 s{sT1}, s{sH}, 56")
        A(f"s_add_u32 s{sHbase}, s{sHbase}, s{sT1}")
        A("s_waitcnt lgkmcnt(0)")
        for st in (0, 1):
            A(f"s_mov_b32 s{sT4}, {st*STAGE}")
            for u in dma_units(typ, sT4):
                A(u)
        A(f"s_lshl_b32 s{sT0}, s2, 3")
        A(f"s_add_u32 s{sT0}, s{sT0}, s{sW}")
        A(f"s_mul_i32 s{sT1}, s{sT0}, 9363")
        A(f"s_lshr_b32 s{sT1}, s{sT1}, 20")
        A(f"s_mul_i32 s{sT2}, s{sT1}, 112")
        A(f"s_sub_u32 s{sT2}, s{sT0}, s{sT2}")
        A(f"s_lshl_b32 s{sT2}, s{sT2}, 4")
        A(f"s_sub_u32 s{sT3}, s{sT0}, 1568")
        A(f"s_lshr_b32 s{sT4}, s{sT3}, 5")
        A(f"s_lshr_b32 s{sT5}, s{sT3}, 1")
        A(f"s_and_b32 s{sT5}, s{sT5}, 15")
        A(f"s_mul_i32 s{sT5}, s{sT5}, 28")
        A(f"s_and_b32 s{sKT}, s{sT3}, 1")
        A(f"s_lshl_b32 s{sK2}, s{sKT}, 4")
        A(f"s_add_u32 s{sT5}, s{sT5}, s{sK2}")
        A(f"s_cmp_lt_u32 s{sT0}, 1568")
        A(f"s_cselect_b32 s{sT1}, s{sT1}, s{sT4}")
        A(f"s_cselect_b32 s{sT2}, s{sT2}, s{sT5}")
        A(f"s_cselect_b32 s{sKT}, 0, s{sKT}")
        A(f"s_cselect_b32 s{SRD_RP}, s80, s82")
        A(f"s_cselect_b32 s{SRD_RP+1}, s81, s83")
        A(f"s_mov_b32 s{SRD_RP+2}, {WO_BYTES}")
        A(f"s_cselect_b32 s{SRD_RP+2}, {WD_BYTES}, s{SRD_RP+2}")
        A(f"s_mov_b32 s{SRD_RP+3}, 0x20000")
        A(f"s_mul_i32 s{sRProw}, s{sT2}, 896")
        A(f"s_lshl_b32 s{sT1}, s{sT1}, 6")
        A(f"s_add_u32 s{sRProw}, s{sRProw}, s{sT1}")
        A("v_and_b32 v1, 31, v0")
        A("v_lshlrev_b32 v1, 1, v1")
        A("v_lshrrev_b32 v2, 5, v0")
        A("v_mul_u32_u24 v2, 3584, v2")
        A("v_add_u32 v2, v1, v2")
        A("v_mov_b32 v3, 0x40000000")
        A(f"v_cndmask_b32_e64 v3, v1, v3, s[{sMaskLo32}:{sMaskLo32+1}]")
        A(f"s_cmp_eq_u32 s{sKT}, 1")
        A(f"s_cselect_b64 vcc, -1, 0")
        A("s_nop 1")
        A("v_cndmask_b32 v3, v2, v3, vcc")
        lrp = A.newlabel("K1_norp")
        A(f"s_cmp_ge_u32 s{sT0}, 2016")
        A(f"s_cselect_b32 s{sRPoff}, -1, s{sRPoff}")
        A(f"s_cbranch_scc1 {lrp}")
        for j in range(8):
            ro = j if j < 4 else 8 + (j - 4)
            vo = 2 if j < 4 else 3
            A(f"s_add_u32 s{sT1}, s{sRProw}, {ro*896}")
            A(f"buffer_load_ushort v{vRPL + j}, v{vo}, s[{SRD_RP}:{SRD_RP+3}], s{sT1} offen")
        A.label(lrp)
        A(f"s_mov_b32 s{sT4}, {2*STAGE}")
        for u in dma_units(typ, sT4):
            A(u)
        for r in range(96):
            A(f"v_mov_b32 v{ACC+r}, 0")
        for r in vCS:
            A(f"v_mov_b32 v{r}, 0")
        A("v_and_b32 v1, 31, v0")
        A("v_lshrrev_b32 v2, 5, v0")
        A("v_lshrrev_b32 v3, 1, v1")
        A("v_and_b32 v3, 7, v3")
        A(f"s_lshl_b32 s{sT0}, s{sWp}, 13")
        A("v_lshlrev_b32 v4, 7, v1")
        A(f"v_add_u32 v4, s{sT0}, v4")
        for t in range(4):
            A(f"s_add_u32 s{sT1}, s{sWp}, {t}")
            A(f"s_and_b32 s{sT1}, s{sT1}, 3")
            A(f"s_lshl_b32 s{sT1}, s{sT1}, 1")
            A(f"v_add_u32 v5, s{sT1}, v2")
            A(f"v_xor_b32 v5, v5, v3")
            A(f"v_lshlrev_b32 v5, 4, v5")
            A(f"v_add_u32 v{vXA[t]}, v4, v5")
        A(f"s_cmp_ge_u32 s{sW}, 4")
        A(f"s_cbranch_scc1 K1_{typ}1")
        for g in (0, 1):
            var = f"{typ}{g}"
            A.label(f"K1_{var}")
            variant(A, var, opts)
    A.label("K1_end")
    A("s_endpgm")


def w_addr_setup(A, var):
    A("v_lshrrev_b32 v1, 2, v0")
    A("v_and_b32 v1, 3, v1")
    A("v_and_b32 v2, 3, v0")
    A("v_lshrrev_b32 v3, 5, v0")
    A("v_lshrrev_b32 v4, 4, v0")
    A("v_and_b32 v4, 1, v4")
    A("v_lshlrev_b32 v5, 3, v3")
    A("v_add_u32 v5, v5, v1")
    A("v_lshrrev_b32 v6, 1, v1")
    A("v_lshlrev_b32 v7, 3, v2")
    if var == "A0":
        A("v_lshrrev_b32 v8, 1, v2")
        A("v_lshl_add_u32 v8, v4, 1, v8")
        A("v_lshlrev_b32 v9, 2, v6")
        A("v_xor_b32 v8, v8, v9")
        A("v_lshlrev_b32 v8, 4, v8")
        A("v_and_b32 v9, 1, v2")
        A("v_lshl_add_u32 v8, v9, 3, v8")
        A("v_lshl_add_u32 v8, v5, 7, v8")
        A("v_add_u32 v8, 32768, v8")
        A("v_xor_b32 v9, 64, v8")
        p0 = p1 = 128
    elif var == "A1":
        A("v_mul_u32_u24 v8, 96, v5")
        A("v_add_u32 v8, v8, v7")
        A(f"v_mul_u32_u24 v9, {47232-40960}, v4")
        A("v_add3_u32 v8, v8, v9, 0")
        A("v_add_u32 v8, 40960, v8")
        p0 = p1 = 96
    else:
        A("v_lshl_add_u32 v10, v5, 7, v7")
        A(f"v_mul_u32_u24 v9, {45120-36864}, v4")
        A("v_add_u32 v10, v10, v9")
        A("v_add_u32 v10, 36864, v10")
        A("v_lshlrev_b32 v11, 5, v6")
        if var == "B0":
            A("v_lshl_add_u32 v8, v5, 6, v7")
            A("v_lshl_add_u32 v8, v4, 5, v8")
            A("v_add_u32 v8, 32768, v8")
            A("v_add_u32 v9, v10, v11")
            p0, p1 = 64, 128
        else:
            A("v_xor_b32 v12, 32, v11")
            A("v_add_u32 v8, v10, v12")
            A("v_add_u32 v9, v10, v11")
            p0 = p1 = 128
    for t in range(4):
        A(f"s_add_u32 s{sT1}, s{sWp}, {t}")
        A(f"s_and_b32 s{sT1}, s{sT1}, 3")
        A(f"s_mul_i32 s{sT2}, s{sT1}, {16*p0}")
        A(f"v_add_u32 v{vWA0[t]}, s{sT2}, v8")
        if var != "A1":
            A(f"s_mul_i32 s{sT2}, s{sT1}, {16*p1}")
            A(f"v_add_u32 v{vWA1[t]}, s{sT2}, v9")


def slow_row_stats(A, var):
    L = A.newlabel("K1_srs")
    A(f"v_lshlrev_b32 v{vSP}, 4, v0")
    A(f"v_mov_b32 v{vSP+1}, 0x40000000")
    A(f"v_cndmask_b32_e64 v{vSP}, v{vSP+1}, v{vSP}, s[{sMask56}:{sMask56+1}]")
    A(f"s_lshl_b32 s{sT0}, s{sRB}, 8")
    A(f"s_lshl_b32 s{sT1}, s{sW}, 5")
    A(f"s_add_u32 s{sT0}, s{sT0}, s{sT1}")
    A(f"s_mul_i32 s{sT0}, s{sT0}, 896")
    A(f"s_lshl_b32 s{sT1}, s{sW}, 7")
    A(f"s_add_u32 s{sT1}, s{sT1}, {M_OFF}")
    A(f"s_mov_b32 s{sT2}, 0")
    A.label(L)
    A(f"buffer_load_dwordx4 {vr(vSP+4,4)}, v{vSP}, s[{SRD_X}:{SRD_X+3}], s{sT0} offen")
    A("s_waitcnt vmcnt(0)")
    row_stats(A, vSP + 4, vSP + 2, vSP + 3, list(range(vSP + 8, vSP + 18)))
    A(f"v_mov_b32 v{vSP+8}, s{sT1}")
    A(f"ds_write_b32 v{vSP+8}, v{vSP+2}")
    A(f"ds_write_b32 v{vSP+8}, v{vSP+3} offset:1024")
    A(f"s_add_u32 s{sT0}, s{sT0}, 896")
    A(f"s_add_u32 s{sT1}, s{sT1}, 4")
    A(f"s_add_u32 s{sT2}, s{sT2}, 1")
    A(f"s_cmp_lt_u32 s{sT2}, 32")
    A(f"s_cbranch_scc1 {L}")


def variant(A, var, opts):
    typ, grp, tiles = VARIANTS[var]
    stamps = opts.get("stamps", 0)
    nt = len(tiles)
    nreg = 1 if var == "A1" else 2
    w_addr_setup(A, var)
    A(f"s_mov_b32 s{sI}, 0")
    A(f"s_mov_b32 s{sRS}, 0")
    lsk = A.newlabel("K1_w0")
    A(f"s_cmp_eq_u32 s{sRPoff}, -1")
    A(f"s_cbranch_scc0 {lsk}")
    A("s_waitcnt vmcnt(14)")
    A.label(lsk)
    A("s_waitcnt vmcnt(22)")
    A("s_barrier")
    if stamps:
        A(f"s_memrealtime s[{sSt2}:{sSt2+1}]")
    for s in reads(var, 0, 0):
        A(s)
    Lloop = f"K1_{var}_loop"
    A.label(Lloop)
    for t in range(3):
        A("s_waitcnt lgkmcnt(0)")
        fill = reads(var, t + 1, (t + 1) & 1)
        if (grp == 0 and t == 0) or (grp == 1 and t == 2):
            fill = fill + duty(var, t & 1)
        for s in interleave(mfmas(var, t & 1), fill):
            A(s)
    Lpre = f"K1_{var}_pre"
    Lpre_ret = f"K1_{var}_pre_ret"
    A("s_waitcnt lgkmcnt(0)")
    A("s_waitcnt vmcnt(7)")
    A(f"s_cmp_ge_u32 s{sI}, 5")
    A(f"s_cbranch_scc1 {Lpre}")
    A.label(Lpre_ret)
    A("s_barrier")
    A(f"s_add_u32 s{sNext}, s{sRS}, {STAGE}")
    A(f"s_cmp_eq_u32 s{sNext}, {3*STAGE}")
    A(f"s_cselect_b32 s{sDelta}, {-2*STAGE}, s{sStg}")
    A(f"s_cselect_b32 s{sNext}, 0, s{sNext}")
    upd0 = [f"v_add_u32 v{vXA[0]}, s{sDelta}, v{vXA[0]}", f"v_add_u32 v{vWA0[0]}, s{sDelta}, v{vWA0[0]}"]
    if nreg == 2:
        upd0.append(f"v_add_u32 v{vWA1[0]}, s{sDelta}, v{vWA1[0]}")
    for s in upd0:
        A(s)
    upd = []
    for t in range(1, 4):
        upd.append(f"v_add_u32 v{vXA[t]}, s{sDelta}, v{vXA[t]}")
        upd.append(f"v_add_u32 v{vWA0[t]}, s{sDelta}, v{vWA0[t]}")
        if nreg == 2:
            upd.append(f"v_add_u32 v{vWA1[t]}, s{sDelta}, v{vWA1[t]}")
    Lpost = f"K1_{var}_post"
    Lpost_ret = f"K1_{var}_post_ret"
    Lt3_nodma = f"K1_{var}_t3n"
    Lt3_done = f"K1_{var}_t3d"
    A(f"s_cmp_eq_u32 s{sI}, 0")
    A(f"s_cbranch_scc1 {Lpost}")
    A(f"s_cmp_ge_u32 s{sI}, 4")
    A(f"s_cbranch_scc1 {Lpost}")
    A.label(Lpost_ret)
    fill = reads(var, 0, 0) + upd + dma_units(typ, sRS)
    for s in interleave(mfmas(var, 1), fill):
        A(s)
    A.label(Lt3_done)
    A(f"s_mov_b32 s{sRS}, s{sNext}")
    A(f"s_add_u32 s{sI}, s{sI}, 1")
    A(f"s_cmp_lt_u32 s{sI}, 7")
    A(f"s_cbranch_scc1 {Lloop}")
    A(f"s_branch K1_{var}_epi")
    A.label(Lt3_nodma)
    fill = reads(var, 0, 0) + upd
    for s in interleave(mfmas(var, 1), fill):
        A(s)
    A(f"s_branch {Lt3_done}")
    A.label(Lpre)
    A("s_waitcnt vmcnt(0)")
    A(f"s_cmp_eq_u32 s{sI}, 6")
    A(f"s_cbranch_scc0 {Lpre_ret}")
    for j in range(nt):
        A(f"v_add_f32 v{vCS[2*j]}, v{vCS[2*j]}, v{vCS[2*j+1]}")
    for j in range(nt):
        A(f"v_mov_b32 v{vCS[2*j+1]}, v{vCS[2*j]}")
    A("s_nop 1")
    for j in range(nt):
        A(f"v_permlane32_swap_b32 v{vCS[2*j]}, v{vCS[2*j+1]}")
    A("s_nop 1")
    for j in range(nt):
        A(f"v_add_f32 v{vCS[2*j]}, v{vCS[2*j]}, v{vCS[2*j+1]}")
    jb = 0 if grp == 0 else 2
    A("v_and_b32 v1, 31, v0")
    A("v_lshlrev_b32 v1, 2, v1")
    A(f"s_mul_i32 s{sT0}, s{sWp}, 640")
    A(f"s_add_u32 s{sT0}, s{sT0}, {SP_OFF + jb*128}")
    A(f"v_add_u32 v1, s{sT0}, v1")
    for j in range(nt):
        A(f"ds_write_b32 v1, v{vCS[2*j]} offset:{j*128}")
    A("s_waitcnt lgkmcnt(0)")
    A(f"s_branch {Lpre_ret}")
    A.label(Lpost)
    Lp4 = A.newlabel("K1_p4")
    Lp6 = A.newlabel("K1_p6")
    A(f"s_cmp_eq_u32 s{sI}, 0")
    A(f"s_cbranch_scc0 {Lp4}")
    A(f"s_cmp_eq_u32 s{sRPoff}, -1")
    A(f"s_cbranch_scc1 {Lpost_ret}")
    for j in range(4):
        A(f"v_lshl_or_b32 v{vRP+j}, v{vRPL+2*j+1}, 16, v{vRPL+2*j}")
    A(f"buffer_store_dwordx4 {vr(vRP,4)}, v{vL16}, s[{SRD_WS}:{SRD_WS+3}], s{sRPoff} offen sc1")
    A(f"s_branch {Lpost_ret}")
    A.label(Lp4)
    A(f"s_cmp_eq_u32 s{sI}, 4")
    A(f"s_cbranch_scc0 {Lp6}")
    slow_row_stats(A, var)
    A(f"s_branch {Lt3_nodma}")
    A.label(Lp6)
    A(f"s_cmp_eq_u32 s{sI}, 6")
    A(f"s_cbranch_scc0 {Lt3_nodma}")
    vM = vSP
    vS = vSP + 2
    vR = vSP + 16
    A("v_and_b32 v1, 31, v0")
    A("v_lshlrev_b32 v1, 2, v1")
    A(f"s_lshl_b32 s{sT0}, s{sWp}, 8")
    A(f"s_add_u32 s{sT0}, s{sT0}, {M_OFF}")
    A(f"v_add_u32 v2, s{sT0}, v1")
    A(f"ds_read_b32 v{vM}, v2")
    A(f"ds_read_b32 v{vM+1}, v2 offset:128")
    A(f"v_add_u32 v3, {SP_OFF + jb*128}, v1")
    for j in range(nt):
        for p in range(4):
            A(f"ds_read_b32 v{vS+4*j+p}, v3 offset:{j*128 + p*640}")
    if var == "A0":
        A("v_lshrrev_b32 v4, 5, v0")
        A("v_lshlrev_b32 v4, 4, v4")
        A(f"v_add_u32 v4, s{sT0}, v4")
        for a in range(2):
            for j in range(4):
                A(f"ds_read_b128 {vr(vR+16*a+4*j,4)}, v4 offset:{1024 + a*128 + j*32}")
    else:
        A(f"ds_read_b32 v{vR}, v2 offset:1024")
        A(f"ds_read_b32 v{vR+1}, v2 offset:{1024+128}")
    A(f"s_branch {Lt3_nodma}")

    A.label(f"K1_{var}_epi")
    if stamps:
        A(f"s_memrealtime s[{sSt2+2}:{sSt2+3}]")
    A("s_waitcnt lgkmcnt(0)")
    XC = FB[0]
    WC = FB[0] + 8
    for a in range(2):
        m = vM + a
        A(f"v_sub_f32 v{m}, 0, v{m}")
        A(f"v_cndmask_b32_e64 v{m}, 0, v{m}, s[{sMaskLo32}:{sMaskLo32+1}]")
    for a in range(2):
        m = vM + a
        A(f"v_cvt_pk_bf16_f32 v{XC+4*a+1}, v{m}, 0")
    for a in range(2):
        A(f"v_lshlrev_b32 v{1+a}, 16, v{XC+4*a+1}")
    for a in range(2):
        A(f"v_sub_f32 v{1+a}, v{vM+a}, v{1+a}")
    for a in range(2):
        A(f"v_cvt_pk_bf16_f32 v{XC+4*a}, v{vM+a}, v{1+a}")
        A(f"v_mov_b32 v{XC+4*a+2}, 0")
        A(f"v_mov_b32 v{XC+4*a+3}, 0")
    for j in range(nt):
        s = vS + 4 * j
        A(f"v_add_f32 v{s}, v{s}, v{s+1}")
        A(f"v_add_f32 v{s+2}, v{s+2}, v{s+3}")
    for j in range(nt):
        s = vS + 4 * j
        A(f"v_add_f32 v{s}, v{s}, v{s+2}")
    for j in range(nt):
        s = vS + 4 * j
        A(f"v_cvt_pk_bf16_f32 v{WC+4*j}, v{s}, v{s}")
    for j in range(nt):
        s = vS + 4 * j
        A(f"v_lshlrev_b32 v{s+1}, 16, v{WC+4*j}")
    for j in range(nt):
        s = vS + 4 * j
        A(f"v_sub_f32 v{s+1}, v{s}, v{s+1}")
    for j in range(nt):
        s = vS + 4 * j
        A(f"v_cvt_pk_bf16_f32 v{WC+4*j+1}, v{s+1}, 0")
        A(f"v_mov_b32 v{WC+4*j+2}, 0")
        A(f"v_mov_b32 v{WC+4*j+3}, 0")
    A("s_nop 1")
    if not opts.get("nocorr"):
        for s in mfmas(var, 0):
            A(s)
    A(f"s_lshl_b32 s{sT0}, s{sRB}, 3")
    A(f"s_lshl_b32 s{sT1}, s{sWp}, 1")
    A(f"s_add_u32 s{sT0}, s{sT0}, s{sT1}")
    T = list(range(FB[1], FB[1] + 20)) + list(range(120, 160))

    def ffn_tile(j, ftexpr_sgpr):
        for a in range(2):
            d = acc(j, a)
            P = T[24 + 4 * ((j * 2 + a) % 6):][:4]
            tmp = T[:8]
            for r in range(8):
                A(f"v_max_f32 v{tmp[r]}, 0, v{d+r}")
            for r in range(8):
                A(f"v_mul_f32 v{d+8+r}, v{d+8+r}, v{vR+a}")
            for r in range(8):
                A(f"v_mul_f32 v{tmp[r]}, v{tmp[r]}, v{d+8+r}")
            for r in range(4):
                A(f"v_cvt_pk_bf16_f32 v{P[r]}, v{tmp[2*r]}, v{tmp[2*r+1]}")
            A(f"s_add_u32 s{sT2}, s{sT0}, {a}")
            A(f"s_mul_i32 s{sT2}, s{sT2}, 112")
            A(f"s_add_u32 s{sT2}, s{sT2}, s{ftexpr_sgpr}")
            A(f"s_lshl_b32 s{sT2}, s{sT2}, 10")
            if OFF_H:
                A(f"s_add_u32 s{sT2}, s{sT2}, {OFF_H}")
            A(f"buffer_store_dwordx4 {vr(P[0],4)}, v{vL16}, s[{SRD_WS}:{SRD_WS+3}], s{sT2} offen sc1")

    def phi16(d, rs, out8):
        for half in range(2):
            t1 = T[0:8]
            t2 = T[8:16]
            for r in range(8):
                A(f"v_mul_f32 v{t1[r]}, v{d+8*half+r}, v{rs[8*half+r]}")
            for r in range(8):
                A(f"v_mul_f32 v{t2[r]}, s{sLog2e}, v{t1[r]}")
            for r in range(8):
                A(f"v_exp_f32_e64 v{t2[r]}, v{t2[r]} clamp")
            for r in range(8):
                A(f"v_max_f32 v{t1[r]}, 0, v{t1[r]}")
            for r in range(8):
                A(f"v_add_f32 v{t1[r]}, v{t1[r]}, v{t2[r]}")
            for r in range(8):
                A(f"v_add_f32 v{t1[r]}, s{sEps6}, v{t1[r]}")
            yield half, t1

    A("s_nop 7")
    A("s_nop 7")
    if var == "A0":
        PK = FB[0]
        PV = 136
        vOne = 152
        T = list(range(FB[1], FB[1] + 20))
        A(f"v_mov_b32 v{vOne}, 0x3f803f80")
        for a in range(2):
            rs = [vR + 16 * a + r for r in range(16)]
            for half, t1 in phi16(acc(0, a), rs, None):
                for r in range(4):
                    A(f"v_cvt_pk_bf16_f32 v{PK+8*a+4*half+r}, v{t1[2*r]}, v{t1[2*r+1]}")
            d = acc(1, a)
            for r in range(16):
                A(f"v_mul_f32 v{d+r}, v{d+r}, v{rs[r]}")
            for r in range(8):
                A(f"v_cvt_pk_bf16_f32 v{PV+8*a+r}, v{d+2*r}, v{d+2*r+1}")
            for r in range(8):
                A(f"v_cndmask_b32_e64 v{PV+8*a+r}, v{PV+8*a+r}, v{vOne}, s[{sMask24}:{sMask24+1}]")
        KV = acc(0, 0)
        A("s_nop 1")
        for a in range(2):
            for t in range(2):
                c = "0" if (a == 0 and t == 0) else vr(KV, 16)
                A(f"v_mfma_f32_32x32x16_bf16 {vr(KV,16)}, {vr(PK+8*a+4*t,4)}, {vr(PV+8*a+4*t,4)}, {c}")
        A(f"s_lshl_b32 s{sT1}, s{sWp}, 12")
        A(f"s_add_u32 s{sT1}, s{sT1}, {S2}")
        A(f"v_add_u32 v1, s{sT1}, v{vL16}")
        A("s_nop 7")
        A("s_nop 3")
        for q in range(4):
            A(f"ds_write_b128 v1, {vr(KV+4*q,4)} offset:{q*1024}")
        A("s_waitcnt lgkmcnt(0)")
        A("s_barrier")
        A(f"s_lshl_b32 s{sT1}, s{sWp}, 10")
        A(f"s_add_u32 s{sT1}, s{sT1}, {S2}")
        A(f"v_add_u32 v1, s{sT1}, v{vL16}")
        for p in range(4):
            A(f"ds_read_b128 {vr(FB[0]+4*p,4)}, v1 offset:{p*4096}")
        A("s_waitcnt lgkmcnt(0)")
        for r in range(4):
            A(f"v_add_f32 v{FB[0]+r}, v{FB[0]+r}, v{FB[0]+4+r}")
            A(f"v_add_f32 v{FB[0]+8+r}, v{FB[0]+8+r}, v{FB[0]+12+r}")
        for r in range(4):
            A(f"v_add_f32 v{FB[0]+r}, v{FB[0]+r}, v{FB[0]+8+r}")
        A(f"s_lshl_b32 s{sT2}, s{sH}, 3")
        A(f"s_add_u32 s{sT2}, s{sT2}, s{sRB}")
        A(f"s_lshl_b32 s{sT2}, s{sT2}, 12")
        A(f"s_lshl_b32 s{sT3}, s{sWp}, 10")
        A(f"s_add_u32 s{sT2}, s{sT2}, s{sT3}")
        A(f"s_add_u32 s{sT2}, s{sT2}, {OFF_KVP}")
        A(f"buffer_store_dwordx4 {vr(FB[0],4)}, v{vL16}, s[{SRD_WS}:{SRD_WS+3}], s{sT2} offen sc1")
    else:
        if var == "B0":
            PQ = 120
            T = list(range(FB[1], FB[1] + 20)) + list(range(136, 160)) + list(range(136, 160))
            for a in range(2):
                rs = [vR + a] * 16
                for half, t1 in phi16(acc(0, a), rs, None):
                    if half == 1:
                        for r in range(4, 8):
                            A(f"v_cndmask_b32_e64 v{t1[r]}, v{t1[r]}, 0, s[{sMaskLo32}:{sMaskLo32+1}]")
                    for r in range(4):
                        A(f"v_cvt_pk_bf16_f32 v{PQ+8*a+4*half+r}, v{t1[2*r]}, v{t1[2*r+1]}")
                A(f"s_add_u32 s{sT2}, s{sT0}, {a}")
                A(f"s_lshl_b32 s{sT2}, s{sT2}, 4")
                A(f"s_add_u32 s{sT2}, s{sT2}, s{sH}")
                A(f"s_lshl_b32 s{sT2}, s{sT2}, 11")
                A(f"s_add_u32 s{sT2}, s{sT2}, {OFF_PQ}")
                A(f"buffer_store_dwordx4 {vr(PQ+8*a,4)}, v{vL16}, s[{SRD_WS}:{SRD_WS+3}], s{sT2} offen sc1")
                A(f"s_add_u32 s{sT2}, s{sT2}, 1024")
                A(f"buffer_store_dwordx4 {vr(PQ+8*a+4,4)}, v{vL16}, s[{SRD_WS}:{SRD_WS+3}], s{sT2} offen sc1")
        else:
            T = list(range(FB[1], FB[1] + 20)) + list(range(120, 160))
        A(f"v_mul_f32 v{vR}, v{vR}, v{vR}")
        A(f"v_mul_f32 v{vR+1}, v{vR+1}, v{vR+1}")
        if var == "B0":
            T = list(range(FB[1], FB[1] + 20)) + list(range(136, 160)) + [140, 141, 142, 143] * 4
        for j, kind in enumerate(tiles):
            if kind != "f":
                continue
            if typ == "A":
                A(f"s_mul_i32 s{sT3}, s{sH}, 3")
                A(f"s_add_u32 s{sT3}, s{sT3}, {j}")
            else:
                jj = 0 if grp == 0 else j + 1
                A(f"s_lshl_b32 s{sT3}, s{sH}, 2")
                A(f"s_add_u32 s{sT3}, s{sT3}, {48 + jj}")
            ffn_tile(j, sT3)
    if var == "A1":
        A("s_barrier")
    if stamps and var in ("A0", "B0"):
        L = A.newlabel("K1_st")
        A(f"s_cmp_lg_u32 s{sW}, 0")
        A(f"s_cbranch_scc1 {L}")
        A("s_waitcnt vmcnt(0)")
        A(f"s_memrealtime s[{sK2}:{sK2+1}]")
        A("s_waitcnt lgkmcnt(0)")
        A(f"v_mov_b32 v4, s{sSt0}")
        A(f"v_mov_b32 v5, s{sSt0+1}")
        A(f"v_mov_b32 v6, s{sK2}")
        A(f"v_mov_b32 v7, s{sK2+1}")
        A(f"s_lshl_b32 s{sT2}, s2, 4")
        A(f"s_add_u32 s{sT2}, s{sT2}, {OFF_STAMP}")
        A("v_mov_b32 v1, 0")
        A(f"buffer_store_dwordx4 v[4:7], v1, s[{SRD_WS}:{SRD_WS+3}], s{sT2} offen")
        A(f"v_mov_b32 v8, s{sSt2}")
        A(f"v_mov_b32 v9, s{sSt2+1}")
        A(f"v_mov_b32 v10, s{sSt2+2}")
        A(f"v_mov_b32 v11, s{sSt2+3}")
        A(f"s_add_u32 s{sT2}, s{sT2}, {2*65536}")
        A(f"buffer_store_dwordx4 v[8:11], v1, s[{SRD_WS}:{SRD_WS+3}], s{sT2} offen")
        A.label(L)
    if opts.get("dbgst") and var == "A0":
        L = A.newlabel("K1_dst")
        A(f"s_cmp_lg_u32 s{sW}, 0")
        A(f"s_cbranch_scc1 {L}")
        A(f"s_cmp_lg_u32 s2, 0")
        A(f"s_cbranch_scc1 {L}")
        A("s_waitcnt vmcnt(0)")
        A(f"s_memrealtime s[{sK2}:{sK2+1}]")
        A(f"s_memtime s[88:89]")
        A("s_waitcnt lgkmcnt(0)")
        A(f"v_mov_b32 v4, s{sSt0}")
        A(f"v_mov_b32 v5, s{sK2}")
        A(f"v_mov_b32 v6, s86")
        A(f"v_mov_b32 v7, s88")
        A("v_mov_b32 v1, 0")
        A(f"s_mov_b32 s{sT2}, {OFF_ST + 0x8000}")
        A(f"buffer_store_dwordx4 v[4:7], v1, s[{SRD_WS}:{SRD_WS+3}], s{sT2} offen sc1")
        A.label(L)
    A("s_endpgm")
```

```python
from gen_common import *

LDS_BYTES = 4 * 64 * 272
NVGPR = 512
ACCOFF = 256
NSGPR = 72

SRD_WS, SRD_X, SRD_O, SRD_DBG = 4, 8, 12, 16
sW, sRB, sCB = 20, 21, 22
sH0, sH1, sW0, sW1 = 24, 25, 26, 27
sP0, sP1, sO0, sO1 = 28, 29, 30, 31
sKV = 32
sReady = 33
sT0, sT1, sT2, sT3 = 34, 35, 36, 37
sEps6 = 38
sXo = 39
sSt0 = 40
sHi = 48

vL16 = 1
vFl = 4
vXres = 8
vKV = 16
vD = 48
vOP = 112
vTmp = 128
ACC = 192
D = 8
A_RING = 0
A_PQ = 128
A_WO = 192
EPS6 = 0x358637BD


def accr(ci, ri):
    return ACC + (ci * 2 + ri) * 16


def emit(A, opts):
    stamps = opts.get("stamps", 0)
    PATT = opts.get("patt", 24)
    forceslow = opts.get("k2slow", 0)
    FLO = 128
    A("s_cmp_ge_u32 s2, 256")
    A("s_cbranch_scc1 K2_end")
    if stamps or opts.get("dbgst"):
        A(f"s_memrealtime s[{sSt0}:{sSt0+1}]")
    if opts.get("dbgst"):
        A(f"s_memtime s[54:55]")
    A(f"s_load_dwordx2 s[{SRD_WS}:{SRD_WS+1}], s[0:1], 72")
    A(f"s_load_dwordx2 s[{SRD_X}:{SRD_X+1}], s[0:1], 0")
    A(f"s_load_dwordx2 s[{SRD_O}:{SRD_O+1}], s[0:1], 56")
    A(f"s_load_dwordx2 s[{SRD_DBG}:{SRD_DBG+1}], s[0:1], 64")
    A("v_lshrrev_b32 v2, 6, v0")
    A("v_and_b32 v3, 63, v0")
    A(f"v_readfirstlane_b32 s{sW}, v2")
    A(f"v_lshlrev_b32 v{vL16}, 4, v3")
    for srd, nb in ((SRD_WS, WS_BYTES if not stamps else 0x10000000), (SRD_X, X_BYTES), (SRD_O, X_BYTES), (SRD_DBG, 256)):
        A(f"s_mov_b32 s{srd+2}, {nb}")
        A(f"s_mov_b32 s{srd+3}, 0x20000")
    A(f"s_mov_b32 s{sEps6}, 0x{EPS6:x}")
    A(f"s_mov_b32 s{sHi}, 0xffff0000")
    A(f"s_and_b32 s{sT0}, s2, 7")
    A(f"s_lshr_b32 s{sT1}, s2, 3")
    A(f"s_cmp_lt_u32 s{sT1}, 4")
    A("s_cbranch_scc1 K2_helper")
    A(f"s_sub_u32 s{sT1}, s{sT1}, 4")
    A(f"s_mul_i32 s{sT2}, s{sT1}, 37")
    A(f"s_lshr_b32 s{sT2}, s{sT2}, 8")
    A(f"s_mul_i32 s{sT3}, s{sT2}, 7")
    A(f"s_sub_u32 s{sCB}, s{sT1}, s{sT3}")
    A(f"s_lshl_b32 s{sRB}, s{sT0}, 2")
    A(f"s_add_u32 s{sRB}, s{sRB}, s{sT2}")
    A(f"s_mul_i32 s{sT0}, s{sW}, {28*1024}")
    A(f"s_mul_i32 s{sH0}, s{sRB}, {2*112*1024}")
    A(f"s_add_u32 s{sH0}, s{sH0}, s{sT0}")
    if OFF_H:
        A(f"s_add_u32 s{sH0}, s{sH0}, {OFF_H}")
    A(f"s_add_u32 s{sH1}, s{sH0}, {112*1024}")
    A(f"s_mul_i32 s{sW0}, s{sCB}, {2*112*1024}")
    A(f"s_add_u32 s{sW0}, s{sW0}, s{sT0}")
    A(f"s_add_u32 s{sW0}, s{sW0}, {OFF_WD}")
    A(f"s_add_u32 s{sW1}, s{sW0}, {112*1024}")
    A(f"s_lshl_b32 s{sT0}, s{sW}, 13")
    A(f"s_lshl_b32 s{sP0}, s{sRB}, 16")
    A(f"s_add_u32 s{sP0}, s{sP0}, s{sT0}")
    A(f"s_add_u32 s{sP0}, s{sP0}, {OFF_PQ}")
    A(f"s_add_u32 s{sP1}, s{sP0}, 32768")
    A(f"s_lshl_b32 s{sO0}, s{sCB}, 16")
    A(f"s_add_u32 s{sO0}, s{sO0}, s{sT0}")
    A(f"s_add_u32 s{sO0}, s{sO0}, {OFF_WO}")
    A(f"s_add_u32 s{sO1}, s{sO0}, 32768")
    A(f"s_add_u32 s{sKV}, s{sT0}, {OFF_KVF}")
    A(f"s_mov_b32 s{sReady}, 0")
    A("s_waitcnt lgkmcnt(0)")

    seq = [("f", k) for k in range(PATT)] + [("a", v) for v in range(8)] + [("f", k) for k in range(PATT, 28)]
    NPOS = len(seq)
    issued = []

    def issue_group(q):
        kind, k = seq[q]
        if kind == "f":
            base = A_RING + (k % D) * 16
            off = (k % 4) * 1024
            if k % 4 == 0 and k > 0:
                for s in (sH0, sH1, sW0, sW1):
                    A(f"s_add_u32 s{s}, s{s}, 4096")
            for j, s in enumerate((sW0, sH0, sH1, sW1)):
                A(f"buffer_load_dwordx4 {ar(base+4*j,4)}, v{vL16}, s[{SRD_WS}:{SRD_WS+3}], s{s} offen offset:{off}")
                issued.append((q, j))
        else:
            hh, t = k >> 1, k & 1
            off = (k % 4) * 1024
            if k == 4:
                for s in (sP0, sP1, sO0, sO1):
                    A(f"s_add_u32 s{s}, s{s}, 4096")
            pq = A_PQ + (hh * 2 + t) * 8
            wo = A_WO + (hh * 2 + t) * 8
            for j, (dst, s) in enumerate(((pq, sP0), (pq + 4, sP1), (wo, sO0), (wo + 4, sO1))):
                A(f"buffer_load_dwordx4 {ar(dst,4)}, v{vL16}, s[{SRD_WS}:{SRD_WS+3}], s{s} offen offset:{off}")
                issued.append((q, j))

    def wait_for(q, j):
        idx = issued.index((q, j))
        n = len(issued) - 1 - idx
        A(f"s_waitcnt vmcnt({min(63, n)})")

    def kvf_loads():
        A(f"s_add_u32 s{sT0}, s{sKV}, 4096")
        for i in range(8):
            s = sKV if i < 4 else sT0
            A(f"buffer_load_dwordx4 {vr(vKV+4*i,4)}, v{vL16}, s[{SRD_WS}:{SRD_WS+3}], s{s} offen offset:{(i%4)*1024} sc1")

    def check_flags(label_fail):
        A(f"v_and_b32 v{vFl}, v{vFl}, v{vFl+1}")
        A(f"v_and_b32 v{vFl+2}, v{vFl+2}, v{vFl+3}")
        A(f"v_and_b32 v{vFl}, v{vFl}, v{vFl+2}")
        A("s_nop 0")
        A(f"v_readfirstlane_b32 s{sT1}, v{vFl}")
        A(f"s_cmp_eq_u32 s{sT1}, 1")
        A(f"s_cbranch_scc0 {label_fail}")

    def poll_load():
        A(f"s_lshl_b32 s{sT1}, s{sW}, 4")
        A(f"v_mov_b32 v2, 0")
        A(f"buffer_load_dwordx4 {vr(vFl,4)}, v2, s[{SRD_DBG}:{SRD_DBG+3}], s{sT1} offen offset:{FLO} sc1")

    A("v_lshrrev_b32 v2, 2, v0")
    A("v_mul_u32_u24 v2, 896, v2")
    A("v_and_b32 v3, 3, v0")
    A("v_lshl_add_u32 v3, v3, 5, v2")
    A(f"s_mul_i32 s{sXo}, s{sRB}, {64*896}")
    A(f"s_lshl_b32 s{sT0}, s{sCB}, 7")
    A(f"s_add_u32 s{sXo}, s{sXo}, s{sT0}")

    for q in range(min(D, NPOS)):
        issue_group(q)
    for r in range(64):
        A(f"v_mov_b32 v{ACC+r}, 0")

    first_use = PATT + 1
    QC = opts.get("qc", first_use - D)
    PP = opts.get("ppoll", QC - D)
    assert PP >= 0
    att_done = set()

    def att_kv(hh):
        Db = vD + (hh & 1) * 32
        for ri in range(2):
            for t in range(2):
                a = vr(vKV + (hh * 2 + t) * 4, 4)
                b = ar(A_PQ + (hh * 2 + t) * 8 + 4 * ri, 4)
                c = "0" if t == 0 else vr(Db + 16 * ri, 16)
                A(f"v_mfma_f32_32x32x16_bf16 {vr(Db+16*ri,16)}, {a}, {b}, {c}")

    def att_norm(hh):
        Db = vD + (hh & 1) * 32
        for ri in range(2):
            d = Db + 16 * ri
            t0, t1 = vTmp + 2 * ri, vTmp + 2 * ri + 1
            A(f"v_mov_b32 v{t0}, v{d+12}")
            A(f"v_mov_b32 v{t1}, v{d+12}")
        A("s_nop 1")
        for ri in range(2):
            t0, t1 = vTmp + 2 * ri, vTmp + 2 * ri + 1
            A(f"v_permlane32_swap_b32 v{t0}, v{t1}")
        A("s_nop 1")
        for ri in range(2):
            t0 = vTmp + 2 * ri
            A(f"v_add_f32 v{t0}, s{sEps6}, v{t0}")
        for ri in range(2):
            t0 = vTmp + 2 * ri
            A(f"v_rcp_f32 v{t0}, v{t0}")
        A("s_nop 0")
        for ri in range(2):
            d = Db + 16 * ri
            t0 = vTmp + 2 * ri
            for r in range(16):
                A(f"v_mul_f32 v{d+r}, v{d+r}, v{t0}")
            for r in range(8):
                A(f"v_cvt_pk_bf16_f32 v{vOP+8*ri+r}, v{d+2*r}, v{d+2*r+1}")
        A("s_nop 1")

    def att_wo(hh):
        for t in range(2):
            for ci in range(2):
                for ri in range(2):
                    a = ar(A_WO + (hh * 2 + t) * 8 + 4 * ci, 4)
                    b = vr(vOP + 8 * ri + 4 * t, 4)
                    d = accr(ci, ri)
                    A(f"v_mfma_f32_32x32x16_bf16 {vr(d,16)}, {a}, {b}, {vr(d,16)}")

    first_att = True
    for q in range(NPOS):
        kind, k = seq[q]
        if q == QC:
            A(f"s_waitcnt vmcnt({min(63, len(issued) - 1 - issued.index('poll'))})")
            lab = A.newlabel("K2_nf")
            if not forceslow:
                check_flags(lab)
                A(f"s_mov_b32 s{sReady}, 1")
            A.label(lab)
            kvf_loads()
            for i in range(8):
                issued.append(("kvf", i))
        if kind == "f":
            base = A_RING + (k % D) * 16
            w0, h0, h1, w1 = base, base + 4, base + 8, base + 12
            wait_for(q, 1)
            A(f"v_mfma_f32_32x32x16_bf16 {vr(accr(0,0),16)}, {ar(w0,4)}, {ar(h0,4)}, {vr(accr(0,0),16)}")
            wait_for(q, 2)
            A(f"v_mfma_f32_32x32x16_bf16 {vr(accr(0,1),16)}, {ar(w0,4)}, {ar(h1,4)}, {vr(accr(0,1),16)}")
            wait_for(q, 3)
            A(f"v_mfma_f32_32x32x16_bf16 {vr(accr(1,0),16)}, {ar(w1,4)}, {ar(h0,4)}, {vr(accr(1,0),16)}")
            A(f"v_mfma_f32_32x32x16_bf16 {vr(accr(1,1),16)}, {ar(w1,4)}, {ar(h1,4)}, {vr(accr(1,1),16)}")
            if q == 0 and stamps:
                A(f"s_memrealtime s[{sSt0+4}:{sSt0+5}]")
        else:
            hh, t = k >> 1, k & 1
            if t == 1:
                if first_att:
                    first_att = False
                    lok = A.newlabel("K2_kvok")
                    A(f"s_cmp_eq_u32 s{sReady}, 1")
                    A(f"s_cbranch_scc0 K2_slow")
                    A.label("K2_slow_ret")
                    A(f"s_waitcnt vmcnt({min(63, len(issued) - 1 - issued.index(('kvf', 7)))})")
                wait_for(q, 3)
                att_kv(hh)
                if hh > 0:
                    att_norm(hh - 1)
                    att_wo(hh - 1)
                if hh == 3:
                    A("s_nop 7")
                    A("s_nop 3")
                    att_norm(3)
                    att_wo(3)
        nq = q + D
        if nq < NPOS:
            if q == PP:
                poll_load()
                issued.append("poll")
            issue_group(nq)
        if q == NPOS - D - 1 or (q == 0 and NPOS - D - 1 < 0):
            A(f"buffer_load_dwordx4 {vr(vXres,4)}, v3, s[{SRD_X}:{SRD_X+3}], s{sXo} offen")
            A(f"buffer_load_dwordx4 {vr(vXres+4,4)}, v3, s[{SRD_X}:{SRD_X+3}], s{sXo} offen offset:16")
            issued.append(("x", 0)); issued.append(("x", 1))
    if stamps:
        A(f"s_memrealtime s[{sSt0+6}:{sSt0+7}]")
    A("v_and_b32 v4, 31, v0")
    A("v_mul_u32_u24 v4, 272, v4")
    A("v_lshrrev_b32 v5, 5, v0")
    A("v_and_b32 v5, 1, v5")
    A("v_lshl_add_u32 v4, v5, 4, v4")
    A(f"s_mul_i32 s{sT0}, s{sW}, {64*272}")
    A(f"v_add_u32 v4, s{sT0}, v4")
    A("s_nop 7")
    A("s_nop 3")
    for ri in range(2):
        for ci in range(2):
            d = accr(ci, ri)
            for j in range(4):
                A(f"ds_write_b128 v4, {vr(d+4*j,4)} offset:{ri*32*272 + ci*128 + j*32}")
    A("v_lshrrev_b32 v5, 2, v0")
    A("v_mul_u32_u24 v5, 272, v5")
    A("v_and_b32 v6, 3, v0")
    A("v_lshl_add_u32 v5, v6, 6, v5")
    A("s_waitcnt lgkmcnt(0)")
    A("s_barrier")
    R = 128
    for p in range(4):
        for i in range(4):
            A(f"ds_read_b128 {vr(R+16*p+4*i,4)}, v5 offset:{p*64*272 + i*16}")
    A("s_waitcnt vmcnt(0)")
    for i in range(8):
        A(f"v_lshlrev_b32 v{16+2*i}, 16, v{vXres+i}")
        A(f"v_and_b32 v{17+2*i}, s{sHi}, v{vXres+i}")
    A("s_waitcnt lgkmcnt(0)")
    for r in range(16):
        A(f"v_add_f32 v{R+r}, v{R+r}, v{R+16+r}")
        A(f"v_add_f32 v{R+32+r}, v{R+32+r}, v{R+48+r}")
    for r in range(16):
        A(f"v_add_f32 v{R+r}, v{R+r}, v{R+32+r}")
    for r in range(16):
        A(f"v_add_f32 v{R+r}, v{R+r}, v{16+r}")
    for r in range(8):
        A(f"v_cvt_pk_bf16_f32 v{32+r}, v{R+2*r}, v{R+2*r+1}")
    A(f"buffer_store_dwordx4 v[32:35], v3, s[{SRD_O}:{SRD_O+3}], s{sXo} offen")
    A(f"buffer_store_dwordx4 v[36:39], v3, s[{SRD_O}:{SRD_O+3}], s{sXo} offen offset:16")
    if stamps:
        L = A.newlabel("K2_st")
        A(f"s_cmp_lg_u32 s{sW}, 0")
        A(f"s_cbranch_scc1 {L}")
        A("s_waitcnt vmcnt(0)")
        A(f"s_memrealtime s[{sSt0+2}:{sSt0+3}]")
        A("s_waitcnt lgkmcnt(0)")
        for i in range(8):
            A(f"v_mov_b32 v{4+i}, s{sSt0+i}")
        A(f"s_lshl_b32 s{sT2}, s2, 4")
        A(f"s_add_u32 s{sT2}, s{sT2}, {OFF_STAMP + 65536}")
        A("v_mov_b32 v1, 0")
        A(f"buffer_store_dwordx4 v[4:7], v1, s[{SRD_WS}:{SRD_WS+3}], s{sT2} offen")
        A(f"s_add_u32 s{sT2}, s{sT2}, {2*65536}")
        A(f"buffer_store_dwordx4 v[8:11], v1, s[{SRD_WS}:{SRD_WS+3}], s{sT2} offen")
        A.label(L)
    if opts.get("dbgst"):
        L = A.newlabel("K2_dst")
        A(f"s_cmp_lg_u32 s{sW}, 0")
        A(f"s_cbranch_scc1 {L}")
        A(f"s_cmp_lg_u32 s2, 40")
        A(f"s_cbranch_scc1 {L}")
        A("v_mov_b32 v1, 0")
        A(f"s_mov_b32 s{sT2}, {OFF_ST + 0x8000}")
        A(f"buffer_load_dwordx4 v[4:7], v1, s[{SRD_WS}:{SRD_WS+3}], s{sT2} offen sc1")
        A("s_waitcnt vmcnt(0)")
        A(f"s_memrealtime s[{sSt0+2}:{sSt0+3}]")
        A(f"s_memtime s[56:57]")
        A("s_waitcnt lgkmcnt(0)")
        A("v_sub_u32 v8, v5, v4")
        A("v_sub_u32 v9, v7, v6")
        A(f"v_sub_u32 v10, s{sSt0}, v5")
        A(f"s_sub_u32 s{sT0}, s{sSt0+2}, s{sSt0}")
        A(f"v_mov_b32 v11, s{sT0}")
        A(f"s_sub_u32 s{sT0}, s56, s54")
        A(f"v_mov_b32 v12, s{sT0}")
        A(f"v_mov_b32 v13, s{sReady}")
        A("v_mov_b32 v14, 0")
        A("v_mov_b32 v15, 0")
        A(f"s_mov_b32 s{sT2}, 128")
        A(f"buffer_store_dwordx4 v[8:11], v1, s[{SRD_DBG}:{SRD_DBG+3}], 0 offen")
        A(f"buffer_store_dwordx4 v[12:15], v1, s[{SRD_DBG}:{SRD_DBG+3}], 0 offen offset:16")
        A.label(L)
    A("s_endpgm")

    A.label("K2_slow")
    A(f"s_mov_b32 s{sT2}, 0")
    Lsp = A.newlabel("K2_spin")
    Lnf = A.newlabel("K2_spin_nf")
    Lfb = A.newlabel("K2_fallback")
    if not forceslow:
        A.label(Lsp)
        poll_load()
        A("s_waitcnt vmcnt(0)")
        check_flags(Lnf)
        kvf_loads()
        A("s_waitcnt vmcnt(0)")
        A("s_branch K2_slow_ret")
        A.label(Lnf)
        A("s_sleep 4")
        A(f"s_add_u32 s{sT2}, s{sT2}, 1")
        A(f"s_cmp_lt_u32 s{sT2}, 200")
        A(f"s_cbranch_scc1 {Lsp}")
    A("s_waitcnt vmcnt(0)")
    for hh in range(4):
        A(f"s_lshl_b32 s{sT0}, s{sW}, 17")
        A(f"s_add_u32 s{sT0}, s{sT0}, {OFF_KVP + hh*32768}")
        S = vD
        for rb in range(8):
            dst = S if rb == 0 else S + 16
            for q4 in range(4):
                A(f"buffer_load_dwordx4 {vr(dst+4*q4,4)}, v{vL16}, s[{SRD_WS}:{SRD_WS+3}], s{sT0} offen offset:{q4*1024}")
            A(f"s_add_u32 s{sT0}, s{sT0}, 4096")
            A("s_waitcnt vmcnt(0)")
            if rb > 0:
                for r in range(16):
                    A(f"v_add_f32 v{S+r}, v{S+r}, v{S+16+r}")
        for r in range(8):
            A(f"v_cvt_pk_bf16_f32 v{vKV+hh*8+r}, v{S+2*r}, v{S+2*r+1}")
    A("s_nop 1")
    A("s_branch K2_slow_ret")

    A.label("K2_helper")
    A(f"s_lshl_b32 s{sT1}, s{sT1}, 3")
    A(f"s_add_u32 s{sT1}, s{sT1}, s{sT0}")
    A(f"s_cmp_ge_u32 s{sT1}, 16")
    A("s_cbranch_scc1 K2_end")
    A("s_waitcnt lgkmcnt(0)")
    A(f"s_lshl_b32 s{sT2}, s{sT1}, 15")
    A(f"s_lshl_b32 s{sT3}, s{sW}, 10")
    A(f"s_add_u32 s{sT2}, s{sT2}, s{sT3}")
    A(f"s_add_u32 s{sT2}, s{sT2}, {OFF_KVP}")
    for rb in range(8):
        A(f"buffer_load_dwordx4 {vr(16+4*rb,4)}, v{vL16}, s[{SRD_WS}:{SRD_WS+3}], s{sT2} offen")
        A(f"s_add_u32 s{sT2}, s{sT2}, 4096")
    A("s_waitcnt vmcnt(0)")
    for r in range(4):
        A(f"v_add_f32 v{16+r}, v{16+r}, v{20+r}")
        A(f"v_add_f32 v{24+r}, v{24+r}, v{28+r}")
        A(f"v_add_f32 v{32+r}, v{32+r}, v{36+r}")
        A(f"v_add_f32 v{40+r}, v{40+r}, v{44+r}")
    for r in range(4):
        A(f"v_add_f32 v{16+r}, v{16+r}, v{24+r}")
        A(f"v_add_f32 v{32+r}, v{32+r}, v{40+r}")
    for r in range(4):
        A(f"v_add_f32 v{16+r}, v{16+r}, v{32+r}")
    A("v_cvt_pk_bf16_f32 v20, v16, v17")
    A("v_cvt_pk_bf16_f32 v21, v18, v19")
    A(f"s_lshl_b32 s{sT2}, s{sT1}, 11")
    A(f"s_lshr_b32 s{sT3}, s{sW}, 1")
    A(f"s_lshl_b32 s{sT3}, s{sT3}, 10")
    A(f"s_add_u32 s{sT2}, s{sT2}, s{sT3}")
    A(f"s_and_b32 s{sT3}, s{sW}, 1")
    A(f"s_lshl_b32 s{sT3}, s{sT3}, 3")
    A(f"s_add_u32 s{sT2}, s{sT2}, s{sT3}")
    A(f"s_add_u32 s{sT2}, s{sT2}, {OFF_KVF}")
    A(f"buffer_store_dwordx2 v[20:21], v{vL16}, s[{SRD_WS}:{SRD_WS+3}], s{sT2} offen sc1")
    A("s_waitcnt vmcnt(0)")
    A("s_barrier")
    A(f"s_cmp_lg_u32 s{sW}, 0")
    A("s_cbranch_scc1 K2_end")
    A(f"s_lshl_b32 s{sT2}, s{sT1}, 2")
    A("v_mov_b32 v2, 0")
    A("v_mov_b32 v4, 1")
    A("v_cmp_eq_u32 vcc, 0, v0")
    A("s_and_saveexec_b64 s[50:51], vcc")
    A(f"buffer_store_dword v4, v2, s[{SRD_DBG}:{SRD_DBG+3}], s{sT2} offen offset:{FLO} sc1")
    A.label("K2_end")
    A("s_endpgm")
```

```python
from gen_common import *

STAGE = 53376
LDS_BYTES = 163840
NVGPR = 256
ACCOFF = 256
NSGPR = 96

S1 = STAGE
S2 = 2 * STAGE
M_OFF = S1
R_OFF = S1 + 1024
SP_OFF = S1 + 2048

SRD_X, SRD_Q, SRD_G, SRD_U, SRD_WS, SRD_RP, SRD_DBG = 4, 8, 12, 16, 20, 24, 28
sW, sWp, sRB, sH, sCB = 32, 33, 34, 35, 36
sXbase, sHbase, sGbase = 37, 38, 39
sLx, sLh, sLg, sLu = 40, 41, 42, 43
sI, sC, sRS, sDelta, sNext = 44, 45, 46, 47, 48
sT0, sT1, sT2, sT3, sT4, sT5 = 49, 50, 51, 52, 53, 54
sMaskP = 56
sHi = 58
sEps6 = 59
sLog2e = 60
sRPoff = 61
sRProw = 62
sMaskLo32 = 64
sMask56 = 66
sMask24 = 68
sSt0, sSt1 = 70, 71
sSt2 = 72
sKT = 76
sK2 = 78
sStg = 84

vLane = 0
vT = list(range(1, 16))
vXA = [16, 17, 18, 19]
vWA0 = [20, 21, 22, 23]
vWA1 = [24, 25, 26, 27]
vX, vH, vG = 28, 29, 30
vL16 = 31
vCS = [32, 33, 34, 35, 36, 37]
vCT = [38, 39, 40, 41]
vRP = 44
vST = [148, 149, 150, 151]
vSum, vSq = 156, 158
vRPL = 120
FB = [48, 68]
vSP = 88
ACC = 160

F1_448 = 0x3B124925
EPS5 = 0x3727C5AC
EPS6 = 0x358637BD
LOG2E = 0x3FB8AA3B


def acc(j, a):
    return ACC + (j * 2 + a) * 16


VARIANTS = {
    "A0": ("A", 0, ["k", "v"]),
    "A1": ("A", 1, ["f", "f", "f"]),
    "B0": ("B", 0, ["q", "f"]),
    "B1": ("B", 1, ["f", "f", "f"]),
}


def wread_list(var, t, buf):
    b = FB[buf] + 8
    if var == "A0":
        spec = [(vWA0[t], 0, 512), (vWA1[t], 0, 512)]
    elif var == "A1":
        spec = [(vWA0[t], 32 * j, 384) for j in range(3)]
    elif var == "B0":
        spec = [(vWA0[t], 0, 256), (vWA1[t], 0, 512)]
    else:
        spec = [(vWA0[t], 0, 512), (vWA1[t], 64, 512), (vWA0[t], 64, 512)]
    out = []
    for j, (reg, imm, d2) in enumerate(spec):
        out.append(f"ds_read_b64_tr_b16 {vr(b+4*j,2)}, v{reg} offset:{imm}")
        out.append(f"ds_read_b64_tr_b16 {vr(b+4*j+2,2)}, v{reg} offset:{imm+d2}")
    return out


def reads(var, t, buf):
    b = FB[buf]
    xs = [f"ds_read_b128 {vr(b,4)}, v{vXA[t]}", f"ds_read_b128 {vr(b+4,4)}, v{vXA[t]} offset:4096"]
    ws = wread_list(var, t, buf)
    return [xs[0], ws[0], ws[1], xs[1]] + ws[2:]


def mfmas(var, buf):
    tiles = VARIANTS[var][2]
    b = FB[buf]
    out = []
    for j, kind in enumerate(tiles):
        for a in range(2):
            d = acc(j, a)
            xf = vr(b + 4 * a, 4)
            wf = vr(b + 8 + 4 * j, 4)
            if kind in ("k", "v"):
                out.append(f"v_mfma_f32_32x32x16_bf16 {vr(d,16)}, {xf}, {wf}, {vr(d,16)}")
            else:
                out.append(f"v_mfma_f32_32x32x16_bf16 {vr(d,16)}, {wf}, {xf}, {vr(d,16)}")
    return out


OPTS = {}


def cs_duty(var, buf, j):
    b = FB[buf] + 8
    out = []
    if OPTS.get("nocs"):
        return out
    for r in range(4):
        ta = vCT[(r % 2) * 2]
        src = b + 4 * j + r
        out.append(f"v_lshlrev_b32 v{ta}, 16, v{src}")
        out.append(f"v_and_b32 v{ta+1}, s{sHi}, v{src}")
        if OPTS.get("nopk"):
            out.append(f"v_add_f32 v{vCS[2*j]}, v{vCS[2*j]}, v{ta}")
            out.append(f"v_add_f32 v{vCS[2*j]+1}, v{vCS[2*j]+1}, v{ta+1}")
        else:
            out.append(f"v_pk_add_f32 {vr(vCS[2*j],2)}, {vr(vCS[2*j],2)}, {vr(ta,2)}")
    return out


def st_duty(var, buf):
    g = VARIANTS[var][1]
    b = FB[buf] + 4 * g
    out = []
    if OPTS.get("nost"):
        return out
    for r in range(4):
        ta = vST[(r % 2) * 2]
        src = b + r
        out.append(f"v_lshlrev_b32 v{ta}, 16, v{src}")
        out.append(f"v_and_b32 v{ta+1}, s{sHi}, v{src}")
        if OPTS.get("nopk"):
            out.append(f"v_add_f32 v{vSum}, v{vSum}, v{ta}")
            out.append(f"v_add_f32 v{vSum+1}, v{vSum+1}, v{ta+1}")
            out.append(f"v_fmac_f32 v{vSq}, v{ta}, v{ta}")
            out.append(f"v_fmac_f32 v{vSq+1}, v{ta+1}, v{ta+1}")
        else:
            out.append(f"v_pk_add_f32 {vr(vSum,2)}, {vr(vSum,2)}, {vr(ta,2)}")
            out.append(f"v_pk_fma_f32 {vr(vSq,2)}, {vr(ta,2)}, {vr(ta,2)}, {vr(vSq,2)}")
    return out


def merge(a, b):
    out = []
    na, nb = len(a), len(b)
    ia = ib = 0
    while ia < na or ib < nb:
        if ib >= nb or (ia < na and ia * nb <= ib * na):
            out.append(a[ia]); ia += 1
        else:
            out.append(b[ib]); ib += 1
    return out


def dma_units(typ, sStage):
    u = []
    u.append(f"s_lshl_b32 s{sT0}, s{sC}, 7\ns_add_u32 s{sT0}, s{sT0}, s{sXbase}\ns_add_u32 m0, s{sStage}, s{sLx}\ns_mul_i32 s{sT2}, s{sC}, {64*2688}\n"
             f"buffer_load_dwordx4 v{vX}, s[{SRD_X}:{SRD_X+3}], s{sT0} offen lds")
    for j in range(1, 4):
        u.append(f"s_add_u32 m0, m0, 8192\ns_add_u32 s{sT0}, s{sT0}, {64*896}\n"
                 f"buffer_load_dwordx4 v{vX}, s[{SRD_X}:{SRD_X+3}], s{sT0} offen lds")
    head = (f"s_add_u32 m0, s{sStage}, s{sLh}\ns_add_u32 s{sT2}, s{sT2}, s{sHbase}\n")
    headld = f"buffer_load_dwordx4 v{vH}, s[{SRD_Q}:{SRD_Q+3}], s{sT2} offen lds"
    gpre = f"s_mul_i32 s{sT3}, s{sC}, {64*3584}\ns_add_u32 m0, s{sStage}, s{sLg}\ns_add_u32 s{sT3}, s{sT3}, s{sGbase}\n"
    gld = f"buffer_load_dwordx4 v{vG}, s[{SRD_G}:{SRD_G+3}], s{sT3} offen lds"
    upre = f"s_add_u32 m0, s{sStage}, s{sLu}\ns_nop 0\n"
    uld = f"buffer_load_dwordx4 v{vG}, s[{SRD_U}:{SRD_U+3}], s{sT3} offen lds"
    mon = f"s_mov_b64 exec, s[{sMaskP}:{sMaskP+1}]\n"
    moff = "\ns_mov_b64 exec, -1"
    if typ == "A":
        u.append(head + headld)
        u.append(gpre + mon + gld + moff)
        u.append(upre + mon + uld + moff)
    else:
        u.append(head + mon + headld + moff)
        u.append(gpre + gld)
        u.append(upre + uld)
    u.append(f"s_add_u32 s{sC}, s{sC}, 1\ns_cmp_eq_u32 s{sC}, 7\ns_cselect_b32 s{sC}, 0, s{sC}")
    return u


def row_stats(A, src, vm, vrr, t):
    f = t[:8]
    for i in range(4):
        A(f"v_lshlrev_b32 v{f[2*i]}, 16, v{src+i}")
        A(f"v_and_b32 v{f[2*i+1]}, s{sHi}, v{src+i}")
    s = t[8]
    A(f"v_add_f32 v{s}, v{f[0]}, v{f[1]}")
    for i in range(2, 8):
        A(f"v_add_f32 v{s}, v{s}, v{f[i]}")
    wave_sum(A, s, sKT)
    A("s_nop 1")
    A(f"v_mov_b32 v{vm}, s{sKT}")
    A(f"v_mul_f32 v{vm}, 0x{F1_448:x}, v{vm}")
    for i in range(8):
        A(f"v_sub_f32 v{f[i]}, v{f[i]}, v{vm}")
    A(f"v_mul_f32 v{s}, v{f[0]}, v{f[0]}")
    for i in range(1, 8):
        A(f"v_fmac_f32 v{s}, v{f[i]}, v{f[i]}")
    A(f"v_cndmask_b32_e64 v{s}, 0, v{s}, s[{sMask56}:{sMask56+1}]")
    wave_sum(A, s, sKT)
    A("s_nop 1")
    A(f"v_mov_b32 v{vrr}, s{sKT}")
    A(f"v_mov_b32 v{t[9]}, 0x{EPS5:x}")
    A(f"v_fmac_f32 v{t[9]}, 0x{F1_448:x}, v{vrr}")
    A(f"v_rsq_f32 v{vrr}, v{t[9]}")
    A("s_nop 0")


def stamp(A, which):
    pass


def emit(A, opts):
    OPTS.update(opts)
    stamps = opts.get("stamps", 0)
    A("s_cmp_ge_u32 s2, 256")
    A("s_cbranch_scc1 K1_end")
    if stamps or opts.get("dbgst"):
        A(f"s_memrealtime s[{sSt0}:{sSt0+1}]")
    if opts.get("dbgst"):
        A(f"s_memtime s[86:87]")
    A(f"s_load_dwordx2 s[{SRD_X}:{SRD_X+1}], s[0:1], 0")
    A(f"s_load_dwordx2 s[{SRD_Q}:{SRD_Q+1}], s[0:1], 8")
    A(f"s_load_dwordx2 s[{SRD_G}:{SRD_G+1}], s[0:1], 32")
    A(f"s_load_dwordx2 s[{SRD_U}:{SRD_U+1}], s[0:1], 40")
    A(f"s_load_dwordx2 s[{SRD_WS}:{SRD_WS+1}], s[0:1], 72")
    A(f"s_load_dwordx2 s[80:81], s[0:1], 48")
    A(f"s_load_dwordx2 s[82:83], s[0:1], 16")
    A(f"s_load_dwordx2 s[{SRD_DBG}:{SRD_DBG+1}], s[0:1], 64")
    A("v_lshrrev_b32 v1, 6, v0")
    A("v_and_b32 v0, 63, v0")
    A(f"v_readfirstlane_b32 s{sW}, v1")
    for srd, nb in ((SRD_X, X_BYTES), (SRD_Q, Q_BYTES), (SRD_G, G_BYTES), (SRD_U, G_BYTES), (SRD_WS, WS_BYTES if not stamps else 0x10000000), (SRD_DBG, 256)):
        A(f"s_mov_b32 s{srd+2}, {nb}")
        A(f"s_mov_b32 s{srd+3}, 0x20000")
    A(f"s_and_b32 s{sT0}, s2, 7")
    A(f"s_lshr_b32 s{sT1}, s2, 3")
    A(f"s_and_b32 s{sRB}, s{sT0}, 1")
    A(f"s_lshl_b32 s{sRB}, s{sRB}, 2")
    A(f"s_and_b32 s{sT2}, s{sT1}, 3")
    A(f"s_add_u32 s{sRB}, s{sRB}, s{sT2}")
    A(f"s_lshr_b32 s{sCB}, s{sT0}, 1")
    A(f"s_lshl_b32 s{sCB}, s{sCB}, 3")
    A(f"s_lshr_b32 s{sT2}, s{sT1}, 2")
    A(f"s_add_u32 s{sCB}, s{sCB}, s{sT2}")
    A(f"s_and_b32 s{sH}, s{sCB}, 15")
    A(f"s_and_b32 s{sWp}, s{sW}, 3")
    A(f"s_mov_b32 s{sHi}, 0xffff0000")
    A(f"s_mov_b32 s{sStg}, {STAGE}")
    A(f"s_mov_b32 s{sEps6}, 0x{EPS6:x}")
    A(f"s_mov_b32 s{sLog2e}, 0x{LOG2E:x}")
    A(f"s_mov_b32 s{sMaskLo32}, -1")
    A(f"s_mov_b32 s{sMaskLo32+1}, 0")
    A(f"s_mov_b32 s{sMask56}, -1")
    A(f"s_mov_b32 s{sMask56+1}, 0x00ffffff")
    A(f"s_mov_b32 s{sMask24}, 0x01000000")
    A(f"s_mov_b32 s{sMask24+1}, 0x01000000")
    A(f"s_lshl_b32 s{sT0}, s{sRB}, 8")
    A(f"s_lshl_b32 s{sT1}, s{sW}, 3")
    A(f"s_add_u32 s{sT0}, s{sT0}, s{sT1}")
    A(f"s_mul_i32 s{sXbase}, s{sT0}, 896")
    A(f"s_lshl_b32 s{sLx}, s{sW}, 10")
    A(f"v_lshrrev_b32 v1, 3, v0")
    A(f"v_lshrrev_b32 v2, 4, v0")
    A(f"s_and_b32 s{sT1}, s{sW}, 1")
    A(f"s_lshl_b32 s{sT1}, s{sT1}, 2")
    A(f"v_add_u32 v3, s{sT1}, v2")
    A(f"v_and_b32 v4, 7, v0")
    A(f"v_xor_b32 v4, v4, v3")
    A(f"v_lshlrev_b32 v4, 4, v4")
    A(f"v_mul_u32_u24 v{vX}, 896, v1")
    A(f"v_add_u32 v{vX}, v{vX}, v4")
    A(f"v_lshlrev_b32 v{vL16}, 4, v0")
    A(f"s_cmp_eq_u32 s{sRB}, 7")
    A(f"s_cselect_b32 s{sC}, 0, s{sRB}")
    if opts.get("norot"):
        A(f"s_mov_b32 s{sC}, 0")
    A(f"s_lshl_b32 s{sT0}, s2, 3")
    A(f"s_add_u32 s{sT0}, s{sT0}, s{sW}")
    A(f"s_lshl_b32 s{sRPoff}, s{sT0}, 10")
    A(f"s_add_u32 s{sRPoff}, s{sRPoff}, {OFF_WD}")
    A(f"s_cmp_ge_u32 s{sCB}, 16")
    A("s_cbranch_scc1 K1_typeB")
    for typ in ("A", "B"):
        A.label(f"K1_type{typ}")
        if typ == "A":
            A("v_lshrrev_b32 v1, 3, v0")
            A("v_lshrrev_b32 v2, 4, v0")
            A("v_and_b32 v2, 1, v2")
            A("v_lshlrev_b32 v2, 2, v2")
            A("v_and_b32 v3, 7, v0")
            A("v_xor_b32 v3, v3, v2")
            A("v_and_b32 v4, 3, v3")
            A("v_lshrrev_b32 v3, 2, v3")
            A("v_lshlrev_b32 v5, 4, v4")
            A("v_cmp_eq_u32 vcc, 3, v4")
            A("v_mul_u32_u24 v3, 896, v3")
            A("v_add_u32 v3, 896, v3")
            A("v_mov_b32 v6, 40")
            A("v_cndmask_b32 v5, v5, v6, vcc")
            A(f"v_mul_u32_u24 v{vH}, 2688, v1")
            A(f"v_add3_u32 v{vH}, v{vH}, v3, v5")
            A("v_mul_u32_u24 v1, 43, v0")
            A("v_lshrrev_b32 v1, 8, v1")
            A("v_mul_u32_u24 v2, 6, v1")
            A("v_sub_u32 v2, v0, v2")
            A("v_lshlrev_b32 v2, 4, v2")
            A(f"v_mul_u32_u24 v{vG}, 3584, v1")
            A(f"v_add_u32 v{vG}, v{vG}, v2")
            A(f"s_mov_b32 s{sMaskP}, -1")
            A(f"s_mov_b32 s{sMaskP+1}, 0xffff")
            A(f"s_mul_i32 s{sT1}, s{sH}, 96")
            A(f"s_lshl_b32 s{sLh}, s{sW}, 10")
            A(f"s_add_u32 s{sLh}, s{sLh}, 32768")
            A(f"s_mul_i32 s{sLg}, s{sW}, 768")
            A(f"s_add_u32 s{sLu}, s{sLg}, 47232")
            A(f"s_add_u32 s{sLg}, s{sLg}, 40960")
        else:
            A("v_lshrrev_b32 v1, 2, v0")
            A("v_and_b32 v4, 3, v0")
            A("v_lshlrev_b32 v5, 4, v4")
            A("v_cmp_eq_u32 vcc, 3, v4")
            A("v_mov_b32 v6, 40")
            A(f"v_mul_u32_u24 v{vH}, 2688, v1")
            A("v_cndmask_b32 v5, v5, v6, vcc")
            A(f"v_add_u32 v{vH}, v{vH}, v5")
            A("v_lshrrev_b32 v1, 3, v0")
            A("v_lshrrev_b32 v2, 4, v0")
            A("v_and_b32 v2, 1, v2")
            A("v_lshlrev_b32 v2, 1, v2")
            A("v_and_b32 v3, 7, v0")
            A("v_xor_b32 v3, v3, v2")
            A("v_lshlrev_b32 v3, 4, v3")
            A(f"v_mul_u32_u24 v{vG}, 3584, v1")
            A(f"v_add_u32 v{vG}, v{vG}, v3")
            A(f"s_mov_b32 s{sMaskP}, -1")
            A(f"s_mov_b32 s{sMaskP+1}, 0")
            A(f"s_lshl_b32 s{sT1}, s{sH}, 7")
            A(f"s_add_u32 s{sT1}, s{sT1}, 1536")
            A(f"s_lshl_b32 s{sLh}, s{sW}, 9")
            A(f"s_add_u32 s{sLh}, s{sLh}, 32768")
            A(f"s_lshl_b32 s{sLg}, s{sW}, 10")
            A(f"s_add_u32 s{sLu}, s{sLg}, 45120")
            A(f"s_add_u32 s{sLg}, s{sLg}, 36864")
        A(f"s_mul_i32 s{sGbase}, s{sW}, {8*3584}")
        A(f"s_add_u32 s{sGbase}, s{sGbase}, s{sT1}")
        A(f"s_mul_i32 s{sHbase}, s{sW}, {8*2688}")
        A(f"s_mul_i32 s{sT1}, s{sH}, 56")
        A(f"s_add_u32 s{sHbase}, s{sHbase}, s{sT1}")
        A("s_waitcnt lgkmcnt(0)")
        for st in (0, 1):
            A(f"s_mov_b32 s{sT4}, {st*STAGE}")
            for u in dma_units(typ, sT4):
                A(u)
        A(f"s_lshl_b32 s{sT0}, s2, 3")
        A(f"s_add_u32 s{sT0}, s{sT0}, s{sW}")
        A(f"s_mul_i32 s{sT1}, s{sT0}, 9363")
        A(f"s_lshr_b32 s{sT1}, s{sT1}, 20")
        A(f"s_mul_i32 s{sT2}, s{sT1}, 112")
        A(f"s_sub_u32 s{sT2}, s{sT0}, s{sT2}")
        A(f"s_lshl_b32 s{sT2}, s{sT2}, 4")
        A(f"s_sub_u32 s{sT3}, s{sT0}, 1568")
        A(f"s_lshr_b32 s{sT4}, s{sT3}, 5")
        A(f"s_lshr_b32 s{sT5}, s{sT3}, 1")
        A(f"s_and_b32 s{sT5}, s{sT5}, 15")
        A(f"s_mul_i32 s{sT5}, s{sT5}, 28")
        A(f"s_and_b32 s{sKT}, s{sT3}, 1")
        A(f"s_lshl_b32 s{sK2}, s{sKT}, 4")
        A(f"s_add_u32 s{sT5}, s{sT5}, s{sK2}")
        A(f"s_cmp_lt_u32 s{sT0}, 1568")
        A(f"s_cselect_b32 s{sT1}, s{sT1}, s{sT4}")
        A(f"s_cselect_b32 s{sT2}, s{sT2}, s{sT5}")
        A(f"s_cselect_b32 s{sKT}, 0, s{sKT}")
        A(f"s_cselect_b32 s{SRD_RP}, s80, s82")
        A(f"s_cselect_b32 s{SRD_RP+1}, s81, s83")
        A(f"s_mov_b32 s{SRD_RP+2}, {WO_BYTES}")
        A(f"s_cselect_b32 s{SRD_RP+2}, {WD_BYTES}, s{SRD_RP+2}")
        A(f"s_mov_b32 s{SRD_RP+3}, 0x20000")
        A(f"s_mul_i32 s{sRProw}, s{sT2}, 896")
        A(f"s_lshl_b32 s{sT1}, s{sT1}, 6")
        A(f"s_add_u32 s{sRProw}, s{sRProw}, s{sT1}")
        A("v_and_b32 v1, 31, v0")
        A("v_lshlrev_b32 v1, 1, v1")
        A("v_lshrrev_b32 v2, 5, v0")
        A("v_mul_u32_u24 v2, 3584, v2")
        A("v_add_u32 v2, v1, v2")
        A("v_mov_b32 v3, 0x40000000")
        A(f"v_cndmask_b32_e64 v3, v1, v3, s[{sMaskLo32}:{sMaskLo32+1}]")
        A(f"s_cmp_eq_u32 s{sKT}, 1")
        A(f"s_cselect_b64 vcc, -1, 0")
        A("s_nop 1")
        A("v_cndmask_b32 v3, v2, v3, vcc")
        lrp = A.newlabel("K1_norp")
        A(f"s_cmp_ge_u32 s{sT0}, 2016")
        A(f"s_cselect_b32 s{sRPoff}, -1, s{sRPoff}")
        A(f"s_cbranch_scc1 {lrp}")
        for j in range(8):
            ro = j if j < 4 else 8 + (j - 4)
            vo = 2 if j < 4 else 3
            A(f"s_add_u32 s{sT1}, s{sRProw}, {ro*896}")
            A(f"buffer_load_ushort v{vRPL + j}, v{vo}, s[{SRD_RP}:{SRD_RP+3}], s{sT1} offen")
        A.label(lrp)
        A(f"s_mov_b32 s{sT4}, {2*STAGE}")
        for u in dma_units(typ, sT4):
            A(u)
        for r in range(96):
            A(f"v_mov_b32 v{ACC+r}, 0")
        for r in vCS + [vSum, vSum + 1, vSq, vSq + 1]:
            A(f"v_mov_b32 v{r}, 0")
        A("v_and_b32 v1, 31, v0")
        A("v_lshrrev_b32 v2, 5, v0")
        A("v_lshrrev_b32 v3, 1, v1")
        A("v_and_b32 v3, 7, v3")
        A(f"s_lshl_b32 s{sT0}, s{sWp}, 13")
        A("v_lshlrev_b32 v4, 7, v1")
        A(f"v_add_u32 v4, s{sT0}, v4")
        for t in range(4):
            A(f"s_add_u32 s{sT1}, s{sWp}, {t}")
            A(f"s_and_b32 s{sT1}, s{sT1}, 3")
            A(f"s_lshl_b32 s{sT1}, s{sT1}, 1")
            A(f"v_add_u32 v5, s{sT1}, v2")
            A(f"v_xor_b32 v5, v5, v3")
            A(f"v_lshlrev_b32 v5, 4, v5")
            A(f"v_add_u32 v{vXA[t]}, v4, v5")
        A(f"s_cmp_ge_u32 s{sW}, 4")
        A(f"s_cbranch_scc1 K1_{typ}1")
        for g in (0, 1):
            var = f"{typ}{g}"
            A.label(f"K1_{var}")
            variant(A, var, opts)
    A.label("K1_end")
    A("s_endpgm")


def w_addr_setup(A, var):
    A("v_lshrrev_b32 v1, 2, v0")
    A("v_and_b32 v1, 3, v1")
    A("v_and_b32 v2, 3, v0")
    A("v_lshrrev_b32 v3, 5, v0")
    A("v_lshrrev_b32 v4, 4, v0")
    A("v_and_b32 v4, 1, v4")
    A("v_lshlrev_b32 v5, 3, v3")
    A("v_add_u32 v5, v5, v1")
    A("v_lshrrev_b32 v6, 1, v1")
    A("v_lshlrev_b32 v7, 3, v2")
    if var == "A0":
        A("v_lshrrev_b32 v8, 1, v2")
        A("v_lshl_add_u32 v8, v4, 1, v8")
        A("v_lshlrev_b32 v9, 2, v6")
        A("v_xor_b32 v8, v8, v9")
        A("v_lshlrev_b32 v8, 4, v8")
        A("v_and_b32 v9, 1, v2")
        A("v_lshl_add_u32 v8, v9, 3, v8")
        A("v_lshl_add_u32 v8, v5, 7, v8")
        A("v_add_u32 v8, 32768, v8")
        A("v_xor_b32 v9, 64, v8")
        p0 = p1 = 128
    elif var == "A1":
        A("v_mul_u32_u24 v8, 96, v5")
        A("v_add_u32 v8, v8, v7")
        A(f"v_mul_u32_u24 v9, {47232-40960}, v4")
        A("v_add3_u32 v8, v8, v9, 0")
        A("v_add_u32 v8, 40960, v8")
        p0 = p1 = 96
    else:
        A("v_lshl_add_u32 v10, v5, 7, v7")
        A(f"v_mul_u32_u24 v9, {45120-36864}, v4")
        A("v_add_u32 v10, v10, v9")
        A("v_add_u32 v10, 36864, v10")
        A("v_lshlrev_b32 v11, 5, v6")
        if var == "B0":
            A("v_lshl_add_u32 v8, v5, 6, v7")
            A("v_lshl_add_u32 v8, v4, 5, v8")
            A("v_add_u32 v8, 32768, v8")
            A("v_add_u32 v9, v10, v11")
            p0, p1 = 64, 128
        else:
            A("v_xor_b32 v12, 32, v11")
            A("v_add_u32 v8, v10, v12")
            A("v_add_u32 v9, v10, v11")
            p0 = p1 = 128
    for t in range(4):
        A(f"s_add_u32 s{sT1}, s{sWp}, {t}")
        A(f"s_and_b32 s{sT1}, s{sT1}, 3")
        A(f"s_mul_i32 s{sT2}, s{sT1}, {16*p0}")
        A(f"v_add_u32 v{vWA0[t]}, s{sT2}, v8")
        if var != "A1":
            A(f"s_mul_i32 s{sT2}, s{sT1}, {16*p1}")
            A(f"v_add_u32 v{vWA1[t]}, s{sT2}, v9")


def slow_row_stats(A, var):
    L = A.newlabel("K1_srs")
    A(f"v_lshlrev_b32 v{vSP}, 4, v0")
    A(f"v_mov_b32 v{vSP+1}, 0x40000000")
    A(f"v_cndmask_b32_e64 v{vSP}, v{vSP+1}, v{vSP}, s[{sMask56}:{sMask56+1}]")
    A(f"s_lshl_b32 s{sT0}, s{sRB}, 8")
    A(f"s_lshl_b32 s{sT1}, s{sW}, 5")
    A(f"s_add_u32 s{sT0}, s{sT0}, s{sT1}")
    A(f"s_mul_i32 s{sT0}, s{sT0}, 896")
    A(f"s_lshl_b32 s{sT1}, s{sW}, 7")
    A(f"s_add_u32 s{sT1}, s{sT1}, {M_OFF}")
    A(f"s_mov_b32 s{sT2}, 0")
    A.label(L)
    A(f"buffer_load_dwordx4 {vr(vSP+4,4)}, v{vSP}, s[{SRD_X}:{SRD_X+3}], s{sT0} offen")
    A("s_waitcnt vmcnt(0)")
    row_stats(A, vSP + 4, vSP + 2, vSP + 3, list(range(vSP + 8, vSP + 18)))
    A(f"v_mov_b32 v{vSP+8}, s{sT1}")
    A(f"ds_write_b32 v{vSP+8}, v{vSP+2}")
    A(f"ds_write_b32 v{vSP+8}, v{vSP+3} offset:1024")
    A(f"s_add_u32 s{sT0}, s{sT0}, 896")
    A(f"s_add_u32 s{sT1}, s{sT1}, 4")
    A(f"s_add_u32 s{sT2}, s{sT2}, 1")
    A(f"s_cmp_lt_u32 s{sT2}, 32")
    A(f"s_cbranch_scc1 {L}")


def variant(A, var, opts):
    typ, grp, tiles = VARIANTS[var]
    stamps = opts.get("stamps", 0)
    nt = len(tiles)
    nreg = 1 if var == "A1" else 2
    w_addr_setup(A, var)
    A(f"s_mov_b32 s{sI}, 0")
    A(f"s_mov_b32 s{sRS}, 0")
    lsk = A.newlabel("K1_w0")
    A(f"s_cmp_eq_u32 s{sRPoff}, -1")
    A(f"s_cbranch_scc0 {lsk}")
    A("s_waitcnt vmcnt(14)")
    A.label(lsk)
    A("s_waitcnt vmcnt(22)")
    A("s_barrier")
    if stamps:
        A(f"s_memrealtime s[{sSt2}:{sSt2+1}]")
    for s in reads(var, 0, 0):
        A(s)
    Lloop = f"K1_{var}_loop"
    A.label(Lloop)
    for t in range(3):
        A("s_waitcnt lgkmcnt(0)")
        d = st_duty(var, t & 1)
        jd = t - (1 if grp == 0 else 0)
        if 0 <= jd < nt:
            d = merge(d, cs_duty(var, t & 1, jd))
        fill = reads(var, t + 1, (t + 1) & 1) + d
        for s in interleave(mfmas(var, t & 1), fill):
            A(s)
    Lpre = f"K1_{var}_pre"
    Lpre_ret = f"K1_{var}_pre_ret"
    A("s_waitcnt lgkmcnt(0)")
    A("s_waitcnt vmcnt(7)")
    A(f"s_cmp_ge_u32 s{sI}, 5")
    A(f"s_cbranch_scc1 {Lpre}")
    A.label(Lpre_ret)
    A("s_barrier")
    A(f"s_add_u32 s{sNext}, s{sRS}, {STAGE}")
    A(f"s_cmp_eq_u32 s{sNext}, {3*STAGE}")
    A(f"s_cselect_b32 s{sDelta}, {-2*STAGE}, s{sStg}")
    A(f"s_cselect_b32 s{sNext}, 0, s{sNext}")
    upd0 = [f"v_add_u32 v{vXA[0]}, s{sDelta}, v{vXA[0]}", f"v_add_u32 v{vWA0[0]}, s{sDelta}, v{vWA0[0]}"]
    if nreg == 2:
        upd0.append(f"v_add_u32 v{vWA1[0]}, s{sDelta}, v{vWA1[0]}")
    for s in upd0:
        A(s)
    upd = []
    for t in range(1, 4):
        upd.append(f"v_add_u32 v{vXA[t]}, s{sDelta}, v{vXA[t]}")
        upd.append(f"v_add_u32 v{vWA0[t]}, s{sDelta}, v{vWA0[t]}")
        if nreg == 2:
            upd.append(f"v_add_u32 v{vWA1[t]}, s{sDelta}, v{vWA1[t]}")
    Lpost = f"K1_{var}_post"
    Lpost_ret = f"K1_{var}_post_ret"
    Lt3_nodma = f"K1_{var}_t3n"
    Lt3_done = f"K1_{var}_t3d"
    A(f"s_cmp_eq_u32 s{sI}, 0")
    A(f"s_cbranch_scc1 {Lpost}")
    A(f"s_cmp_ge_u32 s{sI}, 4")
    A(f"s_cbranch_scc1 {Lpost}")
    A.label(Lpost_ret)
    fill = reads(var, 0, 0) + merge(upd + ([] if opts.get("nodma") else dma_units(typ, sRS)), st_duty(var, 1))
    for s in interleave(mfmas(var, 1), fill):
        A(s)
    A.label(Lt3_done)
    A(f"s_mov_b32 s{sRS}, s{sNext}")
    A(f"s_add_u32 s{sI}, s{sI}, 1")
    A(f"s_cmp_lt_u32 s{sI}, 7")
    A(f"s_cbranch_scc1 {Lloop}")
    A(f"s_branch K1_{var}_epi")
    A.label(Lt3_nodma)
    fill = reads(var, 0, 0) + merge(upd, st_duty(var, 1))
    for s in interleave(mfmas(var, 1), fill):
        A(s)
    A(f"s_branch {Lt3_done}")
    A.label(Lpre)
    A("s_waitcnt vmcnt(0)")
    A(f"s_cmp_eq_u32 s{sI}, 6")
    A(f"s_cbranch_scc0 {Lpre_ret}")
    for x in st_duty(var, 1):
        A(x)
    A(f"v_add_f32 v{vSum}, v{vSum}, v{vSum+1}")
    A(f"v_add_f32 v{vSq}, v{vSq}, v{vSq+1}")
    A(f"v_mov_b32 v{vSum+1}, v{vSum}")
    A(f"v_mov_b32 v{vSq+1}, v{vSq}")
    A("s_nop 1")
    A(f"v_permlane32_swap_b32 v{vSum}, v{vSum+1}")
    A(f"v_permlane32_swap_b32 v{vSq}, v{vSq+1}")
    A("s_nop 1")
    A(f"v_add_f32 v{vSum}, v{vSum}, v{vSum+1}")
    A(f"v_add_f32 v{vSq}, v{vSq}, v{vSq+1}")
    A(f"v_mul_f32 v{vSum}, 0x{F1_448:x}, v{vSum}")
    A(f"v_mul_f32 v{vSq}, 0x{F1_448:x}, v{vSq}")
    A(f"v_fma_f32 v{vSq}, -v{vSum}, v{vSum}, v{vSq}")
    A(f"v_max_f32 v{vSq}, 0, v{vSq}")
    A(f"v_add_f32 v{vSq}, 0x{EPS5:x}, v{vSq}")
    A(f"v_rsq_f32 v{vSq}, v{vSq}")
    A("v_and_b32 v1, 31, v0")
    A("v_lshlrev_b32 v1, 2, v1")
    A(f"s_lshl_b32 s{sT0}, s{sWp}, 8")
    A(f"s_add_u32 s{sT0}, s{sT0}, {M_OFF + 128 * grp}")
    A(f"v_add_u32 v2, s{sT0}, v1")
    A(f"ds_write_b32 v2, v{vSum}")
    A(f"ds_write_b32 v2, v{vSq} offset:1024")
    for j in range(nt):
        A(f"v_add_f32 v{vCS[2*j]}, v{vCS[2*j]}, v{vCS[2*j+1]}")
    for j in range(nt):
        A(f"v_mov_b32 v{vCS[2*j+1]}, v{vCS[2*j]}")
    A("s_nop 1")
    for j in range(nt):
        A(f"v_permlane32_swap_b32 v{vCS[2*j]}, v{vCS[2*j+1]}")
    A("s_nop 1")
    for j in range(nt):
        A(f"v_add_f32 v{vCS[2*j]}, v{vCS[2*j]}, v{vCS[2*j+1]}")
    jb = 0 if grp == 0 else 2
    A("v_and_b32 v1, 31, v0")
    A("v_lshlrev_b32 v1, 2, v1")
    A(f"s_mul_i32 s{sT0}, s{sWp}, 640")
    A(f"s_add_u32 s{sT0}, s{sT0}, {SP_OFF + jb*128}")
    A(f"v_add_u32 v1, s{sT0}, v1")
    for j in range(nt):
        A(f"ds_write_b32 v1, v{vCS[2*j]} offset:{j*128}")
    A("s_waitcnt lgkmcnt(0)")
    A(f"s_branch {Lpre_ret}")
    A.label(Lpost)
    Lp4 = A.newlabel("K1_p4")
    Lp6 = A.newlabel("K1_p6")
    A(f"s_cmp_eq_u32 s{sI}, 0")
    A(f"s_cbranch_scc0 {Lp4}")
    A(f"s_cmp_eq_u32 s{sRPoff}, -1")
    A(f"s_cbranch_scc1 {Lpost_ret}")
    for j in range(4):
        A(f"v_lshl_or_b32 v{vRP+j}, v{vRPL+2*j+1}, 16, v{vRPL+2*j}")
    A(f"buffer_store_dwordx4 {vr(vRP,4)}, v{vL16}, s[{SRD_WS}:{SRD_WS+3}], s{sRPoff} offen sc1")
    A(f"s_branch {Lpost_ret}")
    A.label(Lp4)
    A.label(Lp6)
    A(f"s_cmp_eq_u32 s{sI}, 6")
    A(f"s_cbranch_scc0 {Lt3_nodma}")
    vM = vSP
    vS = vSP + 2
    vR = vSP + 16
    A("v_and_b32 v1, 31, v0")
    A("v_lshlrev_b32 v1, 2, v1")
    A(f"s_lshl_b32 s{sT0}, s{sWp}, 8")
    A(f"s_add_u32 s{sT0}, s{sT0}, {M_OFF}")
    A(f"v_add_u32 v2, s{sT0}, v1")
    A(f"ds_read_b32 v{vM}, v2")
    A(f"ds_read_b32 v{vM+1}, v2 offset:128")
    A(f"v_add_u32 v3, {SP_OFF + jb*128}, v1")
    for j in range(nt):
        for p in range(4):
            A(f"ds_read_b32 v{vS+4*j+p}, v3 offset:{j*128 + p*640}")
    if var == "A0":
        A("v_lshrrev_b32 v4, 5, v0")
        A("v_lshlrev_b32 v4, 4, v4")
        A(f"v_add_u32 v4, s{sT0}, v4")
        for a in range(2):
            for j in range(4):
                A(f"ds_read_b128 {vr(vR+16*a+4*j,4)}, v4 offset:{1024 + a*128 + j*32}")
    else:
        A(f"ds_read_b32 v{vR}, v2 offset:1024")
        A(f"ds_read_b32 v{vR+1}, v2 offset:{1024+128}")
    A(f"s_branch {Lt3_nodma}")

    A.label(f"K1_{var}_epi")
    if stamps:
        A(f"s_memrealtime s[{sSt2+2}:{sSt2+3}]")
    A("s_waitcnt lgkmcnt(0)")
    XC = FB[0]
    WC = FB[0] + 8
    for a in range(2):
        m = vM + a
        A(f"v_sub_f32 v{m}, 0, v{m}")
        A(f"v_cndmask_b32_e64 v{m}, 0, v{m}, s[{sMaskLo32}:{sMaskLo32+1}]")
    for a in range(2):
        m = vM + a
        A(f"v_cvt_pk_bf16_f32 v{XC+4*a+1}, v{m}, 0")
    for a in range(2):
        A(f"v_lshlrev_b32 v{1+a}, 16, v{XC+4*a+1}")
    for a in range(2):
        A(f"v_sub_f32 v{1+a}, v{vM+a}, v{1+a}")
    for a in range(2):
        A(f"v_cvt_pk_bf16_f32 v{XC+4*a}, v{vM+a}, v{1+a}")
        A(f"v_mov_b32 v{XC+4*a+2}, 0")
        A(f"v_mov_b32 v{XC+4*a+3}, 0")
    for j in range(nt):
        s = vS + 4 * j
        A(f"v_add_f32 v{s}, v{s}, v{s+1}")
        A(f"v_add_f32 v{s+2}, v{s+2}, v{s+3}")
    for j in range(nt):
        s = vS + 4 * j
        A(f"v_add_f32 v{s}, v{s}, v{s+2}")
    for j in range(nt):
        s = vS + 4 * j
        A(f"v_cvt_pk_bf16_f32 v{WC+4*j}, v{s}, v{s}")
    for j in range(nt):
        s = vS + 4 * j
        A(f"v_lshlrev_b32 v{s+1}, 16, v{WC+4*j}")
    for j in range(nt):
        s = vS + 4 * j
        A(f"v_sub_f32 v{s+1}, v{s}, v{s+1}")
    for j in range(nt):
        s = vS + 4 * j
        A(f"v_cvt_pk_bf16_f32 v{WC+4*j+1}, v{s+1}, 0")
        A(f"v_mov_b32 v{WC+4*j+2}, 0")
        A(f"v_mov_b32 v{WC+4*j+3}, 0")
    A("s_nop 1")
    if not opts.get("nocorr"):
        for s in mfmas(var, 0):
            A(s)
    A(f"s_lshl_b32 s{sT0}, s{sRB}, 3")
    A(f"s_lshl_b32 s{sT1}, s{sWp}, 1")
    A(f"s_add_u32 s{sT0}, s{sT0}, s{sT1}")
    T = list(range(FB[1], FB[1] + 20)) + list(range(120, 160))

    def ffn_tile(j, ftexpr_sgpr):
        for a in range(2):
            d = acc(j, a)
            P = T[24 + 4 * ((j * 2 + a) % 6):][:4]
            tmp = T[:8]
            for r in range(8):
                A(f"v_max_f32 v{tmp[r]}, 0, v{d+r}")
            for r in range(8):
                A(f"v_mul_f32 v{d+8+r}, v{d+8+r}, v{vR+a}")
            for r in range(8):
                A(f"v_mul_f32 v{tmp[r]}, v{tmp[r]}, v{d+8+r}")
            for r in range(4):
                A(f"v_cvt_pk_bf16_f32 v{P[r]}, v{tmp[2*r]}, v{tmp[2*r+1]}")
            A(f"s_add_u32 s{sT2}, s{sT0}, {a}")
            A(f"s_mul_i32 s{sT2}, s{sT2}, 112")
            A(f"s_add_u32 s{sT2}, s{sT2}, s{ftexpr_sgpr}")
            A(f"s_lshl_b32 s{sT2}, s{sT2}, 10")
            if OFF_H:
                A(f"s_add_u32 s{sT2}, s{sT2}, {OFF_H}")
            A(f"buffer_store_dwordx4 {vr(P[0],4)}, v{vL16}, s[{SRD_WS}:{SRD_WS+3}], s{sT2} offen sc1")

    def phi16(d, rs, out8):
        for half in range(2):
            t1 = T[0:8]
            t2 = T[8:16]
            for r in range(8):
                A(f"v_mul_f32 v{t1[r]}, v{d+8*half+r}, v{rs[8*half+r]}")
            for r in range(8):
                A(f"v_mul_f32 v{t2[r]}, s{sLog2e}, v{t1[r]}")
            for r in range(8):
                A(f"v_exp_f32_e64 v{t2[r]}, v{t2[r]} clamp")
            for r in range(8):
                A(f"v_max_f32 v{t1[r]}, 0, v{t1[r]}")
            for r in range(8):
                A(f"v_add_f32 v{t1[r]}, v{t1[r]}, v{t2[r]}")
            for r in range(8):
                A(f"v_add_f32 v{t1[r]}, s{sEps6}, v{t1[r]}")
            yield half, t1

    A("s_nop 7")
    A("s_nop 7")
    if var == "A0":
        PK = FB[0]
        PV = 136
        vOne = 152
        T = list(range(FB[1], FB[1] + 20))
        A(f"v_mov_b32 v{vOne}, 0x3f803f80")
        for a in range(2):
            rs = [vR + 16 * a + r for r in range(16)]
            for half, t1 in phi16(acc(0, a), rs, None):
                for r in range(4):
                    A(f"v_cvt_pk_bf16_f32 v{PK+8*a+4*half+r}, v{t1[2*r]}, v{t1[2*r+1]}")
            d = acc(1, a)
            for r in range(16):
                A(f"v_mul_f32 v{d+r}, v{d+r}, v{rs[r]}")
            for r in range(8):
                A(f"v_cvt_pk_bf16_f32 v{PV+8*a+r}, v{d+2*r}, v{d+2*r+1}")
            for r in range(8):
                A(f"v_cndmask_b32_e64 v{PV+8*a+r}, v{PV+8*a+r}, v{vOne}, s[{sMask24}:{sMask24+1}]")
        KV = acc(0, 0)
        A("s_nop 1")
        for a in range(2):
            for t in range(2):
                c = "0" if (a == 0 and t == 0) else vr(KV, 16)
                A(f"v_mfma_f32_32x32x16_bf16 {vr(KV,16)}, {vr(PK+8*a+4*t,4)}, {vr(PV+8*a+4*t,4)}, {c}")
        A(f"s_lshl_b32 s{sT1}, s{sWp}, 12")
        A(f"s_add_u32 s{sT1}, s{sT1}, {S2}")
        A(f"v_add_u32 v1, s{sT1}, v{vL16}")
        A("s_nop 7")
        A("s_nop 3")
        for q in range(4):
            A(f"ds_write_b128 v1, {vr(KV+4*q,4)} offset:{q*1024}")
        A("s_waitcnt lgkmcnt(0)")
        A("s_barrier")
        A(f"s_lshl_b32 s{sT1}, s{sWp}, 10")
        A(f"s_add_u32 s{sT1}, s{sT1}, {S2}")
        A(f"v_add_u32 v1, s{sT1}, v{vL16}")
        for p in range(4):
            A(f"ds_read_b128 {vr(FB[0]+4*p,4)}, v1 offset:{p*4096}")
        A("s_waitcnt lgkmcnt(0)")
        for r in range(4):
            A(f"v_add_f32 v{FB[0]+r}, v{FB[0]+r}, v{FB[0]+4+r}")
            A(f"v_add_f32 v{FB[0]+8+r}, v{FB[0]+8+r}, v{FB[0]+12+r}")
        for r in range(4):
            A(f"v_add_f32 v{FB[0]+r}, v{FB[0]+r}, v{FB[0]+8+r}")
        A(f"s_lshl_b32 s{sT2}, s{sH}, 3")
        A(f"s_add_u32 s{sT2}, s{sT2}, s{sRB}")
        A(f"s_lshl_b32 s{sT2}, s{sT2}, 12")
        A(f"s_lshl_b32 s{sT3}, s{sWp}, 10")
        A(f"s_add_u32 s{sT2}, s{sT2}, s{sT3}")
        A(f"s_add_u32 s{sT2}, s{sT2}, {OFF_KVP}")
        A(f"buffer_store_dwordx4 {vr(FB[0],4)}, v{vL16}, s[{SRD_WS}:{SRD_WS+3}], s{sT2} offen sc1")
    else:
        if var == "B0":
            PQ = 120
            T = list(range(FB[1], FB[1] + 20)) + list(range(136, 160)) + list(range(136, 160))
            for a in range(2):
                rs = [vR + a] * 16
                for half, t1 in phi16(acc(0, a), rs, None):
                    if half == 1:
                        for r in range(4, 8):
                            A(f"v_cndmask_b32_e64 v{t1[r]}, v{t1[r]}, 0, s[{sMaskLo32}:{sMaskLo32+1}]")
                    for r in range(4):
                        A(f"v_cvt_pk_bf16_f32 v{PQ+8*a+4*half+r}, v{t1[2*r]}, v{t1[2*r+1]}")
                A(f"s_add_u32 s{sT2}, s{sT0}, {a}")
                A(f"s_lshl_b32 s{sT2}, s{sT2}, 4")
                A(f"s_add_u32 s{sT2}, s{sT2}, s{sH}")
                A(f"s_lshl_b32 s{sT2}, s{sT2}, 11")
                A(f"s_add_u32 s{sT2}, s{sT2}, {OFF_PQ}")
                A(f"buffer_store_dwordx4 {vr(PQ+8*a,4)}, v{vL16}, s[{SRD_WS}:{SRD_WS+3}], s{sT2} offen sc1")
                A(f"s_add_u32 s{sT2}, s{sT2}, 1024")
                A(f"buffer_store_dwordx4 {vr(PQ+8*a+4,4)}, v{vL16}, s[{SRD_WS}:{SRD_WS+3}], s{sT2} offen sc1")
        else:
            T = list(range(FB[1], FB[1] + 20)) + list(range(120, 160))
        A(f"v_mul_f32 v{vR}, v{vR}, v{vR}")
        A(f"v_mul_f32 v{vR+1}, v{vR+1}, v{vR+1}")
        if var == "B0":
            T = list(range(FB[1], FB[1] + 20)) + list(range(136, 160)) + [140, 141, 142, 143] * 4
        for j, kind in enumerate(tiles):
            if kind != "f":
                continue
            if typ == "A":
                A(f"s_mul_i32 s{sT3}, s{sH}, 3")
                A(f"s_add_u32 s{sT3}, s{sT3}, {j}")
            else:
                jj = 0 if grp == 0 else j + 1
                A(f"s_lshl_b32 s{sT3}, s{sH}, 2")
                A(f"s_add_u32 s{sT3}, s{sT3}, {48 + jj}")
            ffn_tile(j, sT3)
    if var == "A1":
        A("s_barrier")
    if stamps and var in ("A0", "B0"):
        L = A.newlabel("K1_st")
        A(f"s_cmp_lg_u32 s{sW}, 0")
        A(f"s_cbranch_scc1 {L}")
        A("s_waitcnt vmcnt(0)")
        A(f"s_memrealtime s[{sK2}:{sK2+1}]")
        A("s_waitcnt lgkmcnt(0)")
        A(f"v_mov_b32 v4, s{sSt0}")
        A(f"v_mov_b32 v5, s{sSt0+1}")
        A(f"v_mov_b32 v6, s{sK2}")
        A(f"v_mov_b32 v7, s{sK2+1}")
        A(f"s_lshl_b32 s{sT2}, s2, 4")
        A(f"s_add_u32 s{sT2}, s{sT2}, {OFF_STAMP}")
        A("v_mov_b32 v1, 0")
        A(f"buffer_store_dwordx4 v[4:7], v1, s[{SRD_WS}:{SRD_WS+3}], s{sT2} offen")
        A(f"v_mov_b32 v8, s{sSt2}")
        A(f"v_mov_b32 v9, s{sSt2+1}")
        A(f"v_mov_b32 v10, s{sSt2+2}")
        A(f"v_mov_b32 v11, s{sSt2+3}")
        A(f"s_add_u32 s{sT2}, s{sT2}, {2*65536}")
        A(f"buffer_store_dwordx4 v[8:11], v1, s[{SRD_WS}:{SRD_WS+3}], s{sT2} offen")
        A.label(L)
    if opts.get("dbgst") and var == "A0":
        L = A.newlabel("K1_dst")
        A(f"s_cmp_lg_u32 s{sW}, 0")
        A(f"s_cbranch_scc1 {L}")
        A(f"s_cmp_lg_u32 s2, 0")
        A(f"s_cbranch_scc1 {L}")
        A("s_waitcnt vmcnt(0)")
        A(f"s_memrealtime s[{sK2}:{sK2+1}]")
        A(f"s_memtime s[88:89]")
        A("s_waitcnt lgkmcnt(0)")
        A(f"v_mov_b32 v4, s{sSt0}")
        A(f"v_mov_b32 v5, s{sK2}")
        A(f"v_mov_b32 v6, s86")
        A(f"v_mov_b32 v7, s88")
        A("v_mov_b32 v1, 0")
        A(f"s_mov_b32 s{sT2}, {OFF_ST + 0x8000}")
        A(f"buffer_store_dwordx4 v[4:7], v1, s[{SRD_WS}:{SRD_WS+3}], s{sT2} offen sc1")
        A.label(L)
    A("s_endpgm")
```

```python
NAME = "parallel_sum__linear_attn_block__glu_gated_reglu__prompt"
K1NAME = NAME + "_kernel"
K2NAME = NAME + "_p2_kernel"

OFF_H = 0x000000
OFF_WD = 0x700000
OFF_WO = OFF_WD + 1568 * 1024
OFF_PQ = 0x900000
OFF_KVP = 0xD00000
OFF_KVF = 0xC00000
OFF_ST = 0xC10000
OFF_CS = 0xC20000
WS_BYTES = 0x1000000
OFF_STAMP = 200 * 1024 * 1024

X_BYTES = 2048 * 896
Q_BYTES = 448 * 2688
G_BYTES = 448 * 3584
WD_BYTES = 1792 * 896
WO_BYTES = 448 * 896


class Asm:
    def __init__(self):
        self.lines = []
        self.uid = 0

    def raw(self, s):
        self.lines.append(s)

    def __call__(self, s):
        for l in s.split("\n"):
            l = l.strip()
            if l:
                self.lines.append("    " + l)

    def label(self, l):
        self.lines.append(l + ":")

    def newlabel(self, p="L"):
        self.uid += 1
        return f"{p}_{self.uid}"

    def c(self, s):
        self.lines.append("    ; " + s)

    def text(self):
        return "\n".join(self.lines) + "\n"


def vr(a, n=1):
    return f"v{a}" if n == 1 else f"v[{a}:{a+n-1}]"


def sr(a, n=1):
    return f"s{a}" if n == 1 else f"s[{a}:{a+n-1}]"


def ar(a, n=1):
    return f"a{a}" if n == 1 else f"a[{a}:{a+n-1}]"


def interleave(main, fill):
    out = []
    n = len(main)
    for i, m in enumerate(main):
        out.append(m)
        out.extend(fill[i * len(fill) // n:(i + 1) * len(fill) // n])
    return out


def wave_sum(A, v, tmp_s):
    A("s_nop 1")
    for sh in (1, 2, 4, 8):
        A(f"v_add_f32_dpp v{v}, v{v}, v{v} row_shr:{sh} row_mask:0xf bank_mask:0xf bound_ctrl:0")
        A("s_nop 1")
    A(f"v_add_f32_dpp v{v}, v{v}, v{v} row_bcast:15 row_mask:0xa bank_mask:0xf")
    A("s_nop 1")
    A(f"v_add_f32_dpp v{v}, v{v}, v{v} row_bcast:31 row_mask:0xc bank_mask:0xf")
    A("s_nop 1")
    A(f"v_readlane_b32 s{tmp_s}, v{v}, 63")


class Stamps:
    def __init__(self, A, base, kidx, on):
        self.A, self.base, self.kidx, self.on = A, base, kidx, on
        self.ins = "s_memtime" if on == 2 else "s_memrealtime"

    def mark(self, i):
        if self.on:
            self.A(f"{self.ins} s[{self.base+2*i}:{self.base+2*i+1}]")

    def zero(self):
        if self.on:
            for i in range(8):
                self.A(f"s_mov_b32 s{self.base+2*i}, 0")

    def dump(self, sW, srd, sT, last=7):
        if not self.on:
            return
        A = self.A
        A("s_waitcnt vmcnt(0)")
        self.mark(last)
        A("s_waitcnt lgkmcnt(0)")
        for i in range(8):
            A(f"v_mov_b32 v{4+i}, s{self.base+2*i}")
        A(f"s_lshl_b32 s{sT}, s2, 3")
        A(f"s_add_u32 s{sT}, s{sT}, s{sW}")
        A(f"s_lshl_b32 s{sT}, s{sT}, 5")
        A(f"s_add_u32 s{sT}, s{sT}, {OFF_STAMP + self.kidx * 0x10000}")
        A("v_mov_b32 v1, 0")
        A(f"buffer_store_dwordx4 v[4:7], v1, s[{srd}:{srd+3}], s{sT} offen")
        A(f"buffer_store_dwordx4 v[8:11], v1, s[{srd}:{srd+3}], s{sT} offen offset:16")
```

```python
from gen_common import *
import struct

STAGE = 53376
LDS_BYTES = 163840
NVGPR = 256
ACCOFF = 256
NSGPR = 102

S1 = STAGE
S2 = 2 * STAGE
TOP = 3 * STAGE
M_OFF = S1
R_OFF = S1 + 1024
CP_OFF = S1 + 2048
RPS_OFF = S1 + 8192
OOB = 0x40000000

SRD_X, SRD_Q, SRD_G, SRD_U, SRD_WS, SRD_RP = 4, 8, 12, 16, 20, 24
sW, sWp, sRB, sH, sCB = 32, 33, 34, 35, 36
sXbase, sHbase, sGbase = 37, 38, 39
sLx, sLh, sLg, sLu = 40, 41, 42, 43
sC, sXc, sHc, sGc = 44, 45, 46, 47
sHb2, sLh2 = 48, 28
sT0, sT1, sT2, sT3, sT4, sT5 = 49, 50, 51, 52, 53, 54
sWin = 55
sMaskP = 56
sHi = 58
sTag = 60
sRPoff = 62
sRProw = 63
sMaskLo32 = 64
sMask24 = 66
sOk = 68
sNeed = 70
sKT, sK2 = 72, 73
sD0, sD1 = 74, 75
sCSo = 76
sSpec = 77
sCnt = 78
sLim = 79
sWDp, sWOp = 80, 82
sOk2 = 84

vXA = [[16, 17, 18, 19], [124, 125, 126, 127]]
vWA0 = [[20, 21, 22, 23], [128, 129, 130, 131]]
vWA1 = [[24, 25, 26, 27], [132, 133, 134, 135]]
vX, vH, vG = 28, 29, 30
vL16 = 31
vCS = [32, 33, 34, 35, 36, 37]
vCT = [38, 39, 40, 41]
vRPo, vCSo = 42, 43
vRP = 44
FB = [48, 68]
XC = 88
WC = 96
ACC = 160

F1_448 = 0x3B124925
EPS5 = 0x3727C5AC
EPS6 = 0x358637BD
LOG2E = 0x3FB8AA3B
CHK = 0x5BD1E995
DELTA = 300
NRETRY = 40
NEG_EPS_LOG2E = struct.unpack("<I", struct.pack("<f", -1e-6 * 1.4426950408889634))[0]

OPTS = {}
ST = None


def acc(j, a):
    return ACC + (j * 2 + a) * 16


VARIANTS = {
    "A0": ("A", 0, ["k", "v"]),
    "A1": ("A", 1, ["f", "f", "f"]),
    "B0": ("B", 0, ["q", "f"]),
    "B1": ("B", 1, ["f", "f", "f"]),
}


class Em:
    def __init__(self, A):
        self.A = A
        self.ops = []

    def copy_state(self):
        return list(self.ops)

    def __call__(self, s):
        for l in s.split("\n"):
            l = l.strip()
            if not l:
                continue
            if l.startswith("@vm "):
                self.ops.append(l[4:].strip())
            elif l.startswith("@wait "):
                tag = l[6:].strip()
                idx = max(i for i, t in enumerate(self.ops) if t == tag)
                n = len(self.ops) - 1 - idx
                assert n <= 63
                self.A(f"s_waitcnt vmcnt({n})")
            else:
                self.A(l)


def stage_sel(n):
    s = n % 3
    return (1 if s == 2 else 0), (STAGE if s == 1 else 0)


def wread_list(var, n, t, buf):
    b = FB[buf] + 8
    st, ib = stage_sel(n)
    w0, w1 = vWA0[st][t], vWA1[st][t]
    if var == "A0":
        spec = [(w0, 0, 512), (w1, 0, 512)]
    elif var == "A1":
        spec = [(w0, 32 * j, 384) for j in range(3)]
    elif var == "B0":
        spec = [(w0, 0, 256), (w1, 0, 512)]
    else:
        spec = [(w0, 0, 512), (w1, 64, 512), (w0, 64, 512)]
    out = []
    for j, (reg, imm, d2) in enumerate(spec):
        out.append(f"ds_read_b64_tr_b16 {vr(b+4*j,2)}, v{reg} offset:{ib+imm}")
        out.append(f"ds_read_b64_tr_b16 {vr(b+4*j+2,2)}, v{reg} offset:{ib+imm+d2}")
    return out


def reads(var, n, t, buf):
    b = FB[buf]
    st, ib = stage_sel(n)
    xa = vXA[st][t]
    xs = [f"ds_read_b128 {vr(b,4)}, v{xa} offset:{ib}", f"ds_read_b128 {vr(b+4,4)}, v{xa} offset:{ib+4096}"]
    ws = wread_list(var, n, t, buf)
    return [xs[0], ws[0], ws[1], xs[1]] + ws[2:]


def mfmas_regs(var, xb, wb, zero=False):
    tiles = VARIANTS[var][2]
    out = []
    for j, kind in enumerate(tiles):
        for a in range(2):
            d = acc(j, a)
            xf = vr(xb + 4 * a, 4)
            wf = vr(wb + 4 * j, 4)
            c = "0" if zero else vr(d, 16)
            if kind in ("k", "v"):
                out.append(f"v_mfma_f32_32x32x16_bf16 {vr(d,16)}, {xf}, {wf}, {c}")
            else:
                out.append(f"v_mfma_f32_32x32x16_bf16 {vr(d,16)}, {wf}, {xf}, {c}")
    return out


def mfmas(var, buf, zero=False):
    return mfmas_regs(var, FB[buf], FB[buf] + 8, zero)


def cs_duty(var, buf, j):
    b = FB[buf] + 8
    out = []
    for r in range(4):
        ta = vCT[(r % 2) * 2]
        src = b + 4 * j + r
        out.append(f"v_lshlrev_b32 v{ta}, 16, v{src}")
        out.append(f"v_and_b32 v{ta+1}, s{sHi}, v{src}")
        if r == 0:
            out.append(f"v_add_f32 v{vCS[2*j]}, 0, v{ta}")
            out.append(f"v_add_f32 v{vCS[2*j]+1}, 0, v{ta+1}")
        else:
            out.append(f"v_add_f32 v{vCS[2*j]}, v{vCS[2*j]}, v{ta}")
            out.append(f"v_add_f32 v{vCS[2*j]+1}, v{vCS[2*j]+1}, v{ta+1}")
    return out


def dma_units(typ, stage_off, tag):
    vm = f"@vm {tag}\n"
    u = []
    u.append(f"s_lshl_b32 s{sD0}, s{sC}, 7\ns_add_u32 s{sD0}, s{sD0}, s{sXbase}\ns_add_u32 m0, s{sLx}, {stage_off}\ns_mul_i32 s{sD1}, s{sC}, {64*2688}\n"
             + vm + f"buffer_load_dwordx4 v{vX}, s[{SRD_X}:{SRD_X+3}], s{sD0} offen lds")
    for j in range(1, 4):
        u.append(f"s_add_u32 m0, m0, 8192\ns_add_u32 s{sD0}, s{sD0}, {64*896}\n"
                 + vm + f"buffer_load_dwordx4 v{vX}, s[{SRD_X}:{SRD_X+3}], s{sD0} offen lds")
    head = (f"s_add_u32 m0, s{sLh}, {stage_off}\ns_add_u32 s{sD1}, s{sD1}, s{sHbase}\n")
    headld = vm + f"buffer_load_dwordx4 v{vH}, s[{SRD_Q}:{SRD_Q+3}], s{sD1} offen lds"
    gpre = f"s_mul_i32 s{sD0}, s{sC}, {64*3584}\ns_add_u32 m0, s{sLg}, {stage_off}\ns_add_u32 s{sD0}, s{sD0}, s{sGbase}\n"
    gld = vm + f"buffer_load_dwordx4 v{vG}, s[{SRD_G}:{SRD_G+3}], s{sD0} offen lds"
    upre = f"s_add_u32 m0, s{sLu}, {stage_off}\ns_nop 0\n"
    uld = vm + f"buffer_load_dwordx4 v{vG}, s[{SRD_U}:{SRD_U+3}], s{sD0} offen lds"
    mon = f"s_mov_b64 exec, s[{sMaskP}:{sMaskP+1}]\n"
    moff = "\ns_mov_b64 exec, -1"
    if typ == "A":
        u.append(head + headld)
        u.append(gpre + mon + gld + moff)
        u.append(upre + mon + uld + moff)
    else:
        u.append(head + mon + headld + moff)
        u.append(gpre + gld)
        u.append(upre + uld + "")
    u[-1] += f"\ns_add_u32 s{sC}, s{sC}, 1\ns_cmp_eq_u32 s{sC}, 7\ns_cselect_b32 s{sC}, 0, s{sC}"
    return u


def dma14(typ, n):
    SB = (n % 3) * STAGE
    vm = f"@vm c{n}\n"
    hb = sHbase if typ == "A" else sHb2
    pre = (f"s_lshl_b32 s{sXc}, s{sC}, 7\ns_mul_i32 s{sHc}, s{sC}, {64*2688}\ns_mul_i32 s{sGc}, s{sC}, {64*3584}\n"
           f"s_add_u32 s{sXc}, s{sXc}, s{sXbase}\ns_add_u32 s{sHc}, s{sHc}, s{hb}\ns_add_u32 s{sGc}, s{sGc}, s{sGbase}\n"
           f"s_add_u32 s{sC}, s{sC}, 1\ns_cmp_eq_u32 s{sC}, 7\ns_cselect_b32 s{sC}, 0, s{sC}\n")
    mon = f"s_mov_b64 exec, s[{sMaskP}:{sMaskP+1}]\n"
    moff = "\ns_mov_b64 exec, -1"
    u = []

    def piece(lds_s, lds_imm, base_s, goff, vaddr, srd, masked):
        s = f"s_add_u32 m0, s{lds_s}, {SB + lds_imm}\n"
        if goff:
            s += f"s_add_u32 s{sD0}, s{base_s}, {goff}\n"
            so = sD0
        else:
            s += "s_nop 0\n" if not masked else ""
            so = base_s
        if masked:
            s += mon
        s += vm + f"buffer_load_dwordx4 v{vaddr}, s[{srd}:{srd+3}], s{so} offen lds"
        if masked:
            s += moff
        return s
    for j in range(8):
        u.append(piece(sLx, j * 4096, sXc, j * 32 * 896, vX, SRD_X, False))
    if typ == "A":
        for j in range(2):
            u.append(piece(sLh, j * 4096, sHc, j * 32 * 2688, vH, SRD_Q, False))
        for j in range(2):
            u.append(piece(sLg, j * 3072, sGc, j * 32 * 3584, vG, SRD_G, True))
            u.append(piece(sLu, j * 3072, sGc, j * 32 * 3584, vG, SRD_U, True))
    else:
        u.append(piece(sLh2, 0, sHc, 0, vH, SRD_Q, False))
        for j in range(2):
            u.append(piece(sLg, j * 4096, sGc, j * 32 * 3584, vG, SRD_G, False))
            u.append(piece(sLu, j * 4096, sGc, j * 32 * 3584, vG, SRD_U, False))
    u[0] = pre + u[0]
    return u


def granule_finish(g):
    return [f"v_mov_b32 v{g+2}, s{sTag}",
            f"v_xor_b32 v{g+3}, v{g}, v{g+1}",
            f"v_xor_b32 v{g+3}, 0x{CHK:x}, v{g+3}",
            f"v_xor_b32 v{g+3}, s{sTag}, v{g+3}"]


def granule_check(g, t, dst):
    return [f"v_xor_b32 v{t}, v{g}, v{g+1}",
            f"v_xor_b32 v{t}, 0x{CHK:x}, v{t}",
            f"v_xor_b32 v{t}, v{g+2}, v{t}",
            f"v_subrev_u32 v{t+1}, s{sWin}, v{g+2}",
            f"v_cmp_eq_u32 vcc, v{t}, v{g+3}",
            f"v_cmp_gt_u32_e64 s[{dst}:{dst+1}], s{sLim}, v{t+1}",
            "s_nop 1",
            f"s_and_b64 s[{dst}:{dst+1}], s[{dst}:{dst+1}], vcc"]


def STM(i, first=False):
    if OPTS.get("chst") or (OPTS.get("pst") and i > 2):
        return
    ST.mark(i)


def CHM(i):
    if OPTS.get("chst"):
        ST.mark(i)


def emit(A, opts):
    global ST
    OPTS.update(opts)
    stamps = opts.get("stamps", 0)
    A("s_cmp_ge_u32 s2, 256")
    A("s_cbranch_scc1 K1_end")
    A(f"s_memrealtime s[{sTag}:{sTag+1}]")
    A(f"s_load_dwordx2 s[{SRD_X}:{SRD_X+1}], s[0:1], 0")
    A(f"s_load_dwordx2 s[{SRD_Q}:{SRD_Q+1}], s[0:1], 8")
    A(f"s_load_dwordx2 s[{SRD_G}:{SRD_G+1}], s[0:1], 32")
    A(f"s_load_dwordx2 s[{SRD_U}:{SRD_U+1}], s[0:1], 40")
    A(f"s_load_dwordx2 s[{SRD_WS}:{SRD_WS+1}], s[0:1], 72")
    A(f"s_load_dwordx2 s[{sWDp}:{sWDp+1}], s[0:1], 48")
    A(f"s_load_dwordx2 s[{sWOp}:{sWOp+1}], s[0:1], 16")
    if opts.get("prio", 1):
        A("s_setprio 3")
    ST = Stamps(A, 86, 0, stamps)
    ST.zero()
    STM(0)
    A("v_lshrrev_b32 v1, 6, v0")
    A("v_and_b32 v0, 63, v0")
    A(f"v_readfirstlane_b32 s{sW}, v1")
    for srd, nb in ((SRD_X, X_BYTES), (SRD_Q, Q_BYTES), (SRD_G, G_BYTES), (SRD_U, G_BYTES), (SRD_WS, WS_BYTES if not stamps else 0x10000000)):
        A(f"s_mov_b32 s{srd+2}, {nb}")
        A(f"s_mov_b32 s{srd+3}, 0x20000")
    A(f"s_and_b32 s{sT0}, s2, 7")
    A(f"s_lshr_b32 s{sT1}, s2, 3")
    A(f"s_and_b32 s{sRB}, s{sT0}, 1")
    A(f"s_lshl_b32 s{sRB}, s{sRB}, 2")
    A(f"s_and_b32 s{sT2}, s{sT1}, 3")
    A(f"s_add_u32 s{sRB}, s{sRB}, s{sT2}")
    A(f"s_lshr_b32 s{sCB}, s{sT0}, 1")
    A(f"s_lshl_b32 s{sCB}, s{sCB}, 3")
    A(f"s_lshr_b32 s{sT2}, s{sT1}, 2")
    A(f"s_add_u32 s{sCB}, s{sCB}, s{sT2}")
    A(f"s_and_b32 s{sH}, s{sCB}, 15")
    A(f"s_and_b32 s{sWp}, s{sW}, 3")
    A(f"s_lshl_b32 s{sT0}, s{sRB}, 8")
    A(f"s_lshl_b32 s{sT1}, s{sW}, 3")
    A(f"s_add_u32 s{sT0}, s{sT0}, s{sT1}")
    A(f"s_mul_i32 s{sXbase}, s{sT0}, 896")
    A(f"s_lshl_b32 s{sLx}, s{sW}, 10")
    A(f"v_lshrrev_b32 v1, 3, v0")
    A(f"v_lshrrev_b32 v2, 4, v0")
    A(f"s_and_b32 s{sT1}, s{sW}, 1")
    A(f"s_lshl_b32 s{sT1}, s{sT1}, 2")
    A(f"v_add_u32 v3, s{sT1}, v2")
    A(f"v_and_b32 v4, 7, v0")
    A(f"v_xor_b32 v4, v4, v3")
    A(f"v_lshlrev_b32 v4, 4, v4")
    A(f"v_mul_u32_u24 v{vX}, 896, v1")
    A(f"v_add_u32 v{vX}, v{vX}, v4")
    A(f"v_lshlrev_b32 v{vL16}, 4, v0")
    A(f"v_mov_b32 v5, 0x{OOB:x}")
    A(f"v_cmp_gt_u32 vcc, 56, v0")
    A(f"v_cndmask_b32 v5, v5, v{vL16}, vcc")
    A(f"s_lshl_b32 s{sT4}, s{sRB}, 8")
    A(f"s_lshl_b32 s{sT5}, s{sCB}, 3")
    A(f"s_add_u32 s{sT4}, s{sT4}, s{sT5}")
    A(f"s_add_u32 s{sK2}, s{sT4}, s{sW}")
    A(f"s_mul_i32 s{sKT}, s{sK2}, 896")
    A(f"s_cmp_eq_u32 s{sRB}, 7")
    A(f"s_cselect_b32 s{sC}, 0, s{sRB}")
    if opts.get("rot", 1) == 0:
        A(f"s_mov_b32 s{sC}, 0")
    elif opts.get("rot", 1) == 2:
        A(f"s_and_b32 s{sC}, s{sRB}, 6")
    elif opts.get("rot", 1) == 4:
        A(f"s_and_b32 s{sC}, s{sRB}, 4")
    A(f"s_cmp_ge_u32 s{sCB}, 16")
    A("s_cbranch_scc1 K1_typeB")
    for typ in ("A", "B"):
        A.label(f"K1_type{typ}")
        if typ == "A":
            A("v_lshrrev_b32 v1, 3, v0")
            A("v_lshrrev_b32 v2, 4, v0")
            A("v_and_b32 v2, 1, v2")
            A("v_lshlrev_b32 v2, 2, v2")
            A("v_and_b32 v3, 7, v0")
            A("v_xor_b32 v3, v3, v2")
            A("v_and_b32 v4, 3, v3")
            A("v_lshrrev_b32 v3, 2, v3")
            A("v_lshlrev_b32 v6, 4, v4")
            A("v_cmp_eq_u32 vcc, 3, v4")
            A("v_mul_u32_u24 v3, 896, v3")
            A("v_add_u32 v3, 896, v3")
            A("v_mov_b32 v7, 40")
            A("v_cndmask_b32 v6, v6, v7, vcc")
            A(f"v_mul_u32_u24 v{vH}, 2688, v1")
            A(f"v_add3_u32 v{vH}, v{vH}, v3, v6")
            A("v_mul_u32_u24 v1, 43, v0")
            A("v_lshrrev_b32 v1, 8, v1")
            A("v_mul_u32_u24 v2, 6, v1")
            A("v_sub_u32 v2, v0, v2")
            A("v_lshlrev_b32 v2, 4, v2")
            A(f"v_mul_u32_u24 v{vG}, 3584, v1")
            A(f"v_add_u32 v{vG}, v{vG}, v2")
            A(f"s_mov_b32 s{sMaskP}, -1")
            A(f"s_mov_b32 s{sMaskP+1}, 0xffff")
            A(f"s_mul_i32 s{sT1}, s{sH}, 96")
            A(f"s_lshl_b32 s{sLh}, s{sW}, 10")
            A(f"s_add_u32 s{sLh}, s{sLh}, 32768")
            A(f"s_mul_i32 s{sLg}, s{sW}, 768")
            A(f"s_add_u32 s{sLu}, s{sLg}, 47232")
            A(f"s_add_u32 s{sLg}, s{sLg}, 40960")
        else:
            A("v_lshrrev_b32 v1, 2, v0")
            A("v_and_b32 v4, 3, v0")
            A("v_lshlrev_b32 v6, 4, v4")
            A("v_cmp_eq_u32 vcc, 3, v4")
            A("v_mov_b32 v7, 40")
            A(f"v_mul_u32_u24 v{vH}, 2688, v1")
            A("v_cndmask_b32 v6, v6, v7, vcc")
            A(f"v_add_u32 v{vH}, v{vH}, v6")
            A("v_lshrrev_b32 v1, 3, v0")
            A("v_lshrrev_b32 v2, 4, v0")
            A("v_and_b32 v2, 1, v2")
            A("v_lshlrev_b32 v2, 1, v2")
            A("v_and_b32 v3, 7, v0")
            A("v_xor_b32 v3, v3, v2")
            A("v_lshlrev_b32 v3, 4, v3")
            A(f"v_mul_u32_u24 v{vG}, 3584, v1")
            A(f"v_add_u32 v{vG}, v{vG}, v3")
            A(f"s_mov_b32 s{sMaskP}, -1")
            A(f"s_mov_b32 s{sMaskP+1}, 0")
            A(f"s_lshl_b32 s{sT1}, s{sH}, 7")
            A(f"s_add_u32 s{sT1}, s{sT1}, 1536")
            A(f"s_lshl_b32 s{sLh}, s{sW}, 9")
            A(f"s_add_u32 s{sLh}, s{sLh}, 32768")
            A(f"s_lshl_b32 s{sLg}, s{sW}, 10")
            A(f"s_add_u32 s{sLu}, s{sLg}, 45120")
            A(f"s_add_u32 s{sLg}, s{sLg}, 36864")
        A(f"s_mul_i32 s{sGbase}, s{sW}, {8*3584}")
        A(f"s_add_u32 s{sGbase}, s{sGbase}, s{sT1}")
        A(f"s_mul_i32 s{sHbase}, s{sW}, {8*2688}")
        A(f"s_mul_i32 s{sT1}, s{sH}, 56")
        A(f"s_add_u32 s{sHbase}, s{sHbase}, s{sT1}")
        if typ == "B":
            A(f"s_mul_i32 s{sHb2}, s{sWp}, {16*2688}")
            A(f"s_add_u32 s{sHb2}, s{sHb2}, s{sT1}")
            A(f"s_lshl_b32 s{sLh2}, s{sWp}, 10")
            A(f"s_add_u32 s{sLh2}, s{sLh2}, 32768")
        A("s_waitcnt lgkmcnt(0)")
        STM(1)
        E0 = Em(A)
        RW = 88
        E0("@vm row")
        E0(f"buffer_load_dwordx4 {vr(RW,4)}, v5, s[{SRD_X}:{SRD_X+3}], s{sKT} offen")
        for u in dma_units(typ, 0, "c0"):
            E0(u)
        STM(2)
        if opts.get("pst") == 1:
            for i, n in enumerate((7, 3, 2, 0)):
                A(f"s_waitcnt vmcnt({n})")
                ST.mark(3 + i)
        A(f"s_cmp_ge_u32 s{sW}, 4")
        A(f"s_cbranch_scc1 K1_{typ}1")
        for g in (0, 1):
            var = f"{typ}{g}"
            A.label(f"K1_{var}")
            E = Em(A)
            E.ops = E0.copy_state()
            variant(E, A, var, opts)
    A.label("K1_end")
    A("s_endpgm")


def common_setup():
    opts = OPTS
    o = []
    o.append(f"s_mov_b32 s{sHi}, 0xffff0000")
    o.append(f"s_mov_b32 s{sMaskLo32}, -1")
    o.append(f"s_mov_b32 s{sMaskLo32+1}, 0")
    o.append(f"s_mov_b32 s{sMask24}, 0x01000000")
    o.append(f"s_mov_b32 s{sMask24+1}, 0x01000000")
    o.append(f"s_sub_u32 s{sWin}, s{sTag}, {DELTA}")
    o.append(f"s_mov_b32 s{sLim}, {0 if opts.get('forcefb') else 1 << 24}")
    o.append(f"s_lshl_b32 s{sT0}, s2, 3")
    o.append(f"s_add_u32 s{sT0}, s{sT0}, s{sW}")
    o.append(f"s_lshl_b32 s{sRPoff}, s{sT0}, 10")
    o.append(f"s_add_u32 s{sRPoff}, s{sRPoff}, {OFF_WD}")
    o.append(f"s_mul_i32 s{sT1}, s{sT0}, 9363")
    o.append(f"s_lshr_b32 s{sT1}, s{sT1}, 20")
    o.append(f"s_mul_i32 s{sT2}, s{sT1}, 112")
    o.append(f"s_sub_u32 s{sT2}, s{sT0}, s{sT2}")
    o.append(f"s_lshl_b32 s{sT2}, s{sT2}, 4")
    o.append(f"s_sub_u32 s{sT3}, s{sT0}, 1568")
    o.append(f"s_lshr_b32 s{sT4}, s{sT3}, 5")
    o.append(f"s_lshr_b32 s{sT5}, s{sT3}, 1")
    o.append(f"s_and_b32 s{sT5}, s{sT5}, 15")
    o.append(f"s_mul_i32 s{sT5}, s{sT5}, 28")
    o.append(f"s_and_b32 s{sSpec}, s{sT3}, 1")
    o.append(f"s_lshl_b32 s{sKT}, s{sSpec}, 4")
    o.append(f"s_add_u32 s{sT5}, s{sT5}, s{sKT}")
    o.append(f"s_cmp_lt_u32 s{sT0}, 1568\n"
             f"s_cselect_b32 s{sT1}, s{sT1}, s{sT4}\n"
             f"s_cselect_b32 s{sT2}, s{sT2}, s{sT5}\n"
             f"s_cselect_b32 s{sSpec}, 0, s{sSpec}\n"
             f"s_cselect_b32 s{SRD_RP}, s{sWDp}, s{sWOp}\n"
             f"s_cselect_b32 s{SRD_RP+1}, s{sWDp+1}, s{sWOp+1}\n"
             f"s_mov_b32 s{SRD_RP+2}, {WO_BYTES}\n"
             f"s_cselect_b32 s{SRD_RP+2}, {WD_BYTES}, s{SRD_RP+2}\n"
             f"s_mov_b32 s{SRD_RP+3}, 0x20000")
    o.append(f"s_mul_i32 s{sRProw}, s{sT2}, 896")
    o.append(f"s_lshl_b32 s{sT1}, s{sT1}, 6")
    o.append(f"s_add_u32 s{sRProw}, s{sRProw}, s{sT1}")
    o.append(f"v_mov_b32 v1, 0x{OOB:x}\n"
             f"s_cmp_ge_u32 s{sT0}, 2016\n"
             f"s_cselect_b32 s{sRProw}, 0, s{sRProw}\n"
             f"s_cselect_b32 s{sRPoff}, 0, s{sRPoff}\n"
             f"s_cselect_b64 vcc, -1, 0\n"
             f"s_nop 1\n"
             f"v_cndmask_b32 v{vRPo}, v{vL16}, v1, vcc")
    o.append(f"s_mul_i32 s{sT0}, s{sCB}, 8960")
    o.append(f"s_mul_i32 s{sT1}, s{sRB}, 1280")
    o.append(f"s_add_u32 s{sT0}, s{sT0}, s{sT1}")
    o.append(f"s_lshl_b32 s{sT1}, s{sW}, 8")
    o.append(f"s_add_u32 s{sT0}, s{sT0}, s{sT1}")
    o.append(f"s_add_u32 s{sCSo}, s{sT0}, {OFF_CS}")
    o.append(f"v_mov_b32 v1, 0x{OOB:x}\n"
             f"s_mov_b32 s{sOk}, 0xffff\n"
             f"s_mov_b32 s{sOk+1}, 0\n"
             f"s_cmp_lt_u32 s{sW}, 5\n"
             f"s_cselect_b32 s{sOk}, s{sOk}, 0\n"
             f"s_cmp_lt_u32 s{sRB}, 7\n"
             f"s_cselect_b32 s{sOk}, s{sOk}, 0\n"
             f"s_cselect_b32 s{sCSo}, s{sCSo}, 0\n"
             f"v_cndmask_b32_e64 v{vCSo}, v1, v{vL16}, s[{sOk}:{sOk+1}]")
    o.append("v_and_b32 v1, 31, v0\n"
             "v_lshrrev_b32 v2, 5, v0\n"
             "v_lshrrev_b32 v3, 1, v1\n"
             "v_and_b32 v3, 7, v3\n"
             f"s_lshl_b32 s{sT0}, s{sWp}, 13\n"
             "v_lshlrev_b32 v4, 7, v1\n"
             f"v_add_u32 v4, s{sT0}, v4")
    for t in range(4):
        o.append(f"s_add_u32 s{sT1}, s{sWp}, {t}\n"
                 f"s_and_b32 s{sT1}, s{sT1}, 3\n"
                 f"s_lshl_b32 s{sT1}, s{sT1}, 1\n"
                 f"v_add_u32 v5, s{sT1}, v2\n"
                 f"v_xor_b32 v5, v5, v3\n"
                 f"v_lshlrev_b32 v5, 4, v5\n"
                 f"v_add_u32 v{vXA[0][t]}, v4, v5\n"
                 f"v_add_u32 v{vXA[1][t]}, {S2}, v{vXA[0][t]}")
    return o


def w_addr_setup(var):
    o = []
    s = ("v_lshrrev_b32 v1, 2, v0\n"
         "v_and_b32 v1, 3, v1\n"
         "v_and_b32 v2, 3, v0\n"
         "v_lshrrev_b32 v3, 5, v0\n"
         "v_lshrrev_b32 v4, 4, v0\n"
         "v_and_b32 v4, 1, v4\n"
         "v_lshlrev_b32 v5, 3, v3\n"
         "v_add_u32 v5, v5, v1\n"
         "v_lshrrev_b32 v6, 1, v1\n"
         "v_lshlrev_b32 v7, 3, v2\n")
    if var == "A0":
        s += ("v_lshrrev_b32 v8, 1, v2\n"
              "v_lshl_add_u32 v8, v4, 1, v8\n"
              "v_lshlrev_b32 v9, 2, v6\n"
              "v_xor_b32 v8, v8, v9\n"
              "v_lshlrev_b32 v8, 4, v8\n"
              "v_and_b32 v9, 1, v2\n"
              "v_lshl_add_u32 v8, v9, 3, v8\n"
              "v_lshl_add_u32 v8, v5, 7, v8\n"
              "v_add_u32 v8, 32768, v8\n"
              "v_xor_b32 v9, 64, v8\n")
        p0 = p1 = 128
    elif var == "A1":
        s += ("v_mul_u32_u24 v8, 96, v5\n"
              "v_add_u32 v8, v8, v7\n"
              f"v_mul_u32_u24 v9, {47232-40960}, v4\n"
              "v_add3_u32 v8, v8, v9, 0\n"
              "v_add_u32 v8, 40960, v8\n")
        p0 = p1 = 96
    else:
        s += ("v_lshl_add_u32 v10, v5, 7, v7\n"
              f"v_mul_u32_u24 v9, {45120-36864}, v4\n"
              "v_add_u32 v10, v10, v9\n"
              "v_add_u32 v10, 36864, v10\n"
              "v_lshlrev_b32 v11, 5, v6\n")
        if var == "B0":
            s += ("v_lshl_add_u32 v8, v5, 6, v7\n"
                  "v_lshl_add_u32 v8, v4, 5, v8\n"
                  "v_add_u32 v8, 32768, v8\n"
                  "v_add_u32 v9, v10, v11\n")
            p0, p1 = 64, 128
        else:
            s += ("v_xor_b32 v12, 32, v11\n"
                  "v_add_u32 v8, v10, v12\n"
                  "v_add_u32 v9, v10, v11\n")
            p0 = p1 = 128
    o.append(s)
    for t in range(4):
        s = (f"s_add_u32 s{sT1}, s{sWp}, {t}\n"
             f"s_and_b32 s{sT1}, s{sT1}, 3\n"
             f"s_mul_i32 s{sT2}, s{sT1}, {16*p0}\n"
             f"v_add_u32 v{vWA0[0][t]}, s{sT2}, v8\n"
             f"v_add_u32 v{vWA0[1][t]}, {S2}, v{vWA0[0][t]}\n")
        if var != "A1":
            s += (f"s_mul_i32 s{sT2}, s{sT1}, {16*p1}\n"
                  f"v_add_u32 v{vWA1[0][t]}, s{sT2}, v9\n"
                  f"v_add_u32 v{vWA1[1][t]}, {S2}, v{vWA1[0][t]}\n")
        o.append(s)
    return o


def row_stats_publish(E):
    A = E
    RW = 88
    f = list(range(92, 100))
    s, q = 100, 101
    A("@wait row")
    for i in range(4):
        A(f"v_lshlrev_b32 v{f[2*i]}, 16, v{RW+i}")
        A(f"v_and_b32 v{f[2*i+1]}, s{sHi}, v{RW+i}")
    A(f"v_add_f32 v{s}, v{f[0]}, v{f[1]}")
    A(f"v_mul_f32 v{q}, v{f[0]}, v{f[0]}")
    A(f"v_fmac_f32 v{q}, v{f[1]}, v{f[1]}")
    for i in range(2, 8):
        A(f"v_add_f32 v{s}, v{s}, v{f[i]}")
        A(f"v_fmac_f32 v{q}, v{f[i]}, v{f[i]}")
    A("s_nop 0")
    for sh in (1, 2, 4, 8):
        for v in (s, q):
            A(f"v_add_f32_dpp v{v}, v{v}, v{v} row_shr:{sh} row_mask:0xf bank_mask:0xf bound_ctrl:0")
        A("s_nop 0")
    for v in (s, q):
        A(f"v_add_f32_dpp v{v}, v{v}, v{v} row_bcast:15 row_mask:0xa bank_mask:0xf")
    A("s_nop 0")
    for v in (s, q):
        A(f"v_add_f32_dpp v{v}, v{v}, v{v} row_bcast:31 row_mask:0xc bank_mask:0xf")
    G = 104
    A(f"v_mul_f32 v{G}, 0x{F1_448:x}, v{s}")
    A(f"v_mul_f32 v{q}, 0x{F1_448:x}, v{q}")
    A(f"v_fma_f32 v{q}, -v{G}, v{G}, v{q}")
    A(f"v_max_f32 v{q}, 0, v{q}")
    A(f"v_add_f32 v{q}, 0x{EPS5:x}, v{q}")
    A(f"v_rsq_f32 v{G+1}, v{q}")
    A(f"s_lshl_b32 s{sT0}, s{sK2}, 4")
    A(f"s_add_u32 s{sT0}, s{sT0}, {OFF_ST}")
    A("v_mov_b32 v1, 0")
    for l in granule_finish(G):
        A(l)
    A(f"s_mov_b32 s{sOk}, 0")
    A(f"s_mov_b32 s{sOk+1}, 0x80000000")
    A(f"s_mov_b64 exec, s[{sOk}:{sOk+1}]")
    A("@vm st")
    A(f"buffer_store_dwordx4 {vr(G,4)}, v1, s[{SRD_WS}:{SRD_WS+3}], s{sT0} offen sc1")
    A("s_mov_b64 exec, -1")


def fb_rows(A, g):
    L = A.newlabel("K1_fbr")
    t = list(range(108, 120))
    A(f"s_lshl_b32 s{sT0}, s{sRB}, 8")
    A(f"s_lshl_b32 s{sT1}, s{sW}, 6")
    A(f"s_add_u32 s{sT0}, s{sT0}, s{sT1}")
    A(f"v_add_u32 v{t[0]}, s{sT0}, v0")
    A(f"v_mul_u32_u24 v{t[0]}, 896, v{t[0]}")
    A(f"v_mov_b32 v{g}, 0")
    A(f"v_mov_b32 v{g+1}, 0")
    A(f"s_mov_b32 s{sT2}, 0")
    A.label(L)
    A(f"buffer_load_dwordx4 {vr(t[4],4)}, v{t[0]}, s[{SRD_X}:{SRD_X+3}], s{sT2} offen")
    A("s_waitcnt vmcnt(0)")
    for i in range(4):
        A(f"v_lshlrev_b32 v{t[1]}, 16, v{t[4]+i}")
        A(f"v_and_b32 v{t[2]}, s{sHi}, v{t[4]+i}")
        A(f"v_add_f32 v{g}, v{g}, v{t[1]}")
        A(f"v_fmac_f32 v{g+1}, v{t[1]}, v{t[1]}")
        A(f"v_add_f32 v{g}, v{g}, v{t[2]}")
        A(f"v_fmac_f32 v{g+1}, v{t[2]}, v{t[2]}")
    A(f"s_add_u32 s{sT2}, s{sT2}, 16")
    A(f"s_cmp_lt_u32 s{sT2}, 896")
    A(f"s_cbranch_scc1 {L}")
    A(f"v_mul_f32 v{g}, 0x{F1_448:x}, v{g}")
    A(f"v_mul_f32 v{g+1}, 0x{F1_448:x}, v{g+1}")
    A(f"v_fma_f32 v{g+1}, -v{g}, v{g}, v{g+1}")
    A(f"v_max_f32 v{g+1}, 0, v{g+1}")
    A(f"v_add_f32 v{g+1}, 0x{EPS5:x}, v{g+1}")
    A(f"v_rsq_f32 v{g+1}, v{g+1}")
    A("s_nop 0")


def fb_cols(A, typ, g, gbase_sgpr):
    L = A.newlabel("K1_fbc")
    t = list(range(108, 124))
    gi, c, rem, j, p, oq, og, ou, e, d0, d1, d2 = t[:12]
    A(f"v_add_u32 v{gi}, s{gbase_sgpr}, v0")
    A(f"v_mul_u32_u24 v{c}, 205, v{gi}")
    A(f"v_lshrrev_b32 v{c}, 14, v{c}")
    A(f"v_mul_u32_u24 v{rem}, 80, v{c}")
    A(f"v_sub_u32 v{rem}, v{gi}, v{rem}")
    A(f"v_lshrrev_b32 v{j}, 4, v{rem}")
    A(f"v_and_b32 v{p}, 15, v{rem}")
    A(f"v_lshlrev_b32 v{e}, 1, v{p}")
    A(f"v_subrev_u32 v{d0}, 4, v{e}")
    A(f"v_cmp_gt_u32 vcc, 24, v{e}")
    A(f"v_cndmask_b32 v{e}, v{d0}, v{e}, vcc")
    A(f"s_mul_i32 s{sT0}, s{sH}, 28")
    A(f"v_add_u32 v{e}, s{sT0}, v{e}")
    nh = 2 if typ == "A" else 1
    if typ == "A":
        A(f"v_mul_u32_u24 v{d0}, 448, v{j}")
        A(f"v_add_u32 v{e}, v{e}, v{d0}")
        A(f"v_add_u32 v{e}, 448, v{e}")
    A(f"v_lshlrev_b32 v{oq}, 1, v{e}")
    A(f"v_mul_u32_u24 v{d0}, {64*2688//64}, v{c}")
    A(f"v_lshlrev_b32 v{d0}, 6, v{d0}")
    A(f"v_add_u32 v{oq}, v{oq}, v{d0}")
    A(f"v_mov_b32 v{d1}, {OOB}")
    A(f"v_cmp_gt_u32 vcc, {nh}, v{j}")
    A(f"v_cndmask_b32 v{oq}, v{d1}, v{oq}, vcc")
    A(f"v_subrev_u32 v{e}, {nh}, v{j}")
    A(f"v_lshlrev_b32 v{e}, 4, v{e}")
    A(f"v_and_b32 v{d0}, 7, v{p}")
    A(f"v_lshl_add_u32 v{e}, v{d0}, 1, v{e}")
    if typ == "A":
        A(f"s_mul_i32 s{sT0}, s{sH}, 48")
    else:
        A(f"s_lshl_b32 s{sT0}, s{sH}, 6")
        A(f"s_add_u32 s{sT0}, s{sT0}, 768")
    A(f"v_add_u32 v{e}, s{sT0}, v{e}")
    A(f"v_lshlrev_b32 v{og}, 1, v{e}")
    A(f"v_mul_u32_u24 v{d0}, 3584, v{c}")
    A(f"v_lshlrev_b32 v{d0}, 6, v{d0}")
    A(f"v_add_u32 v{og}, v{og}, v{d0}")
    A(f"v_cndmask_b32 v{og}, v{og}, v{d1}, vcc")
    A(f"v_cmp_gt_u32 vcc, 8, v{p}")
    A(f"v_cndmask_b32 v{ou}, v{og}, v{d1}, vcc")
    A(f"v_cndmask_b32 v{og}, v{d1}, v{og}, vcc")
    A(f"v_mov_b32 v{g}, 0")
    A(f"v_mov_b32 v{g+1}, 0")
    A(f"s_mov_b32 s{sT2}, 0")
    A(f"s_mov_b32 s{sT3}, 0")
    A(f"s_mov_b32 s{sT4}, 0")
    A.label(L)
    A(f"buffer_load_dword v{d0}, v{oq}, s[{SRD_Q}:{SRD_Q+3}], s{sT2} offen")
    A(f"buffer_load_dword v{d1}, v{og}, s[{SRD_G}:{SRD_G+3}], s{sT3} offen")
    A(f"buffer_load_dword v{d2}, v{ou}, s[{SRD_U}:{SRD_U+3}], s{sT3} offen")
    A("s_waitcnt vmcnt(0)")
    A(f"v_or_b32 v{d0}, v{d0}, v{d1}")
    A(f"v_or_b32 v{d0}, v{d0}, v{d2}")
    A(f"v_lshlrev_b32 v{d1}, 16, v{d0}")
    A(f"v_and_b32 v{d2}, s{sHi}, v{d0}")
    A(f"v_add_f32 v{g}, v{g}, v{d1}")
    A(f"v_add_f32 v{g+1}, v{g+1}, v{d2}")
    A(f"s_add_u32 s{sT2}, s{sT2}, 2688")
    A(f"s_add_u32 s{sT3}, s{sT3}, 3584")
    A(f"s_add_u32 s{sT4}, s{sT4}, 1")
    A(f"s_cmp_lt_u32 s{sT4}, 64")
    A(f"s_cbranch_scc1 {L}")


def spread(units, nslots, first=0):
    out = [[] for _ in range(nslots)]
    n = nslots - first
    for i, u in enumerate(units):
        out[first + i * n // len(units)].append(u)
    return out


def variant(E, A, var, opts):
    typ, grp, tiles = VARIANTS[var]
    nt = len(tiles)
    nm = 2 * nt
    prio = opts.get("prio", 1)
    if prio:
        A(f"s_setprio {2 if grp == 0 else 1}")
    setup = common_setup() + w_addr_setup(var)
    c1 = dma_units(typ, STAGE, "c1")
    c1pos = opts.get("c1pos", 1)
    if c1pos == 0:
        k = 0
        for i, u in enumerate(c1):
            E(u)
            hi = (i + 1) * len(setup) // len(c1)
            for s_ in setup[k:hi]:
                E(s_)
            k = hi
    else:
        for s_ in setup:
            E(s_)
    if opts.get("pst") == 2:
        ST.mark(3)
        E("@wait row")
        ST.mark(4)
    row_stats_publish(E)
    if c1pos == 1 or (c1pos == 3 and grp == 0):
        for u in c1:
            E(u)
    if opts.get("pst") == 2:
        ST.mark(5)
    E("@wait c0")
    if opts.get("pst") == 2:
        ST.mark(6)
    A("s_barrier")
    STM(3)
    CHM(0)
    c1_late = c1pos == 2 or (c1pos == 3 and grp == 1)
    c2split = opts.get("c2split", 14)

    rdper = opts.get("rdper0" if grp == 0 else "rdper1", 2)

    def step(mf, rd, slots, bar=None, rper=None):
        rper = rper or rdper
        k = 0
        for i, m in enumerate(mf):
            E(m)
            r = rd[k:k + rper] if i < len(mf) - 1 else rd[k:]
            k += len(r)
            for s_ in r:
                E(s_)
            for u in slots[i]:
                E(u)
            if bar is not None and bar[0] == i:
                bar[1]()

    def empty(n):
        return [[] for _ in range(n)]

    def merge(*ss):
        out = empty(len(ss[0]))
        for s_ in ss:
            for i, l in enumerate(s_):
                out[i].extend(l)
        return out

    if var == "A0":
        vR, vCP, vM = 104, 136, 150
    else:
        vR, vCP, vM = 108, 136, 157
    jb = 0 if grp == 0 else 2
    G1, G2 = 96, 100

    def gather(sc=None):
        o = []
        SC = " sc1" if (opts.get("gsc", 1) if sc is None else sc) else ""
        if grp == 0:
            o.append(f"s_lshl_b32 s{sT0}, s{sRB}, 12\n"
                     f"s_lshl_b32 s{sT1}, s{sW}, 10\n"
                     f"s_add_u32 s{sT0}, s{sT0}, s{sT1}\n"
                     f"s_add_u32 s{sT0}, s{sT0}, {OFF_ST}\n"
                     f"@vm ga\n"
                     f"buffer_load_dwordx4 {vr(G1,4)}, v{vL16}, s[{SRD_WS}:{SRD_WS+3}], s{sT0} offen{SC}")
        else:
            o.append(f"s_mul_i32 s{sT0}, s{sCB}, 8960\n"
                     f"s_lshl_b32 s{sT1}, s{sWp}, 10\n"
                     f"s_add_u32 s{sT0}, s{sT0}, s{sT1}\n"
                     f"s_add_u32 s{sT0}, s{sT0}, {OFF_CS}\n"
                     f"@vm ga\n"
                     f"buffer_load_dwordx4 {vr(G1,4)}, v{vL16}, s[{SRD_WS}:{SRD_WS+3}], s{sT0} offen{SC}")
        o.append(f"s_mul_i32 s{sT0}, s{sCB}, 8960\n"
                 f"s_lshl_b32 s{sT1}, s{sW}, 10\n"
                 f"s_add_u32 s{sT0}, s{sT0}, s{sT1}\n"
                 f"s_add_u32 s{sT0}, s{sT0}, {OFF_CS + 4096}\n"
                 f"@vm ga\n"
                 f"buffer_load_dwordx4 {vr(G2,4)}, v{vL16}, s[{SRD_WS}:{SRD_WS+3}], s{sT0} offen{SC}")
        return o

    Lslow = f"K1_{var}_slow"
    Lok = f"K1_{var}_ok"

    for p in range(-1, 6):
        n = p + 1
        nsl = 4 * nm
        fill = empty(nsl)
        add = lambda units, first, last: [fill[first + i * (last - first) // len(units)].append(u) for i, u in enumerate(units)]
        first_slot = nm if p == -1 else 0
        if p == -1 and c1_late:
            for i, u in enumerate(c1):
                fill[first_slot + i].append(u)
        if grp == 0 and p + 3 <= 6 and not (opts.get("nodma") and p >= 0):
            d = dma14(typ, p + 3)
            if p == -1:
                carry = d[c2split:]
                d = d[:c2split]
                if c1_late:
                    add(d, first_slot + 7, nsl)
                else:
                    add(d, first_slot, nsl)
            else:
                if p == 0:
                    d = carry + d
                if len(d) <= nsl:
                    for i, u in enumerate(d):
                        fill[i].append(u)
                else:
                    add(d, 0, nsl)
        if p == -1:
            for t in range(nt):
                add(cs_duty(var, t & 1, t), nm * (1 + t), nm * (1 + t) + (nm if t < 2 else nm // 2))
            red = []
            red.append("\n".join([f"v_add_f32 v{vCS[2*j]}, v{vCS[2*j]}, v{vCS[2*j]+1}" for j in range(nt)] +
                                 [f"v_mov_b32 v{vCS[2*j]+1}, v{vCS[2*j]}" for j in range(nt)] + ["s_nop 1"] +
                                 [f"v_permlane32_swap_b32 v{vCS[2*j]}, v{vCS[2*j]+1}" for j in range(nt)]))
            red.append("v_and_b32 v1, 31, v0\nv_lshlrev_b32 v1, 2, v1\n"
                       f"s_mul_i32 s{sT0}, s{sWp}, 640\ns_add_u32 s{sT0}, s{sT0}, {TOP + jb*128}\nv_add_u32 v1, s{sT0}, v1\n" +
                       "\n".join([f"v_add_f32 v{vCS[2*j]}, v{vCS[2*j]}, v{vCS[2*j]+1}" for j in range(nt)] +
                                 [f"ds_write_b32 v1, v{vCS[2*j]} offset:{j*128}" for j in range(nt)]))
            fill[4 * nm - 3].append(red[0])
            fill[4 * nm - 2].append(red[1])
        if p == 0:
            P = 104
            G = 112
            fill[nm - 1].append("v_lshlrev_b32 v1, 3, v0\n"
                                f"s_lshl_b32 s{sT0}, s{sW}, 7\ns_add_u32 s{sT0}, s{sT0}, {TOP}\nv_add_u32 v1, s{sT0}, v1\n" +
                                "\n".join(f"ds_read_b64 {vr(P+2*q,2)}, v1 offset:{q*640}" for q in range(4)))
            pub = []
            for e in range(2):
                pub.append(f"v_add_f32 v{P+e}, v{P+e}, v{P+2+e}")
                pub.append(f"v_add_f32 v{P+4+e}, v{P+4+e}, v{P+6+e}")
            for e in range(2):
                pub.append(f"v_add_f32 v{G+e}, v{P+e}, v{P+4+e}")
            pub += granule_finish(G)
            pub.append(f"@vm cs\nbuffer_store_dwordx4 {vr(G,4)}, v{vCSo}, s[{SRD_WS}:{SRD_WS+3}], s{sCSo} offen sc1")
            add(pub, nm, 2 * nm)
        if p == opts.get("gp", 4):
            gs = opts.get("gslot", 0)
            if gs < 0:
                gs = nsl + gs
            add(gather(), gs, gs + 2)
        if p == 4:
            rpu = ["v_lshrrev_b32 v1, 2, v0\n"
                   "v_subrev_u32 v2, 4, v1\n"
                   "v_cmp_lt_u32 vcc, 11, v1\n"
                   "v_cndmask_b32 v2, v1, v2, vcc",
                   f"s_cmp_eq_u32 s{sSpec}, 1\n"
                   f"s_cselect_b64 vcc, -1, 0\n"
                   "v_and_b32 v3, 12, v1\n"
                   f"v_cmp_eq_u32_e64 s[{sOk}:{sOk+1}], 8, v3\n"
                   "v_cndmask_b32 v2, v1, v2, vcc",
                   "v_mul_u32_u24 v2, 896, v2\n"
                   "v_and_b32 v3, 3, v0\n"
                   "v_lshl_add_u32 v2, v3, 4, v2\n"
                   f"s_and_b64 vcc, vcc, s[{sOk}:{sOk+1}]\n"
                   f"v_mov_b32 v3, 0x{OOB:x}",
                   f"s_lshl_b32 s{sT0}, s{sW}, 10\n"
                   f"s_add_u32 m0, s{sT0}, {RPS_OFF}\n"
                   "v_cndmask_b32 v2, v2, v3, vcc\n"
                   "@vm rp\n"
                   f"buffer_load_dwordx4 v2, s[{SRD_RP}:{SRD_RP+3}], s{sRProw} offen lds"]
            for i, u in enumerate(rpu):
                fill[i].append(u)
            val = []
            if grp == 0:
                val.append(f"s_mov_b64 s[{sNeed}:{sNeed+1}], -1")
            else:
                val.append(f"s_cmp_eq_u32 s{sW}, 4\ns_cselect_b32 s{sNeed}, -1, 0\ns_cselect_b32 s{sNeed+1}, 0xffff, 0")
            val.append(f"s_mov_b32 s{sCnt}, 0\n@wait ga\n@label {Lslow}_chk")
            val += granule_check(G1, 108, sOk)
            val += granule_check(G2, 110, sOk2)
            val.append(f"s_orn2_b64 s[{sOk2}:{sOk2+1}], s[{sOk2}:{sOk2+1}], s[{sNeed}:{sNeed+1}]\n"
                       f"s_and_b64 s[{sOk}:{sOk+1}], s[{sOk}:{sOk+1}], s[{sOk2}:{sOk2+1}]\n"
                       f"s_cmp_eq_u64 s[{sOk}:{sOk+1}], -1\n"
                       f"s_cbranch_scc0 {Lslow}\n"
                       f"@label {Lok}")
            wr = []
            if grp == 0:
                wr.append(f"s_lshl_b32 s{sT0}, s{sW}, 8\ns_add_u32 s{sT0}, s{sT0}, {M_OFF}\nv_lshlrev_b32 v1, 2, v0\nv_add_u32 v1, s{sT0}, v1\n"
                          f"ds_write_b32 v1, v{G1}\nds_write_b32 v1, v{G1+1} offset:1024")
            else:
                wr.append(f"s_lshl_b32 s{sT0}, s{sWp}, 9\ns_add_u32 s{sT0}, s{sT0}, {CP_OFF}\nv_lshlrev_b32 v1, 3, v0\nv_add_u32 v1, s{sT0}, v1\n"
                          f"ds_write_b64 v1, {vr(G1,2)}")
            wr.append(f"s_lshl_b32 s{sT0}, s{sW}, 9\ns_add_u32 s{sT0}, s{sT0}, {CP_OFF + 2048}\nv_lshlrev_b32 v1, 3, v0\nv_add_u32 v2, s{sT0}, v1\n"
                      f"v_add_u32 v1, {TOP}, v1\n"
                      f"v_cndmask_b32_e64 v1, v1, v2, s[{sNeed}:{sNeed+1}]\n"
                      f"ds_write_b64 v1, {vr(G2,2)}")
            vs = opts.get("vstep", 3) * nm
            fill[vs].append("\n".join(val))
            fill[vs + 1].append(wr[0])
            fill[vs + 2].append(wr[1])
        if p == 5:
            fr = ("v_and_b32 v1, 31, v0\nv_lshlrev_b32 v1, 2, v1\n"
                  f"s_lshl_b32 s{sT0}, s{sWp}, 8\ns_add_u32 s{sT0}, s{sT0}, {M_OFF}\nv_add_u32 v2, s{sT0}, v1\n"
                  f"ds_read_b32 v{vM}, v2\nds_read_b32 v{vM+1}, v2 offset:128\n"
                  f"v_add_u32 v3, {CP_OFF + jb*128}, v1")
            lst = [fr]
            for j in range(nt):
                for c in range(7):
                    lst.append(f"ds_read_b32 v{vCP+7*j+c}, v3 offset:{j*128 + c*640}")
            if var == "A0":
                lst.append(f"v_lshrrev_b32 v4, 5, v0\nv_lshlrev_b32 v4, 4, v4\nv_add_u32 v4, s{sT0}, v4")
                for a in range(2):
                    for j in range(4):
                        lst.append(f"ds_read_b128 {vr(vR+16*a+4*j,4)}, v4 offset:{1024 + a*128 + j*32}")
            elif var == "B0":
                lst.append(f"ds_read_b32 v{vR}, v2 offset:1024\nds_read_b32 v{vR+1}, v2 offset:{1024+128}")
            lst.append("v_lshrrev_b32 v5, 2, v0\nv_and_b32 v5, 3, v5\nv_lshrrev_b32 v6, 5, v0\nv_lshl_add_u32 v5, v6, 2, v5\n"
                       "v_lshlrev_b32 v5, 6, v5\nv_lshrrev_b32 v6, 4, v0\nv_and_b32 v6, 1, v6\nv_lshl_add_u32 v5, v6, 5, v5\n"
                       "v_and_b32 v6, 3, v0\nv_lshl_add_u32 v5, v6, 3, v5\n"
                       f"s_lshl_b32 s{sT1}, s{sW}, 10\ns_add_u32 s{sT1}, s{sT1}, {RPS_OFF}\nv_add_u32 v5, s{sT1}, v5\n"
                       f"@wait rp\n"
                       f"ds_read_b64_tr_b16 {vr(vRP,2)}, v5\nds_read_b64_tr_b16 {vr(vRP+2,2)}, v5 offset:512")
            add(lst, 0, 2 * nm)
            prep = []
            for a in range(2):
                m = vM + a
                prep.append(f"v_sub_f32 v{m}, 0, v{m}")
                prep.append(f"v_cndmask_b32_e64 v{m}, 0, v{m}, s[{sMaskLo32}:{sMaskLo32+1}]")
            for a in range(2):
                prep.append(f"v_cvt_pk_bf16_f32 v{XC+4*a+1}, v{vM+a}, 0")
            for a in range(2):
                prep.append(f"v_lshlrev_b32 v{1+a}, 16, v{XC+4*a+1}")
            for a in range(2):
                prep.append(f"v_sub_f32 v{1+a}, v{vM+a}, v{1+a}")
            for a in range(2):
                prep.append(f"v_cvt_pk_bf16_f32 v{XC+4*a}, v{vM+a}, v{1+a}")
                prep.append(f"v_mov_b32 v{XC+4*a+2}, 0")
                prep.append(f"v_mov_b32 v{XC+4*a+3}, 0")
            for j in range(nt):
                c = vCP + 7 * j
                prep.append(f"v_add_f32 v{c}, v{c}, v{c+1}")
                prep.append(f"v_add_f32 v{c+2}, v{c+2}, v{c+3}")
                prep.append(f"v_add_f32 v{c+4}, v{c+4}, v{c+5}")
                prep.append(f"v_add_f32 v{c}, v{c}, v{c+6}")
                prep.append(f"v_add_f32 v{c+2}, v{c+2}, v{c+4}")
                prep.append(f"v_add_f32 v{c}, v{c}, v{c+2}")
                prep.append(f"v_cvt_pk_bf16_f32 v{WC+4*j}, v{c}, v{c}")
                prep.append(f"v_lshlrev_b32 v{c+1}, 16, v{WC+4*j}")
                prep.append(f"v_sub_f32 v{c+1}, v{c}, v{c+1}")
                prep.append(f"v_cvt_pk_bf16_f32 v{WC+4*j+1}, v{c+1}, 0")
                prep.append(f"v_mov_b32 v{WC+4*j+2}, 0")
                prep.append(f"v_mov_b32 v{WC+4*j+3}, 0")
            if grp == 0:
                prep.append(f"v_mov_b32 v12, 0x{EPS6:x}")
                prep.append(f"v_mov_b32 v13, 0x{LOG2E:x}")
                prep.append(f"v_mov_b32 v14, 0x{NEG_EPS_LOG2E:x}")
            prep.append(f"@vm rs\nbuffer_store_dwordx4 {vr(vRP,4)}, v{vRPo}, s[{SRD_WS}:{SRD_WS+3}], s{sRPoff} offen sc1")
            last_fill = empty(nm)
            np_ = len(prep)
            tot = 3 * nm
            for i, u in enumerate(prep):
                sl = 2 * nm + i * tot // np_
                (fill[sl] if sl < nsl else last_fill[sl - nsl]).append(u)

        def fix(units):
            return units

        def barrier_fn(pp):
            def f():
                A("s_waitcnt lgkmcnt(0)")
                need = pp + 1
                tag = f"c{need}"
                if tag in E.ops:
                    E(f"@wait {tag}")
                if prio and opts.get("eprio", 3) == 3 and pp == opts.get("swp", 5):
                    A(f"s_setprio {0 if grp == 0 else 3}")
                A("s_barrier")
                CHM(pp + 1)
                if pp == 0:
                    STM(4)
            return f

        def EM(u):
            for l in u.split("\n"):
                if l.startswith("@label "):
                    A.label(l[7:])
                else:
                    E(l)

        def step2(mf, rd, slots, bar=None, rper=None, wait=True):
            rper = rper or rdper
            if wait:
                A("s_waitcnt lgkmcnt(0)")
            k = 0
            for i, m in enumerate(mf):
                E(m)
                r = rd[k:k + rper] if i < len(mf) - 1 else rd[k:]
                k += len(r)
                for s_ in r:
                    E(s_)
                for u in slots[i]:
                    EM(u)
                if bar is not None and bar[0] == i:
                    bar[1]()

        if p == -1:
            for s_ in reads(var, 0, 0, 0):
                E(s_)
        else:
            step2(mfmas(var, 1), reads(var, n, 0, 0), fill[0:nm], wait=False)
        step2(mfmas(var, 0, zero=(p == -1)), reads(var, n, 1, 1), fill[nm:2*nm])
        step2(mfmas(var, 1), reads(var, n, 2, 0), fill[2*nm:3*nm])
        if p < 5:
            bat = opts.get("bat1", 4) if grp == 1 else opts.get("bat0", 3)
            step2(mfmas(var, 0), reads(var, n, 3, 1), fill[3*nm:4*nm], bar=(bat, barrier_fn(p + 1)),
                  rper=(opts.get("rb1", 3) if grp == 1 else None))
            rest = []
        else:
            step2(mfmas(var, 0), reads(var, n, 3, 1), fill[3*nm:4*nm])
            step2(mfmas(var, 1), [], last_fill)
    STM(5)
    if prio and opts.get("eprio", 3) == 1 and grp == 0:
        A("s_setprio 0")
    if prio and opts.get("eprio", 3) == 2:
        A("s_setprio 0")
    if not opts.get("nocorr"):
        for s_ in mfmas_regs(var, XC, WC):
            A(s_)
    vEps, vL2e, vNeg = 12, 13, 14
    A(f"s_lshl_b32 s{sT0}, s{sRB}, 3")
    A(f"s_lshl_b32 s{sT1}, s{sWp}, 1")
    A(f"s_add_u32 s{sT0}, s{sT0}, s{sT1}")

    STSC = {0: "", 1: " sc1", 2: " nt", 3: " sc0 sc1", 4: " sc1 nt"}[opts.get("stsc", 1)]

    def ffn_tile(j, ft_sgpr, P0):
        for a in range(2):
            d = acc(j, a)
            P = P0 + 4 * a
            for r in range(8):
                A(f"v_max_f32 v{d+r}, 0, v{d+r}")
            if opts.get("epk", 1):
                for r in range(0, 8, 2):
                    A(f"v_pk_mul_f32 {vr(d+r,2)}, {vr(d+r,2)}, {vr(d+8+r,2)}")
            else:
                for r in range(8):
                    A(f"v_mul_f32 v{d+r}, v{d+r}, v{d+8+r}")
            for r in range(4):
                A(f"v_cvt_pk_bf16_f32 v{P+r}, v{d+2*r}, v{d+2*r+1}")
            A(f"s_add_u32 s{sT2}, s{sT0}, {a}")
            A(f"s_mul_i32 s{sT2}, s{sT2}, 112")
            A(f"s_add_u32 s{sT2}, s{sT2}, s{ft_sgpr}")
            A(f"s_lshl_b32 s{sT2}, s{sT2}, 10")
            if OFF_H:
                A(f"s_add_u32 s{sT2}, s{sT2}, {OFF_H}")
            A(f"buffer_store_dwordx4 {vr(P,4)}, v{vL16}, s[{SRD_WS}:{SRD_WS+3}], s{sT2} offen{STSC}")

    def phi8(d, rs, out4, T):
        t1, t2 = T[0:8], T[8:16]
        for r in range(8):
            A(f"v_fma_f32 v{t1[r]}, v{d+r}, v{rs[r]}, v{vEps}")
        for r in range(8):
            A(f"v_fma_f32 v{t2[r]}, v{t1[r]}, v{vL2e}, v{vNeg}")
        for r in range(8):
            A(f"v_exp_f32_e64 v{t2[r]}, v{t2[r]} clamp")
        for r in range(8):
            A(f"v_max_f32 v{t1[r]}, v{vEps}, v{t1[r]}")
        for r in range(8):
            A(f"v_add_f32 v{t1[r]}, v{t1[r]}, v{t2[r]}")
        return t1

    A("s_nop 7")
    A("s_nop 3" if nt == 3 else "s_nop 7")

    def ft_index(j):
        if typ == "A":
            A(f"s_mul_i32 s{sT3}, s{sH}, 3")
            A(f"s_add_u32 s{sT3}, s{sT3}, {j}")
        else:
            jj = 0 if grp == 0 else j + 1
            A(f"s_lshl_b32 s{sT3}, s{sH}, 2")
            A(f"s_add_u32 s{sT3}, s{sT3}, {48 + jj}")

    if var == "A0":
        PK, PV, vOne = 48, 136, 152
        T = list(range(64, 88))
        A(f"v_mov_b32 v{vOne}, 0x3f803f80")
        for a in range(2):
            rs = [vR + 16 * a + r for r in range(16)]
            for half in range(2):
                t1 = phi8(acc(0, a) + 8 * half, rs[8 * half:8 * half + 8], None, T)
                for r in range(4):
                    A(f"v_cvt_pk_bf16_f32 v{PK+8*a+4*half+r}, v{t1[2*r]}, v{t1[2*r+1]}")
            d = acc(1, a)
            for r in range(0, 16, 2):
                A(f"v_pk_mul_f32 {vr(d+r,2)}, {vr(d+r,2)}, {vr(rs[r],2)}")
            for r in range(8):
                A(f"v_cvt_pk_bf16_f32 v{PV+8*a+r}, v{d+2*r}, v{d+2*r+1}")
            for r in range(8):
                A(f"v_cndmask_b32_e64 v{PV+8*a+r}, v{PV+8*a+r}, v{vOne}, s[{sMask24}:{sMask24+1}]")
        KV = acc(0, 0)
        A("s_nop 1")
        for a in range(2):
            for t in range(2):
                c = "0" if (a == 0 and t == 0) else vr(KV, 16)
                A(f"v_mfma_f32_32x32x16_bf16 {vr(KV,16)}, {vr(PK+8*a+4*t,4)}, {vr(PV+8*a+4*t,4)}, {c}")
        A(f"s_lshl_b32 s{sT2}, s{sH}, 3")
        A(f"s_add_u32 s{sT2}, s{sT2}, s{sRB}")
        A(f"s_lshl_b32 s{sT2}, s{sT2}, 2")
        A(f"s_add_u32 s{sT2}, s{sT2}, s{sWp}")
        A(f"s_lshl_b32 s{sT2}, s{sT2}, 12")
        A(f"s_add_u32 s{sT2}, s{sT2}, {OFF_KVP}")
        A("s_nop 7")
        A("s_nop 1")
        for q in range(4):
            A(f"buffer_store_dwordx4 {vr(KV+4*q,4)}, v{vL16}, s[{SRD_WS}:{SRD_WS+3}], s{sT2} offen offset:{q*1024}{STSC}")
    else:
        if var == "B0":
            ft_index(1)
            ffn_tile(1, sT3, 112)
            PQ = 120
            T = list(range(48, 64))
            for a in range(2):
                rs = [vR + a] * 8
                for half in range(2):
                    t1 = phi8(acc(0, a) + 8 * half, rs, None, T)
                    if half == 1:
                        for r in range(4, 8):
                            A(f"v_cndmask_b32_e64 v{t1[r]}, v{t1[r]}, 0, s[{sMaskLo32}:{sMaskLo32+1}]")
                    for r in range(4):
                        A(f"v_cvt_pk_bf16_f32 v{PQ+8*a+4*half+r}, v{t1[2*r]}, v{t1[2*r+1]}")
                A(f"s_add_u32 s{sT2}, s{sT0}, {a}")
                A(f"s_lshl_b32 s{sT2}, s{sT2}, 4")
                A(f"s_add_u32 s{sT2}, s{sT2}, s{sH}")
                A(f"s_lshl_b32 s{sT2}, s{sT2}, 11")
                A(f"s_add_u32 s{sT2}, s{sT2}, {OFF_PQ}")
                A(f"buffer_store_dwordx4 {vr(PQ+8*a,4)}, v{vL16}, s[{SRD_WS}:{SRD_WS+3}], s{sT2} offen{STSC}")
                A(f"buffer_store_dwordx4 {vr(PQ+8*a+4,4)}, v{vL16}, s[{SRD_WS}:{SRD_WS+3}], s{sT2} offen offset:1024{STSC}")
        else:
            for j in range(3):
                ft_index(j)
                ffn_tile(j, sT3, 48 + 8 * j)
    STM(6)
    ST.dump(sW, SRD_WS, sT2)
    A("s_endpgm")
    G1, G2 = 96, 100
    Lfb = A.newlabel("K1_fb")
    A.label(Lslow)
    A(f"s_add_u32 s{sCnt}, s{sCnt}, 1")
    A(f"s_cmp_ge_u32 s{sCnt}, {0 if opts.get('forcefb') else NRETRY}")
    A(f"s_cbranch_scc1 {Lfb}")
    A("s_sleep 2")
    for u in gather(1):
        for l in u.split("\n"):
            if not l.startswith("@"):
                A(l)
    A("s_waitcnt vmcnt(0)")
    A(f"s_branch {Lslow}_chk")
    A.label(Lfb)
    if grp == 0:
        fb_rows(A, G1)
    else:
        A(f"s_lshl_b32 s{sT5}, s{sWp}, 6")
        fb_cols(A, typ, G1, sT5)
    A(f"s_lshl_b32 s{sT5}, s{sW}, 6")
    A(f"s_add_u32 s{sT5}, s{sT5}, 256")
    fb_cols(A, typ, G2, sT5)
    A(f"s_branch {Lok}")
```

```python
from gen_common import *

LDS_BYTES = 4 * 64 * 272
NVGPR = 512
ACCOFF = 256
NSGPR = 96

SRD_WS, SRD_X, SRD_O, SRD_DBG = 4, 8, 12, 16
sW, sRB, sCB = 20, 21, 22
sH0, sH1, sW0, sW1 = 24, 25, 26, 27
sP0, sP1, sO0, sO1 = 28, 29, 30, 31
sKV = 32
sReady = 33
sT0, sT1, sT2, sT3 = 34, 35, 36, 37
sEps6 = 38
sXo = 39
sSt0 = 40
sHi = 48

vL16 = 1
vFl = 4
vXres = 8
vKV = 16
vD = 48
vOP = 112
vTmp = 128
vIr = 136
vRf = 138
ACC = 192
D = 8
A_RING = 0
A_PQ = 128
A_WO = 192
EPS6 = 0x358637BD


def accr(ci, ri):
    return ACC + (ci * 2 + ri) * 16


def emit(A, opts):
    stamps = opts.get("stamps", 0)
    PATT = opts.get("patt", 24)
    forceslow = opts.get("k2slow", 0)
    FLO = 128
    A("s_cmp_ge_u32 s2, 256")
    A("s_cbranch_scc1 K2_end")
    ST = Stamps(A, 72, 1, stamps)
    ST.zero()
    ST.mark(0)
    A(f"s_load_dwordx2 s[{SRD_WS}:{SRD_WS+1}], s[0:1], 72")
    A(f"s_load_dwordx2 s[{SRD_X}:{SRD_X+1}], s[0:1], 0")
    A(f"s_load_dwordx2 s[{SRD_O}:{SRD_O+1}], s[0:1], 56")
    A(f"s_load_dwordx2 s[{SRD_DBG}:{SRD_DBG+1}], s[0:1], 64")
    A("v_lshrrev_b32 v2, 6, v0")
    A("v_and_b32 v3, 63, v0")
    A(f"v_readfirstlane_b32 s{sW}, v2")
    A(f"v_lshlrev_b32 v{vL16}, 4, v3")
    for srd, nb in ((SRD_WS, WS_BYTES if not stamps else 0x10000000), (SRD_X, X_BYTES), (SRD_O, X_BYTES), (SRD_DBG, 256)):
        A(f"s_mov_b32 s{srd+2}, {nb}")
        A(f"s_mov_b32 s{srd+3}, 0x20000")
    A(f"s_mov_b32 s{sEps6}, 0x{EPS6:x}")
    A(f"s_mov_b32 s{sHi}, 0xffff0000")
    A(f"s_and_b32 s{sT0}, s2, 7")
    A(f"s_lshr_b32 s{sT1}, s2, 3")
    A(f"s_cmp_lt_u32 s{sT1}, 4")
    A("s_cbranch_scc1 K2_helper")
    A(f"s_sub_u32 s{sT1}, s{sT1}, 4")
    A(f"s_mul_i32 s{sT2}, s{sT1}, 37")
    A(f"s_lshr_b32 s{sT2}, s{sT2}, 8")
    A(f"s_mul_i32 s{sT3}, s{sT2}, 7")
    A(f"s_sub_u32 s{sCB}, s{sT1}, s{sT3}")
    A(f"s_lshl_b32 s{sRB}, s{sT0}, 2")
    A(f"s_add_u32 s{sRB}, s{sRB}, s{sT2}")
    A(f"s_mul_i32 s{sT0}, s{sW}, {28*1024}")
    A(f"s_mul_i32 s{sH0}, s{sRB}, {2*112*1024}")
    A(f"s_add_u32 s{sH0}, s{sH0}, s{sT0}")
    if OFF_H:
        A(f"s_add_u32 s{sH0}, s{sH0}, {OFF_H}")
    A(f"s_add_u32 s{sH1}, s{sH0}, {112*1024}")
    A(f"s_mul_i32 s{sW0}, s{sCB}, {2*112*1024}")
    A(f"s_add_u32 s{sW0}, s{sW0}, s{sT0}")
    A(f"s_add_u32 s{sW0}, s{sW0}, {OFF_WD}")
    A(f"s_add_u32 s{sW1}, s{sW0}, {112*1024}")
    A(f"s_lshl_b32 s{sT0}, s{sW}, 13")
    A(f"s_lshl_b32 s{sP0}, s{sRB}, 16")
    A(f"s_add_u32 s{sP0}, s{sP0}, s{sT0}")
    A(f"s_add_u32 s{sP0}, s{sP0}, {OFF_PQ}")
    A(f"s_add_u32 s{sP1}, s{sP0}, 32768")
    A(f"s_lshl_b32 s{sO0}, s{sCB}, 16")
    A(f"s_add_u32 s{sO0}, s{sO0}, s{sT0}")
    A(f"s_add_u32 s{sO0}, s{sO0}, {OFF_WO}")
    A(f"s_add_u32 s{sO1}, s{sO0}, 32768")
    A(f"s_add_u32 s{sKV}, s{sT0}, {OFF_KVF}")
    A(f"s_mov_b32 s{sReady}, 0")
    A("s_waitcnt lgkmcnt(0)")
    ST.mark(1)

    seq = [("f", k) for k in range(PATT)] + [("a", v) for v in range(8)] + [("f", k) for k in range(PATT, 28)]
    NPOS = len(seq)
    issued = []

    def issue_group(q):
        kind, k = seq[q]
        if kind == "f":
            base = A_RING + (k % D) * 16
            off = (k % 4) * 1024
            if k % 4 == 0 and k > 0:
                for s in (sH0, sH1, sW0, sW1):
                    A(f"s_add_u32 s{s}, s{s}, 4096")
            for j, s in enumerate((sW0, sH0, sH1, sW1)):
                A(f"buffer_load_dwordx4 {ar(base+4*j,4)}, v{vL16}, s[{SRD_WS}:{SRD_WS+3}], s{s} offen offset:{off}")
                issued.append((q, j))
        else:
            hh, t = k >> 1, k & 1
            off = (k % 4) * 1024
            if k == 4:
                for s in (sP0, sP1, sO0, sO1):
                    A(f"s_add_u32 s{s}, s{s}, 4096")
            pq = A_PQ + (hh * 2 + t) * 8
            wo = A_WO + (hh * 2 + t) * 8
            for j, (dst, s) in enumerate(((pq, sP0), (pq + 4, sP1), (wo, sO0), (wo + 4, sO1))):
                A(f"buffer_load_dwordx4 {ar(dst,4)}, v{vL16}, s[{SRD_WS}:{SRD_WS+3}], s{s} offen offset:{off}")
                issued.append((q, j))

    def wait_for(q, j):
        idx = issued.index((q, j))
        n = len(issued) - 1 - idx
        A(f"s_waitcnt vmcnt({min(63, n)})")

    def kvf_loads():
        A(f"s_add_u32 s{sT0}, s{sKV}, 4096")
        for i in range(8):
            s = sKV if i < 4 else sT0
            A(f"buffer_load_dwordx4 {vr(vKV+4*i,4)}, v{vL16}, s[{SRD_WS}:{SRD_WS+3}], s{s} offen offset:{(i%4)*1024} sc1")

    def check_flags(label_fail):
        A(f"v_and_b32 v{vFl}, v{vFl}, v{vFl+1}")
        A(f"v_and_b32 v{vFl+2}, v{vFl+2}, v{vFl+3}")
        A(f"v_and_b32 v{vFl}, v{vFl}, v{vFl+2}")
        A("s_nop 0")
        A(f"v_readfirstlane_b32 s{sT1}, v{vFl}")
        A(f"s_cmp_eq_u32 s{sT1}, 1")
        A(f"s_cbranch_scc0 {label_fail}")

    def poll_load():
        A(f"s_lshl_b32 s{sT1}, s{sW}, 4")
        A(f"v_mov_b32 v2, 0")
        A(f"buffer_load_dwordx4 {vr(vFl,4)}, v2, s[{SRD_DBG}:{SRD_DBG+3}], s{sT1} offen offset:{FLO} sc1")

    A("v_lshrrev_b32 v2, 2, v0")
    A("v_mul_u32_u24 v2, 896, v2")
    A("v_and_b32 v3, 3, v0")
    A("v_lshl_add_u32 v3, v3, 5, v2")
    A(f"s_mul_i32 s{sXo}, s{sRB}, {64*896}")
    A(f"s_lshl_b32 s{sT0}, s{sCB}, 7")
    A(f"s_add_u32 s{sXo}, s{sXo}, s{sT0}")

    A("v_and_b32 v4, 31, v0")
    A("v_lshlrev_b32 v4, 4, v4")
    A(f"s_lshl_b32 s{sT0}, s{sRB}, 10")
    A(f"s_add_u32 s{sT0}, s{sT0}, {OFF_ST + 4}")
    A("v_lshrrev_b32 v5, 2, v0")
    A("v_lshlrev_b32 v5, 4, v5")
    for q in range(min(D, NPOS)):
        issue_group(q)
        if q == 0:
            A(f"buffer_load_dword v{vIr}, v4, s[{SRD_WS}:{SRD_WS+3}], s{sT0} offen")
            A(f"buffer_load_dword v{vIr+1}, v4, s[{SRD_WS}:{SRD_WS+3}], s{sT0} offen offset:512")
            A(f"buffer_load_dword v{vRf}, v5, s[{SRD_WS}:{SRD_WS+3}], s{sT0} offen")
            issued.extend([("r", 0), ("r", 1), ("r", 2)])
    for r in range(64):
        A(f"v_mov_b32 v{ACC+r}, 0")

    first_use = PATT + 1
    QC = opts.get("qc", first_use - D)
    PP = opts.get("ppoll", QC - D)
    assert PP >= 0
    att_done = set()

    def att_kv(hh):
        Db = vD + (hh & 1) * 32
        for ri in range(2):
            for t in range(2):
                a = vr(vKV + (hh * 2 + t) * 4, 4)
                b = ar(A_PQ + (hh * 2 + t) * 8 + 4 * ri, 4)
                c = "0" if t == 0 else vr(Db + 16 * ri, 16)
                A(f"v_mfma_f32_32x32x16_bf16 {vr(Db+16*ri,16)}, {a}, {b}, {c}")

    def att_norm(hh):
        Db = vD + (hh & 1) * 32
        for ri in range(2):
            d = Db + 16 * ri
            t0, t1 = vTmp + 2 * ri, vTmp + 2 * ri + 1
            A(f"v_mov_b32 v{t0}, v{d+12}")
            A(f"v_mov_b32 v{t1}, v{d+12}")
        A("s_nop 1")
        for ri in range(2):
            t0, t1 = vTmp + 2 * ri, vTmp + 2 * ri + 1
            A(f"v_permlane32_swap_b32 v{t0}, v{t1}")
        A("s_nop 1")
        for ri in range(2):
            t0 = vTmp + 2 * ri
            A(f"v_add_f32 v{t0}, s{sEps6}, v{t0}")
        for ri in range(2):
            t0 = vTmp + 2 * ri
            A(f"v_rcp_f32 v{t0}, v{t0}")
        A("s_nop 0")
        for ri in range(2):
            t0 = vTmp + 2 * ri
            A(f"v_mul_f32 v{t0}, v{t0}, v{vIr+ri}")
        for ri in range(2):
            d = Db + 16 * ri
            t0 = vTmp + 2 * ri
            for r in range(16):
                A(f"v_mul_f32 v{d+r}, v{d+r}, v{t0}")
            for r in range(8):
                A(f"v_cvt_pk_bf16_f32 v{vOP+8*ri+r}, v{d+2*r}, v{d+2*r+1}")
        A("s_nop 1")

    def att_wo(hh):
        for t in range(2):
            for ci in range(2):
                for ri in range(2):
                    a = ar(A_WO + (hh * 2 + t) * 8 + 4 * ci, 4)
                    b = vr(vOP + 8 * ri + 4 * t, 4)
                    d = accr(ci, ri)
                    A(f"v_mfma_f32_32x32x16_bf16 {vr(d,16)}, {a}, {b}, {vr(d,16)}")

    first_att = True
    for q in range(NPOS):
        kind, k = seq[q]
        if q == QC:
            A(f"s_waitcnt vmcnt({min(63, len(issued) - 1 - issued.index('poll'))})")
            lab = A.newlabel("K2_nf")
            if not forceslow:
                check_flags(lab)
                A(f"s_mov_b32 s{sReady}, 1")
            A.label(lab)
            kvf_loads()
            for i in range(8):
                issued.append(("kvf", i))
        if kind == "f":
            base = A_RING + (k % D) * 16
            w0, h0, h1, w1 = base, base + 4, base + 8, base + 12
            wait_for(q, 1)
            A(f"v_mfma_f32_32x32x16_bf16 {vr(accr(0,0),16)}, {ar(w0,4)}, {ar(h0,4)}, {vr(accr(0,0),16)}")
            wait_for(q, 2)
            A(f"v_mfma_f32_32x32x16_bf16 {vr(accr(0,1),16)}, {ar(w0,4)}, {ar(h1,4)}, {vr(accr(0,1),16)}")
            wait_for(q, 3)
            A(f"v_mfma_f32_32x32x16_bf16 {vr(accr(1,0),16)}, {ar(w1,4)}, {ar(h0,4)}, {vr(accr(1,0),16)}")
            A(f"v_mfma_f32_32x32x16_bf16 {vr(accr(1,1),16)}, {ar(w1,4)}, {ar(h1,4)}, {vr(accr(1,1),16)}")
            if q == 0:
                ST.mark(2)
            if q == 1:
                for i in range(2):
                    A(f"v_mul_f32 v{vIr+i}, v{vIr+i}, v{vIr+i}")
                A(f"v_mul_f32 v{vRf}, v{vRf}, v{vRf}")
                for i in range(2):
                    A(f"v_rcp_f32 v{vIr+i}, v{vIr+i}")
            if q == QC:
                ST.mark(3)
            if q == PATT - 1:
                ST.mark(4)
        else:
            hh, t = k >> 1, k & 1
            if t == 1:
                if first_att:
                    first_att = False
                    lok = A.newlabel("K2_kvok")
                    A(f"s_cmp_eq_u32 s{sReady}, 1")
                    A(f"s_cbranch_scc0 K2_slow")
                    A.label("K2_slow_ret")
                    A(f"s_waitcnt vmcnt({min(63, len(issued) - 1 - issued.index(('kvf', 7)))})")
                wait_for(q, 3)
                att_kv(hh)
                if hh > 0:
                    att_norm(hh - 1)
                    att_wo(hh - 1)
                if hh == 3:
                    A("s_nop 7")
                    A("s_nop 3")
                    att_norm(3)
                    att_wo(3)
        nq = q + D
        if nq < NPOS:
            if q == PP:
                poll_load()
                issued.append("poll")
            issue_group(nq)
        if q == NPOS - D - 1 or (q == 0 and NPOS - D - 1 < 0):
            A(f"buffer_load_dwordx4 {vr(vXres,4)}, v3, s[{SRD_X}:{SRD_X+3}], s{sXo} offen")
            A(f"buffer_load_dwordx4 {vr(vXres+4,4)}, v3, s[{SRD_X}:{SRD_X+3}], s{sXo} offen offset:16")
            issued.append(("x", 0)); issued.append(("x", 1))
    ST.mark(5)
    A("v_and_b32 v4, 31, v0")
    A("v_mul_u32_u24 v4, 272, v4")
    A("v_lshrrev_b32 v5, 5, v0")
    A("v_and_b32 v5, 1, v5")
    A("v_lshl_add_u32 v4, v5, 4, v4")
    A(f"s_mul_i32 s{sT0}, s{sW}, {64*272}")
    A(f"v_add_u32 v4, s{sT0}, v4")
    A("s_nop 7")
    A("s_nop 3")
    for ri in range(2):
        for ci in range(2):
            d = accr(ci, ri)
            for j in range(4):
                A(f"ds_write_b128 v4, {vr(d+4*j,4)} offset:{ri*32*272 + ci*128 + j*32}")
    A("v_lshrrev_b32 v5, 2, v0")
    A("v_mul_u32_u24 v5, 272, v5")
    A("v_and_b32 v6, 3, v0")
    A("v_lshl_add_u32 v5, v6, 6, v5")
    A("s_waitcnt lgkmcnt(0)")
    A("s_barrier")
    R = 128
    A(f"v_mov_b32 v40, v{vRf}")
    for p in range(4):
        for i in range(4):
            A(f"ds_read_b128 {vr(R+16*p+4*i,4)}, v5 offset:{p*64*272 + i*16}")
    A("s_waitcnt vmcnt(0)")
    for i in range(8):
        A(f"v_lshlrev_b32 v{16+2*i}, 16, v{vXres+i}")
        A(f"v_and_b32 v{17+2*i}, s{sHi}, v{vXres+i}")
    A("s_waitcnt lgkmcnt(0)")
    for r in range(16):
        A(f"v_add_f32 v{R+r}, v{R+r}, v{R+16+r}")
        A(f"v_add_f32 v{R+32+r}, v{R+32+r}, v{R+48+r}")
    for r in range(16):
        A(f"v_add_f32 v{R+r}, v{R+r}, v{R+32+r}")
    for r in range(16):
        A(f"v_fma_f32 v{R+r}, v{R+r}, v40, v{16+r}")
    for r in range(8):
        A(f"v_cvt_pk_bf16_f32 v{32+r}, v{R+2*r}, v{R+2*r+1}")
    A(f"buffer_store_dwordx4 v[32:35], v3, s[{SRD_O}:{SRD_O+3}], s{sXo} offen")
    A(f"buffer_store_dwordx4 v[36:39], v3, s[{SRD_O}:{SRD_O+3}], s{sXo} offen offset:16")
    ST.mark(6)
    ST.dump(sW, SRD_WS, sT2)
    A("s_endpgm")

    A.label("K2_slow")
    A(f"s_mov_b32 s{sT2}, 0")
    Lsp = A.newlabel("K2_spin")
    Lnf = A.newlabel("K2_spin_nf")
    Lfb = A.newlabel("K2_fallback")
    if not forceslow:
        A.label(Lsp)
        poll_load()
        A("s_waitcnt vmcnt(0)")
        check_flags(Lnf)
        kvf_loads()
        A("s_waitcnt vmcnt(0)")
        A("s_branch K2_slow_ret")
        A.label(Lnf)
        A("s_sleep 4")
        A(f"s_add_u32 s{sT2}, s{sT2}, 1")
        A(f"s_cmp_lt_u32 s{sT2}, 200")
        A(f"s_cbranch_scc1 {Lsp}")
    A("s_waitcnt vmcnt(0)")
    for hh in range(4):
        A(f"s_lshl_b32 s{sT0}, s{sW}, 19")
        A(f"s_add_u32 s{sT0}, s{sT0}, {OFF_KVP + hh*131072}")
        S = vD
        for r in range(16):
            A(f"v_mov_b32 v{S+r}, 0")
        A(f"s_mov_b32 s{sT3}, 0")
        Lf = A.newlabel("K2_fbl")
        A.label(Lf)
        for q4 in range(4):
            A(f"buffer_load_dwordx4 {vr(S+16+4*q4,4)}, v{vL16}, s[{SRD_WS}:{SRD_WS+3}], s{sT0} offen offset:{q4*1024}")
        A(f"s_add_u32 s{sT0}, s{sT0}, 4096")
        A("s_waitcnt vmcnt(0)")
        for r in range(16):
            A(f"v_add_f32 v{S+r}, v{S+r}, v{S+16+r}")
        A(f"s_add_u32 s{sT3}, s{sT3}, 1")
        A(f"s_cmp_lt_u32 s{sT3}, 32")
        A(f"s_cbranch_scc1 {Lf}")
        for r in range(8):
            A(f"v_cvt_pk_bf16_f32 v{vKV+hh*8+r}, v{S+2*r}, v{S+2*r+1}")
    A("s_nop 1")
    A("s_branch K2_slow_ret")

    A.label("K2_helper")
    A(f"s_lshl_b32 s{sT1}, s{sT1}, 3")
    A(f"s_add_u32 s{sT1}, s{sT1}, s{sT0}")
    A(f"s_cmp_ge_u32 s{sT1}, 16")
    A("s_cbranch_scc1 K2_end")
    A("s_waitcnt lgkmcnt(0)")
    A(f"s_lshl_b32 s{sT2}, s{sT1}, 17")
    A(f"s_lshl_b32 s{sT3}, s{sW}, 10")
    A(f"s_add_u32 s{sT2}, s{sT2}, s{sT3}")
    A(f"s_add_u32 s{sT2}, s{sT2}, {OFF_KVP}")
    for pt in range(32):
        A(f"buffer_load_dwordx4 {vr(16+4*pt,4)}, v{vL16}, s[{SRD_WS}:{SRD_WS+3}], s{sT2} offen")
        A(f"s_add_u32 s{sT2}, s{sT2}, 4096")
    for pt in range(0, 32, 2):
        A(f"s_waitcnt vmcnt({30 - pt})")
        for r in range(4):
            A(f"v_add_f32 v{16+4*pt+r}, v{16+4*pt+r}, v{20+4*pt+r}")
    st = 2
    while st < 32:
        for pt in range(0, 32, 2 * st):
            for r in range(4):
                A(f"v_add_f32 v{16+4*pt+r}, v{16+4*pt+r}, v{16+4*(pt+st)+r}")
        st *= 2
    A("v_cvt_pk_bf16_f32 v20, v16, v17")
    A("v_cvt_pk_bf16_f32 v21, v18, v19")
    A(f"s_lshl_b32 s{sT2}, s{sT1}, 11")
    A(f"s_lshr_b32 s{sT3}, s{sW}, 1")
    A(f"s_lshl_b32 s{sT3}, s{sT3}, 10")
    A(f"s_add_u32 s{sT2}, s{sT2}, s{sT3}")
    A(f"s_and_b32 s{sT3}, s{sW}, 1")
    A(f"s_lshl_b32 s{sT3}, s{sT3}, 3")
    A(f"s_add_u32 s{sT2}, s{sT2}, s{sT3}")
    A(f"s_add_u32 s{sT2}, s{sT2}, {OFF_KVF}")
    A(f"buffer_store_dwordx2 v[20:21], v{vL16}, s[{SRD_WS}:{SRD_WS+3}], s{sT2} offen sc1")
    A("s_waitcnt vmcnt(0)")
    A("s_barrier")
    A(f"s_cmp_lg_u32 s{sW}, 0")
    A("s_cbranch_scc1 K2_end")
    A(f"s_lshl_b32 s{sT2}, s{sT1}, 2")
    A("v_mov_b32 v2, 0")
    A("v_mov_b32 v4, 1")
    A("v_cmp_eq_u32 vcc, 0, v0")
    A("s_and_saveexec_b64 s[50:51], vcc")
    A(f"buffer_store_dword v4, v2, s[{SRD_DBG}:{SRD_DBG+3}], s{sT2} offen offset:{FLO} sc1")
    A.label("K2_end")
    A("s_endpgm")
```

```python
from gen_common import *
import struct

STAGE = 53376
LDS_BYTES = 163840
NVGPR = 256
ACCOFF = 256
NSGPR = 102

S1 = STAGE
S2 = 2 * STAGE
TOP = 3 * STAGE
M_OFF = S1
R_OFF = S1 + 1024
CP_OFF = S1 + 2048
OOB = 0x40000000
OFF_KVS = OFF_KVF
OFF_FL = 0xC80000
DBG_Z = 64

SRD_X, SRD_Q, SRD_G, SRD_U, SRD_WS, SRD_WD = 4, 8, 12, 16, 20, 24
SRD_DBG, SRD_WO, SRD_OUT = 64, 80, 16
sW, sWp, sRB, sH, sCB = 32, 33, 34, 35, 36
sXbase, sHbase, sGbase = 37, 38, 39
sLx, sLh, sLg, sLu = 40, 41, 42, 43
sC, sXc, sHc, sGc = 44, 45, 46, 47
sHb2, sLh2 = 48, 28
sFG = 29
sChk = 59
FGPERM = [7, 1, 0, 2, 3, 5, 4, 6, 15, 8, 9, 11, 10, 12, 13, 14]
sT0, sT1, sT2, sT3, sT4, sT5 = 49, 50, 51, 52, 53, 54
sWin = 55
sMaskP = 56
sHi = 58
sTag = 60
sMaskLo32 = 62
sMask24 = 30
sOk = 68
sNeed = 70
sKT, sK2 = 72, 73
sD0, sD1 = 74, 75
sCSo = 76
sZo = 77
sCnt = 78
sLim = 79
sOk2 = 84
sPF = 72

vXA = [[16, 17, 18, 19], [124, 125, 126, 127]]
vWA0 = [[20, 21, 22, 23], [128, 129, 130, 131]]
vWA1 = [[24, 25, 26, 27], [132, 133, 134, 135]]
vX, vH, vG = 28, 29, 30
vL16 = 31
vCS = [32, 33, 34, 35, 36, 37]
vCT = [38, 39, 40, 41]
vZo, vCSo = 42, 43
vZ0 = 44
FB = [48, 68]
XC = 88
WC = 96
ACC = 160

F1_448 = 0x3B124925
EPS5 = 0x3727C5AC
EPS6 = 0x358637BD
LOG2E = 0x3FB8AA3B
CHK = 0x5BD1E995
DELTA = 800
NRETRY = 40
SPINMAX = 200000
NEG_EPS_LOG2E = struct.unpack("<I", struct.pack("<f", -1e-6 * 1.4426950408889634))[0]

OPTS = {}
ST = None


def acc(j, a):
    return ACC + (j * 2 + a) * 16


VARIANTS = {
    "A0": ("A", 0, ["k", "v"]),
    "A1": ("A", 1, ["f", "f", "f"]),
    "B0": ("B", 0, ["q", "f"]),
    "B1": ("B", 1, ["f", "f", "f"]),
}


class Em:
    def __init__(self, A):
        self.A = A
        self.ops = []

    def copy_state(self):
        return list(self.ops)

    def __call__(self, s):
        for l in s.split("\n"):
            l = l.strip()
            if not l:
                continue
            if l.startswith("@vm "):
                self.ops.append(l[4:].strip())
            elif l.startswith("@wait "):
                tag = l[6:].strip()
                idx = max(i for i, t in enumerate(self.ops) if t == tag)
                n = len(self.ops) - 1 - idx
                assert n <= 63
                self.A(f"s_waitcnt vmcnt({n})")
            else:
                self.A(l)


def stage_sel(n):
    s = n % 3
    return (1 if s == 2 else 0), (STAGE if s == 1 else 0)


def wread_list(var, n, t, buf):
    b = FB[buf] + 8
    st, ib = stage_sel(n)
    w0, w1 = vWA0[st][t], vWA1[st][t]
    if var == "A0":
        spec = [(w0, 0, 512), (w1, 0, 512)]
    elif var == "A1":
        spec = [(w0, 32 * j, 384) for j in range(3)]
    elif var == "B0":
        spec = [(w0, 0, 256), (w1, 0, 512)]
    else:
        spec = [(w0, 0, 512), (w1, 64, 512), (w0, 64, 512)]
    out = []
    for j, (reg, imm, d2) in enumerate(spec):
        out.append(f"ds_read_b64_tr_b16 {vr(b+4*j,2)}, v{reg} offset:{ib+imm}")
        out.append(f"ds_read_b64_tr_b16 {vr(b+4*j+2,2)}, v{reg} offset:{ib+imm+d2}")
    return out


def reads(var, n, t, buf):
    b = FB[buf]
    st, ib = stage_sel(n)
    xa = vXA[st][t]
    xs = [f"ds_read_b128 {vr(b,4)}, v{xa} offset:{ib}", f"ds_read_b128 {vr(b+4,4)}, v{xa} offset:{ib+4096}"]
    ws = wread_list(var, n, t, buf)
    return [xs[0], ws[0], ws[1], xs[1]] + ws[2:]


def mfmas_regs(var, xb, wb, zero=False):
    tiles = VARIANTS[var][2]
    out = []
    for j, kind in enumerate(tiles):
        for a in range(2):
            d = acc(j, a)
            xf = vr(xb + 4 * a, 4)
            wf = vr(wb + 4 * j, 4)
            c = "0" if zero else vr(d, 16)
            if kind in ("k", "v"):
                out.append(f"v_mfma_f32_32x32x16_bf16 {vr(d,16)}, {xf}, {wf}, {c}")
            else:
                out.append(f"v_mfma_f32_32x32x16_bf16 {vr(d,16)}, {wf}, {xf}, {c}")
    return out


def mfmas(var, buf, zero=False):
    return mfmas_regs(var, FB[buf], FB[buf] + 8, zero)


def cs_duty(var, buf, j):
    b = FB[buf] + 8
    out = []
    for r in range(4):
        ta = vCT[(r % 2) * 2]
        src = b + 4 * j + r
        out.append(f"v_lshlrev_b32 v{ta}, 16, v{src}")
        out.append(f"v_and_b32 v{ta+1}, s{sHi}, v{src}")
        if r == 0:
            out.append(f"v_add_f32 v{vCS[2*j]}, 0, v{ta}")
            out.append(f"v_add_f32 v{vCS[2*j]+1}, 0, v{ta+1}")
        else:
            out.append(f"v_add_f32 v{vCS[2*j]}, v{vCS[2*j]}, v{ta}")
            out.append(f"v_add_f32 v{vCS[2*j]+1}, v{vCS[2*j]+1}, v{ta+1}")
    return out


def dma_units(typ, stage_off, tag):
    vm = f"@vm {tag}\n"
    u = []
    u.append(f"s_lshl_b32 s{sD0}, s{sC}, 7\ns_add_u32 s{sD0}, s{sD0}, s{sXbase}\ns_add_u32 m0, s{sLx}, {stage_off}\ns_mul_i32 s{sD1}, s{sC}, {64*2688}\n"
             + vm + f"buffer_load_dwordx4 v{vX}, s[{SRD_X}:{SRD_X+3}], s{sD0} offen lds")
    for j in range(1, 4):
        u.append(f"s_add_u32 m0, m0, 8192\ns_add_u32 s{sD0}, s{sD0}, {64*896}\n"
                 + vm + f"buffer_load_dwordx4 v{vX}, s[{SRD_X}:{SRD_X+3}], s{sD0} offen lds")
    head = (f"s_add_u32 m0, s{sLh}, {stage_off}\ns_add_u32 s{sD1}, s{sD1}, s{sHbase}\n")
    headld = vm + f"buffer_load_dwordx4 v{vH}, s[{SRD_Q}:{SRD_Q+3}], s{sD1} offen lds"
    gpre = f"s_mul_i32 s{sD0}, s{sC}, {64*3584}\ns_add_u32 m0, s{sLg}, {stage_off}\ns_add_u32 s{sD0}, s{sD0}, s{sGbase}\n"
    gld = vm + f"buffer_load_dwordx4 v{vG}, s[{SRD_G}:{SRD_G+3}], s{sD0} offen lds"
    upre = f"s_add_u32 m0, s{sLu}, {stage_off}\ns_nop 0\n"
    uld = vm + f"buffer_load_dwordx4 v{vG}, s[{SRD_U}:{SRD_U+3}], s{sD0} offen lds"
    mon = f"s_mov_b64 exec, s[{sMaskP}:{sMaskP+1}]\n"
    moff = "\ns_mov_b64 exec, -1"
    if typ == "A":
        u.append(head + headld)
        u.append(gpre + mon + gld + moff)
        u.append(upre + mon + uld + moff)
    else:
        u.append(head + mon + headld + moff)
        u.append(gpre + gld)
        u.append(upre + uld + "")
    u[-1] += f"\ns_add_u32 s{sC}, s{sC}, 1\ns_cmp_eq_u32 s{sC}, 7\ns_cselect_b32 s{sC}, 0, s{sC}"
    return u


def dma14(typ, n):
    SB = (n % 3) * STAGE
    vm = f"@vm c{n}\n"
    hb = sHbase if typ == "A" else sHb2
    pre = (f"s_lshl_b32 s{sXc}, s{sC}, 7\ns_mul_i32 s{sHc}, s{sC}, {64*2688}\ns_mul_i32 s{sGc}, s{sC}, {64*3584}\n"
           f"s_add_u32 s{sXc}, s{sXc}, s{sXbase}\ns_add_u32 s{sHc}, s{sHc}, s{hb}\ns_add_u32 s{sGc}, s{sGc}, s{sGbase}\n"
           f"s_add_u32 s{sC}, s{sC}, 1\ns_cmp_eq_u32 s{sC}, 7\ns_cselect_b32 s{sC}, 0, s{sC}\n")
    mon = f"s_mov_b64 exec, s[{sMaskP}:{sMaskP+1}]\n"
    moff = "\ns_mov_b64 exec, -1"
    u = []

    def piece(lds_s, lds_imm, base_s, goff, vaddr, srd, masked):
        s = f"s_add_u32 m0, s{lds_s}, {SB + lds_imm}\n"
        if goff:
            s += f"s_add_u32 s{sD0}, s{base_s}, {goff}\n"
            so = sD0
        else:
            s += "s_nop 0\n" if not masked else ""
            so = base_s
        if masked:
            s += mon
        s += vm + f"buffer_load_dwordx4 v{vaddr}, s[{srd}:{srd+3}], s{so} offen lds"
        if masked:
            s += moff
        return s
    for j in range(8):
        u.append(piece(sLx, j * 4096, sXc, j * 32 * 896, vX, SRD_X, False))
    if typ == "A":
        for j in range(2):
            u.append(piece(sLh, j * 4096, sHc, j * 32 * 2688, vH, SRD_Q, False))
        for j in range(2):
            u.append(piece(sLg, j * 3072, sGc, j * 32 * 3584, vG, SRD_G, True))
            u.append(piece(sLu, j * 3072, sGc, j * 32 * 3584, vG, SRD_U, True))
    else:
        u.append(piece(sLh2, 0, sHc, 0, vH, SRD_Q, False))
        for j in range(2):
            u.append(piece(sLg, j * 4096, sGc, j * 32 * 3584, vG, SRD_G, False))
            u.append(piece(sLu, j * 4096, sGc, j * 32 * 3584, vG, SRD_U, False))
    u[0] = pre + u[0]
    return u


def granule_finish(g):
    return [f"v_mov_b32 v{g+2}, s{sTag}",
            f"v_xor_b32 v{g+3}, v{g}, v{g+1}",
            f"v_xor_b32 v{g+3}, s{sChk}, v{g+3}",
            f"v_xor_b32 v{g+3}, s{sTag}, v{g+3}"]


def granule_check(g, t, dst):
    return [f"v_xor_b32 v{t}, v{g}, v{g+1}",
            f"v_xor_b32 v{t}, s{sChk}, v{t}",
            f"v_xor_b32 v{t}, v{g+2}, v{t}",
            f"v_subrev_u32 v{t+1}, s{sWin}, v{g+2}",
            f"v_cmp_eq_u32 vcc, v{t}, v{g+3}",
            f"v_cmp_gt_u32_e64 s[{dst}:{dst+1}], s{sLim}, v{t+1}",
            "s_nop 1",
            f"s_and_b64 s[{dst}:{dst+1}], s[{dst}:{dst+1}], vcc"]


def STM(i, first=False):
    if OPTS.get("chst") or (OPTS.get("pst") and i > 2):
        return
    ST.mark(i)


def CHM(i):
    if OPTS.get("chst"):
        ST.mark(i)


def emit(A, opts):
    global ST
    OPTS.update(opts)
    stamps = opts.get("stamps", 0)
    A("s_cmp_ge_u32 s2, 256")
    A("s_cbranch_scc1 K1_end")
    A(f"s_memrealtime s[{sTag}:{sTag+1}]")
    A(f"s_load_dwordx2 s[{SRD_X}:{SRD_X+1}], s[0:1], 0")
    A(f"s_load_dwordx2 s[{SRD_Q}:{SRD_Q+1}], s[0:1], 8")
    A(f"s_load_dwordx2 s[{SRD_G}:{SRD_G+1}], s[0:1], 32")
    A(f"s_load_dwordx2 s[{SRD_U}:{SRD_U+1}], s[0:1], 40")
    A(f"s_load_dwordx2 s[{SRD_WS}:{SRD_WS+1}], s[0:1], 72")
    A(f"s_load_dwordx2 s[{SRD_WD}:{SRD_WD+1}], s[0:1], 48")
    A(f"s_load_dwordx2 s[{SRD_WO}:{SRD_WO+1}], s[0:1], 16")
    A(f"s_load_dwordx2 s[{SRD_DBG}:{SRD_DBG+1}], s[0:1], 64")
    if opts.get("prio", 1):
        A("s_setprio 3")
    ST = Stamps(A, 86, 0, stamps)
    ST.zero()
    STM(0)
    A("v_lshrrev_b32 v1, 6, v0")
    A("v_and_b32 v0, 63, v0")
    A(f"v_readfirstlane_b32 s{sW}, v1")
    for srd, nb in ((SRD_X, X_BYTES), (SRD_Q, Q_BYTES), (SRD_G, G_BYTES), (SRD_U, G_BYTES), (SRD_WS, WS_BYTES if not stamps else 0x10000000),
                    (SRD_WD, WD_BYTES), (SRD_WO, WO_BYTES), (SRD_DBG, 256)):
        A(f"s_mov_b32 s{srd+2}, {nb}")
        A(f"s_mov_b32 s{srd+3}, 0x20000")
    A(f"s_and_b32 s{sT0}, s2, 7")
    A(f"s_lshr_b32 s{sT1}, s2, 3")
    A(f"s_and_b32 s{sRB}, s{sT0}, 1")
    A(f"s_lshl_b32 s{sRB}, s{sRB}, 2")
    A(f"s_and_b32 s{sT2}, s{sT1}, 3")
    A(f"s_add_u32 s{sRB}, s{sRB}, s{sT2}")
    A(f"s_lshr_b32 s{sCB}, s{sT0}, 1")
    A(f"s_lshl_b32 s{sCB}, s{sCB}, 3")
    A(f"s_lshr_b32 s{sT2}, s{sT1}, 2")
    A(f"s_add_u32 s{sCB}, s{sCB}, s{sT2}")
    A(f"s_and_b32 s{sH}, s{sCB}, 15")
    A(f"s_and_b32 s{sWp}, s{sW}, 3")
    A(f"s_lshl_b32 s{sT0}, s{sRB}, 8")
    A(f"s_lshl_b32 s{sT1}, s{sW}, 3")
    A(f"s_add_u32 s{sT0}, s{sT0}, s{sT1}")
    A(f"s_mul_i32 s{sXbase}, s{sT0}, 896")
    A(f"s_lshl_b32 s{sLx}, s{sW}, 10")
    A(f"v_lshrrev_b32 v1, 3, v0")
    A(f"v_lshrrev_b32 v2, 4, v0")
    A(f"s_and_b32 s{sT1}, s{sW}, 1")
    A(f"s_lshl_b32 s{sT1}, s{sT1}, 2")
    A(f"v_add_u32 v3, s{sT1}, v2")
    A(f"v_and_b32 v4, 7, v0")
    A(f"v_xor_b32 v4, v4, v3")
    A(f"v_lshlrev_b32 v4, 4, v4")
    A(f"v_mul_u32_u24 v{vX}, 896, v1")
    A(f"v_add_u32 v{vX}, v{vX}, v4")
    A(f"v_lshlrev_b32 v{vL16}, 4, v0")
    A(f"v_mov_b32 v5, 0x{OOB:x}")
    A(f"v_cmp_gt_u32 vcc, 56, v0")
    A(f"v_cndmask_b32 v5, v5, v{vL16}, vcc")
    A(f"s_lshl_b32 s{sT4}, s{sRB}, 8")
    A(f"s_lshl_b32 s{sT5}, s{sCB}, 3")
    A(f"s_add_u32 s{sT4}, s{sT4}, s{sT5}")
    A(f"s_add_u32 s{sK2}, s{sT4}, s{sW}")
    A(f"s_mul_i32 s{sKT}, s{sK2}, 896")
    A(f"s_cmp_eq_u32 s{sRB}, 7")
    A(f"s_cselect_b32 s{sC}, 0, s{sRB}")
    if opts.get("rot", 1) == 0:
        A(f"s_mov_b32 s{sC}, 0")
    elif opts.get("rot", 1) == 2:
        A(f"s_and_b32 s{sC}, s{sRB}, 6")
    elif opts.get("rot", 1) == 4:
        A(f"s_and_b32 s{sC}, s{sRB}, 4")
    A(f"s_cmp_ge_u32 s{sCB}, 16")
    A("s_cbranch_scc1 K1_typeB")
    for typ in ("A", "B"):
        A.label(f"K1_type{typ}")
        if typ == "A":
            A("v_lshrrev_b32 v1, 3, v0")
            A("v_lshrrev_b32 v2, 4, v0")
            A("v_and_b32 v2, 1, v2")
            A("v_lshlrev_b32 v2, 2, v2")
            A("v_and_b32 v3, 7, v0")
            A("v_xor_b32 v3, v3, v2")
            A("v_and_b32 v4, 3, v3")
            A("v_lshrrev_b32 v3, 2, v3")
            A("v_lshlrev_b32 v6, 4, v4")
            A("v_cmp_eq_u32 vcc, 3, v4")
            A("v_mul_u32_u24 v3, 896, v3")
            A("v_add_u32 v3, 896, v3")
            A("v_mov_b32 v7, 40")
            A("v_cndmask_b32 v6, v6, v7, vcc")
            A(f"v_mul_u32_u24 v{vH}, 2688, v1")
            A(f"v_add3_u32 v{vH}, v{vH}, v3, v6")
            A("v_mul_u32_u24 v1, 43, v0")
            A("v_lshrrev_b32 v1, 8, v1")
            A("v_mul_u32_u24 v2, 6, v1")
            A("v_sub_u32 v2, v0, v2")
            A("v_lshlrev_b32 v2, 4, v2")
            A(f"v_mul_u32_u24 v{vG}, 3584, v1")
            A(f"v_add_u32 v{vG}, v{vG}, v2")
            A(f"s_mov_b32 s{sMaskP}, -1")
            A(f"s_mov_b32 s{sMaskP+1}, 0xffff")
            perm = FGPERM if opts.get("fgp", 1) else list(range(16))
            pv = sum(f << (4 * h) for h, f in enumerate(perm))
            A(f"s_mov_b32 s{sT3}, 0x{pv & 0xffffffff:x}")
            A(f"s_mov_b32 s{sT4}, 0x{pv >> 32:x}")
            A(f"s_lshl_b32 s{sT1}, s{sH}, 2")
            A(f"s_lshr_b64 s[{sT3}:{sT4}], s[{sT3}:{sT4}], s{sT1}")
            A(f"s_and_b32 s{sFG}, s{sT3}, 15")
            A(f"s_mul_i32 s{sT1}, s{sFG}, 96")
            A(f"s_lshl_b32 s{sLh}, s{sW}, 10")
            A(f"s_add_u32 s{sLh}, s{sLh}, 32768")
            A(f"s_mul_i32 s{sLg}, s{sW}, 768")
            A(f"s_add_u32 s{sLu}, s{sLg}, 47232")
            A(f"s_add_u32 s{sLg}, s{sLg}, 40960")
        else:
            A("v_lshrrev_b32 v1, 2, v0")
            A("v_and_b32 v4, 3, v0")
            A("v_lshlrev_b32 v6, 4, v4")
            A("v_cmp_eq_u32 vcc, 3, v4")
            A("v_mov_b32 v7, 40")
            A(f"v_mul_u32_u24 v{vH}, 2688, v1")
            A("v_cndmask_b32 v6, v6, v7, vcc")
            A(f"v_add_u32 v{vH}, v{vH}, v6")
            A("v_lshrrev_b32 v1, 3, v0")
            A("v_lshrrev_b32 v2, 4, v0")
            A("v_and_b32 v2, 1, v2")
            A("v_lshlrev_b32 v2, 1, v2")
            A("v_and_b32 v3, 7, v0")
            A("v_xor_b32 v3, v3, v2")
            A("v_lshlrev_b32 v3, 4, v3")
            A(f"v_mul_u32_u24 v{vG}, 3584, v1")
            A(f"v_add_u32 v{vG}, v{vG}, v3")
            A(f"s_mov_b32 s{sMaskP}, -1")
            A(f"s_mov_b32 s{sMaskP+1}, 0")
            A(f"s_lshl_b32 s{sT1}, s{sH}, 7")
            A(f"s_add_u32 s{sT1}, s{sT1}, 1536")
            A(f"s_lshl_b32 s{sLh}, s{sW}, 9")
            A(f"s_add_u32 s{sLh}, s{sLh}, 32768")
            A(f"s_lshl_b32 s{sLg}, s{sW}, 10")
            A(f"s_add_u32 s{sLu}, s{sLg}, 45120")
            A(f"s_add_u32 s{sLg}, s{sLg}, 36864")
        A(f"s_mul_i32 s{sGbase}, s{sW}, {8*3584}")
        A(f"s_add_u32 s{sGbase}, s{sGbase}, s{sT1}")
        A(f"s_mul_i32 s{sHbase}, s{sW}, {8*2688}")
        A(f"s_mul_i32 s{sT1}, s{sH}, 56")
        A(f"s_add_u32 s{sHbase}, s{sHbase}, s{sT1}")
        if typ == "B":
            A(f"s_mul_i32 s{sHb2}, s{sWp}, {16*2688}")
            A(f"s_add_u32 s{sHb2}, s{sHb2}, s{sT1}")
            A(f"s_lshl_b32 s{sLh2}, s{sWp}, 10")
            A(f"s_add_u32 s{sLh2}, s{sLh2}, 32768")
        A("s_waitcnt lgkmcnt(0)")
        E0 = Em(A)
        RW = 88
        E0("@vm row")
        E0(f"buffer_load_dwordx4 {vr(RW,4)}, v5, s[{SRD_X}:{SRD_X+3}], s{sKT} offen")
        for u in dma_units(typ, 0, "c0"):
            E0(u)
        if opts.get("pst") == 1:
            for i, n in enumerate((7, 3, 2, 0)):
                A(f"s_waitcnt vmcnt({n})")
                ST.mark(3 + i)
        A(f"s_cmp_ge_u32 s{sW}, 4")
        A(f"s_cbranch_scc1 K1_{typ}1")
        for g in (0, 1):
            var = f"{typ}{g}"
            A.label(f"K1_{var}")
            E = Em(A)
            E.ops = E0.copy_state()
            variant(E, A, var, opts)
    phase2(A, opts)
    A.label("K1_end")
    A("s_endpgm")


def common_setup(var):
    opts = OPTS
    o = []
    o.append(f"s_mov_b32 s{sHi}, 0xffff0000")
    o.append(f"s_mov_b32 s{sMaskLo32}, -1")
    o.append(f"s_mov_b32 s{sMaskLo32+1}, 0")
    o.append(f"s_mov_b32 s{sMask24}, 0x01000000")
    o.append(f"s_mov_b32 s{sMask24+1}, 0x01000000")
    o.append(f"s_sub_u32 s{sWin}, s{sTag}, {DELTA}")
    o.append(f"s_xor_b32 s{sChk}, s{sTag+1}, 0x{CHK:x}")
    o.append(f"s_mov_b32 s{sLim}, {0 if opts.get('forcefb') else 1 << 24}")
    if var[1] == "1":
        o.append(f"s_mul_i32 s{sT0}, s{sCB}, 8960")
        o.append(f"s_mul_i32 s{sT1}, s{sRB}, 1280")
        o.append(f"s_add_u32 s{sT0}, s{sT0}, s{sT1}")
        o.append(f"s_lshl_b32 s{sT1}, s{sWp}, 10")
        o.append(f"s_add_u32 s{sT0}, s{sT0}, s{sT1}")
        o.append(f"s_add_u32 s{sCSo}, s{sT0}, {OFF_CS}")
        o.append(f"v_mov_b32 v1, 0x{OOB:x}\n"
                 f"s_cmp_eq_u32 s{sWp}, 1\n"
                 f"s_cselect_b32 s{sOk}, 0xffff, 0\n"
                 f"s_mov_b32 s{sOk+1}, 0\n"
                 f"s_cmp_eq_u32 s{sWp}, 0\n"
                 f"s_cselect_b32 s{sOk}, -1, s{sOk}\n"
                 f"s_cselect_b32 s{sOk+1}, -1, 0\n"
                 f"s_cmp_lt_u32 s{sRB}, 7\n"
                 f"s_cselect_b32 s{sOk}, s{sOk}, 0\n"
                 f"s_cselect_b32 s{sOk+1}, s{sOk+1}, 0\n"
                 f"s_cselect_b32 s{sCSo}, s{sCSo}, 0\n"
                 f"v_cndmask_b32_e64 v{vCSo}, v1, v{vL16}, s[{sOk}:{sOk+1}]")
    if var[0] == "A":
        o.append(f"s_lshl_b32 s{sZo}, s{sH}, 2\ns_add_u32 s{sZo}, s{sZo}, {DBG_Z}\nv_mov_b32 v{vZ0}, 0")
    if var == "A1":
        o.append(f"v_mov_b32 v{vZ0+1}, 0\n"
                 f"v_mov_b32 v{vZ0+3}, 1\n"
                 f"v_mov_b32 v1, 0x{OOB:x}\n"
                 f"v_lshlrev_b32 v2, 3, v0\n"
                 f"s_cmp_eq_u32 s{sRB}, 0\n"
                 f"s_cselect_b64 vcc, -1, 0\n"
                 f"s_cselect_b64 s[{sOk}:{sOk+1}], 1, 0\n"
                 f"v_cndmask_b32 v{vZo}, v1, v2, vcc\n"
                 f"v_cndmask_b32_e64 v{vZ0+2}, v1, v{vZ0}, s[{sOk}:{sOk+1}]")
    o.append("v_and_b32 v1, 31, v0\n"
             "v_lshrrev_b32 v2, 5, v0\n"
             "v_lshrrev_b32 v3, 1, v1\n"
             "v_and_b32 v3, 7, v3\n"
             f"s_lshl_b32 s{sT0}, s{sWp}, 13\n"
             "v_lshlrev_b32 v4, 7, v1\n"
             f"v_add_u32 v4, s{sT0}, v4")
    for t in range(4):
        o.append(f"s_add_u32 s{sT1}, s{sWp}, {t}\n"
                 f"s_and_b32 s{sT1}, s{sT1}, 3\n"
                 f"s_lshl_b32 s{sT1}, s{sT1}, 1\n"
                 f"v_add_u32 v5, s{sT1}, v2\n"
                 f"v_xor_b32 v5, v5, v3\n"
                 f"v_lshlrev_b32 v5, 4, v5\n"
                 f"v_add_u32 v{vXA[0][t]}, v4, v5\n"
                 f"v_add_u32 v{vXA[1][t]}, {S2}, v{vXA[0][t]}")
    return o


def w_addr_setup(var):
    o = []
    s = ("v_lshrrev_b32 v1, 2, v0\n"
         "v_and_b32 v1, 3, v1\n"
         "v_and_b32 v2, 3, v0\n"
         "v_lshrrev_b32 v3, 5, v0\n"
         "v_lshrrev_b32 v4, 4, v0\n"
         "v_and_b32 v4, 1, v4\n"
         "v_lshlrev_b32 v5, 3, v3\n"
         "v_add_u32 v5, v5, v1\n"
         "v_lshrrev_b32 v6, 1, v1\n"
         "v_lshlrev_b32 v7, 3, v2\n")
    if var == "A0":
        s += ("v_lshrrev_b32 v8, 1, v2\n"
              "v_lshl_add_u32 v8, v4, 1, v8\n"
              "v_lshlrev_b32 v9, 2, v6\n"
              "v_xor_b32 v8, v8, v9\n"
              "v_lshlrev_b32 v8, 4, v8\n"
              "v_and_b32 v9, 1, v2\n"
              "v_lshl_add_u32 v8, v9, 3, v8\n"
              "v_lshl_add_u32 v8, v5, 7, v8\n"
              "v_add_u32 v8, 32768, v8\n"
              "v_xor_b32 v9, 64, v8\n")
        p0 = p1 = 128
    elif var == "A1":
        s += ("v_mul_u32_u24 v8, 96, v5\n"
              "v_add_u32 v8, v8, v7\n"
              f"v_mul_u32_u24 v9, {47232-40960}, v4\n"
              "v_add3_u32 v8, v8, v9, 0\n"
              "v_add_u32 v8, 40960, v8\n")
        p0 = p1 = 96
    else:
        s += ("v_lshl_add_u32 v10, v5, 7, v7\n"
              f"v_mul_u32_u24 v9, {45120-36864}, v4\n"
              "v_add_u32 v10, v10, v9\n"
              "v_add_u32 v10, 36864, v10\n"
              "v_lshlrev_b32 v11, 5, v6\n")
        if var == "B0":
            s += ("v_lshl_add_u32 v8, v5, 6, v7\n"
                  "v_lshl_add_u32 v8, v4, 5, v8\n"
                  "v_add_u32 v8, 32768, v8\n"
                  "v_add_u32 v9, v10, v11\n")
            p0, p1 = 64, 128
        else:
            s += ("v_xor_b32 v12, 32, v11\n"
                  "v_add_u32 v8, v10, v12\n"
                  "v_add_u32 v9, v10, v11\n")
            p0 = p1 = 128
    o.append(s)
    for t in range(4):
        s = (f"s_add_u32 s{sT1}, s{sWp}, {t}\n"
             f"s_and_b32 s{sT1}, s{sT1}, 3\n"
             f"s_mul_i32 s{sT2}, s{sT1}, {16*p0}\n"
             f"v_add_u32 v{vWA0[0][t]}, s{sT2}, v8\n"
             f"v_add_u32 v{vWA0[1][t]}, {S2}, v{vWA0[0][t]}\n")
        if var != "A1":
            s += (f"s_mul_i32 s{sT2}, s{sT1}, {16*p1}\n"
                  f"v_add_u32 v{vWA1[0][t]}, s{sT2}, v9\n"
                  f"v_add_u32 v{vWA1[1][t]}, {S2}, v{vWA1[0][t]}\n")
        o.append(s)
    return o


def row_stats_publish(E):
    A = E
    RW = 88
    f = list(range(92, 100))
    s, q = 100, 101
    A("@wait row")
    for i in range(4):
        A(f"v_lshlrev_b32 v{f[2*i]}, 16, v{RW+i}")
        A(f"v_and_b32 v{f[2*i+1]}, s{sHi}, v{RW+i}")
    A(f"v_add_f32 v{s}, v{f[0]}, v{f[1]}")
    A(f"v_mul_f32 v{q}, v{f[0]}, v{f[0]}")
    A(f"v_fmac_f32 v{q}, v{f[1]}, v{f[1]}")
    for i in range(2, 8):
        A(f"v_add_f32 v{s}, v{s}, v{f[i]}")
        A(f"v_fmac_f32 v{q}, v{f[i]}, v{f[i]}")
    A("s_nop 0")
    for sh in (1, 2, 4, 8):
        for v in (s, q):
            A(f"v_add_f32_dpp v{v}, v{v}, v{v} row_shr:{sh} row_mask:0xf bank_mask:0xf bound_ctrl:0")
        A("s_nop 0")
    for v in (s, q):
        A(f"v_add_f32_dpp v{v}, v{v}, v{v} row_bcast:15 row_mask:0xa bank_mask:0xf")
    A("s_nop 0")
    for v in (s, q):
        A(f"v_add_f32_dpp v{v}, v{v}, v{v} row_bcast:31 row_mask:0xc bank_mask:0xf")
    G = 104
    A(f"v_mul_f32 v{G}, 0x{F1_448:x}, v{s}")
    A(f"v_mul_f32 v{q}, 0x{F1_448:x}, v{q}")
    A(f"v_fma_f32 v{q}, -v{G}, v{G}, v{q}")
    A(f"v_max_f32 v{q}, 0, v{q}")
    A(f"v_add_f32 v{q}, 0x{EPS5:x}, v{q}")
    A(f"v_rsq_f32 v{G+1}, v{q}")
    A(f"s_lshl_b32 s{sT0}, s{sK2}, 4")
    A(f"s_add_u32 s{sT0}, s{sT0}, {OFF_ST}")
    A("v_mov_b32 v1, 0")
    for l in granule_finish(G):
        A(l)
    A(f"s_mov_b32 s{sKT}, s{sT0}")
    return (f"s_mov_b32 s{sOk}, 0\ns_mov_b32 s{sOk+1}, 0x80000000\nv_mov_b32 v1, 0\n"
            f"s_mov_b64 exec, s[{sOk}:{sOk+1}]\n@vm st\n"
            f"buffer_store_dwordx4 {vr(G,4)}, v1, s[{SRD_WS}:{SRD_WS+3}], s{sKT} offen sc1\n"
            "s_mov_b64 exec, -1")


def fb_rows(A, g):
    L = A.newlabel("K1_fbr")
    t = list(range(108, 120))
    A(f"s_lshl_b32 s{sT0}, s{sRB}, 8")
    A(f"s_lshl_b32 s{sT1}, s{sW}, 6")
    A(f"s_add_u32 s{sT0}, s{sT0}, s{sT1}")
    A(f"v_add_u32 v{t[0]}, s{sT0}, v0")
    A(f"v_mul_u32_u24 v{t[0]}, 896, v{t[0]}")
    A(f"v_mov_b32 v{g}, 0")
    A(f"v_mov_b32 v{g+1}, 0")
    A(f"s_mov_b32 s{sT2}, 0")
    A.label(L)
    A(f"buffer_load_dwordx4 {vr(t[4],4)}, v{t[0]}, s[{SRD_X}:{SRD_X+3}], s{sT2} offen")
    A("s_waitcnt vmcnt(0)")
    for i in range(4):
        A(f"v_lshlrev_b32 v{t[1]}, 16, v{t[4]+i}")
        A(f"v_and_b32 v{t[2]}, s{sHi}, v{t[4]+i}")
        A(f"v_add_f32 v{g}, v{g}, v{t[1]}")
        A(f"v_fmac_f32 v{g+1}, v{t[1]}, v{t[1]}")
        A(f"v_add_f32 v{g}, v{g}, v{t[2]}")
        A(f"v_fmac_f32 v{g+1}, v{t[2]}, v{t[2]}")
    A(f"s_add_u32 s{sT2}, s{sT2}, 16")
    A(f"s_cmp_lt_u32 s{sT2}, 896")
    A(f"s_cbranch_scc1 {L}")
    A(f"v_mul_f32 v{g}, 0x{F1_448:x}, v{g}")
    A(f"v_mul_f32 v{g+1}, 0x{F1_448:x}, v{g+1}")
    A(f"v_fma_f32 v{g+1}, -v{g}, v{g}, v{g+1}")
    A(f"v_max_f32 v{g+1}, 0, v{g+1}")
    A(f"v_add_f32 v{g+1}, 0x{EPS5:x}, v{g+1}")
    A(f"v_rsq_f32 v{g+1}, v{g+1}")
    A("s_nop 0")


def fb_cols(A, typ, g, gbase_sgpr):
    L = A.newlabel("K1_fbc")
    t = list(range(108, 124))
    gi, c, rem, j, p, oq, og, ou, e, d0, d1, d2 = t[:12]
    A(f"v_add_u32 v{gi}, s{gbase_sgpr}, v0")
    A(f"v_mul_u32_u24 v{c}, 205, v{gi}")
    A(f"v_lshrrev_b32 v{c}, 14, v{c}")
    A(f"v_mul_u32_u24 v{rem}, 80, v{c}")
    A(f"v_sub_u32 v{rem}, v{gi}, v{rem}")
    A(f"v_lshrrev_b32 v{j}, 4, v{rem}")
    A(f"v_and_b32 v{p}, 15, v{rem}")
    A(f"v_lshlrev_b32 v{e}, 1, v{p}")
    A(f"v_subrev_u32 v{d0}, 4, v{e}")
    A(f"v_cmp_gt_u32 vcc, 24, v{e}")
    A(f"v_cndmask_b32 v{e}, v{d0}, v{e}, vcc")
    A(f"s_mul_i32 s{sT0}, s{sH}, 28")
    A(f"v_add_u32 v{e}, s{sT0}, v{e}")
    nh = 2 if typ == "A" else 1
    if typ == "A":
        A(f"v_mul_u32_u24 v{d0}, 448, v{j}")
        A(f"v_add_u32 v{e}, v{e}, v{d0}")
        A(f"v_add_u32 v{e}, 448, v{e}")
    A(f"v_lshlrev_b32 v{oq}, 1, v{e}")
    A(f"v_mul_u32_u24 v{d0}, {64*2688//64}, v{c}")
    A(f"v_lshlrev_b32 v{d0}, 6, v{d0}")
    A(f"v_add_u32 v{oq}, v{oq}, v{d0}")
    A(f"v_mov_b32 v{d1}, {OOB}")
    A(f"v_cmp_gt_u32 vcc, {nh}, v{j}")
    A(f"v_cndmask_b32 v{oq}, v{d1}, v{oq}, vcc")
    A(f"v_subrev_u32 v{e}, {nh}, v{j}")
    A(f"v_lshlrev_b32 v{e}, 4, v{e}")
    A(f"v_and_b32 v{d0}, 7, v{p}")
    A(f"v_lshl_add_u32 v{e}, v{d0}, 1, v{e}")
    if typ == "A":
        A(f"s_mul_i32 s{sT0}, s{sFG}, 48")
    else:
        A(f"s_lshl_b32 s{sT0}, s{sH}, 6")
        A(f"s_add_u32 s{sT0}, s{sT0}, 768")
    A(f"v_add_u32 v{e}, s{sT0}, v{e}")
    A(f"v_lshlrev_b32 v{og}, 1, v{e}")
    A(f"v_mul_u32_u24 v{d0}, 3584, v{c}")
    A(f"v_lshlrev_b32 v{d0}, 6, v{d0}")
    A(f"v_add_u32 v{og}, v{og}, v{d0}")
    A(f"v_cndmask_b32 v{og}, v{og}, v{d1}, vcc")
    A(f"v_cmp_gt_u32 vcc, 8, v{p}")
    A(f"v_cndmask_b32 v{ou}, v{og}, v{d1}, vcc")
    A(f"v_cndmask_b32 v{og}, v{d1}, v{og}, vcc")
    A(f"v_mov_b32 v{g}, 0")
    A(f"v_mov_b32 v{g+1}, 0")
    A(f"s_mov_b32 s{sT2}, 0")
    A(f"s_mov_b32 s{sT3}, 0")
    A(f"s_mov_b32 s{sT4}, 0")
    A.label(L)
    A(f"buffer_load_dword v{d0}, v{oq}, s[{SRD_Q}:{SRD_Q+3}], s{sT2} offen")
    A(f"buffer_load_dword v{d1}, v{og}, s[{SRD_G}:{SRD_G+3}], s{sT3} offen")
    A(f"buffer_load_dword v{d2}, v{ou}, s[{SRD_U}:{SRD_U+3}], s{sT3} offen")
    A("s_waitcnt vmcnt(0)")
    A(f"v_or_b32 v{d0}, v{d0}, v{d1}")
    A(f"v_or_b32 v{d0}, v{d0}, v{d2}")
    A(f"v_lshlrev_b32 v{d1}, 16, v{d0}")
    A(f"v_and_b32 v{d2}, s{sHi}, v{d0}")
    A(f"v_add_f32 v{g}, v{g}, v{d1}")
    A(f"v_add_f32 v{g+1}, v{g+1}, v{d2}")
    A(f"s_add_u32 s{sT2}, s{sT2}, 2688")
    A(f"s_add_u32 s{sT3}, s{sT3}, 3584")
    A(f"s_add_u32 s{sT4}, s{sT4}, 1")
    A(f"s_cmp_lt_u32 s{sT4}, 64")
    A(f"s_cbranch_scc1 {L}")


def spread(units, nslots, first=0):
    out = [[] for _ in range(nslots)]
    n = nslots - first
    for i, u in enumerate(units):
        out[first + i * n // len(units)].append(u)
    return out


def variant(E, A, var, opts):
    typ, grp, tiles = VARIANTS[var]
    nt = len(tiles)
    nm = 2 * nt
    prio = opts.get("prio", 1)
    if prio:
        A(f"s_setprio {2 if grp == 0 else 1}")
    setup = common_setup(var) + w_addr_setup(var)
    c1 = dma_units(typ, STAGE, "c1")
    c1pos = opts.get("c1pos", 1)
    if c1pos == 0:
        k = 0
        for i, u in enumerate(c1):
            E(u)
            hi = (i + 1) * len(setup) // len(c1)
            for s_ in setup[k:hi]:
                E(s_)
            k = hi
    else:
        for s_ in setup:
            E(s_)
    if opts.get("pst") == 2:
        ST.mark(3)
        E("@wait row")
        ST.mark(4)
    st_store = row_stats_publish(E)
    if not opts.get("stlate", 1):
        E(st_store)
    if c1pos == 1 or (c1pos == 3 and grp == 0):
        for u in c1:
            E(u)
    if opts.get("stlate", 1):
        E(st_store)
    if var == "A1":
        E(f"s_lshl_b32 s{sT0}, s{sH}, 12\ns_lshl_b32 s{sT1}, s{sWp}, 10\ns_add_u32 s{sT0}, s{sT0}, s{sT1}\n"
          f"s_add_u32 s{sT0}, s{sT0}, {OFF_KVS}\n"
          f"@vm zr\nbuffer_atomic_swap_x2 {vr(vZ0,2)}, v{vZo}, s[{SRD_WS}:{SRD_WS+3}], s{sT0} offen sc1\n"
          f"@vm zr\nbuffer_atomic_swap_x2 {vr(vZ0,2)}, v{vZo}, s[{SRD_WS}:{SRD_WS+3}], s{sT0} offen offset:512 sc1")
    if opts.get("pst") == 2:
        ST.mark(5)
    E("@wait c0")
    if opts.get("pst") == 2:
        ST.mark(6)
    A("s_barrier")
    STM(1)
    CHM(0)
    c1_late = c1pos == 2 or (c1pos == 3 and grp == 1)
    c2split = opts.get("c2split", 14)

    rdper = opts.get("rdper0" if grp == 0 else "rdper1", 2)

    def step(mf, rd, slots, bar=None, rper=None):
        rper = rper or rdper
        k = 0
        for i, m in enumerate(mf):
            E(m)
            r = rd[k:k + rper] if i < len(mf) - 1 else rd[k:]
            k += len(r)
            for s_ in r:
                E(s_)
            for u in slots[i]:
                E(u)
            if bar is not None and bar[0] == i:
                bar[1]()

    def empty(n):
        return [[] for _ in range(n)]

    def merge(*ss):
        out = empty(len(ss[0]))
        for s_ in ss:
            for i, l in enumerate(s_):
                out[i].extend(l)
        return out

    if var == "A0":
        vR, vCP, vM = 104, 136, 150
    else:
        vR, vCP, vM = 108, 136, 157
    jb = 0 if grp == 0 else 2
    G1, G2 = 96, 100

    def gather(sc=None):
        o = []
        SC = " sc1" if (opts.get("gsc", 1) if sc is None else sc) else ""
        if grp == 0:
            o.append(f"s_lshl_b32 s{sT0}, s{sRB}, 12\n"
                     f"s_lshl_b32 s{sT1}, s{sW}, 10\n"
                     f"s_add_u32 s{sT0}, s{sT0}, s{sT1}\n"
                     f"s_add_u32 s{sT0}, s{sT0}, {OFF_ST}\n"
                     f"@vm ga\n"
                     f"buffer_load_dwordx4 {vr(G1,4)}, v{vL16}, s[{SRD_WS}:{SRD_WS+3}], s{sT0} offen{SC}")
        else:
            o.append(f"s_mul_i32 s{sT0}, s{sCB}, 8960\n"
                     f"s_lshl_b32 s{sT1}, s{sWp}, 10\n"
                     f"s_add_u32 s{sT0}, s{sT0}, s{sT1}\n"
                     f"s_add_u32 s{sT0}, s{sT0}, {OFF_CS}\n"
                     f"@vm ga\n"
                     f"buffer_load_dwordx4 {vr(G1,4)}, v{vL16}, s[{SRD_WS}:{SRD_WS+3}], s{sT0} offen{SC}")
        o.append(f"s_mul_i32 s{sT0}, s{sCB}, 8960\n"
                 f"s_lshl_b32 s{sT1}, s{sW}, 10\n"
                 f"s_add_u32 s{sT0}, s{sT0}, s{sT1}\n"
                 f"s_add_u32 s{sT0}, s{sT0}, {OFF_CS + 4096}\n"
                 f"@vm ga\n"
                 f"buffer_load_dwordx4 {vr(G2,4)}, v{vL16}, s[{SRD_WS}:{SRD_WS+3}], s{sT0} offen{SC}")
        return o

    def check_tail():
        return (f"s_orn2_b64 s[{sOk2}:{sOk2+1}], s[{sOk2}:{sOk2+1}], s[{sNeed}:{sNeed+1}]\n"
                f"s_and_b64 s[{sOk}:{sOk+1}], s[{sOk}:{sOk+1}], s[{sOk2}:{sOk2+1}]\n"
                f"s_cmp_eq_u64 s[{sOk}:{sOk+1}], -1\n")

    Lslow = f"K1_{var}_slow"
    Lok = f"K1_{var}_ok"

    for p in range(-1, 6):
        n = p + 1
        nsl = 4 * nm
        fill = empty(nsl)
        add = lambda units, first, last: [fill[first + i * (last - first) // len(units)].append(u) for i, u in enumerate(units)]
        first_slot = nm if p == -1 else 0
        if p == -1 and c1_late:
            for i, u in enumerate(c1):
                fill[first_slot + i].append(u)
        if grp == 0 and p + 3 <= 6 and not (opts.get("nodma") and p >= 0):
            d = dma14(typ, p + 3)
            if p == -1:
                carry = d[c2split:]
                d = d[:c2split]
                if c1_late:
                    add(d, first_slot + 7, nsl)
                else:
                    add(d, first_slot, nsl)
            else:
                if p == 0:
                    d = carry + d
                if len(d) <= nsl:
                    for i, u in enumerate(d):
                        fill[i].append(u)
                else:
                    add(d, 0, nsl)
        if p == -1:
            for t in range(nt):
                add(cs_duty(var, t & 1, t), nm * (1 + t), nm * (1 + t) + (nm if t < 2 else nm // 2))
            red = []
            red.append("\n".join([f"v_add_f32 v{vCS[2*j]}, v{vCS[2*j]}, v{vCS[2*j]+1}" for j in range(nt)] +
                                 [f"v_mov_b32 v{vCS[2*j]+1}, v{vCS[2*j]}" for j in range(nt)] + ["s_nop 1"] +
                                 [f"v_permlane32_swap_b32 v{vCS[2*j]}, v{vCS[2*j]+1}" for j in range(nt)]))
            red.append("v_and_b32 v1, 31, v0\nv_lshlrev_b32 v1, 2, v1\n"
                       f"s_mul_i32 s{sT0}, s{sWp}, 640\ns_add_u32 s{sT0}, s{sT0}, {TOP + jb*128}\nv_add_u32 v1, s{sT0}, v1\n" +
                       "\n".join([f"v_add_f32 v{vCS[2*j]}, v{vCS[2*j]}, v{vCS[2*j]+1}" for j in range(nt)] +
                                 [f"ds_write_b32 v1, v{vCS[2*j]} offset:{j*128}" for j in range(nt)]))
            fill[4 * nm - 3].append(red[0])
            fill[4 * nm - 2].append(red[1])
        if p == 0 and grp == 1:
            P = 104
            G = 112
            fill[nm - 1].append("v_lshlrev_b32 v1, 3, v0\n"
                                f"s_and_b32 s{sT0}, s{sWp}, 1\ns_lshl_b32 s{sT0}, s{sT0}, 9\ns_add_u32 s{sT0}, s{sT0}, {TOP}\nv_add_u32 v1, s{sT0}, v1\n" +
                                "\n".join(f"ds_read_b64 {vr(P+2*q,2)}, v1 offset:{q*640}" for q in range(4)))
            pub = []
            for e in range(2):
                pub.append(f"v_add_f32 v{P+e}, v{P+e}, v{P+2+e}")
                pub.append(f"v_add_f32 v{P+4+e}, v{P+4+e}, v{P+6+e}")
            for e in range(2):
                pub.append(f"v_add_f32 v{G+e}, v{P+e}, v{P+4+e}")
            pub += granule_finish(G)
            pub.append(f"@vm cs\nbuffer_store_dwordx4 {vr(G,4)}, v{vCSo}, s[{SRD_WS}:{SRD_WS+3}], s{sCSo} offen sc1")
            add(pub, nm, 2 * nm)
        if p == 1 and var == "A1" and not opts.get("znochk"):
            fill[nm].append(f"@wait zr\n@vm zs\nbuffer_atomic_add v{vZ0+3}, v{vZ0+2}, s[{SRD_DBG}:{SRD_DBG+3}], s{sZo} offen sc1")
        if p == opts.get("gp", 4):
            gs = opts.get("gslot", 0)
            if opts.get("gend"):
                gs = nsl - opts.get("gend")
            add(gather(), gs, gs + 2)
        if p == opts.get("pfp", 4) and opts.get("pf", 1):
            PFV = 38
            pfu = [f"s_lshr_b32 s{sT4}, s2, 3\ns_lshl_b32 s{sT4}, s{sT4}, 3\ns_add_u32 s{sT4}, s{sT4}, s{sW}\n"
                   f"v_lshlrev_b32 v{PFV}, 7, v0\n"
                   f"s_cmp_lt_u32 s{sT4}, 196\n"
                   f"s_cselect_b32 s{sPF}, s{SRD_WD}, s{SRD_WO}\n"
                   f"s_cselect_b32 s{sPF+1}, s{SRD_WD+1}, s{SRD_WO+1}\n"
                   f"s_mov_b32 s{sPF+2}, {WO_BYTES}\n"
                   f"s_cselect_b32 s{sPF+2}, {WD_BYTES}, s{sPF+2}\n"
                   f"s_mov_b32 s{sPF+3}, 0x20000\n"
                   f"s_cselect_b32 s{sT5}, 0, 196\n"
                   f"s_sub_u32 s{sT4}, s{sT4}, s{sT5}\n"
                   f"s_lshl_b32 s{sT4}, s{sT4}, 13\n"
                   f"v_add_u32 v{PFV}, s{sT4}, v{PFV}",
                   f"@vm pf\nbuffer_load_dword v{PFV+1}, v{PFV}, s[{sPF}:{sPF+3}], 0 offen"]
            if opts.get("pf", 1) == 2:
                pfu.append(f"@vm pf\nbuffer_load_dword v{PFV+2}, v{PFV}, s[{sPF}:{sPF+3}], 0 offen offset:64")
            ps = opts.get("pfslot", 3)
            add(pfu, ps, ps + len(pfu))
        if p == 4:
            val = []
            if grp == 0:
                val.append(f"s_mov_b64 s[{sNeed}:{sNeed+1}], -1")
            else:
                val.append(f"s_cmp_eq_u32 s{sW}, 4\ns_cselect_b32 s{sNeed}, -1, 0\ns_cselect_b32 s{sNeed+1}, 0xffff, 0")
            val.append(f"s_mov_b32 s{sCnt}, 0\n@wait ga")
            val += granule_check(G1, 108, sOk)
            val += granule_check(G2, 110, sOk2)
            val.append(check_tail() + f"s_cbranch_scc0 {Lslow}\n@label {Lok}")
            wr = []
            if grp == 0:
                wr.append(f"s_lshl_b32 s{sT0}, s{sW}, 8\ns_add_u32 s{sT0}, s{sT0}, {M_OFF}\nv_lshlrev_b32 v1, 2, v0\nv_add_u32 v1, s{sT0}, v1\n"
                          f"ds_write_b32 v1, v{G1}\nds_write_b32 v1, v{G1+1} offset:1024")
            else:
                wr.append(f"s_lshl_b32 s{sT0}, s{sWp}, 9\ns_add_u32 s{sT0}, s{sT0}, {CP_OFF}\nv_lshlrev_b32 v1, 3, v0\nv_add_u32 v1, s{sT0}, v1\n"
                          f"ds_write_b64 v1, {vr(G1,2)}")
            wr.append(f"s_lshl_b32 s{sT0}, s{sW}, 9\ns_add_u32 s{sT0}, s{sT0}, {CP_OFF + 2048}\nv_lshlrev_b32 v1, 3, v0\nv_add_u32 v2, s{sT0}, v1\n"
                      f"v_add_u32 v1, {TOP}, v1\n"
                      f"v_cndmask_b32_e64 v1, v1, v2, s[{sNeed}:{sNeed+1}]\n"
                      f"ds_write_b64 v1, {vr(G2,2)}")
            if opts.get("vspread", 1):
                bat_ = opts.get("bat1", 4) if grp == 1 else opts.get("bat0", 3)
                v0_ = opts.get("vs0", 2) * nm
                add(val + wr, v0_, 3 * nm + bat_)
            else:
                vs = opts.get("vstep", 3) * nm
                fill[vs].append("\n".join(val))
                fill[vs + 1].append(wr[0])
                fill[vs + 2].append(wr[1])
        if p == 5:
            fr = ("v_and_b32 v1, 31, v0\nv_lshlrev_b32 v1, 2, v1\n"
                  f"s_lshl_b32 s{sT0}, s{sWp}, 8\ns_add_u32 s{sT0}, s{sT0}, {M_OFF}\nv_add_u32 v2, s{sT0}, v1\n"
                  f"ds_read_b32 v{vM}, v2\nds_read_b32 v{vM+1}, v2 offset:128\n"
                  f"v_add_u32 v3, {CP_OFF + jb*128}, v1")
            lst = [fr]
            for j in range(nt):
                for c in range(7):
                    lst.append(f"ds_read_b32 v{vCP+7*j+c}, v3 offset:{j*128 + c*640}")
            if var == "A0":
                lst.append(f"v_lshrrev_b32 v4, 5, v0\nv_lshlrev_b32 v4, 4, v4\nv_add_u32 v4, s{sT0}, v4")
                for a in range(2):
                    for j in range(4):
                        lst.append(f"ds_read_b128 {vr(vR+16*a+4*j,4)}, v4 offset:{1024 + a*128 + j*32}")
            elif var == "B0":
                lst.append(f"ds_read_b32 v{vR}, v2 offset:1024\nds_read_b32 v{vR+1}, v2 offset:{1024+128}")
            if var == "A0" and not opts.get("znochk"):
                lst.append(f"@vm zl\nbuffer_load_dword v{vZ0+2}, v{vZ0}, s[{SRD_DBG}:{SRD_DBG+3}], s{sZo} offen sc1")
            add(lst, 0, 2 * nm)
            prep = []
            for a in range(2):
                m = vM + a
                prep.append(f"v_sub_f32 v{m}, 0, v{m}")
                prep.append(f"v_cndmask_b32_e64 v{m}, 0, v{m}, s[{sMaskLo32}:{sMaskLo32+1}]")
            for a in range(2):
                prep.append(f"v_cvt_pk_bf16_f32 v{XC+4*a+1}, v{vM+a}, 0")
            for a in range(2):
                prep.append(f"v_lshlrev_b32 v{1+a}, 16, v{XC+4*a+1}")
            for a in range(2):
                prep.append(f"v_sub_f32 v{1+a}, v{vM+a}, v{1+a}")
            for a in range(2):
                prep.append(f"v_cvt_pk_bf16_f32 v{XC+4*a}, v{vM+a}, v{1+a}")
                prep.append(f"v_mov_b32 v{XC+4*a+2}, 0")
                prep.append(f"v_mov_b32 v{XC+4*a+3}, 0")
            for j in range(nt):
                c = vCP + 7 * j
                prep.append(f"v_add_f32 v{c}, v{c}, v{c+1}")
                prep.append(f"v_add_f32 v{c+2}, v{c+2}, v{c+3}")
                prep.append(f"v_add_f32 v{c+4}, v{c+4}, v{c+5}")
                prep.append(f"v_add_f32 v{c}, v{c}, v{c+6}")
                prep.append(f"v_add_f32 v{c+2}, v{c+2}, v{c+4}")
                prep.append(f"v_add_f32 v{c}, v{c}, v{c+2}")
                prep.append(f"v_cvt_pk_bf16_f32 v{WC+4*j}, v{c}, v{c}")
                prep.append(f"v_lshlrev_b32 v{c+1}, 16, v{WC+4*j}")
                prep.append(f"v_sub_f32 v{c+1}, v{c}, v{c+1}")
                prep.append(f"v_cvt_pk_bf16_f32 v{WC+4*j+1}, v{c+1}, 0")
                prep.append(f"v_mov_b32 v{WC+4*j+2}, 0")
                prep.append(f"v_mov_b32 v{WC+4*j+3}, 0")
            if grp == 0:
                prep.append(f"v_mov_b32 v12, 0x{EPS6:x}")
                prep.append(f"v_mov_b32 v13, 0x{LOG2E:x}")
                prep.append(f"v_mov_b32 v14, 0x{NEG_EPS_LOG2E:x}")
            last_fill = empty(nm)
            np_ = len(prep)
            tot = 3 * nm
            for i, u in enumerate(prep):
                sl = 2 * nm + i * tot // np_
                (fill[sl] if sl < nsl else last_fill[sl - nsl]).append(u)

        def fix(units):
            return units

        def barrier_fn(pp):
            def f():
                A("s_waitcnt lgkmcnt(0)")
                need = pp + 1
                tag = f"c{need}"
                if tag in E.ops:
                    E(f"@wait {tag}")
                if prio and opts.get("eprio", 3) == 3 and pp == opts.get("swp", 5):
                    A(f"s_setprio {0 if grp == 0 else 3}")
                A("s_barrier")
                CHM(pp + 1)
            return f

        def EM(u):
            for l in u.split("\n"):
                if l.startswith("@label "):
                    A.label(l[7:])
                else:
                    E(l)

        def step2(mf, rd, slots, bar=None, rper=None, wait=True):
            rper = rper or rdper
            if wait:
                A("s_waitcnt lgkmcnt(0)")
            k = 0
            for i, m in enumerate(mf):
                E(m)
                r = rd[k:k + rper] if i < len(mf) - 1 else rd[k:]
                k += len(r)
                for s_ in r:
                    E(s_)
                for u in slots[i]:
                    EM(u)
                if bar is not None and bar[0] == i:
                    bar[1]()

        if p == -1:
            for s_ in reads(var, 0, 0, 0):
                E(s_)
        else:
            step2(mfmas(var, 1), reads(var, n, 0, 0), fill[0:nm], wait=False)
        step2(mfmas(var, 0, zero=(p == -1)), reads(var, n, 1, 1), fill[nm:2*nm])
        step2(mfmas(var, 1), reads(var, n, 2, 0), fill[2*nm:3*nm])
        if p < 5:
            bat = opts.get("bat1", 4) if grp == 1 else opts.get("bat0", 3)
            step2(mfmas(var, 0), reads(var, n, 3, 1), fill[3*nm:4*nm], bar=(bat, barrier_fn(p + 1)),
                  rper=(opts.get("rb1", 3) if grp == 1 else None))
            rest = []
        else:
            step2(mfmas(var, 0), reads(var, n, 3, 1), fill[3*nm:4*nm])
            if grp == 0 and opts.get("b6", 0):
                A("s_waitcnt lgkmcnt(0)")
                A("s_barrier")
                step2(mfmas(var, 1), [], last_fill, wait=False)
            else:
                step2(mfmas(var, 1), [], last_fill)
    STM(2)
    if prio and grp == 0:
        A("s_setprio 3")
    if prio and opts.get("eprio", 3) == 1 and grp == 0:
        A("s_setprio 0")
    if prio and opts.get("eprio", 3) == 2:
        A("s_setprio 0")
    if not opts.get("nocorr"):
        for s_ in mfmas_regs(var, XC, WC):
            A(s_)
    vEps, vL2e, vNeg = 12, 13, 14
    A(f"s_lshl_b32 s{sT0}, s{sRB}, 3")
    A(f"s_lshl_b32 s{sT1}, s{sWp}, 1")
    A(f"s_add_u32 s{sT0}, s{sT0}, s{sT1}")

    STSC = {0: "", 1: " sc1", 2: " nt", 3: " sc0 sc1", 4: " sc1 nt"}[opts.get("stsc", 1)]

    def ffn_tile(j, ft_sgpr, P0):
        for a in range(2):
            d = acc(j, a)
            P = P0 + 4 * a
            for r in range(8):
                A(f"v_max_f32 v{d+r}, 0, v{d+r}")
            if opts.get("epk", 1):
                for r in range(0, 8, 2):
                    A(f"v_pk_mul_f32 {vr(d+r,2)}, {vr(d+r,2)}, {vr(d+8+r,2)}")
            else:
                for r in range(8):
                    A(f"v_mul_f32 v{d+r}, v{d+r}, v{d+8+r}")
            for r in range(4):
                A(f"v_cvt_pk_bf16_f32 v{P+r}, v{d+2*r}, v{d+2*r+1}")
            A(f"s_add_u32 s{sT2}, s{sT0}, {a}")
            A(f"s_mul_i32 s{sT2}, s{sT2}, 112")
            A(f"s_add_u32 s{sT2}, s{sT2}, s{ft_sgpr}")
            A(f"s_lshl_b32 s{sT2}, s{sT2}, 10")
            if OFF_H:
                A(f"s_add_u32 s{sT2}, s{sT2}, {OFF_H}")
            A(f"buffer_store_dwordx4 {vr(P,4)}, v{vL16}, s[{SRD_WS}:{SRD_WS+3}], s{sT2} offen{STSC}")

    def phi8(d, rs, out4, T):
        t1, t2 = T[0:8], T[8:16]
        for r in range(8):
            A(f"v_fma_f32 v{t1[r]}, v{d+r}, v{rs[r]}, v{vEps}")
        for r in range(8):
            A(f"v_fma_f32 v{t2[r]}, v{t1[r]}, v{vL2e}, v{vNeg}")
        for r in range(8):
            A(f"v_exp_f32_e64 v{t2[r]}, v{t2[r]} clamp")
        for r in range(8):
            A(f"v_max_f32 v{t1[r]}, v{vEps}, v{t1[r]}")
        for r in range(8):
            A(f"v_add_f32 v{t1[r]}, v{t1[r]}, v{t2[r]}")
        return t1

    A("s_nop 7")
    A("s_nop 3" if nt == 3 else "s_nop 7")

    def ft_index(j):
        if typ == "A":
            A(f"s_mul_i32 s{sT3}, s{sFG}, 3")
            A(f"s_add_u32 s{sT3}, s{sT3}, {j}")
        else:
            jj = 0 if grp == 0 else j + 1
            A(f"s_lshl_b32 s{sT3}, s{sH}, 2")
            A(f"s_add_u32 s{sT3}, s{sT3}, {48 + jj}")

    if var == "A0":
        PK, PV, vOne = 48, 136, 152
        T = list(range(64, 88))
        A(f"v_mov_b32 v{vOne}, 0x3f803f80")
        for a in range(2):
            rs = [vR + 16 * a + r for r in range(16)]
            for half in range(2):
                t1 = phi8(acc(0, a) + 8 * half, rs[8 * half:8 * half + 8], None, T)
                for r in range(4):
                    A(f"v_cvt_pk_bf16_f32 v{PK+8*a+4*half+r}, v{t1[2*r]}, v{t1[2*r+1]}")
            d = acc(1, a)
            for r in range(0, 16, 2):
                A(f"v_pk_mul_f32 {vr(d+r,2)}, {vr(d+r,2)}, {vr(rs[r],2)}")
            for r in range(8):
                A(f"v_cvt_pk_bf16_f32 v{PV+8*a+r}, v{d+2*r}, v{d+2*r+1}")
            for r in range(8):
                A(f"v_cndmask_b32_e64 v{PV+8*a+r}, v{PV+8*a+r}, v{vOne}, s[{sMask24}:{sMask24+1}]")
        KV = acc(0, 0)
        A("s_nop 1")
        for a in range(2):
            for t in range(2):
                c = "0" if (a == 0 and t == 0) else vr(KV, 16)
                A(f"v_mfma_f32_32x32x16_bf16 {vr(KV,16)}, {vr(PK+8*a+4*t,4)}, {vr(PV+8*a+4*t,4)}, {c}")
        Lz, Lzo = "K1_A0_zslow", "K1_A0_zok"
        A(f"s_lshl_b32 s{sT2}, s{sH}, 12")
        A(f"s_add_u32 s{sT2}, s{sT2}, {OFF_KVS}")
        A("v_lshlrev_b32 v1, 2, v0")
        if not opts.get("znochk"):
            E("@wait zl")
            A(f"v_readfirstlane_b32 s{sT3}, v{vZ0+2}")
            A(f"s_cmp_eq_u32 s{sT3}, 4")
            A(f"s_cbranch_scc0 {Lz}")
        A.label(Lzo)
        A("s_nop 7")
        for r in range(16):
            A(f"buffer_atomic_add_f32 v{KV+r}, v1, s[{SRD_WS}:{SRD_WS+3}], s{sT2} offen offset:{r*256} sc1")
    else:
        if var == "B0":
            ft_index(1)
            ffn_tile(1, sT3, 112)
            PQ = 120
            T = list(range(48, 64))
            for a in range(2):
                rs = [vR + a] * 8
                for half in range(2):
                    t1 = phi8(acc(0, a) + 8 * half, rs, None, T)
                    if half == 1:
                        for r in range(4, 8):
                            A(f"v_cndmask_b32_e64 v{t1[r]}, v{t1[r]}, 0, s[{sMaskLo32}:{sMaskLo32+1}]")
                    for r in range(4):
                        A(f"v_cvt_pk_bf16_f32 v{PQ+8*a+4*half+r}, v{t1[2*r]}, v{t1[2*r+1]}")
                A(f"s_add_u32 s{sT2}, s{sT0}, {a}")
                A(f"s_lshl_b32 s{sT2}, s{sT2}, 4")
                A(f"s_add_u32 s{sT2}, s{sT2}, s{sH}")
                A(f"s_lshl_b32 s{sT2}, s{sT2}, 11")
                A(f"s_add_u32 s{sT2}, s{sT2}, {OFF_PQ}")
                A(f"buffer_store_dwordx4 {vr(PQ+8*a,4)}, v{vL16}, s[{SRD_WS}:{SRD_WS+3}], s{sT2} offen{STSC}")
                A(f"buffer_store_dwordx4 {vr(PQ+8*a+4,4)}, v{vL16}, s[{SRD_WS}:{SRD_WS+3}], s{sT2} offen offset:1024{STSC}")
        else:
            for j in range(3):
                ft_index(j)
                ffn_tile(j, sT3, 48 + 8 * j)
    STM(3)
    if grp == 1:
        if prio:
            A("s_setprio 0")
        if opts.get("b6", 0):
            A("s_barrier")
    A("s_branch F_bridge")
    if var == "A0":
        A.label("K1_A0_zslow")
        A(f"s_mov_b32 s{sCnt}, 0")
        A.label("K1_A0_zspin")
        A("s_sleep 2")
        A(f"buffer_load_dword v{vZ0+2}, v{vZ0}, s[{SRD_DBG}:{SRD_DBG+3}], s{sZo} offen sc1")
        A("s_waitcnt vmcnt(0)")
        A(f"v_readfirstlane_b32 s{sT3}, v{vZ0+2}")
        A(f"s_cmp_eq_u32 s{sT3}, 4")
        A("s_cbranch_scc1 K1_A0_zok")
        A(f"s_add_u32 s{sCnt}, s{sCnt}, 1")
        A(f"s_cmp_lt_u32 s{sCnt}, {SPINMAX}")
        A("s_cbranch_scc1 K1_A0_zspin")
        A("s_branch K1_A0_zok")
    G1, G2 = 96, 100
    Lfb = A.newlabel("K1_fb")
    A.label(Lslow)
    A(f"s_add_u32 s{sCnt}, s{sCnt}, 1")
    A(f"s_cmp_ge_u32 s{sCnt}, {0 if opts.get('forcefb') else NRETRY}")
    A(f"s_cbranch_scc1 {Lfb}")
    A("s_sleep 2")
    for u in gather(1):
        for l in u.split("\n"):
            if not l.startswith("@"):
                A(l)
    A("s_waitcnt vmcnt(0)")
    for l in granule_check(G1, 108, sOk) + granule_check(G2, 110, sOk2):
        A(l)
    A(check_tail())
    A(f"s_cbranch_scc0 {Lslow}")
    A(f"s_branch {Lok}")
    A.label(Lfb)
    if grp == 0:
        fb_rows(A, G1)
    else:
        A(f"s_lshl_b32 s{sT5}, s{sWp}, 6")
        fb_cols(A, typ, G1, sT5)
    A(f"s_lshl_b32 s{sT5}, s{sW}, 6")
    A(f"s_add_u32 s{sT5}, s{sT5}, 256")
    fb_cols(A, typ, G2, sT5)
    A(f"s_branch {Lok}")


LBW = 20480
pL16, pT0, pT1, pW, pWsp, pL4, pOut, pStg = 8, 9, 10, 11, 12, 13, 14, 15
RING = 16
WF = [96, 104]
pX = 112
pIr = 116
pRf = 118
pTmp = 120
WRAW = 128
ACC2 = 192
qLB, qWD, qWO, qH0, qH1, qP0, qP1, qKV, qXo, qST, qRB = 37, 38, 39, 40, 41, 42, 43, 44, 45, 46, 47


def acc2(ci, ri):
    return ACC2 + (ci * 2 + ri) * 16


def phase2(A, opts):
    prio = opts.get("prio", 1)
    A.label("F_bridge")
    A(f"s_load_dwordx2 s[{SRD_OUT}:{SRD_OUT+1}], s[0:1], 56")
    A(f"s_and_b32 s{sT0}, s2, 7")
    A(f"s_lshr_b32 s{sT1}, s2, 3")
    A(f"s_cmp_lt_u32 s{sT1}, 4")
    A("s_cbranch_scc1 F_spare")
    A(f"s_sub_u32 s{sT1}, s{sT1}, 4")
    A(f"s_mul_i32 s{sT2}, s{sT1}, 37")
    A(f"s_lshr_b32 s{sT2}, s{sT2}, 8")
    A(f"s_mul_i32 s{sT3}, s{sT2}, 7")
    A(f"s_sub_u32 s{sT3}, s{sT1}, s{sT3}")
    if opts.get("rbmap", 1):
        A(f"s_and_b32 s{sT4}, s{sT0}, 1")
        A(f"s_lshl_b32 s{sT4}, s{sT4}, 2")
        A(f"s_lshr_b32 s{sT0}, s{sT0}, 1")
        A(f"s_add_u32 s{sT0}, s{sT0}, s{sT4}")
    A(f"s_mov_b32 s{qRB}, s{sT0}")
    A(f"s_lshl_b32 s{sT4}, s{sT0}, 2")
    A(f"s_add_u32 s{sT4}, s{sT4}, s{sT2}")
    A(f"s_lshl_b32 s{sT3}, s{sT3}, 7")
    A(f"s_mul_i32 s{qLB}, s{sW}, {LBW}")
    A(f"s_mul_i32 s{qWD}, s{sW}, {224*896}")
    A(f"s_add_u32 s{qWD}, s{qWD}, s{sT3}")
    A(f"s_mul_i32 s{qWO}, s{sW}, {56*896}")
    A(f"s_add_u32 s{qWO}, s{qWO}, s{sT3}")
    A("v_lshrrev_b32 v1, 3, v0")
    A("v_lshrrev_b32 v2, 4, v0")
    A("v_and_b32 v2, 1, v2")
    A("v_lshlrev_b32 v2, 2, v2")
    A("v_and_b32 v3, 7, v0")
    A("v_xor_b32 v3, v3, v2")
    A("v_lshlrev_b32 v3, 4, v3")
    A(f"v_mul_u32_u24 v{pW}, 896, v1")
    A(f"v_add_u32 v{pW}, v{pW}, v3")
    A(f"v_lshlrev_b32 v{pL16}, 4, v0")
    def w_loads():
        nld = 0
        A(f"s_mov_b32 m0, s{qLB}")
        for i in range(12):
            if i:
                A("s_add_u32 m0, m0, 1024")
                A(f"s_add_u32 s{qWD}, s{qWD}, 7168")
            else:
                A("s_nop 0")
            A(f"buffer_load_dwordx4 v{pW}, s[{SRD_WD}:{SRD_WD+3}], s{qWD} offen lds")
            nld += 1
            if i == 0:
                A(f"v_subrev_u32 v{pWsp}, {4*896}, v{pW}")
                A(f"v_mov_b32 v1, 0x{OOB:x}")
                A("v_cmp_gt_u32 vcc, 32, v0")
                A(f"v_cndmask_b32 v{pWsp}, v{pWsp}, v1, vcc")
        for hh in range(2):
            for j in range(4):
                A("s_add_u32 m0, m0, 1024")
                if hh or j:
                    A(f"s_add_u32 s{qWO}, s{qWO}, {7168 if j else 4*896}")
                else:
                    A("s_nop 0")
                A(f"buffer_load_dwordx4 v{pWsp if j == 3 else pW}, s[{SRD_WO}:{SRD_WO+3}], s{qWO} offen lds")
                nld += 1
        for i in range(16):
            A(f"s_add_u32 s{qWD}, s{qWD}, 7168")
            A(f"buffer_load_dwordx4 {vr(WRAW+4*i,4)}, v{pW}, s[{SRD_WD}:{SRD_WD+3}], s{qWD} offen")
            nld += 1
        return nld
    wpos = opts.get("wpos", 1)
    nld = 0
    if wpos == 1:
        if not opts.get("b6", 0):
            A("s_barrier")
        nld = w_loads()
    A(f"s_lshl_b32 s{sT5}, s{sW}, 3")
    A("v_lshrrev_b32 v1, 3, v0")
    A(f"v_add_u32 v1, s{sT5}, v1")
    A("v_and_b32 v2, 7, v0")
    A(f"v_mul_u32_u24 v{pOut}, 896, v1")
    A(f"v_lshl_add_u32 v{pOut}, v2, 4, v{pOut}")
    A(f"s_mul_i32 s{qXo}, s{sT4}, {64*896}")
    A(f"s_add_u32 s{qXo}, s{qXo}, s{sT3}")
    A(f"buffer_load_dwordx4 {vr(pX,4)}, v{pOut}, s[{SRD_X}:{SRD_X+3}], s{qXo} offen")
    nld += 1
    A("v_lshlrev_b32 v7, 4, v1")
    A("v_and_b32 v6, 31, v0")
    A("v_lshlrev_b32 v6, 4, v6")
    A(f"v_lshlrev_b32 v{pL4}, 2, v0")
    A(f"v_add_u32 v{pStg}, s{qLB}, v{pL16}")
    A("v_lshrrev_b32 v1, 2, v0")
    A("v_and_b32 v1, 3, v1")
    A("v_and_b32 v2, 3, v0")
    A("v_lshrrev_b32 v3, 5, v0")
    A("v_lshrrev_b32 v4, 4, v0")
    A("v_and_b32 v4, 1, v4")
    A("v_lshl_add_u32 v5, v3, 2, v1")
    A("v_lshrrev_b32 v1, 1, v1")
    A("v_lshrrev_b32 v3, 1, v2")
    A("v_lshl_add_u32 v3, v4, 1, v3")
    A("v_lshlrev_b32 v1, 2, v1")
    A("v_xor_b32 v3, v3, v1")
    A("v_lshlrev_b32 v3, 4, v3")
    A("v_and_b32 v2, 1, v2")
    A("v_lshl_add_u32 v3, v2, 3, v3")
    A("v_lshl_add_u32 v3, v5, 7, v3")
    A(f"v_add_u32 v{pT0}, s{qLB}, v3")
    A(f"v_xor_b32 v{pT1}, 64, v{pT0}")
    A(f"s_mul_i32 s{qH0}, s{sT4}, {2*112*1024}")
    A(f"s_mul_i32 s{sT0}, s{sW}, {14*1024}")
    A(f"s_add_u32 s{qH0}, s{qH0}, s{sT0}")
    if OFF_H:
        A(f"s_add_u32 s{qH0}, s{qH0}, {OFF_H}")
    A(f"s_add_u32 s{qH1}, s{qH0}, {112*1024}")
    A(f"s_lshl_b32 s{sT0}, s{sW}, 12")
    A(f"s_lshl_b32 s{qP0}, s{sT4}, 16")
    A(f"s_add_u32 s{qP0}, s{qP0}, s{sT0}")
    A(f"s_add_u32 s{qP0}, s{qP0}, {OFF_PQ}")
    A(f"s_add_u32 s{qP1}, s{qP0}, 32768")
    A(f"s_lshl_b32 s{qKV}, s{sW}, 13")
    A(f"s_add_u32 s{qKV}, s{qKV}, {OFF_KVS}")
    A(f"s_lshl_b32 s{qST}, s{sT4}, 10")
    A(f"s_add_u32 s{qST}, s{qST}, {OFF_ST + 4}")
    A(f"s_mov_b32 s{SRD_OUT+2}, {X_BYTES}")
    A(f"s_mov_b32 s{SRD_OUT+3}, 0x20000")
    A(f"s_mov_b32 s{sT5}, 0x{EPS6:x}")
    assert nld <= 63
    A(f"s_waitcnt vmcnt({nld})")
    A("s_barrier")
    ST.mark(4)
    A(f"s_cmp_lg_u32 s{sW}, 4")
    A("s_cbranch_scc1 F_wait")

    fmode = opts.get("fmode", 0)

    def flag():
        A(f"v_mov_b32 v1, 0x{OOB:x}")
        A("v_cmp_eq_u32 vcc, 0, v0")
        if fmode == 0:
            A(f"s_lshl_b32 s{sT0}, s{sRB}, 2")
            A(f"v_mov_b32 v2, s{sT0}")
            A("v_cndmask_b32 v1, v1, v2, vcc")
            A(f"s_lshl_b32 s{sT0}, 1, s{sCB}")
            A(f"v_mov_b32 v2, s{sT0}")
            A(f"buffer_atomic_or v2, v1, s[{SRD_DBG}:{SRD_DBG+3}], 0 offen sc1")
        elif fmode == 1:
            A(f"s_lshl_b32 s{sT0}, s{sRB}, 5")
            A(f"s_add_u32 s{sT0}, s{sT0}, s{sCB}")
            A(f"v_mov_b32 v2, s{sT0}")
            A("v_cndmask_b32 v1, v1, v2, vcc")
            A("v_mov_b32 v2, 1")
            A(f"buffer_store_byte v2, v1, s[{SRD_DBG}:{SRD_DBG+3}], 0 offen sc1")
        else:
            A(f"s_lshl_b32 s{sT0}, s{sRB}, 5")
            A(f"s_add_u32 s{sT0}, s{sT0}, s{sCB}")
            A(f"s_lshl_b32 s{sT0}, s{sT0}, 4")
            A(f"s_add_u32 s{sT0}, s{sT0}, {OFF_FL}")
            A(f"v_mov_b32 v2, s{sT0}")
            A("v_cndmask_b32 v1, v1, v2, vcc")
            A("v_mov_b32 v2, 1")
            A("v_mov_b32 v3, 2")
            for l in granule_finish(2):
                A(l)
            A(f"buffer_store_dwordx4 v[2:5], v1, s[{SRD_WS}:{SRD_WS+3}], 0 offen sc1")
    if prio:
        A("s_setprio 3")
    flag()
    if wpos == 2:
        w_loads()
    DONE = "F_wait2" if wpos == 2 else "F_wait"
    if fmode == 0:
        A(f"v_mov_b32 v1, 0x{OOB:x}")
        A("v_cmp_gt_u32 vcc, 8, v0")
        A(f"v_cndmask_b32 v1, v1, v{pL4}, vcc")
    A(f"s_mov_b32 s{sCnt}, 0")
    A.label("F_poll")
    if fmode == 0:
        A(f"buffer_load_dword v2, v1, s[{SRD_DBG}:{SRD_DBG+3}], 0 offen sc1")
        A("s_waitcnt vmcnt(0)")
        A("v_cmp_eq_u32 vcc, -1, v2")
        A("s_nop 1")
        A(f"s_and_b32 s{sT0}, vcc_lo, 0xff")
        A(f"s_cmp_eq_u32 s{sT0}, 0xff")
    elif fmode == 1:
        A(f"buffer_load_dword v2, v{pL4}, s[{SRD_DBG}:{SRD_DBG+3}], 0 offen sc1")
        A("s_waitcnt vmcnt(0)")
        A("v_and_b32 v2, 0x01010101, v2")
        A("v_cmp_eq_u32 vcc, 0x01010101, v2")
        A("s_nop 1")
        A("s_cmp_eq_u64 vcc, -1")
    else:
        if fmode == 3:
            A(f"s_lshl_b32 s{sT0}, s{qRB}, 9")
            A(f"s_add_u32 s{sT0}, s{sT0}, {OFF_FL}")
            A(f"v_mov_b32 v1, 0x{OOB:x}")
            A("v_cmp_gt_u32 vcc, 32, v0")
            A(f"v_cndmask_b32 v1, v1, v{pL16}, vcc")
            A.label("F_poll0")
            A(f"buffer_load_dwordx4 {vr(96,4)}, v1, s[{SRD_WS}:{SRD_WS+3}], s{sT0} offen sc1")
            A("s_waitcnt vmcnt(0)")
            for l in granule_check(96, 2, sOk):
                A(l)
            A(f"s_cmp_eq_u32 s{sOk}, -1")
            A("s_cbranch_scc1 F_poll1")
            A(f"s_add_u32 s{sCnt}, s{sCnt}, 1")
            if opts.get("psleep"):
                A(f"s_sleep {opts.get('psleep')}")
            A(f"s_cmp_lt_u32 s{sCnt}, {SPINMAX}")
            A("s_cbranch_scc1 F_poll0")
            A.label("F_poll1")
        A(f"s_mov_b32 s{sT0}, {OFF_FL}")
        for j in range(4):
            A(f"buffer_load_dwordx4 {vr(96+4*j,4)}, v{pL16}, s[{SRD_WS}:{SRD_WS+3}], s{sT0} offen offset:{j*1024} sc1")
        A(f"s_mov_b64 s[{sOk2}:{sOk2+1}], -1")
        for j in range(4):
            A(f"s_waitcnt vmcnt({3-j})")
            for l in granule_check(96 + 4 * j, 2, sOk):
                A(l)
            A(f"s_and_b64 s[{sOk2}:{sOk2+1}], s[{sOk2}:{sOk2+1}], s[{sOk}:{sOk+1}]")
        A(f"s_cmp_eq_u64 s[{sOk2}:{sOk2+1}], -1")
    A(f"s_cbranch_scc1 {DONE}")
    A(f"s_add_u32 s{sCnt}, s{sCnt}, 1")
    if opts.get("psleep"):
        A(f"s_sleep {opts.get('psleep')}")
    A(f"s_cmp_lt_u32 s{sCnt}, {SPINMAX}")
    A("s_cbranch_scc1 F_poll1" if fmode == 3 else "s_cbranch_scc1 F_poll")
    if wpos == 2:
        A("s_branch F_wait2")
    A.label("F_wait")
    if wpos == 2:
        w_loads()
        A.label("F_wait2")
    A("s_waitcnt vmcnt(0) lgkmcnt(0)")
    if prio:
        A("s_setprio 0")
    A("s_barrier")
    ST.mark(5)
    if wpos == 0:
        w_loads()
        A("s_waitcnt vmcnt(0)")

    issued = []

    def ld(tag, ins):
        A(ins)
        issued.append(tag)

    def wait_for(tag):
        idx = max(i for i, t in enumerate(issued) if t == tag)
        A(f"s_waitcnt vmcnt({min(63, len(issued) - 1 - idx)})")

    def hslot(ks):
        return RING + (ks % 10) * 8

    def h_loads(ks):
        if ks % 4 == 0 and ks > 0:
            A(f"s_add_u32 s{qH0}, s{qH0}, 4096")
            A(f"s_add_u32 s{qH1}, s{qH1}, 4096")
        for ri, so in enumerate((qH0, qH1)):
            ld(("h", ks), f"buffer_load_dwordx4 {vr(hslot(ks)+4*ri,4)}, v{pL16}, s[{SRD_WS}:{SRD_WS+3}], s{so} offen offset:{(ks%4)*1024}")

    def wslot(ks):
        return ks if ks < 6 else (ks - 6) % 6

    def tr_reads(dst, slot):
        o = []
        for ci, va in enumerate((pT0, pT1)):
            o.append(f"ds_read_b64_tr_b16 {vr(dst+4*ci,2)}, v{va} offset:{slot*2048}")
            o.append(f"ds_read_b64_tr_b16 {vr(dst+4*ci+2,2)}, v{va} offset:{slot*2048+1024}")
        return o

    for s_ in tr_reads(WF[0], 0):
        A(s_)
    for ks in range(10):
        h_loads(ks)
        if ks == 0:
            ld("r", f"buffer_load_dword v{pIr}, v6, s[{SRD_WS}:{SRD_WS+3}], s{qST} offen sc1")
            ld("r", f"buffer_load_dword v{pIr+1}, v6, s[{SRD_WS}:{SRD_WS+3}], s{qST} offen offset:512 sc1")
            ld("r", f"buffer_load_dword v{pRf}, v7, s[{SRD_WS}:{SRD_WS+3}], s{qST} offen sc1")
    KVR = [WRAW, WRAW + 16]
    PQR = [WRAW + 32, WRAW + 48]
    DB = [RING + 32, RING]
    OP = [RING + 64, WRAW + 32]
    WOF = [None, WRAW]

    def extra_loads(i):
        o = []
        if 1 <= i <= 4:
            hh, half = (i - 1) >> 1, (i - 1) & 1
            if i == 3:
                o.append((None, f"s_add_u32 s{qKV}, s{qKV}, 4096"))
            for r in range(8 * half, 8 * half + 8):
                o.append((("kv", hh), f"buffer_load_dword v{KVR[hh]+r}, v{pL4}, s[{SRD_WS}:{SRD_WS+3}], s{qKV} offen offset:{r*256}"))
        if 5 <= i <= 8:
            hh, t = (i - 5) >> 1, (i - 5) & 1
            for ri, so in enumerate((qP0, qP1)):
                o.append((("pq", hh), f"buffer_load_dwordx4 {vr(PQR[hh]+8*t+4*ri,4)}, v{pL16}, s[{SRD_WS}:{SRD_WS+3}], s{so} offen offset:{(hh*2+t)*1024}"))
        return o

    def att_kv(hh):
        o = []
        for ri in range(2):
            for t in range(2):
                c = "0" if t == 0 else vr(DB[hh] + 16 * ri, 16)
                o.append(f"v_mfma_f32_32x32x16_bf16 {vr(DB[hh]+16*ri,16)}, {vr(KVR[hh]+4*t,4)}, {vr(PQR[hh]+8*t+4*ri,4)}, {c}")
        return o

    def att_norm(hh):
        o = []
        D_ = DB[hh]
        for ri in range(2):
            t0, t1 = pTmp + 2 * ri, pTmp + 2 * ri + 1
            o.append(f"v_mov_b32 v{t0}, v{D_+16*ri+12}\nv_mov_b32 v{t1}, v{D_+16*ri+12}")
        o.append("s_nop 0\n" + "\n".join(f"v_permlane32_swap_b32 v{pTmp+2*ri}, v{pTmp+2*ri+1}" for ri in range(2)))
        o.append("s_nop 0\n" + "\n".join(f"v_add_f32 v{pTmp+2*ri}, s{sT5}, v{pTmp+2*ri}" for ri in range(2)))
        o.append("\n".join(f"v_rcp_f32 v{pTmp+2*ri}, v{pTmp+2*ri}" for ri in range(2)))
        o.append("s_nop 0\n" + "\n".join(f"v_mul_f32 v{pTmp+2*ri}, v{pTmp+2*ri}, v{pIr+ri}" for ri in range(2)))
        for ri in range(2):
            d = D_ + 16 * ri
            t0 = pTmp + 2 * ri
            for r in range(8):
                o.append(f"v_mul_f32 v{d+2*r}, v{d+2*r}, v{t0}\nv_mul_f32 v{d+2*r+1}, v{d+2*r+1}, v{t0}\n"
                         f"v_cvt_pk_bf16_f32 v{OP[hh]+8*ri+r}, v{d+2*r}, v{d+2*r+1}")
        return o

    def att_wo(hh, wf):
        o = []
        for t in range(2):
            for ci in range(2):
                for ri in range(2):
                    d = acc2(ci, ri)
                    o.append(f"v_mfma_f32_32x32x16_bf16 {vr(d,16)}, {vr(wf[t]+4*ci,4)}, {vr(OP[hh]+8*ri+4*t,4)}, {vr(d,16)}")
        return o

    def run(mf, fills):
        n = len(mf)
        for i, m in enumerate(mf):
            A(m)
            for u in fills[i * len(fills) // n:(i + 1) * len(fills) // n]:
                if isinstance(u, tuple):
                    if u[0] is None:
                        A(u[1])
                    else:
                        ld(u[0], u[1])
                else:
                    A(u)

    def kv_cvt(hh):
        return [f"v_cvt_pk_bf16_f32 v{KVR[hh]+r}, v{KVR[hh]+2*r}, v{KVR[hh]+2*r+1}" for r in range(8)]

    for i in range(14):
        A("s_waitcnt lgkmcnt(0)")
        wait_for(("h", i))
        wf = WF[i & 1]
        hs = hslot(i)
        mf = []
        for ci in range(2):
            for ri in range(2):
                c = "0" if i == 0 else vr(acc2(ci, ri), 16)
                mf.append(f"v_mfma_f32_32x32x16_bf16 {vr(acc2(ci,ri),16)}, {vr(wf+4*ci,4)}, {vr(hs+4*ri,4)}, {c}")
        fills = []
        fills += tr_reads(WF[(i + 1) & 1], wslot(i + 1) if i < 13 else 6)
        if i <= 7:
            for j in range(2):
                fills.append(f"ds_write_b128 v{pStg}, {vr(WRAW+8*i+4*j,4)} offset:{(i%6)*2048+j*1024}")
        fills += extra_loads(i)
        if i == 1:
            fills.append(f"v_mul_f32 v{pIr}, v{pIr}, v{pIr}\nv_mul_f32 v{pIr+1}, v{pIr+1}, v{pIr+1}\nv_mul_f32 v{pRf}, v{pRf}, v{pRf}")
            fills.append(f"v_rcp_f32 v{pIr}, v{pIr}\nv_rcp_f32 v{pIr+1}, v{pIr+1}")
        if i == 11:
            fills += kv_cvt(0)
        if i == 12:
            fills += att_norm(0)[:8]
        if i == 13:
            fills += att_norm(0)[8:] + kv_cvt(1)
        run(mf, fills)
        if i + 10 < 14:
            h_loads(i + 10)
        if i == 10:
            wait_for(("kv", 1))
        if i == 11:
            wait_for(("pq", 0))
            A("s_nop 1")
            run(att_kv(0), [])
            A("s_nop 7")
            A("s_nop 3")
    ST.mark(6)
    wait_for(("pq", 1))
    run(att_kv(1), tr_reads(WF[1], 7) + tr_reads(WOF[1], 8) + tr_reads(WOF[1] + 8, 9))
    A("s_waitcnt lgkmcnt(0)")
    n1 = att_norm(1)
    mf = att_wo(0, WF)
    for i, m in enumerate(mf):
        A(m)
        if i >= 2:
            k0 = (i - 2) * len(n1) // 6
            k1 = (i - 1) * len(n1) // 6
            for u in n1[k0:k1]:
                A(u)
    A("s_nop 1")
    run(att_wo(1, [WOF[1], WOF[1] + 8]), [])
    A("v_and_b32 v4, 31, v0")
    A("v_mul_u32_u24 v4, 272, v4")
    A("v_lshrrev_b32 v5, 5, v0")
    A("v_lshl_add_u32 v4, v5, 4, v4")
    A(f"v_add_u32 v4, s{qLB}, v4")
    A(f"s_lshl_b32 s{sT0}, s{sW}, 3")
    A("v_lshrrev_b32 v5, 3, v0")
    A(f"v_add_u32 v5, s{sT0}, v5")
    A("v_mul_u32_u24 v5, 272, v5")
    A("v_and_b32 v6, 7, v0")
    A("v_lshl_add_u32 v5, v6, 5, v5")
    A(f"v_add_u32 v6, {3*LBW}, v5")
    A(f"v_add_u32 v7, {6*LBW}, v5")
    A("s_nop 3")
    for ri in range(2):
        for ci in range(2):
            d = acc2(ci, ri)
            for j in range(4):
                A(f"ds_write_b128 v4, {vr(d+4*j,4)} offset:{ri*32*272 + ci*128 + j*32}")
    X = 96
    for i in range(4):
        A(f"v_lshlrev_b32 v{X+2*i}, 16, v{pX+i}")
        A(f"v_and_b32 v{X+2*i+1}, s{sHi}, v{pX+i}")
    A("s_waitcnt lgkmcnt(0)")
    A("s_barrier")
    R = 16
    for p_ in range(8):
        va = (5, 6, 7)[p_ // 3]
        for i in range(2):
            A(f"ds_read_b128 {vr(R+8*p_+4*i,4)}, v{va} offset:{(p_%3)*LBW + i*16}")
    for st_, wl in ((1, 12), (1, 8), (1, 4), (1, 0)):
        pass
    for p_ in range(0, 8, 2):
        A(f"s_waitcnt lgkmcnt({12 - 2*p_})")
        for r in range(8):
            A(f"v_add_f32 v{R+8*p_+r}, v{R+8*p_+r}, v{R+8*p_+8+r}")
    for r in range(8):
        A(f"v_add_f32 v{R+r}, v{R+r}, v{R+16+r}")
        A(f"v_add_f32 v{R+32+r}, v{R+32+r}, v{R+48+r}")
    for r in range(8):
        A(f"v_add_f32 v{R+r}, v{R+r}, v{R+32+r}")
    for r in range(8):
        A(f"v_fma_f32 v{R+r}, v{R+r}, v{pRf}, v{X+r}")
    for r in range(4):
        A(f"v_cvt_pk_bf16_f32 v{104+r}, v{R+2*r}, v{R+2*r+1}")
    A("s_waitcnt lgkmcnt(0)")
    A(f"buffer_store_dwordx4 v[104:107], v{pOut}, s[{SRD_OUT}:{SRD_OUT+3}], s{qXo} offen")
    ST.dump(sW, SRD_WS, sT2)
    A("s_endpgm")
    A.label("F_spare")
    A("s_waitcnt vmcnt(0) lgkmcnt(0)")
    A("s_barrier")
    A(f"s_cmp_lg_u32 s{sW}, 4")
    A("s_cbranch_scc1 F_spare_end")
    flag()
    A.label("F_spare_end")
    ST.dump(sW, SRD_WS, sT2)
    A("s_endpgm")
```

```python
from gen_common import *
import struct

STAGE = 53376
LDS_BYTES = 163840
NVGPR = 256
ACCOFF = 256
NSGPR = 102

S1 = STAGE
S2 = 2 * STAGE
TOP = 3 * STAGE
M_OFF = S1
R_OFF = S1 + 1024
CP_OFF = S1 + 2048
RPS_OFF = S1 + 8192
OOB = 0x40000000

SRD_X, SRD_Q, SRD_G, SRD_U, SRD_WS, SRD_RP = 4, 8, 12, 16, 20, 24
sW, sWp, sRB, sH, sCB = 32, 33, 34, 35, 36
sXbase, sHbase, sGbase = 37, 38, 39
sLx, sLh, sLg, sLu = 40, 41, 42, 43
sC, sXc, sHc, sGc = 44, 45, 46, 47
sHb2, sLh2 = 48, 28
sFG = 29
sChk = 30
FGPERM = [7, 1, 0, 2, 3, 5, 4, 6, 15, 8, 9, 11, 10, 12, 13, 14]
sT0, sT1, sT2, sT3, sT4, sT5 = 49, 50, 51, 52, 53, 54
sWin = 55
sMaskP = 56
sHi = 58
sTag = 60
sRPoff = 62
sRProw = 63
sMaskLo32 = 64
sMask24 = 66
sOk = 68
sNeed = 70
sKT, sK2 = 72, 73
sD0, sD1 = 74, 75
sCSo = 76
sSpec = 77
sCnt = 78
sLim = 79
sWDp, sWOp = 80, 82
sOk2 = 84

vXA = [[16, 17, 18, 19], [124, 125, 126, 127]]
vWA0 = [[20, 21, 22, 23], [128, 129, 130, 131]]
vWA1 = [[24, 25, 26, 27], [132, 133, 134, 135]]
vX, vH, vG = 28, 29, 30
vL16 = 31
vCS = [32, 33, 34, 35, 36, 37]
vCT = [38, 39, 40, 41]
vRPo, vCSo = 42, 43
vRP = 44
FB = [48, 68]
XC = 88
WC = 96
ACC = 160

F1_448 = 0x3B124925
EPS5 = 0x3727C5AC
EPS6 = 0x358637BD
LOG2E = 0x3FB8AA3B
CHK = 0x5BD1E995
DELTA = 300
NRETRY = 40
NEG_EPS_LOG2E = struct.unpack("<I", struct.pack("<f", -1e-6 * 1.4426950408889634))[0]

OPTS = {}
ST = None


def acc(j, a):
    return ACC + (j * 2 + a) * 16


VARIANTS = {
    "A0": ("A", 0, ["k", "v"]),
    "A1": ("A", 1, ["f", "f", "f"]),
    "B0": ("B", 0, ["q", "f"]),
    "B1": ("B", 1, ["f", "f", "f"]),
}


class Em:
    def __init__(self, A):
        self.A = A
        self.ops = []

    def copy_state(self):
        return list(self.ops)

    def __call__(self, s):
        for l in s.split("\n"):
            l = l.strip()
            if not l:
                continue
            if l.startswith("@vm "):
                self.ops.append(l[4:].strip())
            elif l.startswith("@wait "):
                tag = l[6:].strip()
                idx = max(i for i, t in enumerate(self.ops) if t == tag)
                n = len(self.ops) - 1 - idx
                assert n <= 63
                self.A(f"s_waitcnt vmcnt({n})")
            else:
                self.A(l)


def stage_sel(n):
    s = n % 3
    return (1 if s == 2 else 0), (STAGE if s == 1 else 0)


def wread_list(var, n, t, buf):
    b = FB[buf] + 8
    st, ib = stage_sel(n)
    w0, w1 = vWA0[st][t], vWA1[st][t]
    if var == "A0":
        spec = [(w0, 0, 512), (w1, 0, 512)]
    elif var == "A1":
        spec = [(w0, 32 * j, 384) for j in range(3)]
    elif var == "B0":
        spec = [(w0, 0, 256), (w1, 0, 512)]
    else:
        spec = [(w0, 0, 512), (w1, 64, 512), (w0, 64, 512)]
    out = []
    for j, (reg, imm, d2) in enumerate(spec):
        out.append(f"ds_read_b64_tr_b16 {vr(b+4*j,2)}, v{reg} offset:{ib+imm}")
        out.append(f"ds_read_b64_tr_b16 {vr(b+4*j+2,2)}, v{reg} offset:{ib+imm+d2}")
    return out


def reads(var, n, t, buf):
    b = FB[buf]
    st, ib = stage_sel(n)
    xa = vXA[st][t]
    xs = [f"ds_read_b128 {vr(b,4)}, v{xa} offset:{ib}", f"ds_read_b128 {vr(b+4,4)}, v{xa} offset:{ib+4096}"]
    ws = wread_list(var, n, t, buf)
    return [xs[0], ws[0], ws[1], xs[1]] + ws[2:]


def mfmas_regs(var, xb, wb, zero=False):
    tiles = VARIANTS[var][2]
    out = []
    for j, kind in enumerate(tiles):
        for a in range(2):
            d = acc(j, a)
            xf = vr(xb + 4 * a, 4)
            wf = vr(wb + 4 * j, 4)
            c = "0" if zero else vr(d, 16)
            if kind in ("k", "v"):
                out.append(f"v_mfma_f32_32x32x16_bf16 {vr(d,16)}, {xf}, {wf}, {c}")
            else:
                out.append(f"v_mfma_f32_32x32x16_bf16 {vr(d,16)}, {wf}, {xf}, {c}")
    return out


def mfmas(var, buf, zero=False):
    return mfmas_regs(var, FB[buf], FB[buf] + 8, zero)


def cs_duty(var, buf, j):
    b = FB[buf] + 8
    out = []
    for r in range(4):
        ta = vCT[(r % 2) * 2]
        src = b + 4 * j + r
        out.append(f"v_lshlrev_b32 v{ta}, 16, v{src}")
        out.append(f"v_and_b32 v{ta+1}, s{sHi}, v{src}")
        if r == 0:
            out.append(f"v_add_f32 v{vCS[2*j]}, 0, v{ta}")
            out.append(f"v_add_f32 v{vCS[2*j]+1}, 0, v{ta+1}")
        else:
            out.append(f"v_add_f32 v{vCS[2*j]}, v{vCS[2*j]}, v{ta}")
            out.append(f"v_add_f32 v{vCS[2*j]+1}, v{vCS[2*j]+1}, v{ta+1}")
    return out


def dma_units(typ, stage_off, tag):
    vm = f"@vm {tag}\n"
    u = []
    u.append(f"s_lshl_b32 s{sD0}, s{sC}, 7\ns_add_u32 s{sD0}, s{sD0}, s{sXbase}\ns_add_u32 m0, s{sLx}, {stage_off}\ns_mul_i32 s{sD1}, s{sC}, {64*2688}\n"
             + vm + f"buffer_load_dwordx4 v{vX}, s[{SRD_X}:{SRD_X+3}], s{sD0} offen lds")
    for j in range(1, 4):
        u.append(f"s_add_u32 m0, m0, 8192\ns_add_u32 s{sD0}, s{sD0}, {64*896}\n"
                 + vm + f"buffer_load_dwordx4 v{vX}, s[{SRD_X}:{SRD_X+3}], s{sD0} offen lds")
    head = (f"s_add_u32 m0, s{sLh}, {stage_off}\ns_add_u32 s{sD1}, s{sD1}, s{sHbase}\n")
    headld = vm + f"buffer_load_dwordx4 v{vH}, s[{SRD_Q}:{SRD_Q+3}], s{sD1} offen lds"
    gpre = f"s_mul_i32 s{sD0}, s{sC}, {64*3584}\ns_add_u32 m0, s{sLg}, {stage_off}\ns_add_u32 s{sD0}, s{sD0}, s{sGbase}\n"
    gld = vm + f"buffer_load_dwordx4 v{vG}, s[{SRD_G}:{SRD_G+3}], s{sD0} offen lds"
    upre = f"s_add_u32 m0, s{sLu}, {stage_off}\ns_nop 0\n"
    uld = vm + f"buffer_load_dwordx4 v{vG}, s[{SRD_U}:{SRD_U+3}], s{sD0} offen lds"
    mon = f"s_mov_b64 exec, s[{sMaskP}:{sMaskP+1}]\n"
    moff = "\ns_mov_b64 exec, -1"
    if typ == "A":
        u.append(head + headld)
        u.append(gpre + mon + gld + moff)
        u.append(upre + mon + uld + moff)
    else:
        u.append(head + mon + headld + moff)
        u.append(gpre + gld)
        u.append(upre + uld + "")
    u[-1] += f"\ns_add_u32 s{sC}, s{sC}, 1\ns_cmp_eq_u32 s{sC}, 7\ns_cselect_b32 s{sC}, 0, s{sC}"
    return u


def dma14(typ, n):
    SB = (n % 3) * STAGE
    vm = f"@vm c{n}\n"
    hb = sHbase if typ == "A" else sHb2
    pre = (f"s_lshl_b32 s{sXc}, s{sC}, 7\ns_mul_i32 s{sHc}, s{sC}, {64*2688}\ns_mul_i32 s{sGc}, s{sC}, {64*3584}\n"
           f"s_add_u32 s{sXc}, s{sXc}, s{sXbase}\ns_add_u32 s{sHc}, s{sHc}, s{hb}\ns_add_u32 s{sGc}, s{sGc}, s{sGbase}\n"
           f"s_add_u32 s{sC}, s{sC}, 1\ns_cmp_eq_u32 s{sC}, 7\ns_cselect_b32 s{sC}, 0, s{sC}\n")
    mon = f"s_mov_b64 exec, s[{sMaskP}:{sMaskP+1}]\n"
    moff = "\ns_mov_b64 exec, -1"
    u = []

    def piece(lds_s, lds_imm, base_s, goff, vaddr, srd, masked):
        s = f"s_add_u32 m0, s{lds_s}, {SB + lds_imm}\n"
        if goff:
            s += f"s_add_u32 s{sD0}, s{base_s}, {goff}\n"
            so = sD0
        else:
            s += "s_nop 0\n" if not masked else ""
            so = base_s
        if masked:
            s += mon
        s += vm + f"buffer_load_dwordx4 v{vaddr}, s[{srd}:{srd+3}], s{so} offen lds"
        if masked:
            s += moff
        return s
    for j in range(8):
        u.append(piece(sLx, j * 4096, sXc, j * 32 * 896, vX, SRD_X, False))
    if typ == "A":
        for j in range(2):
            u.append(piece(sLh, j * 4096, sHc, j * 32 * 2688, vH, SRD_Q, False))
        for j in range(2):
            u.append(piece(sLg, j * 3072, sGc, j * 32 * 3584, vG, SRD_G, True))
            u.append(piece(sLu, j * 3072, sGc, j * 32 * 3584, vG, SRD_U, True))
    else:
        u.append(piece(sLh2, 0, sHc, 0, vH, SRD_Q, False))
        for j in range(2):
            u.append(piece(sLg, j * 4096, sGc, j * 32 * 3584, vG, SRD_G, False))
            u.append(piece(sLu, j * 4096, sGc, j * 32 * 3584, vG, SRD_U, False))
    u[0] = pre + u[0]
    return u


def granule_finish(g):
    return [f"v_mov_b32 v{g+2}, s{sTag}",
            f"v_xor_b32 v{g+3}, v{g}, v{g+1}",
            f"v_xor_b32 v{g+3}, s{sChk}, v{g+3}",
            f"v_xor_b32 v{g+3}, s{sTag}, v{g+3}"]


def granule_check(g, t, dst):
    return [f"v_xor_b32 v{t}, v{g}, v{g+1}",
            f"v_xor_b32 v{t}, s{sChk}, v{t}",
            f"v_xor_b32 v{t}, v{g+2}, v{t}",
            f"v_subrev_u32 v{t+1}, s{sWin}, v{g+2}",
            f"v_cmp_eq_u32 vcc, v{t}, v{g+3}",
            f"v_cmp_gt_u32_e64 s[{dst}:{dst+1}], s{sLim}, v{t+1}",
            "s_nop 1",
            f"s_and_b64 s[{dst}:{dst+1}], s[{dst}:{dst+1}], vcc"]


def STM(i, first=False):
    if OPTS.get("chst") or (OPTS.get("pst") and i > 2):
        return
    ST.mark(i)


def CHM(i):
    if OPTS.get("chst"):
        ST.mark(i)


def emit(A, opts):
    global ST
    OPTS.update(opts)
    stamps = opts.get("stamps", 0)
    A("s_cmp_ge_u32 s2, 256")
    A("s_cbranch_scc1 K1_end")
    A(f"s_memrealtime s[{sTag}:{sTag+1}]")
    A(f"s_load_dwordx2 s[{SRD_X}:{SRD_X+1}], s[0:1], 0")
    A(f"s_load_dwordx2 s[{SRD_Q}:{SRD_Q+1}], s[0:1], 8")
    A(f"s_load_dwordx2 s[{SRD_G}:{SRD_G+1}], s[0:1], 32")
    A(f"s_load_dwordx2 s[{SRD_U}:{SRD_U+1}], s[0:1], 40")
    A(f"s_load_dwordx2 s[{SRD_WS}:{SRD_WS+1}], s[0:1], 72")
    A(f"s_load_dwordx2 s[{sWDp}:{sWDp+1}], s[0:1], 48")
    A(f"s_load_dwordx2 s[{sWOp}:{sWOp+1}], s[0:1], 16")
    if opts.get("prio", 1):
        A("s_setprio 3")
    ST = Stamps(A, 86, 0, stamps)
    ST.zero()
    STM(0)
    A("v_lshrrev_b32 v1, 6, v0")
    A("v_and_b32 v0, 63, v0")
    A(f"v_readfirstlane_b32 s{sW}, v1")
    for srd, nb in ((SRD_X, X_BYTES), (SRD_Q, Q_BYTES), (SRD_G, G_BYTES), (SRD_U, G_BYTES), (SRD_WS, WS_BYTES if not stamps else 0x10000000)):
        A(f"s_mov_b32 s{srd+2}, {nb}")
        A(f"s_mov_b32 s{srd+3}, 0x20000")
    A(f"s_and_b32 s{sT0}, s2, 7")
    A(f"s_lshr_b32 s{sT1}, s2, 3")
    A(f"s_and_b32 s{sRB}, s{sT0}, 1")
    A(f"s_lshl_b32 s{sRB}, s{sRB}, 2")
    A(f"s_and_b32 s{sT2}, s{sT1}, 3")
    A(f"s_add_u32 s{sRB}, s{sRB}, s{sT2}")
    A(f"s_lshr_b32 s{sCB}, s{sT0}, 1")
    A(f"s_lshl_b32 s{sCB}, s{sCB}, 3")
    A(f"s_lshr_b32 s{sT2}, s{sT1}, 2")
    A(f"s_add_u32 s{sCB}, s{sCB}, s{sT2}")
    A(f"s_and_b32 s{sH}, s{sCB}, 15")
    A(f"s_and_b32 s{sWp}, s{sW}, 3")
    A(f"s_lshl_b32 s{sT0}, s{sRB}, 8")
    A(f"s_lshl_b32 s{sT1}, s{sW}, 3")
    A(f"s_add_u32 s{sT0}, s{sT0}, s{sT1}")
    A(f"s_mul_i32 s{sXbase}, s{sT0}, 896")
    A(f"s_lshl_b32 s{sLx}, s{sW}, 10")
    A(f"v_lshrrev_b32 v1, 3, v0")
    A(f"v_lshrrev_b32 v2, 4, v0")
    A(f"s_and_b32 s{sT1}, s{sW}, 1")
    A(f"s_lshl_b32 s{sT1}, s{sT1}, 2")
    A(f"v_add_u32 v3, s{sT1}, v2")
    A(f"v_and_b32 v4, 7, v0")
    A(f"v_xor_b32 v4, v4, v3")
    A(f"v_lshlrev_b32 v4, 4, v4")
    A(f"v_mul_u32_u24 v{vX}, 896, v1")
    A(f"v_add_u32 v{vX}, v{vX}, v4")
    A(f"v_lshlrev_b32 v{vL16}, 4, v0")
    A(f"v_mov_b32 v5, 0x{OOB:x}")
    A(f"v_cmp_gt_u32 vcc, 56, v0")
    A(f"v_cndmask_b32 v5, v5, v{vL16}, vcc")
    A(f"s_lshl_b32 s{sT4}, s{sRB}, 8")
    A(f"s_lshl_b32 s{sT5}, s{sCB}, 3")
    A(f"s_add_u32 s{sT4}, s{sT4}, s{sT5}")
    A(f"s_add_u32 s{sK2}, s{sT4}, s{sW}")
    A(f"s_mul_i32 s{sKT}, s{sK2}, 896")
    A(f"s_cmp_eq_u32 s{sRB}, 7")
    A(f"s_cselect_b32 s{sC}, 0, s{sRB}")
    if opts.get("rot", 1) == 0:
        A(f"s_mov_b32 s{sC}, 0")
    elif opts.get("rot", 1) == 2:
        A(f"s_and_b32 s{sC}, s{sRB}, 6")
    elif opts.get("rot", 1) == 4:
        A(f"s_and_b32 s{sC}, s{sRB}, 4")
    A(f"s_cmp_ge_u32 s{sCB}, 16")
    A("s_cbranch_scc1 K1_typeB")
    for typ in ("A", "B"):
        A.label(f"K1_type{typ}")
        if typ == "A":
            A("v_lshrrev_b32 v1, 3, v0")
            A("v_lshrrev_b32 v2, 4, v0")
            A("v_and_b32 v2, 1, v2")
            A("v_lshlrev_b32 v2, 2, v2")
            A("v_and_b32 v3, 7, v0")
            A("v_xor_b32 v3, v3, v2")
            A("v_and_b32 v4, 3, v3")
            A("v_lshrrev_b32 v3, 2, v3")
            A("v_lshlrev_b32 v6, 4, v4")
            A("v_cmp_eq_u32 vcc, 3, v4")
            A("v_mul_u32_u24 v3, 896, v3")
            A("v_add_u32 v3, 896, v3")
            A("v_mov_b32 v7, 40")
            A("v_cndmask_b32 v6, v6, v7, vcc")
            A(f"v_mul_u32_u24 v{vH}, 2688, v1")
            A(f"v_add3_u32 v{vH}, v{vH}, v3, v6")
            A("v_mul_u32_u24 v1, 43, v0")
            A("v_lshrrev_b32 v1, 8, v1")
            A("v_mul_u32_u24 v2, 6, v1")
            A("v_sub_u32 v2, v0, v2")
            A("v_lshlrev_b32 v2, 4, v2")
            A(f"v_mul_u32_u24 v{vG}, 3584, v1")
            A(f"v_add_u32 v{vG}, v{vG}, v2")
            A(f"s_mov_b32 s{sMaskP}, -1")
            A(f"s_mov_b32 s{sMaskP+1}, 0xffff")
            perm = FGPERM if opts.get("fgp", 1) else list(range(16))
            pv = sum(f << (4 * h) for h, f in enumerate(perm))
            A(f"s_mov_b32 s{sT3}, 0x{pv & 0xffffffff:x}")
            A(f"s_mov_b32 s{sT4}, 0x{pv >> 32:x}")
            A(f"s_lshl_b32 s{sT1}, s{sH}, 2")
            A(f"s_lshr_b64 s[{sT3}:{sT4}], s[{sT3}:{sT4}], s{sT1}")
            A(f"s_and_b32 s{sFG}, s{sT3}, 15")
            A(f"s_mul_i32 s{sT1}, s{sFG}, 96")
            A(f"s_lshl_b32 s{sLh}, s{sW}, 10")
            A(f"s_add_u32 s{sLh}, s{sLh}, 32768")
            A(f"s_mul_i32 s{sLg}, s{sW}, 768")
            A(f"s_add_u32 s{sLu}, s{sLg}, 47232")
            A(f"s_add_u32 s{sLg}, s{sLg}, 40960")
        else:
            A("v_lshrrev_b32 v1, 2, v0")
            A("v_and_b32 v4, 3, v0")
            A("v_lshlrev_b32 v6, 4, v4")
            A("v_cmp_eq_u32 vcc, 3, v4")
            A("v_mov_b32 v7, 40")
            A(f"v_mul_u32_u24 v{vH}, 2688, v1")
            A("v_cndmask_b32 v6, v6, v7, vcc")
            A(f"v_add_u32 v{vH}, v{vH}, v6")
            A("v_lshrrev_b32 v1, 3, v0")
            A("v_lshrrev_b32 v2, 4, v0")
            A("v_and_b32 v2, 1, v2")
            A("v_lshlrev_b32 v2, 1, v2")
            A("v_and_b32 v3, 7, v0")
            A("v_xor_b32 v3, v3, v2")
            A("v_lshlrev_b32 v3, 4, v3")
            A(f"v_mul_u32_u24 v{vG}, 3584, v1")
            A(f"v_add_u32 v{vG}, v{vG}, v3")
            A(f"s_mov_b32 s{sMaskP}, -1")
            A(f"s_mov_b32 s{sMaskP+1}, 0")
            A(f"s_lshl_b32 s{sT1}, s{sH}, 7")
            A(f"s_add_u32 s{sT1}, s{sT1}, 1536")
            A(f"s_lshl_b32 s{sLh}, s{sW}, 9")
            A(f"s_add_u32 s{sLh}, s{sLh}, 32768")
            A(f"s_lshl_b32 s{sLg}, s{sW}, 10")
            A(f"s_add_u32 s{sLu}, s{sLg}, 45120")
            A(f"s_add_u32 s{sLg}, s{sLg}, 36864")
        A(f"s_mul_i32 s{sGbase}, s{sW}, {8*3584}")
        A(f"s_add_u32 s{sGbase}, s{sGbase}, s{sT1}")
        A(f"s_mul_i32 s{sHbase}, s{sW}, {8*2688}")
        A(f"s_mul_i32 s{sT1}, s{sH}, 56")
        A(f"s_add_u32 s{sHbase}, s{sHbase}, s{sT1}")
        if typ == "B":
            A(f"s_mul_i32 s{sHb2}, s{sWp}, {16*2688}")
            A(f"s_add_u32 s{sHb2}, s{sHb2}, s{sT1}")
            A(f"s_lshl_b32 s{sLh2}, s{sWp}, 10")
            A(f"s_add_u32 s{sLh2}, s{sLh2}, 32768")
        A("s_waitcnt lgkmcnt(0)")
        STM(1)
        E0 = Em(A)
        RW = 88
        E0("@vm row")
        E0(f"buffer_load_dwordx4 {vr(RW,4)}, v5, s[{SRD_X}:{SRD_X+3}], s{sKT} offen")
        for u in dma_units(typ, 0, "c0"):
            E0(u)
        STM(2)
        if opts.get("pst") == 1:
            for i, n in enumerate((7, 3, 2, 0)):
                A(f"s_waitcnt vmcnt({n})")
                ST.mark(3 + i)
        A(f"s_cmp_ge_u32 s{sW}, 4")
        A(f"s_cbranch_scc1 K1_{typ}1")
        for g in (0, 1):
            var = f"{typ}{g}"
            A.label(f"K1_{var}")
            E = Em(A)
            E.ops = E0.copy_state()
            variant(E, A, var, opts)
    A.label("K1_end")
    A("s_endpgm")


def common_setup():
    opts = OPTS
    o = []
    o.append(f"s_mov_b32 s{sHi}, 0xffff0000")
    o.append(f"s_mov_b32 s{sMaskLo32}, -1")
    o.append(f"s_mov_b32 s{sMaskLo32+1}, 0")
    o.append(f"s_mov_b32 s{sMask24}, 0x01000000")
    o.append(f"s_mov_b32 s{sMask24+1}, 0x01000000")
    o.append(f"s_sub_u32 s{sWin}, s{sTag}, {DELTA}")
    o.append(f"s_xor_b32 s{sChk}, s{sTag+1}, 0x{CHK:x}")
    o.append(f"s_mov_b32 s{sLim}, {0 if opts.get('forcefb') else 1 << 24}")
    o.append(f"s_lshl_b32 s{sT0}, s2, 3")
    o.append(f"s_add_u32 s{sT0}, s{sT0}, s{sW}")
    o.append(f"s_lshl_b32 s{sRPoff}, s{sT0}, 10")
    o.append(f"s_add_u32 s{sRPoff}, s{sRPoff}, {OFF_WD}")
    o.append(f"s_mul_i32 s{sT1}, s{sT0}, 9363")
    o.append(f"s_lshr_b32 s{sT1}, s{sT1}, 20")
    o.append(f"s_mul_i32 s{sT2}, s{sT1}, 112")
    o.append(f"s_sub_u32 s{sT2}, s{sT0}, s{sT2}")
    o.append(f"s_lshl_b32 s{sT2}, s{sT2}, 4")
    o.append(f"s_sub_u32 s{sT3}, s{sT0}, 1568")
    o.append(f"s_lshr_b32 s{sT4}, s{sT3}, 5")
    o.append(f"s_lshr_b32 s{sT5}, s{sT3}, 1")
    o.append(f"s_and_b32 s{sT5}, s{sT5}, 15")
    o.append(f"s_mul_i32 s{sT5}, s{sT5}, 28")
    o.append(f"s_and_b32 s{sSpec}, s{sT3}, 1")
    o.append(f"s_lshl_b32 s{sKT}, s{sSpec}, 4")
    o.append(f"s_add_u32 s{sT5}, s{sT5}, s{sKT}")
    o.append(f"s_cmp_lt_u32 s{sT0}, 1568\n"
             f"s_cselect_b32 s{sT1}, s{sT1}, s{sT4}\n"
             f"s_cselect_b32 s{sT2}, s{sT2}, s{sT5}\n"
             f"s_cselect_b32 s{sSpec}, 0, s{sSpec}\n"
             f"s_cselect_b32 s{SRD_RP}, s{sWDp}, s{sWOp}\n"
             f"s_cselect_b32 s{SRD_RP+1}, s{sWDp+1}, s{sWOp+1}\n"
             f"s_mov_b32 s{SRD_RP+2}, {WO_BYTES}\n"
             f"s_cselect_b32 s{SRD_RP+2}, {WD_BYTES}, s{SRD_RP+2}\n"
             f"s_mov_b32 s{SRD_RP+3}, 0x20000")
    o.append(f"s_mul_i32 s{sRProw}, s{sT2}, 896")
    o.append(f"s_lshl_b32 s{sT1}, s{sT1}, 6")
    o.append(f"s_add_u32 s{sRProw}, s{sRProw}, s{sT1}")
    o.append(f"v_mov_b32 v1, 0x{OOB:x}\n"
             f"s_cmp_ge_u32 s{sT0}, 2016\n"
             f"s_cselect_b32 s{sRProw}, 0, s{sRProw}\n"
             f"s_cselect_b32 s{sRPoff}, 0, s{sRPoff}\n"
             f"s_cselect_b64 vcc, -1, 0\n"
             f"s_nop 1\n"
             f"v_cndmask_b32 v{vRPo}, v{vL16}, v1, vcc")
    o.append(f"s_mul_i32 s{sT0}, s{sCB}, 8960")
    o.append(f"s_mul_i32 s{sT1}, s{sRB}, 1280")
    o.append(f"s_add_u32 s{sT0}, s{sT0}, s{sT1}")
    o.append(f"s_lshl_b32 s{sT1}, s{sW}, 8")
    o.append(f"s_add_u32 s{sT0}, s{sT0}, s{sT1}")
    o.append(f"s_add_u32 s{sCSo}, s{sT0}, {OFF_CS}")
    o.append(f"v_mov_b32 v1, 0x{OOB:x}\n"
             f"s_mov_b32 s{sOk}, 0xffff\n"
             f"s_mov_b32 s{sOk+1}, 0\n"
             f"s_cmp_lt_u32 s{sW}, 5\n"
             f"s_cselect_b32 s{sOk}, s{sOk}, 0\n"
             f"s_cmp_lt_u32 s{sRB}, 7\n"
             f"s_cselect_b32 s{sOk}, s{sOk}, 0\n"
             f"s_cselect_b32 s{sCSo}, s{sCSo}, 0\n"
             f"v_cndmask_b32_e64 v{vCSo}, v1, v{vL16}, s[{sOk}:{sOk+1}]")
    o.append("v_and_b32 v1, 31, v0\n"
             "v_lshrrev_b32 v2, 5, v0\n"
             "v_lshrrev_b32 v3, 1, v1\n"
             "v_and_b32 v3, 7, v3\n"
             f"s_lshl_b32 s{sT0}, s{sWp}, 13\n"
             "v_lshlrev_b32 v4, 7, v1\n"
             f"v_add_u32 v4, s{sT0}, v4")
    for t in range(4):
        o.append(f"s_add_u32 s{sT1}, s{sWp}, {t}\n"
                 f"s_and_b32 s{sT1}, s{sT1}, 3\n"
                 f"s_lshl_b32 s{sT1}, s{sT1}, 1\n"
                 f"v_add_u32 v5, s{sT1}, v2\n"
                 f"v_xor_b32 v5, v5, v3\n"
                 f"v_lshlrev_b32 v5, 4, v5\n"
                 f"v_add_u32 v{vXA[0][t]}, v4, v5\n"
                 f"v_add_u32 v{vXA[1][t]}, {S2}, v{vXA[0][t]}")
    return o


def w_addr_setup(var):
    o = []
    s = ("v_lshrrev_b32 v1, 2, v0\n"
         "v_and_b32 v1, 3, v1\n"
         "v_and_b32 v2, 3, v0\n"
         "v_lshrrev_b32 v3, 5, v0\n"
         "v_lshrrev_b32 v4, 4, v0\n"
         "v_and_b32 v4, 1, v4\n"
         "v_lshlrev_b32 v5, 3, v3\n"
         "v_add_u32 v5, v5, v1\n"
         "v_lshrrev_b32 v6, 1, v1\n"
         "v_lshlrev_b32 v7, 3, v2\n")
    if var == "A0":
        s += ("v_lshrrev_b32 v8, 1, v2\n"
              "v_lshl_add_u32 v8, v4, 1, v8\n"
              "v_lshlrev_b32 v9, 2, v6\n"
              "v_xor_b32 v8, v8, v9\n"
              "v_lshlrev_b32 v8, 4, v8\n"
              "v_and_b32 v9, 1, v2\n"
              "v_lshl_add_u32 v8, v9, 3, v8\n"
              "v_lshl_add_u32 v8, v5, 7, v8\n"
              "v_add_u32 v8, 32768, v8\n"
              "v_xor_b32 v9, 64, v8\n")
        p0 = p1 = 128
    elif var == "A1":
        s += ("v_mul_u32_u24 v8, 96, v5\n"
              "v_add_u32 v8, v8, v7\n"
              f"v_mul_u32_u24 v9, {47232-40960}, v4\n"
              "v_add3_u32 v8, v8, v9, 0\n"
              "v_add_u32 v8, 40960, v8\n")
        p0 = p1 = 96
    else:
        s += ("v_lshl_add_u32 v10, v5, 7, v7\n"
              f"v_mul_u32_u24 v9, {45120-36864}, v4\n"
              "v_add_u32 v10, v10, v9\n"
              "v_add_u32 v10, 36864, v10\n"
              "v_lshlrev_b32 v11, 5, v6\n")
        if var == "B0":
            s += ("v_lshl_add_u32 v8, v5, 6, v7\n"
                  "v_lshl_add_u32 v8, v4, 5, v8\n"
                  "v_add_u32 v8, 32768, v8\n"
                  "v_add_u32 v9, v10, v11\n")
            p0, p1 = 64, 128
        else:
            s += ("v_xor_b32 v12, 32, v11\n"
                  "v_add_u32 v8, v10, v12\n"
                  "v_add_u32 v9, v10, v11\n")
            p0 = p1 = 128
    o.append(s)
    for t in range(4):
        s = (f"s_add_u32 s{sT1}, s{sWp}, {t}\n"
             f"s_and_b32 s{sT1}, s{sT1}, 3\n"
             f"s_mul_i32 s{sT2}, s{sT1}, {16*p0}\n"
             f"v_add_u32 v{vWA0[0][t]}, s{sT2}, v8\n"
             f"v_add_u32 v{vWA0[1][t]}, {S2}, v{vWA0[0][t]}\n")
        if var != "A1":
            s += (f"s_mul_i32 s{sT2}, s{sT1}, {16*p1}\n"
                  f"v_add_u32 v{vWA1[0][t]}, s{sT2}, v9\n"
                  f"v_add_u32 v{vWA1[1][t]}, {S2}, v{vWA1[0][t]}\n")
        o.append(s)
    return o


def row_stats_publish(E):
    A = E
    RW = 88
    f = list(range(92, 100))
    s, q = 100, 101
    A("@wait row")
    for i in range(4):
        A(f"v_lshlrev_b32 v{f[2*i]}, 16, v{RW+i}")
        A(f"v_and_b32 v{f[2*i+1]}, s{sHi}, v{RW+i}")
    A(f"v_add_f32 v{s}, v{f[0]}, v{f[1]}")
    A(f"v_mul_f32 v{q}, v{f[0]}, v{f[0]}")
    A(f"v_fmac_f32 v{q}, v{f[1]}, v{f[1]}")
    for i in range(2, 8):
        A(f"v_add_f32 v{s}, v{s}, v{f[i]}")
        A(f"v_fmac_f32 v{q}, v{f[i]}, v{f[i]}")
    A("s_nop 0")
    for sh in (1, 2, 4, 8):
        for v in (s, q):
            A(f"v_add_f32_dpp v{v}, v{v}, v{v} row_shr:{sh} row_mask:0xf bank_mask:0xf bound_ctrl:0")
        A("s_nop 0")
    for v in (s, q):
        A(f"v_add_f32_dpp v{v}, v{v}, v{v} row_bcast:15 row_mask:0xa bank_mask:0xf")
    A("s_nop 0")
    for v in (s, q):
        A(f"v_add_f32_dpp v{v}, v{v}, v{v} row_bcast:31 row_mask:0xc bank_mask:0xf")
    G = 104
    A(f"v_mul_f32 v{G}, 0x{F1_448:x}, v{s}")
    A(f"v_mul_f32 v{q}, 0x{F1_448:x}, v{q}")
    A(f"v_fma_f32 v{q}, -v{G}, v{G}, v{q}")
    A(f"v_max_f32 v{q}, 0, v{q}")
    A(f"v_add_f32 v{q}, 0x{EPS5:x}, v{q}")
    A(f"v_rsq_f32 v{G+1}, v{q}")
    A(f"s_lshl_b32 s{sT0}, s{sK2}, 4")
    A(f"s_add_u32 s{sT0}, s{sT0}, {OFF_ST}")
    A("v_mov_b32 v1, 0")
    for l in granule_finish(G):
        A(l)
    A(f"s_mov_b32 s{sOk}, 0")
    A(f"s_mov_b32 s{sOk+1}, 0x80000000")
    A(f"s_mov_b64 exec, s[{sOk}:{sOk+1}]")
    A("@vm st")
    A(f"buffer_store_dwordx4 {vr(G,4)}, v1, s[{SRD_WS}:{SRD_WS+3}], s{sT0} offen sc1")
    A("s_mov_b64 exec, -1")


def fb_rows(A, g):
    L = A.newlabel("K1_fbr")
    t = list(range(108, 120))
    A(f"s_lshl_b32 s{sT0}, s{sRB}, 8")
    A(f"s_lshl_b32 s{sT1}, s{sW}, 6")
    A(f"s_add_u32 s{sT0}, s{sT0}, s{sT1}")
    A(f"v_add_u32 v{t[0]}, s{sT0}, v0")
    A(f"v_mul_u32_u24 v{t[0]}, 896, v{t[0]}")
    A(f"v_mov_b32 v{g}, 0")
    A(f"v_mov_b32 v{g+1}, 0")
    A(f"s_mov_b32 s{sT2}, 0")
    A.label(L)
    A(f"buffer_load_dwordx4 {vr(t[4],4)}, v{t[0]}, s[{SRD_X}:{SRD_X+3}], s{sT2} offen")
    A("s_waitcnt vmcnt(0)")
    for i in range(4):
        A(f"v_lshlrev_b32 v{t[1]}, 16, v{t[4]+i}")
        A(f"v_and_b32 v{t[2]}, s{sHi}, v{t[4]+i}")
        A(f"v_add_f32 v{g}, v{g}, v{t[1]}")
        A(f"v_fmac_f32 v{g+1}, v{t[1]}, v{t[1]}")
        A(f"v_add_f32 v{g}, v{g}, v{t[2]}")
        A(f"v_fmac_f32 v{g+1}, v{t[2]}, v{t[2]}")
    A(f"s_add_u32 s{sT2}, s{sT2}, 16")
    A(f"s_cmp_lt_u32 s{sT2}, 896")
    A(f"s_cbranch_scc1 {L}")
    A(f"v_mul_f32 v{g}, 0x{F1_448:x}, v{g}")
    A(f"v_mul_f32 v{g+1}, 0x{F1_448:x}, v{g+1}")
    A(f"v_fma_f32 v{g+1}, -v{g}, v{g}, v{g+1}")
    A(f"v_max_f32 v{g+1}, 0, v{g+1}")
    A(f"v_add_f32 v{g+1}, 0x{EPS5:x}, v{g+1}")
    A(f"v_rsq_f32 v{g+1}, v{g+1}")
    A("s_nop 0")


def fb_cols(A, typ, g, gbase_sgpr):
    L = A.newlabel("K1_fbc")
    t = list(range(108, 124))
    gi, c, rem, j, p, oq, og, ou, e, d0, d1, d2 = t[:12]
    A(f"v_add_u32 v{gi}, s{gbase_sgpr}, v0")
    A(f"v_mul_u32_u24 v{c}, 205, v{gi}")
    A(f"v_lshrrev_b32 v{c}, 14, v{c}")
    A(f"v_mul_u32_u24 v{rem}, 80, v{c}")
    A(f"v_sub_u32 v{rem}, v{gi}, v{rem}")
    A(f"v_lshrrev_b32 v{j}, 4, v{rem}")
    A(f"v_and_b32 v{p}, 15, v{rem}")
    A(f"v_lshlrev_b32 v{e}, 1, v{p}")
    A(f"v_subrev_u32 v{d0}, 4, v{e}")
    A(f"v_cmp_gt_u32 vcc, 24, v{e}")
    A(f"v_cndmask_b32 v{e}, v{d0}, v{e}, vcc")
    A(f"s_mul_i32 s{sT0}, s{sH}, 28")
    A(f"v_add_u32 v{e}, s{sT0}, v{e}")
    nh = 2 if typ == "A" else 1
    if typ == "A":
        A(f"v_mul_u32_u24 v{d0}, 448, v{j}")
        A(f"v_add_u32 v{e}, v{e}, v{d0}")
        A(f"v_add_u32 v{e}, 448, v{e}")
    A(f"v_lshlrev_b32 v{oq}, 1, v{e}")
    A(f"v_mul_u32_u24 v{d0}, {64*2688//64}, v{c}")
    A(f"v_lshlrev_b32 v{d0}, 6, v{d0}")
    A(f"v_add_u32 v{oq}, v{oq}, v{d0}")
    A(f"v_mov_b32 v{d1}, {OOB}")
    A(f"v_cmp_gt_u32 vcc, {nh}, v{j}")
    A(f"v_cndmask_b32 v{oq}, v{d1}, v{oq}, vcc")
    A(f"v_subrev_u32 v{e}, {nh}, v{j}")
    A(f"v_lshlrev_b32 v{e}, 4, v{e}")
    A(f"v_and_b32 v{d0}, 7, v{p}")
    A(f"v_lshl_add_u32 v{e}, v{d0}, 1, v{e}")
    if typ == "A":
        A(f"s_mul_i32 s{sT0}, s{sFG}, 48")
    else:
        A(f"s_lshl_b32 s{sT0}, s{sH}, 6")
        A(f"s_add_u32 s{sT0}, s{sT0}, 768")
    A(f"v_add_u32 v{e}, s{sT0}, v{e}")
    A(f"v_lshlrev_b32 v{og}, 1, v{e}")
    A(f"v_mul_u32_u24 v{d0}, 3584, v{c}")
    A(f"v_lshlrev_b32 v{d0}, 6, v{d0}")
    A(f"v_add_u32 v{og}, v{og}, v{d0}")
    A(f"v_cndmask_b32 v{og}, v{og}, v{d1}, vcc")
    A(f"v_cmp_gt_u32 vcc, 8, v{p}")
    A(f"v_cndmask_b32 v{ou}, v{og}, v{d1}, vcc")
    A(f"v_cndmask_b32 v{og}, v{d1}, v{og}, vcc")
    A(f"v_mov_b32 v{g}, 0")
    A(f"v_mov_b32 v{g+1}, 0")
    A(f"s_mov_b32 s{sT2}, 0")
    A(f"s_mov_b32 s{sT3}, 0")
    A(f"s_mov_b32 s{sT4}, 0")
    A.label(L)
    A(f"buffer_load_dword v{d0}, v{oq}, s[{SRD_Q}:{SRD_Q+3}], s{sT2} offen")
    A(f"buffer_load_dword v{d1}, v{og}, s[{SRD_G}:{SRD_G+3}], s{sT3} offen")
    A(f"buffer_load_dword v{d2}, v{ou}, s[{SRD_U}:{SRD_U+3}], s{sT3} offen")
    A("s_waitcnt vmcnt(0)")
    A(f"v_or_b32 v{d0}, v{d0}, v{d1}")
    A(f"v_or_b32 v{d0}, v{d0}, v{d2}")
    A(f"v_lshlrev_b32 v{d1}, 16, v{d0}")
    A(f"v_and_b32 v{d2}, s{sHi}, v{d0}")
    A(f"v_add_f32 v{g}, v{g}, v{d1}")
    A(f"v_add_f32 v{g+1}, v{g+1}, v{d2}")
    A(f"s_add_u32 s{sT2}, s{sT2}, 2688")
    A(f"s_add_u32 s{sT3}, s{sT3}, 3584")
    A(f"s_add_u32 s{sT4}, s{sT4}, 1")
    A(f"s_cmp_lt_u32 s{sT4}, 64")
    A(f"s_cbranch_scc1 {L}")


def spread(units, nslots, first=0):
    out = [[] for _ in range(nslots)]
    n = nslots - first
    for i, u in enumerate(units):
        out[first + i * n // len(units)].append(u)
    return out


def variant(E, A, var, opts):
    typ, grp, tiles = VARIANTS[var]
    nt = len(tiles)
    nm = 2 * nt
    prio = opts.get("prio", 1)
    if prio:
        A(f"s_setprio {2 if grp == 0 else 1}")
    setup = common_setup() + w_addr_setup(var)
    c1 = dma_units(typ, STAGE, "c1")
    c1pos = opts.get("c1pos", 1)
    if c1pos == 0:
        k = 0
        for i, u in enumerate(c1):
            E(u)
            hi = (i + 1) * len(setup) // len(c1)
            for s_ in setup[k:hi]:
                E(s_)
            k = hi
    else:
        for s_ in setup:
            E(s_)
    if opts.get("pst") == 2:
        ST.mark(3)
        E("@wait row")
        ST.mark(4)
    row_stats_publish(E)
    if c1pos == 1 or (c1pos == 3 and grp == 0):
        for u in c1:
            E(u)
    if opts.get("pst") == 2:
        ST.mark(5)
    E("@wait c0")
    if opts.get("pst") == 2:
        ST.mark(6)
    A("s_barrier")
    STM(3)
    CHM(0)
    c1_late = c1pos == 2 or (c1pos == 3 and grp == 1)
    c2split = opts.get("c2split", 14)

    rdper = opts.get("rdper0" if grp == 0 else "rdper1", 2)

    def step(mf, rd, slots, bar=None, rper=None):
        rper = rper or rdper
        k = 0
        for i, m in enumerate(mf):
            E(m)
            r = rd[k:k + rper] if i < len(mf) - 1 else rd[k:]
            k += len(r)
            for s_ in r:
                E(s_)
            for u in slots[i]:
                E(u)
            if bar is not None and bar[0] == i:
                bar[1]()

    def empty(n):
        return [[] for _ in range(n)]

    def merge(*ss):
        out = empty(len(ss[0]))
        for s_ in ss:
            for i, l in enumerate(s_):
                out[i].extend(l)
        return out

    if var == "A0":
        vR, vCP, vM = 104, 136, 150
    else:
        vR, vCP, vM = 108, 136, 157
    jb = 0 if grp == 0 else 2
    G1, G2 = 96, 100

    def gather(sc=None):
        o = []
        SC = " sc1" if (opts.get("gsc", 1) if sc is None else sc) else ""
        if grp == 0:
            o.append(f"s_lshl_b32 s{sT0}, s{sRB}, 12\n"
                     f"s_lshl_b32 s{sT1}, s{sW}, 10\n"
                     f"s_add_u32 s{sT0}, s{sT0}, s{sT1}\n"
                     f"s_add_u32 s{sT0}, s{sT0}, {OFF_ST}\n"
                     f"@vm ga\n"
                     f"buffer_load_dwordx4 {vr(G1,4)}, v{vL16}, s[{SRD_WS}:{SRD_WS+3}], s{sT0} offen{SC}")
        else:
            o.append(f"s_mul_i32 s{sT0}, s{sCB}, 8960\n"
                     f"s_lshl_b32 s{sT1}, s{sWp}, 10\n"
                     f"s_add_u32 s{sT0}, s{sT0}, s{sT1}\n"
                     f"s_add_u32 s{sT0}, s{sT0}, {OFF_CS}\n"
                     f"@vm ga\n"
                     f"buffer_load_dwordx4 {vr(G1,4)}, v{vL16}, s[{SRD_WS}:{SRD_WS+3}], s{sT0} offen{SC}")
        o.append(f"s_mul_i32 s{sT0}, s{sCB}, 8960\n"
                 f"s_lshl_b32 s{sT1}, s{sW}, 10\n"
                 f"s_add_u32 s{sT0}, s{sT0}, s{sT1}\n"
                 f"s_add_u32 s{sT0}, s{sT0}, {OFF_CS + 4096}\n"
                 f"@vm ga\n"
                 f"buffer_load_dwordx4 {vr(G2,4)}, v{vL16}, s[{SRD_WS}:{SRD_WS+3}], s{sT0} offen{SC}")
        return o

    Lslow = f"K1_{var}_slow"
    Lok = f"K1_{var}_ok"

    for p in range(-1, 6):
        n = p + 1
        nsl = 4 * nm
        fill = empty(nsl)
        add = lambda units, first, last: [fill[first + i * (last - first) // len(units)].append(u) for i, u in enumerate(units)]
        first_slot = nm if p == -1 else 0
        if p == -1 and c1_late:
            for i, u in enumerate(c1):
                fill[first_slot + i].append(u)
        if grp == 0 and p + 3 <= 6 and not (opts.get("nodma") and p >= 0):
            d = dma14(typ, p + 3)
            if p == -1:
                carry = d[c2split:]
                d = d[:c2split]
                if c1_late:
                    add(d, first_slot + 7, nsl)
                else:
                    add(d, first_slot, nsl)
            else:
                if p == 0:
                    d = carry + d
                if len(d) <= nsl:
                    for i, u in enumerate(d):
                        fill[i].append(u)
                else:
                    add(d, 0, nsl)
        if p == -1:
            for t in range(nt):
                add(cs_duty(var, t & 1, t), nm * (1 + t), nm * (1 + t) + (nm if t < 2 else nm // 2))
            red = []
            red.append("\n".join([f"v_add_f32 v{vCS[2*j]}, v{vCS[2*j]}, v{vCS[2*j]+1}" for j in range(nt)] +
                                 [f"v_mov_b32 v{vCS[2*j]+1}, v{vCS[2*j]}" for j in range(nt)] + ["s_nop 1"] +
                                 [f"v_permlane32_swap_b32 v{vCS[2*j]}, v{vCS[2*j]+1}" for j in range(nt)]))
            red.append("v_and_b32 v1, 31, v0\nv_lshlrev_b32 v1, 2, v1\n"
                       f"s_mul_i32 s{sT0}, s{sWp}, 640\ns_add_u32 s{sT0}, s{sT0}, {TOP + jb*128}\nv_add_u32 v1, s{sT0}, v1\n" +
                       "\n".join([f"v_add_f32 v{vCS[2*j]}, v{vCS[2*j]}, v{vCS[2*j]+1}" for j in range(nt)] +
                                 [f"ds_write_b32 v1, v{vCS[2*j]} offset:{j*128}" for j in range(nt)]))
            fill[4 * nm - 3].append(red[0])
            fill[4 * nm - 2].append(red[1])
        if p == 0:
            P = 104
            G = 112
            fill[nm - 1].append("v_lshlrev_b32 v1, 3, v0\n"
                                f"s_lshl_b32 s{sT0}, s{sW}, 7\ns_add_u32 s{sT0}, s{sT0}, {TOP}\nv_add_u32 v1, s{sT0}, v1\n" +
                                "\n".join(f"ds_read_b64 {vr(P+2*q,2)}, v1 offset:{q*640}" for q in range(4)))
            pub = []
            for e in range(2):
                pub.append(f"v_add_f32 v{P+e}, v{P+e}, v{P+2+e}")
                pub.append(f"v_add_f32 v{P+4+e}, v{P+4+e}, v{P+6+e}")
            for e in range(2):
                pub.append(f"v_add_f32 v{G+e}, v{P+e}, v{P+4+e}")
            pub += granule_finish(G)
            pub.append(f"@vm cs\nbuffer_store_dwordx4 {vr(G,4)}, v{vCSo}, s[{SRD_WS}:{SRD_WS+3}], s{sCSo} offen sc1")
            add(pub, nm, 2 * nm)
        if p == opts.get("gp", 4):
            gs = opts.get("gslot", 0)
            if gs < 0:
                gs = nsl + gs
            add(gather(), gs, gs + 2)
        if p == 4:
            rpu = ["v_lshrrev_b32 v1, 2, v0\n"
                   "v_subrev_u32 v2, 4, v1\n"
                   "v_cmp_lt_u32 vcc, 11, v1\n"
                   "v_cndmask_b32 v2, v1, v2, vcc",
                   f"s_cmp_eq_u32 s{sSpec}, 1\n"
                   f"s_cselect_b64 vcc, -1, 0\n"
                   "v_and_b32 v3, 12, v1\n"
                   f"v_cmp_eq_u32_e64 s[{sOk}:{sOk+1}], 8, v3\n"
                   "v_cndmask_b32 v2, v1, v2, vcc",
                   "v_mul_u32_u24 v2, 896, v2\n"
                   "v_and_b32 v3, 3, v0\n"
                   "v_lshl_add_u32 v2, v3, 4, v2\n"
                   f"s_and_b64 vcc, vcc, s[{sOk}:{sOk+1}]\n"
                   f"v_mov_b32 v3, 0x{OOB:x}",
                   f"s_lshl_b32 s{sT0}, s{sW}, 10\n"
                   f"s_add_u32 m0, s{sT0}, {RPS_OFF}\n"
                   "v_cndmask_b32 v2, v2, v3, vcc\n"
                   "@vm rp\n"
                   f"buffer_load_dwordx4 v2, s[{SRD_RP}:{SRD_RP+3}], s{sRProw} offen lds"]
            for i, u in enumerate(rpu):
                fill[i].append(u)
            val = []
            if grp == 0:
                val.append(f"s_mov_b64 s[{sNeed}:{sNeed+1}], -1")
            else:
                val.append(f"s_cmp_eq_u32 s{sW}, 4\ns_cselect_b32 s{sNeed}, -1, 0\ns_cselect_b32 s{sNeed+1}, 0xffff, 0")
            val.append(f"s_mov_b32 s{sCnt}, 0\n@wait ga\n@label {Lslow}_chk")
            val += granule_check(G1, 108, sOk)
            val += granule_check(G2, 110, sOk2)
            val.append(f"s_orn2_b64 s[{sOk2}:{sOk2+1}], s[{sOk2}:{sOk2+1}], s[{sNeed}:{sNeed+1}]\n"
                       f"s_and_b64 s[{sOk}:{sOk+1}], s[{sOk}:{sOk+1}], s[{sOk2}:{sOk2+1}]\n"
                       f"s_cmp_eq_u64 s[{sOk}:{sOk+1}], -1\n"
                       f"s_cbranch_scc0 {Lslow}\n"
                       f"@label {Lok}")
            wr = []
            if grp == 0:
                wr.append(f"s_lshl_b32 s{sT0}, s{sW}, 8\ns_add_u32 s{sT0}, s{sT0}, {M_OFF}\nv_lshlrev_b32 v1, 2, v0\nv_add_u32 v1, s{sT0}, v1\n"
                          f"ds_write_b32 v1, v{G1}\nds_write_b32 v1, v{G1+1} offset:1024")
            else:
                wr.append(f"s_lshl_b32 s{sT0}, s{sWp}, 9\ns_add_u32 s{sT0}, s{sT0}, {CP_OFF}\nv_lshlrev_b32 v1, 3, v0\nv_add_u32 v1, s{sT0}, v1\n"
                          f"ds_write_b64 v1, {vr(G1,2)}")
            wr.append(f"s_lshl_b32 s{sT0}, s{sW}, 9\ns_add_u32 s{sT0}, s{sT0}, {CP_OFF + 2048}\nv_lshlrev_b32 v1, 3, v0\nv_add_u32 v2, s{sT0}, v1\n"
                      f"v_add_u32 v1, {TOP}, v1\n"
                      f"v_cndmask_b32_e64 v1, v1, v2, s[{sNeed}:{sNeed+1}]\n"
                      f"ds_write_b64 v1, {vr(G2,2)}")
            vs = opts.get("vstep", 3) * nm
            fill[vs].append("\n".join(val))
            fill[vs + 1].append(wr[0])
            fill[vs + 2].append(wr[1])
        if p == 5:
            fr = ("v_and_b32 v1, 31, v0\nv_lshlrev_b32 v1, 2, v1\n"
                  f"s_lshl_b32 s{sT0}, s{sWp}, 8\ns_add_u32 s{sT0}, s{sT0}, {M_OFF}\nv_add_u32 v2, s{sT0}, v1\n"
                  f"ds_read_b32 v{vM}, v2\nds_read_b32 v{vM+1}, v2 offset:128\n"
                  f"v_add_u32 v3, {CP_OFF + jb*128}, v1")
            lst = [fr]
            for j in range(nt):
                for c in range(7):
                    lst.append(f"ds_read_b32 v{vCP+7*j+c}, v3 offset:{j*128 + c*640}")
            if var == "A0":
                lst.append(f"v_lshrrev_b32 v4, 5, v0\nv_lshlrev_b32 v4, 4, v4\nv_add_u32 v4, s{sT0}, v4")
                for a in range(2):
                    for j in range(4):
                        lst.append(f"ds_read_b128 {vr(vR+16*a+4*j,4)}, v4 offset:{1024 + a*128 + j*32}")
            elif var == "B0":
                lst.append(f"ds_read_b32 v{vR}, v2 offset:1024\nds_read_b32 v{vR+1}, v2 offset:{1024+128}")
            lst.append("v_lshrrev_b32 v5, 2, v0\nv_and_b32 v5, 3, v5\nv_lshrrev_b32 v6, 5, v0\nv_lshl_add_u32 v5, v6, 2, v5\n"
                       "v_lshlrev_b32 v5, 6, v5\nv_lshrrev_b32 v6, 4, v0\nv_and_b32 v6, 1, v6\nv_lshl_add_u32 v5, v6, 5, v5\n"
                       "v_and_b32 v6, 3, v0\nv_lshl_add_u32 v5, v6, 3, v5\n"
                       f"s_lshl_b32 s{sT1}, s{sW}, 10\ns_add_u32 s{sT1}, s{sT1}, {RPS_OFF}\nv_add_u32 v5, s{sT1}, v5\n"
                       f"@wait rp\n"
                       f"ds_read_b64_tr_b16 {vr(vRP,2)}, v5\nds_read_b64_tr_b16 {vr(vRP+2,2)}, v5 offset:512")
            add(lst, 0, 2 * nm)
            prep = []
            for a in range(2):
                m = vM + a
                prep.append(f"v_sub_f32 v{m}, 0, v{m}")
                prep.append(f"v_cndmask_b32_e64 v{m}, 0, v{m}, s[{sMaskLo32}:{sMaskLo32+1}]")
            for a in range(2):
                prep.append(f"v_cvt_pk_bf16_f32 v{XC+4*a+1}, v{vM+a}, 0")
            for a in range(2):
                prep.append(f"v_lshlrev_b32 v{1+a}, 16, v{XC+4*a+1}")
            for a in range(2):
                prep.append(f"v_sub_f32 v{1+a}, v{vM+a}, v{1+a}")
            for a in range(2):
                prep.append(f"v_cvt_pk_bf16_f32 v{XC+4*a}, v{vM+a}, v{1+a}")
                prep.append(f"v_mov_b32 v{XC+4*a+2}, 0")
                prep.append(f"v_mov_b32 v{XC+4*a+3}, 0")
            for j in range(nt):
                c = vCP + 7 * j
                prep.append(f"v_add_f32 v{c}, v{c}, v{c+1}")
                prep.append(f"v_add_f32 v{c+2}, v{c+2}, v{c+3}")
                prep.append(f"v_add_f32 v{c+4}, v{c+4}, v{c+5}")
                prep.append(f"v_add_f32 v{c}, v{c}, v{c+6}")
                prep.append(f"v_add_f32 v{c+2}, v{c+2}, v{c+4}")
                prep.append(f"v_add_f32 v{c}, v{c}, v{c+2}")
                prep.append(f"v_cvt_pk_bf16_f32 v{WC+4*j}, v{c}, v{c}")
                prep.append(f"v_lshlrev_b32 v{c+1}, 16, v{WC+4*j}")
                prep.append(f"v_sub_f32 v{c+1}, v{c}, v{c+1}")
                prep.append(f"v_cvt_pk_bf16_f32 v{WC+4*j+1}, v{c+1}, 0")
                prep.append(f"v_mov_b32 v{WC+4*j+2}, 0")
                prep.append(f"v_mov_b32 v{WC+4*j+3}, 0")
            if grp == 0:
                prep.append(f"v_mov_b32 v12, 0x{EPS6:x}")
                prep.append(f"v_mov_b32 v13, 0x{LOG2E:x}")
                prep.append(f"v_mov_b32 v14, 0x{NEG_EPS_LOG2E:x}")
            prep.append(f"@vm rs\nbuffer_store_dwordx4 {vr(vRP,4)}, v{vRPo}, s[{SRD_WS}:{SRD_WS+3}], s{sRPoff} offen sc1")
            last_fill = empty(nm)
            np_ = len(prep)
            tot = 3 * nm
            for i, u in enumerate(prep):
                sl = 2 * nm + i * tot // np_
                (fill[sl] if sl < nsl else last_fill[sl - nsl]).append(u)

        def fix(units):
            return units

        def barrier_fn(pp):
            def f():
                A("s_waitcnt lgkmcnt(0)")
                need = pp + 1
                tag = f"c{need}"
                if tag in E.ops:
                    E(f"@wait {tag}")
                if prio and opts.get("eprio", 3) == 3 and pp == opts.get("swp", 5):
                    A(f"s_setprio {0 if grp == 0 else 3}")
                A("s_barrier")
                CHM(pp + 1)
                if pp == 0:
                    STM(4)
            return f

        def EM(u):
            for l in u.split("\n"):
                if l.startswith("@label "):
                    A.label(l[7:])
                else:
                    E(l)

        def step2(mf, rd, slots, bar=None, rper=None, wait=True):
            rper = rper or rdper
            if wait:
                A("s_waitcnt lgkmcnt(0)")
            k = 0
            for i, m in enumerate(mf):
                E(m)
                r = rd[k:k + rper] if i < len(mf) - 1 else rd[k:]
                k += len(r)
                for s_ in r:
                    E(s_)
                for u in slots[i]:
                    EM(u)
                if bar is not None and bar[0] == i:
                    bar[1]()

        if p == -1:
            for s_ in reads(var, 0, 0, 0):
                E(s_)
        else:
            step2(mfmas(var, 1), reads(var, n, 0, 0), fill[0:nm], wait=False)
        step2(mfmas(var, 0, zero=(p == -1)), reads(var, n, 1, 1), fill[nm:2*nm])
        step2(mfmas(var, 1), reads(var, n, 2, 0), fill[2*nm:3*nm])
        if p < 5:
            bat = opts.get("bat1", 4) if grp == 1 else opts.get("bat0", 3)
            step2(mfmas(var, 0), reads(var, n, 3, 1), fill[3*nm:4*nm], bar=(bat, barrier_fn(p + 1)),
                  rper=(opts.get("rb1", 3) if grp == 1 else None))
            rest = []
        else:
            step2(mfmas(var, 0), reads(var, n, 3, 1), fill[3*nm:4*nm])
            step2(mfmas(var, 1), [], last_fill)
    STM(5)
    if prio and opts.get("eprio", 3) == 1 and grp == 0:
        A("s_setprio 0")
    if prio and opts.get("eprio", 3) == 2:
        A("s_setprio 0")
    if not opts.get("nocorr"):
        for s_ in mfmas_regs(var, XC, WC):
            A(s_)
    vEps, vL2e, vNeg = 12, 13, 14
    A(f"s_lshl_b32 s{sT0}, s{sRB}, 3")
    A(f"s_lshl_b32 s{sT1}, s{sWp}, 1")
    A(f"s_add_u32 s{sT0}, s{sT0}, s{sT1}")

    STSC = {0: "", 1: " sc1", 2: " nt", 3: " sc0 sc1", 4: " sc1 nt"}[opts.get("stsc", 1)]

    def ffn_tile(j, ft_sgpr, P0):
        for a in range(2):
            d = acc(j, a)
            P = P0 + 4 * a
            for r in range(8):
                A(f"v_max_f32 v{d+r}, 0, v{d+r}")
            if opts.get("epk", 1):
                for r in range(0, 8, 2):
                    A(f"v_pk_mul_f32 {vr(d+r,2)}, {vr(d+r,2)}, {vr(d+8+r,2)}")
            else:
                for r in range(8):
                    A(f"v_mul_f32 v{d+r}, v{d+r}, v{d+8+r}")
            for r in range(4):
                A(f"v_cvt_pk_bf16_f32 v{P+r}, v{d+2*r}, v{d+2*r+1}")
            A(f"s_add_u32 s{sT2}, s{sT0}, {a}")
            A(f"s_mul_i32 s{sT2}, s{sT2}, 112")
            A(f"s_add_u32 s{sT2}, s{sT2}, s{ft_sgpr}")
            A(f"s_lshl_b32 s{sT2}, s{sT2}, 10")
            if OFF_H:
                A(f"s_add_u32 s{sT2}, s{sT2}, {OFF_H}")
            A(f"buffer_store_dwordx4 {vr(P,4)}, v{vL16}, s[{SRD_WS}:{SRD_WS+3}], s{sT2} offen{STSC}")

    def phi8(d, rs, out4, T):
        t1, t2 = T[0:8], T[8:16]
        for r in range(8):
            A(f"v_fma_f32 v{t1[r]}, v{d+r}, v{rs[r]}, v{vEps}")
        for r in range(8):
            A(f"v_fma_f32 v{t2[r]}, v{t1[r]}, v{vL2e}, v{vNeg}")
        for r in range(8):
            A(f"v_exp_f32_e64 v{t2[r]}, v{t2[r]} clamp")
        for r in range(8):
            A(f"v_max_f32 v{t1[r]}, v{vEps}, v{t1[r]}")
        for r in range(8):
            A(f"v_add_f32 v{t1[r]}, v{t1[r]}, v{t2[r]}")
        return t1

    A("s_nop 7")
    A("s_nop 3" if nt == 3 else "s_nop 7")

    def ft_index(j):
        if typ == "A":
            A(f"s_mul_i32 s{sT3}, s{sFG}, 3")
            A(f"s_add_u32 s{sT3}, s{sT3}, {j}")
        else:
            jj = 0 if grp == 0 else j + 1
            A(f"s_lshl_b32 s{sT3}, s{sH}, 2")
            A(f"s_add_u32 s{sT3}, s{sT3}, {48 + jj}")

    if var == "A0":
        PK, PV, vOne = 48, 136, 152
        T = list(range(64, 88))
        A(f"v_mov_b32 v{vOne}, 0x3f803f80")
        for a in range(2):
            rs = [vR + 16 * a + r for r in range(16)]
            for half in range(2):
                t1 = phi8(acc(0, a) + 8 * half, rs[8 * half:8 * half + 8], None, T)
                for r in range(4):
                    A(f"v_cvt_pk_bf16_f32 v{PK+8*a+4*half+r}, v{t1[2*r]}, v{t1[2*r+1]}")
            d = acc(1, a)
            for r in range(0, 16, 2):
                A(f"v_pk_mul_f32 {vr(d+r,2)}, {vr(d+r,2)}, {vr(rs[r],2)}")
            for r in range(8):
                A(f"v_cvt_pk_bf16_f32 v{PV+8*a+r}, v{d+2*r}, v{d+2*r+1}")
            for r in range(8):
                A(f"v_cndmask_b32_e64 v{PV+8*a+r}, v{PV+8*a+r}, v{vOne}, s[{sMask24}:{sMask24+1}]")
        KV = acc(0, 0)
        A("s_nop 1")
        for a in range(2):
            for t in range(2):
                c = "0" if (a == 0 and t == 0) else vr(KV, 16)
                A(f"v_mfma_f32_32x32x16_bf16 {vr(KV,16)}, {vr(PK+8*a+4*t,4)}, {vr(PV+8*a+4*t,4)}, {c}")
        A(f"s_lshl_b32 s{sT2}, s{sH}, 3")
        A(f"s_add_u32 s{sT2}, s{sT2}, s{sRB}")
        A(f"s_lshl_b32 s{sT2}, s{sT2}, 2")
        A(f"s_add_u32 s{sT2}, s{sT2}, s{sWp}")
        A(f"s_lshl_b32 s{sT2}, s{sT2}, 12")
        A(f"s_add_u32 s{sT2}, s{sT2}, {OFF_KVP}")
        A("s_nop 7")
        A("s_nop 1")
        if opts.get("kvat"):
            A(f"s_lshl_b32 s{sT2}, s{sH}, 12")
            A(f"s_add_u32 s{sT2}, s{sT2}, {OFF_KVP}")
            A("v_lshlrev_b32 v1, 2, v0")
            nat = 16 if opts.get("kvat") == 1 else 4
            if nat == 4:
                A(f"s_lshl_b32 s{sT3}, s{sWp}, 10")
                A(f"s_add_u32 s{sT2}, s{sT2}, s{sT3}")
            for r in range(nat):
                A(f"buffer_atomic_add_f32 v{KV+r}, v1, s[{SRD_WS}:{SRD_WS+3}], s{sT2} offen offset:{r*256} sc1")
        else:
          for q in range(4):
            A(f"buffer_store_dwordx4 {vr(KV+4*q,4)}, v{vL16}, s[{SRD_WS}:{SRD_WS+3}], s{sT2} offen offset:{q*1024}{STSC}")
    else:
        if var == "B0":
            ft_index(1)
            ffn_tile(1, sT3, 112)
            PQ = 120
            T = list(range(48, 64))
            for a in range(2):
                rs = [vR + a] * 8
                for half in range(2):
                    t1 = phi8(acc(0, a) + 8 * half, rs, None, T)
                    if half == 1:
                        for r in range(4, 8):
                            A(f"v_cndmask_b32_e64 v{t1[r]}, v{t1[r]}, 0, s[{sMaskLo32}:{sMaskLo32+1}]")
                    for r in range(4):
                        A(f"v_cvt_pk_bf16_f32 v{PQ+8*a+4*half+r}, v{t1[2*r]}, v{t1[2*r+1]}")
                A(f"s_add_u32 s{sT2}, s{sT0}, {a}")
                A(f"s_lshl_b32 s{sT2}, s{sT2}, 4")
                A(f"s_add_u32 s{sT2}, s{sT2}, s{sH}")
                A(f"s_lshl_b32 s{sT2}, s{sT2}, 11")
                A(f"s_add_u32 s{sT2}, s{sT2}, {OFF_PQ}")
                A(f"buffer_store_dwordx4 {vr(PQ+8*a,4)}, v{vL16}, s[{SRD_WS}:{SRD_WS+3}], s{sT2} offen{STSC}")
                A(f"buffer_store_dwordx4 {vr(PQ+8*a+4,4)}, v{vL16}, s[{SRD_WS}:{SRD_WS+3}], s{sT2} offen offset:1024{STSC}")
        else:
            for j in range(3):
                ft_index(j)
                ffn_tile(j, sT3, 48 + 8 * j)
    STM(6)
    ST.dump(sW, SRD_WS, sT2)
    A("s_endpgm")
    G1, G2 = 96, 100
    Lfb = A.newlabel("K1_fb")
    A.label(Lslow)
    A(f"s_add_u32 s{sCnt}, s{sCnt}, 1")
    A(f"s_cmp_ge_u32 s{sCnt}, {0 if opts.get('forcefb') else NRETRY}")
    A(f"s_cbranch_scc1 {Lfb}")
    A("s_sleep 2")
    for u in gather(1):
        for l in u.split("\n"):
            if not l.startswith("@"):
                A(l)
    A("s_waitcnt vmcnt(0)")
    A(f"s_branch {Lslow}_chk")
    A.label(Lfb)
    if grp == 0:
        fb_rows(A, G1)
    else:
        A(f"s_lshl_b32 s{sT5}, s{sWp}, 6")
        fb_cols(A, typ, G1, sT5)
    A(f"s_lshl_b32 s{sT5}, s{sW}, 6")
    A(f"s_add_u32 s{sT5}, s{sT5}, 256")
    fb_cols(A, typ, G2, sT5)
    A(f"s_branch {Lok}")
```

```python
import sys
from gen_common import *
import gen_k1, gen_k2, gen_f

def main():
    opts = {}
    for a in sys.argv[1:]:
        if "=" in a:
            k, v = a.split("=", 1)
            opts[k] = int(v, 0) if v.lstrip("-").replace("x", "").isalnum() and v[0].isdigit() else v
        else:
            opts[a] = 1
    A = Asm()
    hdr = open("cdna_kernels/" + NAME + ".s.ref").read().split("\n")
    for l in hdr:
        if l.startswith("; Kernarg") or l.startswith(";   offset"):
            A.raw(l)
    A.raw("; " + " ".join(f"{k}={v}" for k, v in opts.items()).replace("xmap=", "_xm=") )
    A.raw(f"; xmap={opts.get('xmap', 0)}")
    only = opts.get("only", 0)
    ks = []
    if opts.get("fused"):
        only = 9
        A.raw(f"; @launch grid=(256,1,1) block=(512,1,1) lds={gen_f.LDS_BYTES}")
        ks.append((K1NAME, gen_f))
    if only in (0, 1):
        A.raw(f"; @launch kernel={K1NAME} grid=(256,1,1) block=(512,1,1) lds={gen_k1.LDS_BYTES}")
        ks.append((K1NAME, gen_k1))
    if only in (0, 2):
        A.raw(f"; @launch kernel={K2NAME} grid=(256,1,1) block=(256,1,1) lds={gen_k2.LDS_BYTES}")
        ks.append((K2NAME, gen_k2))
    A.raw('.amdgcn_target "amdgcn-amd-amdhsa--gfx950"')
    A.raw(".text")
    for name, mod in ks:
        A.raw(f".globl {name}")
        A.raw(".p2align 8")
        A.raw(f".type {name},@function")
        A.raw(f"{name}:")
        mod.emit(A, opts)
    A.raw('.section .rodata,"a"')
    for name, mod in ks:
        A.raw(".p2align 6")
        A.raw(f".amdhsa_kernel {name}")
        A.raw(f"  .amdhsa_next_free_vgpr {mod.NVGPR}")
        A.raw(f"  .amdhsa_next_free_sgpr {mod.NSGPR}")
        A.raw(f"  .amdhsa_accum_offset {mod.ACCOFF}")
        A.raw("  .amdhsa_group_segment_fixed_size 0")
        A.raw("  .amdhsa_kernarg_size 80")
        A.raw("  .amdhsa_user_sgpr_count 2")
        A.raw("  .amdhsa_user_sgpr_kernarg_segment_ptr 1")
        A.raw("  .amdhsa_system_sgpr_workgroup_id_x 1")
        A.raw(".end_amdhsa_kernel")
    print(A.text())

main()
```

```python
from gen_common import *
import struct

STAGE = 53376
LDS_BYTES = 163840
NVGPR = 256
ACCOFF = 256
NSGPR = 102

S1 = STAGE
S2 = 2 * STAGE
TOP = 3 * STAGE
M_OFF = S1
R_OFF = S1 + 1024
CP_OFF = S1 + 2048
OOB = 0x40000000
OFF_KVS = OFF_KVF
OFF_FL = 0xC80000
OFF_ZF = OFF_FL + 8192
DBG_Z = 64

SRD_X, SRD_Q, SRD_G, SRD_U, SRD_WS, SRD_WD = 4, 8, 12, 16, 20, 24
SRD_DBG, SRD_WO, SRD_OUT = 64, 80, 16
sW, sWp, sRB, sH, sCB = 32, 33, 34, 35, 36
sXbase, sHbase, sGbase = 37, 38, 39
sLx, sLh, sLg, sLu = 40, 41, 42, 43
sC, sXc, sHc, sGc = 44, 45, 46, 47
sHb2, sLh2 = 48, 28
sFG = 29
sChk = 59
FGPERM = [7, 1, 0, 2, 3, 5, 4, 6, 15, 8, 9, 11, 10, 12, 13, 14]
sT0, sT1, sT2, sT3, sT4, sT5 = 49, 50, 51, 52, 53, 54
sWin = 55
sMaskP = 56
sHi = 58
sTag = 60
sMaskLo32 = 62
sMask24 = 30
sOk = 68
sNeed = 70
sKT, sK2 = 72, 73
sD0, sD1 = 74, 75
sCSo = 76
sZo = 77
sCnt = 78
sLim = 79
sOk2 = 84
eWB, eKo, eS, eT, eL = 37, 38, 39, 40, 41
sPF = 72

vXA = [[16, 17, 18, 19], [124, 125, 126, 127]]
vWA0 = [[20, 21, 22, 23], [128, 129, 130, 131]]
vWA1 = [[24, 25, 26, 27], [132, 133, 134, 135]]
vX, vH, vG = 28, 29, 30
vL16 = 31
vCS = [32, 33, 34, 35, 36, 37]
vCT = [38, 39, 40, 41]
vZo, vCSo = 42, 43
vZ0 = 44
FB = [48, 68]
XC = 88
WC = 96
ACC = 160

F1_448 = 0x3B124925
EPS5 = 0x3727C5AC
EPS6 = 0x358637BD
LOG2E = 0x3FB8AA3B
CHK = 0x5BD1E995
DELTA = 800
NRETRY = 40
SPINMAX = 200000
NEG_EPS_LOG2E = struct.unpack("<I", struct.pack("<f", -1e-6 * 1.4426950408889634))[0]

OPTS = {}
ST = None


def acc(j, a):
    return ACC + (j * 2 + a) * 16


VARIANTS = {
    "A0": ("A", 0, ["k", "v"]),
    "A1": ("A", 1, ["f", "f", "f"]),
    "B0": ("B", 0, ["q", "f"]),
    "B1": ("B", 1, ["f", "f", "f"]),
}


class Em:
    def __init__(self, A):
        self.A = A
        self.ops = []

    def copy_state(self):
        return list(self.ops)

    def __call__(self, s):
        for l in s.split("\n"):
            l = l.strip()
            if not l:
                continue
            if l.startswith("@vm "):
                self.ops.append(l[4:].strip())
            elif l.startswith("@wait "):
                tag = l[6:].strip()
                idx = max(i for i, t in enumerate(self.ops) if t == tag)
                n = len(self.ops) - 1 - idx
                assert n <= 63
                self.A(f"s_waitcnt vmcnt({n})")
            else:
                self.A(l)


def stage_sel(n):
    s = n % 3
    return (1 if s == 2 else 0), (STAGE if s == 1 else 0)


def wread_list(var, n, t, buf):
    b = FB[buf] + 8
    st, ib = stage_sel(n)
    w0, w1 = vWA0[st][t], vWA1[st][t]
    if var == "A0":
        spec = [(w0, 0, 512), (w1, 0, 512)]
    elif var == "A1":
        spec = [(w0, 32 * j, 384) for j in range(3)]
    elif var == "B0":
        spec = [(w0, 0, 256), (w1, 0, 512)]
    else:
        spec = [(w0, 0, 512), (w1, 64, 512), (w0, 64, 512)]
    out = []
    for j, (reg, imm, d2) in enumerate(spec):
        out.append(f"ds_read_b64_tr_b16 {vr(b+4*j,2)}, v{reg} offset:{ib+imm}")
        out.append(f"ds_read_b64_tr_b16 {vr(b+4*j+2,2)}, v{reg} offset:{ib+imm+d2}")
    return out


def reads(var, n, t, buf):
    b = FB[buf]
    st, ib = stage_sel(n)
    xa = vXA[st][t]
    xs = [f"ds_read_b128 {vr(b,4)}, v{xa} offset:{ib}", f"ds_read_b128 {vr(b+4,4)}, v{xa} offset:{ib+4096}"]
    ws = wread_list(var, n, t, buf)
    return [xs[0], ws[0], ws[1], xs[1]] + ws[2:]


def mfmas_regs(var, xb, wb, zero=False):
    tiles = VARIANTS[var][2]
    out = []
    for j, kind in enumerate(tiles):
        for a in range(2):
            d = acc(j, a)
            xf = vr(xb + 4 * a, 4)
            wf = vr(wb + 4 * j, 4)
            c = "0" if zero else vr(d, 16)
            if kind in ("k", "v"):
                out.append(f"v_mfma_f32_32x32x16_bf16 {vr(d,16)}, {xf}, {wf}, {c}")
            else:
                out.append(f"v_mfma_f32_32x32x16_bf16 {vr(d,16)}, {wf}, {xf}, {c}")
    return out


def mfmas(var, buf, zero=False):
    return mfmas_regs(var, FB[buf], FB[buf] + 8, zero)


def cs_duty(var, buf, j):
    b = FB[buf] + 8
    out = []
    for r in range(4):
        ta = vCT[(r % 2) * 2]
        src = b + 4 * j + r
        out.append(f"v_lshlrev_b32 v{ta}, 16, v{src}")
        out.append(f"v_and_b32 v{ta+1}, s{sHi}, v{src}")
        if r == 0:
            out.append(f"v_add_f32 v{vCS[2*j]}, 0, v{ta}")
            out.append(f"v_add_f32 v{vCS[2*j]+1}, 0, v{ta+1}")
        else:
            out.append(f"v_add_f32 v{vCS[2*j]}, v{vCS[2*j]}, v{ta}")
            out.append(f"v_add_f32 v{vCS[2*j]+1}, v{vCS[2*j]+1}, v{ta+1}")
    return out


def dma_units(typ, stage_off, tag):
    vm = f"@vm {tag}\n"
    u = []
    u.append(f"s_lshl_b32 s{sD0}, s{sC}, 7\ns_add_u32 s{sD0}, s{sD0}, s{sXbase}\ns_add_u32 m0, s{sLx}, {stage_off}\ns_mul_i32 s{sD1}, s{sC}, {64*2688}\n"
             + vm + f"buffer_load_dwordx4 v{vX}, s[{SRD_X}:{SRD_X+3}], s{sD0} offen lds")
    for j in range(1, 4):
        u.append(f"s_add_u32 m0, m0, 8192\ns_add_u32 s{sD0}, s{sD0}, {64*896}\n"
                 + vm + f"buffer_load_dwordx4 v{vX}, s[{SRD_X}:{SRD_X+3}], s{sD0} offen lds")
    head = (f"s_add_u32 m0, s{sLh}, {stage_off}\ns_add_u32 s{sD1}, s{sD1}, s{sHbase}\n")
    headld = vm + f"buffer_load_dwordx4 v{vH}, s[{SRD_Q}:{SRD_Q+3}], s{sD1} offen lds"
    gpre = f"s_mul_i32 s{sD0}, s{sC}, {64*3584}\ns_add_u32 m0, s{sLg}, {stage_off}\ns_add_u32 s{sD0}, s{sD0}, s{sGbase}\n"
    gld = vm + f"buffer_load_dwordx4 v{vG}, s[{SRD_G}:{SRD_G+3}], s{sD0} offen lds"
    upre = f"s_add_u32 m0, s{sLu}, {stage_off}\ns_nop 0\n"
    uld = vm + f"buffer_load_dwordx4 v{vG}, s[{SRD_U}:{SRD_U+3}], s{sD0} offen lds"
    mon = f"s_mov_b64 exec, s[{sMaskP}:{sMaskP+1}]\n"
    moff = "\ns_mov_b64 exec, -1"
    if typ == "A":
        u.append(head + headld)
        u.append(gpre + mon + gld + moff)
        u.append(upre + mon + uld + moff)
    else:
        u.append(head + mon + headld + moff)
        u.append(gpre + gld)
        u.append(upre + uld + "")
    u[-1] += f"\ns_add_u32 s{sC}, s{sC}, 1\ns_cmp_eq_u32 s{sC}, 7\ns_cselect_b32 s{sC}, 0, s{sC}"
    return u


def dma14(typ, n):
    SB = (n % 3) * STAGE
    vm = f"@vm c{n}\n"
    hb = sHbase if typ == "A" else sHb2
    pre = (f"s_lshl_b32 s{sXc}, s{sC}, 7\ns_mul_i32 s{sHc}, s{sC}, {64*2688}\ns_mul_i32 s{sGc}, s{sC}, {64*3584}\n"
           f"s_add_u32 s{sXc}, s{sXc}, s{sXbase}\ns_add_u32 s{sHc}, s{sHc}, s{hb}\ns_add_u32 s{sGc}, s{sGc}, s{sGbase}\n"
           f"s_add_u32 s{sC}, s{sC}, 1\ns_cmp_eq_u32 s{sC}, 7\ns_cselect_b32 s{sC}, 0, s{sC}\n")
    mon = f"s_mov_b64 exec, s[{sMaskP}:{sMaskP+1}]\n"
    moff = "\ns_mov_b64 exec, -1"
    u = []

    def piece(lds_s, lds_imm, base_s, goff, vaddr, srd, masked):
        s = f"s_add_u32 m0, s{lds_s}, {SB + lds_imm}\n"
        if goff:
            s += f"s_add_u32 s{sD0}, s{base_s}, {goff}\n"
            so = sD0
        else:
            s += "s_nop 0\n" if not masked else ""
            so = base_s
        if masked:
            s += mon
        s += vm + f"buffer_load_dwordx4 v{vaddr}, s[{srd}:{srd+3}], s{so} offen lds"
        if masked:
            s += moff
        return s
    for j in range(8):
        u.append(piece(sLx, j * 4096, sXc, j * 32 * 896, vX, SRD_X, False))
    if typ == "A":
        for j in range(2):
            u.append(piece(sLh, j * 4096, sHc, j * 32 * 2688, vH, SRD_Q, False))
        for j in range(2):
            u.append(piece(sLg, j * 3072, sGc, j * 32 * 3584, vG, SRD_G, True))
            u.append(piece(sLu, j * 3072, sGc, j * 32 * 3584, vG, SRD_U, True))
    else:
        u.append(piece(sLh2, 0, sHc, 0, vH, SRD_Q, False))
        for j in range(2):
            u.append(piece(sLg, j * 4096, sGc, j * 32 * 3584, vG, SRD_G, False))
            u.append(piece(sLu, j * 4096, sGc, j * 32 * 3584, vG, SRD_U, False))
    u[0] = pre + u[0]
    return u


def granule_finish(g):
    return [f"v_mov_b32 v{g+2}, s{sTag}",
            f"v_xor_b32 v{g+3}, v{g}, v{g+1}",
            f"v_xor_b32 v{g+3}, s{sChk}, v{g+3}",
            f"v_xor_b32 v{g+3}, s{sTag}, v{g+3}"]


def granule_check(g, t, dst):
    return [f"v_xor_b32 v{t}, v{g}, v{g+1}",
            f"v_xor_b32 v{t}, s{sChk}, v{t}",
            f"v_xor_b32 v{t}, v{g+2}, v{t}",
            f"v_subrev_u32 v{t+1}, s{sWin}, v{g+2}",
            f"v_cmp_eq_u32 vcc, v{t}, v{g+3}",
            f"v_cmp_gt_u32_e64 s[{dst}:{dst+1}], s{sLim}, v{t+1}",
            "s_nop 1",
            f"s_and_b64 s[{dst}:{dst+1}], s[{dst}:{dst+1}], vcc"]


def STM(i, first=False):
    if OPTS.get("chst") or (OPTS.get("pst") and i > 2) or OPTS.get("p2st"):
        return
    ST.mark(i)


def P2M(i):
    if OPTS.get("p2st"):
        ST.mark(i)


def CHM(i):
    if OPTS.get("chst"):
        ST.mark(i)


def emit(A, opts):
    global ST
    OPTS.update(opts)
    stamps = opts.get("stamps", 0)
    A("s_cmp_ge_u32 s2, 256")
    A("s_cbranch_scc1 K1_end")
    A(f"s_memrealtime s[{sTag}:{sTag+1}]")
    A(f"s_load_dwordx2 s[{SRD_X}:{SRD_X+1}], s[0:1], 0")
    A(f"s_load_dwordx2 s[{SRD_Q}:{SRD_Q+1}], s[0:1], 8")
    A(f"s_load_dwordx2 s[{SRD_G}:{SRD_G+1}], s[0:1], 32")
    A(f"s_load_dwordx2 s[{SRD_U}:{SRD_U+1}], s[0:1], 40")
    A(f"s_load_dwordx2 s[{SRD_WS}:{SRD_WS+1}], s[0:1], 72")
    A(f"s_load_dwordx2 s[{SRD_WD}:{SRD_WD+1}], s[0:1], 48")
    A(f"s_load_dwordx2 s[{SRD_WO}:{SRD_WO+1}], s[0:1], 16")
    usedbg = not (opts.get("ztag", 1) and opts.get("p2", 0) == 2)
    if usedbg:
        A(f"s_load_dwordx2 s[{SRD_DBG}:{SRD_DBG+1}], s[0:1], 64")
    if opts.get("prio", 1):
        A("s_setprio 3")
    ST = Stamps(A, 86, 0, stamps)
    ST.zero()
    STM(0)
    A("v_lshrrev_b32 v1, 6, v0")
    A("v_and_b32 v0, 63, v0")
    A(f"v_readfirstlane_b32 s{sW}, v1")
    for srd, nb in ((SRD_X, X_BYTES), (SRD_Q, Q_BYTES), (SRD_G, G_BYTES), (SRD_U, G_BYTES), (SRD_WS, WS_BYTES if not stamps else 0x10000000),
                    (SRD_WD, WD_BYTES), (SRD_WO, WO_BYTES), (SRD_DBG, 256)):
        if srd == SRD_DBG and not usedbg:
            continue
        A(f"s_mov_b32 s{srd+2}, {nb}")
        A(f"s_mov_b32 s{srd+3}, 0x20000")
    A(f"s_and_b32 s{sT0}, s2, 7")
    A(f"s_lshr_b32 s{sT1}, s2, 3")
    A(f"s_and_b32 s{sRB}, s{sT0}, 1")
    A(f"s_lshl_b32 s{sRB}, s{sRB}, 2")
    A(f"s_and_b32 s{sT2}, s{sT1}, 3")
    A(f"s_add_u32 s{sRB}, s{sRB}, s{sT2}")
    A(f"s_lshr_b32 s{sCB}, s{sT0}, 1")
    A(f"s_lshl_b32 s{sCB}, s{sCB}, 3")
    A(f"s_lshr_b32 s{sT2}, s{sT1}, 2")
    A(f"s_add_u32 s{sCB}, s{sCB}, s{sT2}")
    A(f"s_and_b32 s{sH}, s{sCB}, 15")
    A(f"s_and_b32 s{sWp}, s{sW}, 3")
    A(f"s_lshl_b32 s{sT0}, s{sRB}, 8")
    A(f"s_lshl_b32 s{sT1}, s{sW}, 3")
    A(f"s_add_u32 s{sT0}, s{sT0}, s{sT1}")
    A(f"s_mul_i32 s{sXbase}, s{sT0}, 896")
    A(f"s_lshl_b32 s{sLx}, s{sW}, 10")
    A(f"v_lshrrev_b32 v1, 3, v0")
    A(f"v_lshrrev_b32 v2, 4, v0")
    A(f"s_and_b32 s{sT1}, s{sW}, 1")
    A(f"s_lshl_b32 s{sT1}, s{sT1}, 2")
    A(f"v_add_u32 v3, s{sT1}, v2")
    A(f"v_and_b32 v4, 7, v0")
    A(f"v_xor_b32 v4, v4, v3")
    A(f"v_lshlrev_b32 v4, 4, v4")
    A(f"v_mul_u32_u24 v{vX}, 896, v1")
    A(f"v_add_u32 v{vX}, v{vX}, v4")
    A(f"v_lshlrev_b32 v{vL16}, 4, v0")
    A(f"v_mov_b32 v5, 0x{OOB:x}")
    A(f"v_cmp_gt_u32 vcc, 56, v0")
    A(f"v_cndmask_b32 v5, v5, v{vL16}, vcc")
    A(f"s_lshl_b32 s{sT4}, s{sRB}, 8")
    A(f"s_lshl_b32 s{sT5}, s{sCB}, 3")
    A(f"s_add_u32 s{sT4}, s{sT4}, s{sT5}")
    A(f"s_add_u32 s{sK2}, s{sT4}, s{sW}")
    A(f"s_mul_i32 s{sKT}, s{sK2}, 896")
    A(f"s_cmp_eq_u32 s{sRB}, 7")
    A(f"s_cselect_b32 s{sC}, 0, s{sRB}")
    if opts.get("rot", 1) == 0:
        A(f"s_mov_b32 s{sC}, 0")
    elif opts.get("rot", 1) == 2:
        A(f"s_and_b32 s{sC}, s{sRB}, 6")
    elif opts.get("rot", 1) == 4:
        A(f"s_and_b32 s{sC}, s{sRB}, 4")
    A(f"s_cmp_ge_u32 s{sCB}, 16")
    A("s_cbranch_scc1 K1_typeB")
    for typ in ("A", "B"):
        A.label(f"K1_type{typ}")
        if typ == "A":
            A("v_lshrrev_b32 v1, 3, v0")
            A("v_lshrrev_b32 v2, 4, v0")
            A("v_and_b32 v2, 1, v2")
            A("v_lshlrev_b32 v2, 2, v2")
            A("v_and_b32 v3, 7, v0")
            A("v_xor_b32 v3, v3, v2")
            A("v_and_b32 v4, 3, v3")
            A("v_lshrrev_b32 v3, 2, v3")
            A("v_lshlrev_b32 v6, 4, v4")
            A("v_cmp_eq_u32 vcc, 3, v4")
            A("v_mul_u32_u24 v3, 896, v3")
            A("v_add_u32 v3, 896, v3")
            A("v_mov_b32 v7, 40")
            A("v_cndmask_b32 v6, v6, v7, vcc")
            A(f"v_mul_u32_u24 v{vH}, 2688, v1")
            A(f"v_add3_u32 v{vH}, v{vH}, v3, v6")
            A("v_mul_u32_u24 v1, 43, v0")
            A("v_lshrrev_b32 v1, 8, v1")
            A("v_mul_u32_u24 v2, 6, v1")
            A("v_sub_u32 v2, v0, v2")
            A("v_lshlrev_b32 v2, 4, v2")
            A(f"v_mul_u32_u24 v{vG}, 3584, v1")
            A(f"v_add_u32 v{vG}, v{vG}, v2")
            A(f"s_mov_b32 s{sMaskP}, -1")
            A(f"s_mov_b32 s{sMaskP+1}, 0xffff")
            perm = FGPERM if opts.get("fgp", 1) else list(range(16))
            pv = sum(f << (4 * h) for h, f in enumerate(perm))
            A(f"s_mov_b32 s{sT3}, 0x{pv & 0xffffffff:x}")
            A(f"s_mov_b32 s{sT4}, 0x{pv >> 32:x}")
            A(f"s_lshl_b32 s{sT1}, s{sH}, 2")
            A(f"s_lshr_b64 s[{sT3}:{sT4}], s[{sT3}:{sT4}], s{sT1}")
            A(f"s_and_b32 s{sFG}, s{sT3}, 15")
            A(f"s_mul_i32 s{sT1}, s{sFG}, 96")
            A(f"s_lshl_b32 s{sLh}, s{sW}, 10")
            A(f"s_add_u32 s{sLh}, s{sLh}, 32768")
            A(f"s_mul_i32 s{sLg}, s{sW}, 768")
            A(f"s_add_u32 s{sLu}, s{sLg}, 47232")
            A(f"s_add_u32 s{sLg}, s{sLg}, 40960")
        else:
            A("v_lshrrev_b32 v1, 2, v0")
            A("v_and_b32 v4, 3, v0")
            A("v_lshlrev_b32 v6, 4, v4")
            A("v_cmp_eq_u32 vcc, 3, v4")
            A("v_mov_b32 v7, 40")
            A(f"v_mul_u32_u24 v{vH}, 2688, v1")
            A("v_cndmask_b32 v6, v6, v7, vcc")
            A(f"v_add_u32 v{vH}, v{vH}, v6")
            A("v_lshrrev_b32 v1, 3, v0")
            A("v_lshrrev_b32 v2, 4, v0")
            A("v_and_b32 v2, 1, v2")
            A("v_lshlrev_b32 v2, 1, v2")
            A("v_and_b32 v3, 7, v0")
            A("v_xor_b32 v3, v3, v2")
            A("v_lshlrev_b32 v3, 4, v3")
            A(f"v_mul_u32_u24 v{vG}, 3584, v1")
            A(f"v_add_u32 v{vG}, v{vG}, v3")
            A(f"s_mov_b32 s{sMaskP}, -1")
            A(f"s_mov_b32 s{sMaskP+1}, 0")
            A(f"s_lshl_b32 s{sT1}, s{sH}, 7")
            A(f"s_add_u32 s{sT1}, s{sT1}, 1536")
            A(f"s_lshl_b32 s{sLh}, s{sW}, 9")
            A(f"s_add_u32 s{sLh}, s{sLh}, 32768")
            A(f"s_lshl_b32 s{sLg}, s{sW}, 10")
            A(f"s_add_u32 s{sLu}, s{sLg}, 45120")
            A(f"s_add_u32 s{sLg}, s{sLg}, 36864")
        A(f"s_mul_i32 s{sGbase}, s{sW}, {8*3584}")
        A(f"s_add_u32 s{sGbase}, s{sGbase}, s{sT1}")
        A(f"s_mul_i32 s{sHbase}, s{sW}, {8*2688}")
        A(f"s_mul_i32 s{sT1}, s{sH}, 56")
        A(f"s_add_u32 s{sHbase}, s{sHbase}, s{sT1}")
        if typ == "B":
            A(f"s_mul_i32 s{sHb2}, s{sWp}, {16*2688}")
            A(f"s_add_u32 s{sHb2}, s{sHb2}, s{sT1}")
            A(f"s_lshl_b32 s{sLh2}, s{sWp}, 10")
            A(f"s_add_u32 s{sLh2}, s{sLh2}, 32768")
        A("s_waitcnt lgkmcnt(0)")
        E0 = Em(A)
        RW = 88
        E0("@vm row")
        E0(f"buffer_load_dwordx4 {vr(RW,4)}, v5, s[{SRD_X}:{SRD_X+3}], s{sKT} offen")
        for u in dma_units(typ, 0, "c0"):
            E0(u)
        if opts.get("pst") == 1:
            for i, n in enumerate((7, 3, 2, 0)):
                A(f"s_waitcnt vmcnt({n})")
                ST.mark(3 + i)
        A(f"s_cmp_ge_u32 s{sW}, 4")
        A(f"s_cbranch_scc1 K1_{typ}1")
        for g in (0, 1):
            var = f"{typ}{g}"
            A.label(f"K1_{var}")
            E = Em(A)
            E.ops = E0.copy_state()
            variant(E, A, var, opts)
    {0: phase2, 1: phase2b, 2: phase2c}[opts.get("p2", 0)](A, opts)
    A.label("K1_end")
    A("s_endpgm")


def common_setup(var):
    opts = OPTS
    o = []
    o.append(f"s_mov_b32 s{sHi}, 0xffff0000")
    o.append(f"s_mov_b32 s{sMaskLo32}, -1")
    o.append(f"s_mov_b32 s{sMaskLo32+1}, 0")
    o.append(f"s_mov_b32 s{sMask24}, 0x01000000")
    o.append(f"s_mov_b32 s{sMask24+1}, 0x01000000")
    o.append(f"s_sub_u32 s{sWin}, s{sTag}, {DELTA}")
    o.append(f"s_xor_b32 s{sChk}, s{sTag+1}, 0x{CHK:x}")
    o.append(f"s_mov_b32 s{sLim}, {0 if opts.get('forcefb') else 1 << 24}")
    if var[1] == "1":
        o.append(f"s_mul_i32 s{sT0}, s{sCB}, 8960")
        o.append(f"s_mul_i32 s{sT1}, s{sRB}, 1280")
        o.append(f"s_add_u32 s{sT0}, s{sT0}, s{sT1}")
        o.append(f"s_lshl_b32 s{sT1}, s{sWp}, 10")
        o.append(f"s_add_u32 s{sT0}, s{sT0}, s{sT1}")
        o.append(f"s_add_u32 s{sCSo}, s{sT0}, {OFF_CS}")
        o.append(f"v_mov_b32 v1, 0x{OOB:x}\n"
                 f"s_cmp_eq_u32 s{sWp}, 1\n"
                 f"s_cselect_b32 s{sOk}, 0xffff, 0\n"
                 f"s_mov_b32 s{sOk+1}, 0\n"
                 f"s_cmp_eq_u32 s{sWp}, 0\n"
                 f"s_cselect_b32 s{sOk}, -1, s{sOk}\n"
                 f"s_cselect_b32 s{sOk+1}, -1, 0\n"
                 f"s_cmp_lt_u32 s{sRB}, 7\n"
                 f"s_cselect_b32 s{sOk}, s{sOk}, 0\n"
                 f"s_cselect_b32 s{sOk+1}, s{sOk+1}, 0\n"
                 f"s_cselect_b32 s{sCSo}, s{sCSo}, 0\n"
                 f"v_cndmask_b32_e64 v{vCSo}, v1, v{vL16}, s[{sOk}:{sOk+1}]")
    ztag = opts.get("ztag", 1)
    if var[0] == "A" and not ztag:
        o.append(f"s_lshl_b32 s{sZo}, s{sH}, 2\ns_add_u32 s{sZo}, s{sZo}, {DBG_Z}\nv_mov_b32 v{vZ0}, 0")
    if var == "A0" and ztag:
        o.append(f"s_lshl_b32 s{sZo}, s{sH}, 6\ns_add_u32 s{sZo}, s{sZo}, {OFF_ZF}\n"
                 f"v_mov_b32 v1, 0x{OOB:x}\nv_cmp_gt_u32 vcc, 4, v0\nv_cndmask_b32 v{vZo}, v1, v{vL16}, vcc")
    if var == "A1" and ztag:
        o.append(f"s_lshl_b32 s{sZo}, s{sH}, 6\ns_lshl_b32 s{sT0}, s{sWp}, 4\ns_add_u32 s{sZo}, s{sZo}, s{sT0}\n"
                 f"s_add_u32 s{sZo}, s{sZo}, {OFF_ZF}\n"
                 f"v_mov_b32 v{vZ0}, 0\n"
                 f"v_mov_b32 v{vZ0+1}, 0\n"
                 f"v_mov_b32 v1, 0x{OOB:x}\n"
                 f"v_lshlrev_b32 v2, 3, v0\n"
                 f"s_cmp_eq_u32 s{sRB}, 0\n"
                 f"s_cselect_b64 vcc, -1, 0\n"
                 f"s_cselect_b64 s[{sOk}:{sOk+1}], 1, 0\n"
                 f"v_cndmask_b32 v{vZo}, v1, v2, vcc\n"
                 f"v_cndmask_b32_e64 v{vZ0+2}, v1, v{vZ0}, s[{sOk}:{sOk+1}]")
    if var == "A1" and not ztag:
        o.append(f"v_mov_b32 v{vZ0+1}, 0\n"
                 f"v_mov_b32 v{vZ0+3}, 1\n"
                 f"v_mov_b32 v1, 0x{OOB:x}\n"
                 f"v_lshlrev_b32 v2, 3, v0\n"
                 f"s_cmp_eq_u32 s{sRB}, 0\n"
                 f"s_cselect_b64 vcc, -1, 0\n"
                 f"s_cselect_b64 s[{sOk}:{sOk+1}], 1, 0\n"
                 f"v_cndmask_b32 v{vZo}, v1, v2, vcc\n"
                 f"v_cndmask_b32_e64 v{vZ0+2}, v1, v{vZ0}, s[{sOk}:{sOk+1}]")
    o.append("v_and_b32 v1, 31, v0\n"
             "v_lshrrev_b32 v2, 5, v0\n"
             "v_lshrrev_b32 v3, 1, v1\n"
             "v_and_b32 v3, 7, v3\n"
             f"s_lshl_b32 s{sT0}, s{sWp}, 13\n"
             "v_lshlrev_b32 v4, 7, v1\n"
             f"v_add_u32 v4, s{sT0}, v4")
    for t in range(4):
        o.append(f"s_add_u32 s{sT1}, s{sWp}, {t}\n"
                 f"s_and_b32 s{sT1}, s{sT1}, 3\n"
                 f"s_lshl_b32 s{sT1}, s{sT1}, 1\n"
                 f"v_add_u32 v5, s{sT1}, v2\n"
                 f"v_xor_b32 v5, v5, v3\n"
                 f"v_lshlrev_b32 v5, 4, v5\n"
                 f"v_add_u32 v{vXA[0][t]}, v4, v5\n"
                 f"v_add_u32 v{vXA[1][t]}, {S2}, v{vXA[0][t]}")
    return o


def w_addr_setup(var):
    o = []
    s = ("v_lshrrev_b32 v1, 2, v0\n"
         "v_and_b32 v1, 3, v1\n"
         "v_and_b32 v2, 3, v0\n"
         "v_lshrrev_b32 v3, 5, v0\n"
         "v_lshrrev_b32 v4, 4, v0\n"
         "v_and_b32 v4, 1, v4\n"
         "v_lshlrev_b32 v5, 3, v3\n"
         "v_add_u32 v5, v5, v1\n"
         "v_lshrrev_b32 v6, 1, v1\n"
         "v_lshlrev_b32 v7, 3, v2\n")
    if var == "A0":
        s += ("v_lshrrev_b32 v8, 1, v2\n"
              "v_lshl_add_u32 v8, v4, 1, v8\n"
              "v_lshlrev_b32 v9, 2, v6\n"
              "v_xor_b32 v8, v8, v9\n"
              "v_lshlrev_b32 v8, 4, v8\n"
              "v_and_b32 v9, 1, v2\n"
              "v_lshl_add_u32 v8, v9, 3, v8\n"
              "v_lshl_add_u32 v8, v5, 7, v8\n"
              "v_add_u32 v8, 32768, v8\n"
              "v_xor_b32 v9, 64, v8\n")
        p0 = p1 = 128
    elif var == "A1":
        s += ("v_mul_u32_u24 v8, 96, v5\n"
              "v_add_u32 v8, v8, v7\n"
              f"v_mul_u32_u24 v9, {47232-40960}, v4\n"
              "v_add3_u32 v8, v8, v9, 0\n"
              "v_add_u32 v8, 40960, v8\n")
        p0 = p1 = 96
    else:
        s += ("v_lshl_add_u32 v10, v5, 7, v7\n"
              f"v_mul_u32_u24 v9, {45120-36864}, v4\n"
              "v_add_u32 v10, v10, v9\n"
              "v_add_u32 v10, 36864, v10\n"
              "v_lshlrev_b32 v11, 5, v6\n")
        if var == "B0":
            s += ("v_lshl_add_u32 v8, v5, 6, v7\n"
                  "v_lshl_add_u32 v8, v4, 5, v8\n"
                  "v_add_u32 v8, 32768, v8\n"
                  "v_add_u32 v9, v10, v11\n")
            p0, p1 = 64, 128
        else:
            s += ("v_xor_b32 v12, 32, v11\n"
                  "v_add_u32 v8, v10, v12\n"
                  "v_add_u32 v9, v10, v11\n")
            p0 = p1 = 128
    o.append(s)
    for t in range(4):
        s = (f"s_add_u32 s{sT1}, s{sWp}, {t}\n"
             f"s_and_b32 s{sT1}, s{sT1}, 3\n"
             f"s_mul_i32 s{sT2}, s{sT1}, {16*p0}\n"
             f"v_add_u32 v{vWA0[0][t]}, s{sT2}, v8\n"
             f"v_add_u32 v{vWA0[1][t]}, {S2}, v{vWA0[0][t]}\n")
        if var != "A1":
            s += (f"s_mul_i32 s{sT2}, s{sT1}, {16*p1}\n"
                  f"v_add_u32 v{vWA1[0][t]}, s{sT2}, v9\n"
                  f"v_add_u32 v{vWA1[1][t]}, {S2}, v{vWA1[0][t]}\n")
        o.append(s)
    return o


def row_stats_publish(E):
    A = E
    RW = 88
    f = list(range(92, 100))
    s, q = 100, 101
    A("@wait row")
    for i in range(4):
        A(f"v_lshlrev_b32 v{f[2*i]}, 16, v{RW+i}")
        A(f"v_and_b32 v{f[2*i+1]}, s{sHi}, v{RW+i}")
    A(f"v_add_f32 v{s}, v{f[0]}, v{f[1]}")
    A(f"v_mul_f32 v{q}, v{f[0]}, v{f[0]}")
    A(f"v_fmac_f32 v{q}, v{f[1]}, v{f[1]}")
    for i in range(2, 8):
        A(f"v_add_f32 v{s}, v{s}, v{f[i]}")
        A(f"v_fmac_f32 v{q}, v{f[i]}, v{f[i]}")
    A("s_nop 0")
    for sh in (1, 2, 4, 8):
        for v in (s, q):
            A(f"v_add_f32_dpp v{v}, v{v}, v{v} row_shr:{sh} row_mask:0xf bank_mask:0xf bound_ctrl:0")
        A("s_nop 0")
    for v in (s, q):
        A(f"v_add_f32_dpp v{v}, v{v}, v{v} row_bcast:15 row_mask:0xa bank_mask:0xf")
    A("s_nop 0")
    for v in (s, q):
        A(f"v_add_f32_dpp v{v}, v{v}, v{v} row_bcast:31 row_mask:0xc bank_mask:0xf")
    G = 104
    A(f"v_mul_f32 v{G}, 0x{F1_448:x}, v{s}")
    A(f"v_mul_f32 v{q}, 0x{F1_448:x}, v{q}")
    A(f"v_fma_f32 v{q}, -v{G}, v{G}, v{q}")
    A(f"v_max_f32 v{q}, 0, v{q}")
    A(f"v_add_f32 v{q}, 0x{EPS5:x}, v{q}")
    A(f"v_rsq_f32 v{G+1}, v{q}")
    A(f"s_lshl_b32 s{sT0}, s{sK2}, 4")
    A(f"s_add_u32 s{sT0}, s{sT0}, {OFF_ST}")
    A("v_mov_b32 v1, 0")
    for l in granule_finish(G):
        A(l)
    A(f"s_mov_b32 s{sKT}, s{sT0}")
    return (f"s_mov_b32 s{sOk}, 0\ns_mov_b32 s{sOk+1}, 0x80000000\nv_mov_b32 v1, 0\n"
            f"s_mov_b64 exec, s[{sOk}:{sOk+1}]\n@vm st\n"
            f"buffer_store_dwordx4 {vr(G,4)}, v1, s[{SRD_WS}:{SRD_WS+3}], s{sKT} offen sc1\n"
            "s_mov_b64 exec, -1")


def fb_rows(A, g):
    L = A.newlabel("K1_fbr")
    t = list(range(108, 120))
    A(f"s_lshl_b32 s{sT0}, s{sRB}, 8")
    A(f"s_lshl_b32 s{sT1}, s{sW}, 6")
    A(f"s_add_u32 s{sT0}, s{sT0}, s{sT1}")
    A(f"v_add_u32 v{t[0]}, s{sT0}, v0")
    A(f"v_mul_u32_u24 v{t[0]}, 896, v{t[0]}")
    A(f"v_mov_b32 v{g}, 0")
    A(f"v_mov_b32 v{g+1}, 0")
    A(f"s_mov_b32 s{sT2}, 0")
    A.label(L)
    A(f"buffer_load_dwordx4 {vr(t[4],4)}, v{t[0]}, s[{SRD_X}:{SRD_X+3}], s{sT2} offen")
    A("s_waitcnt vmcnt(0)")
    for i in range(4):
        A(f"v_lshlrev_b32 v{t[1]}, 16, v{t[4]+i}")
        A(f"v_and_b32 v{t[2]}, s{sHi}, v{t[4]+i}")
        A(f"v_add_f32 v{g}, v{g}, v{t[1]}")
        A(f"v_fmac_f32 v{g+1}, v{t[1]}, v{t[1]}")
        A(f"v_add_f32 v{g}, v{g}, v{t[2]}")
        A(f"v_fmac_f32 v{g+1}, v{t[2]}, v{t[2]}")
    A(f"s_add_u32 s{sT2}, s{sT2}, 16")
    A(f"s_cmp_lt_u32 s{sT2}, 896")
    A(f"s_cbranch_scc1 {L}")
    A(f"v_mul_f32 v{g}, 0x{F1_448:x}, v{g}")
    A(f"v_mul_f32 v{g+1}, 0x{F1_448:x}, v{g+1}")
    A(f"v_fma_f32 v{g+1}, -v{g}, v{g}, v{g+1}")
    A(f"v_max_f32 v{g+1}, 0, v{g+1}")
    A(f"v_add_f32 v{g+1}, 0x{EPS5:x}, v{g+1}")
    A(f"v_rsq_f32 v{g+1}, v{g+1}")
    A("s_nop 0")


def fb_cols(A, typ, g, gbase_sgpr):
    L = A.newlabel("K1_fbc")
    t = list(range(108, 124))
    gi, c, rem, j, p, oq, og, ou, e, d0, d1, d2 = t[:12]
    A(f"v_add_u32 v{gi}, s{gbase_sgpr}, v0")
    A(f"v_mul_u32_u24 v{c}, 205, v{gi}")
    A(f"v_lshrrev_b32 v{c}, 14, v{c}")
    A(f"v_mul_u32_u24 v{rem}, 80, v{c}")
    A(f"v_sub_u32 v{rem}, v{gi}, v{rem}")
    A(f"v_lshrrev_b32 v{j}, 4, v{rem}")
    A(f"v_and_b32 v{p}, 15, v{rem}")
    A(f"v_lshlrev_b32 v{e}, 1, v{p}")
    A(f"v_subrev_u32 v{d0}, 4, v{e}")
    A(f"v_cmp_gt_u32 vcc, 24, v{e}")
    A(f"v_cndmask_b32 v{e}, v{d0}, v{e}, vcc")
    A(f"s_mul_i32 s{sT0}, s{sH}, 28")
    A(f"v_add_u32 v{e}, s{sT0}, v{e}")
    nh = 2 if typ == "A" else 1
    if typ == "A":
        A(f"v_mul_u32_u24 v{d0}, 448, v{j}")
        A(f"v_add_u32 v{e}, v{e}, v{d0}")
        A(f"v_add_u32 v{e}, 448, v{e}")
    A(f"v_lshlrev_b32 v{oq}, 1, v{e}")
    A(f"v_mul_u32_u24 v{d0}, {64*2688//64}, v{c}")
    A(f"v_lshlrev_b32 v{d0}, 6, v{d0}")
    A(f"v_add_u32 v{oq}, v{oq}, v{d0}")
    A(f"v_mov_b32 v{d1}, {OOB}")
    A(f"v_cmp_gt_u32 vcc, {nh}, v{j}")
    A(f"v_cndmask_b32 v{oq}, v{d1}, v{oq}, vcc")
    A(f"v_subrev_u32 v{e}, {nh}, v{j}")
    A(f"v_lshlrev_b32 v{e}, 4, v{e}")
    A(f"v_and_b32 v{d0}, 7, v{p}")
    A(f"v_lshl_add_u32 v{e}, v{d0}, 1, v{e}")
    if typ == "A":
        A(f"s_mul_i32 s{sT0}, s{sFG}, 48")
    else:
        A(f"s_lshl_b32 s{sT0}, s{sH}, 6")
        A(f"s_add_u32 s{sT0}, s{sT0}, 768")
    A(f"v_add_u32 v{e}, s{sT0}, v{e}")
    A(f"v_lshlrev_b32 v{og}, 1, v{e}")
    A(f"v_mul_u32_u24 v{d0}, 3584, v{c}")
    A(f"v_lshlrev_b32 v{d0}, 6, v{d0}")
    A(f"v_add_u32 v{og}, v{og}, v{d0}")
    A(f"v_cndmask_b32 v{og}, v{og}, v{d1}, vcc")
    A(f"v_cmp_gt_u32 vcc, 8, v{p}")
    A(f"v_cndmask_b32 v{ou}, v{og}, v{d1}, vcc")
    A(f"v_cndmask_b32 v{og}, v{d1}, v{og}, vcc")
    A(f"v_mov_b32 v{g}, 0")
    A(f"v_mov_b32 v{g+1}, 0")
    A(f"s_mov_b32 s{sT2}, 0")
    A(f"s_mov_b32 s{sT3}, 0")
    A(f"s_mov_b32 s{sT4}, 0")
    A.label(L)
    A(f"buffer_load_dword v{d0}, v{oq}, s[{SRD_Q}:{SRD_Q+3}], s{sT2} offen")
    A(f"buffer_load_dword v{d1}, v{og}, s[{SRD_G}:{SRD_G+3}], s{sT3} offen")
    A(f"buffer_load_dword v{d2}, v{ou}, s[{SRD_U}:{SRD_U+3}], s{sT3} offen")
    A("s_waitcnt vmcnt(0)")
    A(f"v_or_b32 v{d0}, v{d0}, v{d1}")
    A(f"v_or_b32 v{d0}, v{d0}, v{d2}")
    A(f"v_lshlrev_b32 v{d1}, 16, v{d0}")
    A(f"v_and_b32 v{d2}, s{sHi}, v{d0}")
    A(f"v_add_f32 v{g}, v{g}, v{d1}")
    A(f"v_add_f32 v{g+1}, v{g+1}, v{d2}")
    A(f"s_add_u32 s{sT2}, s{sT2}, 2688")
    A(f"s_add_u32 s{sT3}, s{sT3}, 3584")
    A(f"s_add_u32 s{sT4}, s{sT4}, 1")
    A(f"s_cmp_lt_u32 s{sT4}, 64")
    A(f"s_cbranch_scc1 {L}")


def spread(units, nslots, first=0):
    out = [[] for _ in range(nslots)]
    n = nslots - first
    for i, u in enumerate(units):
        out[first + i * n // len(units)].append(u)
    return out


def variant(E, A, var, opts):
    typ, grp, tiles = VARIANTS[var]
    nt = len(tiles)
    nm = 2 * nt
    prio = opts.get("prio", 1)
    if prio:
        A(f"s_setprio {2 if grp == 0 else 1}")
    setup = common_setup(var) + w_addr_setup(var)
    c1 = dma_units(typ, STAGE, "c1")
    c1pos = opts.get("c1pos", 1)
    if c1pos == 0:
        k = 0
        for i, u in enumerate(c1):
            E(u)
            hi = (i + 1) * len(setup) // len(c1)
            for s_ in setup[k:hi]:
                E(s_)
            k = hi
    else:
        for s_ in setup:
            E(s_)
    if opts.get("pst") == 2:
        ST.mark(3)
        E("@wait row")
        ST.mark(4)
    st_store = row_stats_publish(E)
    if not opts.get("stlate", 1):
        E(st_store)
    if c1pos == 1 or (c1pos == 3 and grp == 0):
        for u in c1:
            E(u)
    if opts.get("stlate", 1):
        E(st_store)
    if var == "A1":
        E(f"s_lshl_b32 s{sT0}, s{sH}, 12\ns_lshl_b32 s{sT1}, s{sWp}, 10\ns_add_u32 s{sT0}, s{sT0}, s{sT1}\n"
          f"s_add_u32 s{sT0}, s{sT0}, {OFF_KVS}\n"
          f"@vm zr\nbuffer_atomic_swap_x2 {vr(vZ0,2)}, v{vZo}, s[{SRD_WS}:{SRD_WS+3}], s{sT0} offen sc1\n"
          f"@vm zr\nbuffer_atomic_swap_x2 {vr(vZ0,2)}, v{vZo}, s[{SRD_WS}:{SRD_WS+3}], s{sT0} offen offset:512 sc1")
    if opts.get("pst") == 2:
        ST.mark(5)
    E("@wait c0")
    if opts.get("pst") == 2:
        ST.mark(6)
    A("s_barrier")
    STM(1)
    CHM(0)
    c1_late = c1pos == 2 or (c1pos == 3 and grp == 1)
    c2split = opts.get("c2split", 14)

    rdper = opts.get("rdper0" if grp == 0 else "rdper1", 2)

    def step(mf, rd, slots, bar=None, rper=None):
        rper = rper or rdper
        k = 0
        for i, m in enumerate(mf):
            E(m)
            r = rd[k:k + rper] if i < len(mf) - 1 else rd[k:]
            k += len(r)
            for s_ in r:
                E(s_)
            for u in slots[i]:
                E(u)
            if bar is not None and bar[0] == i:
                bar[1]()

    def empty(n):
        return [[] for _ in range(n)]

    def merge(*ss):
        out = empty(len(ss[0]))
        for s_ in ss:
            for i, l in enumerate(s_):
                out[i].extend(l)
        return out

    if var == "A0":
        vR, vCP, vM = 104, 136, 150
    else:
        vR, vCP, vM = 108, 136, 157
    jb = 0 if grp == 0 else 2
    G1, G2 = 96, 100

    def gather(sc=None):
        o = []
        SC = " sc1" if (opts.get("gsc", 1) if sc is None else sc) else ""
        if grp == 0:
            o.append(f"s_lshl_b32 s{sT0}, s{sRB}, 12\n"
                     f"s_lshl_b32 s{sT1}, s{sW}, 10\n"
                     f"s_add_u32 s{sT0}, s{sT0}, s{sT1}\n"
                     f"s_add_u32 s{sT0}, s{sT0}, {OFF_ST}\n"
                     f"@vm ga\n"
                     f"buffer_load_dwordx4 {vr(G1,4)}, v{vL16}, s[{SRD_WS}:{SRD_WS+3}], s{sT0} offen{SC}")
        else:
            o.append(f"s_mul_i32 s{sT0}, s{sCB}, 8960\n"
                     f"s_lshl_b32 s{sT1}, s{sWp}, 10\n"
                     f"s_add_u32 s{sT0}, s{sT0}, s{sT1}\n"
                     f"s_add_u32 s{sT0}, s{sT0}, {OFF_CS}\n"
                     f"@vm ga\n"
                     f"buffer_load_dwordx4 {vr(G1,4)}, v{vL16}, s[{SRD_WS}:{SRD_WS+3}], s{sT0} offen{SC}")
        o.append(f"s_mul_i32 s{sT0}, s{sCB}, 8960\n"
                 f"s_lshl_b32 s{sT1}, s{sW}, 10\n"
                 f"s_add_u32 s{sT0}, s{sT0}, s{sT1}\n"
                 f"s_add_u32 s{sT0}, s{sT0}, {OFF_CS + 4096}\n"
                 f"@vm ga\n"
                 f"buffer_load_dwordx4 {vr(G2,4)}, v{vL16}, s[{SRD_WS}:{SRD_WS+3}], s{sT0} offen{SC}")
        return o

    def check_tail():
        return (f"s_orn2_b64 s[{sOk2}:{sOk2+1}], s[{sOk2}:{sOk2+1}], s[{sNeed}:{sNeed+1}]\n"
                f"s_and_b64 s[{sOk}:{sOk+1}], s[{sOk}:{sOk+1}], s[{sOk2}:{sOk2+1}]\n"
                f"s_cmp_eq_u64 s[{sOk}:{sOk+1}], -1\n")

    Lslow = f"K1_{var}_slow"
    Lok = f"K1_{var}_ok"

    for p in range(-1, 6):
        n = p + 1
        nsl = 4 * nm
        fill = empty(nsl)
        add = lambda units, first, last: [fill[first + i * (last - first) // len(units)].append(u) for i, u in enumerate(units)]
        first_slot = nm if p == -1 else 0
        if p == -1 and c1_late:
            for i, u in enumerate(c1):
                fill[first_slot + i].append(u)
        if grp == 0 and p + 3 <= 6 and not (opts.get("nodma") and p >= 0):
            d = dma14(typ, p + 3)
            if p == -1:
                carry = d[c2split:]
                d = d[:c2split]
                if c1_late:
                    add(d, first_slot + 7, nsl)
                else:
                    add(d, first_slot, nsl)
            else:
                if p == 0:
                    d = carry + d
                if len(d) <= nsl:
                    for i, u in enumerate(d):
                        fill[i].append(u)
                else:
                    add(d, 0, nsl)
        if p == -1:
            for t in range(nt):
                add(cs_duty(var, t & 1, t), nm * (1 + t), nm * (1 + t) + (nm if t < 2 else nm // 2))
            red = []
            red.append("\n".join([f"v_add_f32 v{vCS[2*j]}, v{vCS[2*j]}, v{vCS[2*j]+1}" for j in range(nt)] +
                                 [f"v_mov_b32 v{vCS[2*j]+1}, v{vCS[2*j]}" for j in range(nt)] + ["s_nop 1"] +
                                 [f"v_permlane32_swap_b32 v{vCS[2*j]}, v{vCS[2*j]+1}" for j in range(nt)]))
            red.append("v_and_b32 v1, 31, v0\nv_lshlrev_b32 v1, 2, v1\n"
                       f"s_mul_i32 s{sT0}, s{sWp}, 640\ns_add_u32 s{sT0}, s{sT0}, {TOP + jb*128}\nv_add_u32 v1, s{sT0}, v1\n" +
                       "\n".join([f"v_add_f32 v{vCS[2*j]}, v{vCS[2*j]}, v{vCS[2*j]+1}" for j in range(nt)] +
                                 [f"ds_write_b32 v1, v{vCS[2*j]} offset:{j*128}" for j in range(nt)]))
            fill[4 * nm - 3].append(red[0])
            fill[4 * nm - 2].append(red[1])
        if p == 0 and grp == 1:
            P = 104
            G = 112
            fill[nm - 1].append("v_lshlrev_b32 v1, 3, v0\n"
                                f"s_and_b32 s{sT0}, s{sWp}, 1\ns_lshl_b32 s{sT0}, s{sT0}, 9\ns_add_u32 s{sT0}, s{sT0}, {TOP}\nv_add_u32 v1, s{sT0}, v1\n" +
                                "\n".join(f"ds_read_b64 {vr(P+2*q,2)}, v1 offset:{q*640}" for q in range(4)))
            pub = []
            for e in range(2):
                pub.append(f"v_add_f32 v{P+e}, v{P+e}, v{P+2+e}")
                pub.append(f"v_add_f32 v{P+4+e}, v{P+4+e}, v{P+6+e}")
            for e in range(2):
                pub.append(f"v_add_f32 v{G+e}, v{P+e}, v{P+4+e}")
            pub += granule_finish(G)
            pub.append(f"@vm cs\nbuffer_store_dwordx4 {vr(G,4)}, v{vCSo}, s[{SRD_WS}:{SRD_WS+3}], s{sCSo} offen sc1")
            add(pub, nm, 2 * nm)
        if p == 1 and var == "A1" and not opts.get("znochk"):
            if opts.get("ztag", 1):
                ZG = vCT[0]
                fill[nm].append(f"v_mov_b32 v{ZG}, 1\nv_mov_b32 v{ZG+1}, 2\n" + "\n".join(granule_finish(ZG)))
                fill[nm + 1].append(f"@wait zr\n@vm zs\nbuffer_store_dwordx4 {vr(ZG,4)}, v{vZ0+2}, s[{SRD_WS}:{SRD_WS+3}], s{sZo} offen sc1")
            else:
                fill[nm].append(f"@wait zr\n@vm zs\nbuffer_atomic_add v{vZ0+3}, v{vZ0+2}, s[{SRD_DBG}:{SRD_DBG+3}], s{sZo} offen sc1")
        if p == opts.get("gp", 4):
            gs = opts.get("gslot", 0)
            if opts.get("gend"):
                gs = nsl - opts.get("gend")
            add(gather(), gs, gs + 2)
        if p == opts.get("pfp", 4) and opts.get("pf", 1) in (1, 2):
            PFV = 38
            pfu = [f"s_lshr_b32 s{sT4}, s2, 3\ns_lshl_b32 s{sT4}, s{sT4}, 3\ns_add_u32 s{sT4}, s{sT4}, s{sW}\n"
                   f"v_lshlrev_b32 v{PFV}, 7, v0\n"
                   f"s_cmp_lt_u32 s{sT4}, 196\n"
                   f"s_cselect_b32 s{sPF}, s{SRD_WD}, s{SRD_WO}\n"
                   f"s_cselect_b32 s{sPF+1}, s{SRD_WD+1}, s{SRD_WO+1}\n"
                   f"s_mov_b32 s{sPF+2}, {WO_BYTES}\n"
                   f"s_cselect_b32 s{sPF+2}, {WD_BYTES}, s{sPF+2}\n"
                   f"s_mov_b32 s{sPF+3}, 0x20000\n"
                   f"s_cselect_b32 s{sT5}, 0, 196\n"
                   f"s_sub_u32 s{sT4}, s{sT4}, s{sT5}\n"
                   f"s_lshl_b32 s{sT4}, s{sT4}, 13\n"
                   f"v_add_u32 v{PFV}, s{sT4}, v{PFV}",
                   f"@vm pf\nbuffer_load_dword v{PFV+1}, v{PFV}, s[{sPF}:{sPF+3}], 0 offen"]
            if opts.get("pf", 1) == 2:
                pfu.append(f"@vm pf\nbuffer_load_dword v{PFV+2}, v{PFV}, s[{sPF}:{sPF+3}], 0 offen offset:64")
            ps = opts.get("pfslot", 3)
            add(pfu, ps, ps + len(pfu))
        if p == opts.get("pfp", 4) and opts.get("pf", 1) == 3 and grp == 1:
            PFV = 38
            pfu = [f"s_lshr_b32 s{sT4}, s2, 3\ns_lshl_b32 s{sT4}, s{sT4}, 2\ns_add_u32 s{sT4}, s{sT4}, s{sWp}\n"
                   f"v_lshlrev_b32 v{PFV}, 7, v0\n"
                   f"s_cmp_lt_u32 s{sT4}, 98\n"
                   f"s_cselect_b32 s{sPF}, s{SRD_WD}, s{SRD_WO}\n"
                   f"s_cselect_b32 s{sPF+1}, s{SRD_WD+1}, s{SRD_WO+1}\n"
                   f"s_mov_b32 s{sPF+2}, {WO_BYTES}\n"
                   f"s_cselect_b32 s{sPF+2}, {WD_BYTES}, s{sPF+2}\n"
                   f"s_mov_b32 s{sPF+3}, 0x20000\n"
                   f"s_cselect_b32 s{sT5}, 0, 98\n"
                   f"s_sub_u32 s{sT4}, s{sT4}, s{sT5}\n"
                   f"s_lshl_b32 s{sT4}, s{sT4}, 14\n"
                   f"v_add_u32 v{PFV}, s{sT4}, v{PFV}\n"
                   f"v_add_u32 v{PFV+1}, 0x2000, v{PFV}",
                   f"@vm pf\nbuffer_load_dword v{PFV+2}, v{PFV}, s[{sPF}:{sPF+3}], 0 offen",
                   f"@vm pf\nbuffer_load_dword v{PFV+3}, v{PFV+1}, s[{sPF}:{sPF+3}], 0 offen"]
            ps = opts.get("pfslot", 3)
            add(pfu, ps, ps + 2 * len(pfu))
        if opts.get("p2", 0) and grp == 0 and p in (4, 5) and opts.get("early", 1):
            eu = []
            if p == 4:
                eu.append(f"s_lshr_b32 s{sT4}, s2, 3\ns_sub_u32 s{sT4}, s{sT4}, 4\ns_max_i32 s{sT4}, s{sT4}, 0\n"
                          f"s_mul_i32 s{sT5}, s{sT4}, 37\ns_lshr_b32 s{sT5}, s{sT5}, 8\ns_mul_i32 s{sT5}, s{sT5}, 7\n"
                          f"s_sub_u32 s{sT4}, s{sT4}, s{sT5}\n"
                          f"s_mul_i32 s{eKo}, s{sT4}, {2*14336 if opts.get('rot2', 1) else 0}\n"
                          f"s_lshl_b32 s{sT4}, s{sT4}, 7\n"
                          f"s_mul_i32 s{eWB}, s{sWp}, {224*896}\ns_add_u32 s{eWB}, s{eWB}, s{sT4}\n"
                          f"s_add_u32 s{eS}, s{eWB}, s{eKo}\ns_lshl_b32 s{eL}, s{sWp}, 10\n"
                          "v_lshrrev_b32 v1, 3, v0\nv_lshrrev_b32 v2, 4, v0\nv_and_b32 v2, 1, v2\nv_lshlrev_b32 v2, 2, v2\n"
                          "v_and_b32 v3, 7, v0\nv_xor_b32 v3, v3, v2\nv_lshlrev_b32 v3, 4, v3\n"
                          f"v_mul_u32_u24 v{vX}, 896, v1\nv_add_u32 v{vX}, v{vX}, v3")
            for row in (range(8, 13) if p == 4 else range(13, 20)):
                s_, h_ = (row - 8) // 2, (row - 8) % 2
                for t_ in (0, 1):
                    u = ""
                    if h_ == 0 and t_ == 0 and s_ > 0:
                        u += (f"s_add_u32 s{eKo}, s{eKo}, 14336\ns_cmp_eq_u32 s{eKo}, {14*14336}\ns_cselect_b32 s{eKo}, 0, s{eKo}\n"
                              f"s_add_u32 s{eS}, s{eWB}, s{eKo}\n")
                    u += f"s_add_u32 m0, s{eL}, {row*8192 + t_*4096}\n"
                    c_ = h_ * 7168 + t_ * 4 * 224 * 896
                    if c_:
                        u += f"s_add_u32 s{eT}, s{eS}, {c_}\n"
                        so = eT
                    else:
                        u += "s_nop 0\n"
                        so = eS
                    u += f"@vm ew\nbuffer_load_dwordx4 v{vX}, s[{SRD_WD}:{SRD_WD+3}], s{so} offen lds"
                    eu.append(u)
            e0 = opts.get("e4s", 4) if p == 4 else opts.get("e5s", 0)
            e1 = opts.get("e4e", 3 * nm + 2) if p == 4 else opts.get("e5e", 3 * nm)
            add(eu, e0, e1)
        if p == 4:
            val = []
            if grp == 0:
                val.append(f"s_mov_b64 s[{sNeed}:{sNeed+1}], -1")
            else:
                val.append(f"s_cmp_eq_u32 s{sW}, 4\ns_cselect_b32 s{sNeed}, -1, 0\ns_cselect_b32 s{sNeed+1}, 0xffff, 0")
            val.append(f"s_mov_b32 s{sCnt}, 0\n@wait ga")
            val += granule_check(G1, 108, sOk)
            val += granule_check(G2, 110, sOk2)
            val.append(check_tail() + f"s_cbranch_scc0 {Lslow}\n@label {Lok}" + (f"\ns_mov_b32 s{sLim}, {1 << 24}" if opts.get("forcefb") else ""))
            wr = []
            if grp == 0:
                wr.append(f"s_lshl_b32 s{sT0}, s{sW}, 8\ns_add_u32 s{sT0}, s{sT0}, {M_OFF}\nv_lshlrev_b32 v1, 2, v0\nv_add_u32 v1, s{sT0}, v1\n"
                          f"ds_write_b32 v1, v{G1}\nds_write_b32 v1, v{G1+1} offset:1024")
            else:
                wr.append(f"s_lshl_b32 s{sT0}, s{sWp}, 9\ns_add_u32 s{sT0}, s{sT0}, {CP_OFF}\nv_lshlrev_b32 v1, 3, v0\nv_add_u32 v1, s{sT0}, v1\n"
                          f"ds_write_b64 v1, {vr(G1,2)}")
            wr.append(f"s_lshl_b32 s{sT0}, s{sW}, 9\ns_add_u32 s{sT0}, s{sT0}, {CP_OFF + 2048}\nv_lshlrev_b32 v1, 3, v0\nv_add_u32 v2, s{sT0}, v1\n"
                      f"v_add_u32 v1, {TOP}, v1\n"
                      f"v_cndmask_b32_e64 v1, v1, v2, s[{sNeed}:{sNeed+1}]\n"
                      f"ds_write_b64 v1, {vr(G2,2)}")
            if opts.get("vspread", 1):
                bat_ = opts.get("bat1", 4) if grp == 1 else opts.get("bat0", 3)
                v0_ = opts.get("vs0", 2) * nm
                add(val + wr, v0_, 3 * nm + bat_)
            else:
                vs = opts.get("vstep", 3) * nm
                fill[vs].append("\n".join(val))
                fill[vs + 1].append(wr[0])
                fill[vs + 2].append(wr[1])
        if p == 5:
            fr = ("v_and_b32 v1, 31, v0\nv_lshlrev_b32 v1, 2, v1\n"
                  f"s_lshl_b32 s{sT0}, s{sWp}, 8\ns_add_u32 s{sT0}, s{sT0}, {M_OFF}\nv_add_u32 v2, s{sT0}, v1\n"
                  f"ds_read_b32 v{vM}, v2\nds_read_b32 v{vM+1}, v2 offset:128\n"
                  f"v_add_u32 v3, {CP_OFF + jb*128}, v1")
            lst = [fr]
            for j in range(nt):
                for c in range(7):
                    lst.append(f"ds_read_b32 v{vCP+7*j+c}, v3 offset:{j*128 + c*640}")
            if var == "A0":
                lst.append(f"v_lshrrev_b32 v4, 5, v0\nv_lshlrev_b32 v4, 4, v4\nv_add_u32 v4, s{sT0}, v4")
                for a in range(2):
                    for j in range(4):
                        lst.append(f"ds_read_b128 {vr(vR+16*a+4*j,4)}, v4 offset:{1024 + a*128 + j*32}")
            elif var == "B0":
                lst.append(f"ds_read_b32 v{vR}, v2 offset:1024\nds_read_b32 v{vR+1}, v2 offset:{1024+128}")
            if var == "A0" and not opts.get("znochk"):
                if opts.get("ztag", 1):
                    lst.append(f"@vm zl\nbuffer_load_dwordx4 {vr(vZ0,4)}, v{vZo}, s[{SRD_WS}:{SRD_WS+3}], s{sZo} offen sc1")
                else:
                    lst.append(f"@vm zl\nbuffer_load_dword v{vZ0+2}, v{vZ0}, s[{SRD_DBG}:{SRD_DBG+3}], s{sZo} offen sc1")
            add(lst, 0, 2 * nm)
            prep = []
            for a in range(2):
                m = vM + a
                prep.append(f"v_sub_f32 v{m}, 0, v{m}")
                prep.append(f"v_cndmask_b32_e64 v{m}, 0, v{m}, s[{sMaskLo32}:{sMaskLo32+1}]")
            for a in range(2):
                prep.append(f"v_cvt_pk_bf16_f32 v{XC+4*a+1}, v{vM+a}, 0")
            for a in range(2):
                prep.append(f"v_lshlrev_b32 v{1+a}, 16, v{XC+4*a+1}")
            for a in range(2):
                prep.append(f"v_sub_f32 v{1+a}, v{vM+a}, v{1+a}")
            for a in range(2):
                prep.append(f"v_cvt_pk_bf16_f32 v{XC+4*a}, v{vM+a}, v{1+a}")
                prep.append(f"v_mov_b32 v{XC+4*a+2}, 0")
                prep.append(f"v_mov_b32 v{XC+4*a+3}, 0")
            for j in range(nt):
                c = vCP + 7 * j
                prep.append(f"v_add_f32 v{c}, v{c}, v{c+1}")
                prep.append(f"v_add_f32 v{c+2}, v{c+2}, v{c+3}")
                prep.append(f"v_add_f32 v{c+4}, v{c+4}, v{c+5}")
                prep.append(f"v_add_f32 v{c}, v{c}, v{c+6}")
                prep.append(f"v_add_f32 v{c+2}, v{c+2}, v{c+4}")
                prep.append(f"v_add_f32 v{c}, v{c}, v{c+2}")
                prep.append(f"v_cvt_pk_bf16_f32 v{WC+4*j}, v{c}, v{c}")
                prep.append(f"v_lshlrev_b32 v{c+1}, 16, v{WC+4*j}")
                prep.append(f"v_sub_f32 v{c+1}, v{c}, v{c+1}")
                prep.append(f"v_cvt_pk_bf16_f32 v{WC+4*j+1}, v{c+1}, 0")
                prep.append(f"v_mov_b32 v{WC+4*j+2}, 0")
                prep.append(f"v_mov_b32 v{WC+4*j+3}, 0")
            if grp == 0:
                prep.append(f"v_mov_b32 v12, 0x{EPS6:x}")
                prep.append(f"v_mov_b32 v13, 0x{LOG2E:x}")
                prep.append(f"v_mov_b32 v14, 0x{NEG_EPS_LOG2E:x}")
            last_fill = empty(nm)
            np_ = len(prep)
            tot = 3 * nm
            for i, u in enumerate(prep):
                sl = 2 * nm + i * tot // np_
                (fill[sl] if sl < nsl else last_fill[sl - nsl]).append(u)

        def fix(units):
            return units

        def barrier_fn(pp):
            def f():
                A("s_waitcnt lgkmcnt(0)")
                need = pp + 1
                tag = f"c{need}"
                if tag in E.ops:
                    E(f"@wait {tag}")
                if prio and opts.get("eprio", 3) == 3 and pp == opts.get("swp", 5):
                    A(f"s_setprio {0 if grp == 0 else 3}")
                A("s_barrier")
                CHM(pp + 1)
            return f

        def EM(u):
            for l in u.split("\n"):
                if l.startswith("@label "):
                    A.label(l[7:])
                else:
                    E(l)

        def step2(mf, rd, slots, bar=None, rper=None, wait=True):
            rper = rper or rdper
            if wait:
                A("s_waitcnt lgkmcnt(0)")
            k = 0
            for i, m in enumerate(mf):
                E(m)
                r = rd[k:k + rper] if i < len(mf) - 1 else rd[k:]
                k += len(r)
                for s_ in r:
                    E(s_)
                for u in slots[i]:
                    EM(u)
                if bar is not None and bar[0] == i:
                    bar[1]()

        if p == -1:
            for s_ in reads(var, 0, 0, 0):
                E(s_)
        else:
            step2(mfmas(var, 1), reads(var, n, 0, 0), fill[0:nm], wait=False)
        step2(mfmas(var, 0, zero=(p == -1)), reads(var, n, 1, 1), fill[nm:2*nm])
        step2(mfmas(var, 1), reads(var, n, 2, 0), fill[2*nm:3*nm])
        if p < 5:
            bat = opts.get("bat1", 4) if grp == 1 else opts.get("bat0", 3)
            step2(mfmas(var, 0), reads(var, n, 3, 1), fill[3*nm:4*nm], bar=(bat, barrier_fn(p + 1)),
                  rper=(opts.get("rb1", 3) if grp == 1 else None))
            rest = []
        else:
            step2(mfmas(var, 0), reads(var, n, 3, 1), fill[3*nm:4*nm])
            if grp == 0 and opts.get("b6", 0):
                A("s_waitcnt lgkmcnt(0)")
                A("s_barrier")
                step2(mfmas(var, 1), [], last_fill, wait=False)
            else:
                step2(mfmas(var, 1), [], last_fill)
    STM(2)
    if prio and grp == 0:
        A("s_setprio 3")
    if prio and opts.get("eprio", 3) == 1 and grp == 0:
        A("s_setprio 0")
    if prio and opts.get("eprio", 3) == 2:
        A("s_setprio 0")
    if not opts.get("nocorr"):
        for s_ in mfmas_regs(var, XC, WC):
            A(s_)
    vEps, vL2e, vNeg = 12, 13, 14
    A(f"s_lshl_b32 s{sT0}, s{sRB}, 3")
    A(f"s_lshl_b32 s{sT1}, s{sWp}, 1")
    A(f"s_add_u32 s{sT0}, s{sT0}, s{sT1}")

    STSC = {0: "", 1: " sc1", 2: " nt", 3: " sc0 sc1", 4: " sc1 nt"}[opts.get("stsc", 1)]

    def ffn_tile(j, ft_sgpr, P0):
        for a in range(2):
            d = acc(j, a)
            P = P0 + 4 * a
            for r in range(8):
                A(f"v_max_f32 v{d+r}, 0, v{d+r}")
            if opts.get("epk", 1):
                for r in range(0, 8, 2):
                    A(f"v_pk_mul_f32 {vr(d+r,2)}, {vr(d+r,2)}, {vr(d+8+r,2)}")
            else:
                for r in range(8):
                    A(f"v_mul_f32 v{d+r}, v{d+r}, v{d+8+r}")
            for r in range(4):
                A(f"v_cvt_pk_bf16_f32 v{P+r}, v{d+2*r}, v{d+2*r+1}")
            A(f"s_add_u32 s{sT2}, s{sT0}, {a}")
            A(f"s_mul_i32 s{sT2}, s{sT2}, 112")
            A(f"s_add_u32 s{sT2}, s{sT2}, s{ft_sgpr}")
            A(f"s_lshl_b32 s{sT2}, s{sT2}, 10")
            if OFF_H:
                A(f"s_add_u32 s{sT2}, s{sT2}, {OFF_H}")
            A(f"buffer_store_dwordx4 {vr(P,4)}, v{vL16}, s[{SRD_WS}:{SRD_WS+3}], s{sT2} offen{STSC}")

    def phi8(d, rs, out4, T):
        t1, t2 = T[0:8], T[8:16]
        for r in range(8):
            A(f"v_fma_f32 v{t1[r]}, v{d+r}, v{rs[r]}, v{vEps}")
        for r in range(8):
            A(f"v_fma_f32 v{t2[r]}, v{t1[r]}, v{vL2e}, v{vNeg}")
        for r in range(8):
            A(f"v_exp_f32_e64 v{t2[r]}, v{t2[r]} clamp")
        for r in range(8):
            A(f"v_max_f32 v{t1[r]}, v{vEps}, v{t1[r]}")
        for r in range(8):
            A(f"v_add_f32 v{t1[r]}, v{t1[r]}, v{t2[r]}")
        return t1

    A("s_nop 7")
    A("s_nop 3" if nt == 3 else "s_nop 7")

    def ft_index(j):
        if typ == "A":
            A(f"s_mul_i32 s{sT3}, s{sFG}, 3")
            A(f"s_add_u32 s{sT3}, s{sT3}, {j}")
        else:
            jj = 0 if grp == 0 else j + 1
            A(f"s_lshl_b32 s{sT3}, s{sH}, 2")
            A(f"s_add_u32 s{sT3}, s{sT3}, {48 + jj}")

    if var == "A0":
        PK, PV, vOne = 48, 136, 152
        T = list(range(64, 88))
        A(f"v_mov_b32 v{vOne}, 0x3f803f80")
        for a in range(2):
            rs = [vR + 16 * a + r for r in range(16)]
            for half in range(2):
                t1 = phi8(acc(0, a) + 8 * half, rs[8 * half:8 * half + 8], None, T)
                for r in range(4):
                    A(f"v_cvt_pk_bf16_f32 v{PK+8*a+4*half+r}, v{t1[2*r]}, v{t1[2*r+1]}")
            d = acc(1, a)
            for r in range(0, 16, 2):
                A(f"v_pk_mul_f32 {vr(d+r,2)}, {vr(d+r,2)}, {vr(rs[r],2)}")
            for r in range(8):
                A(f"v_cvt_pk_bf16_f32 v{PV+8*a+r}, v{d+2*r}, v{d+2*r+1}")
            for r in range(8):
                A(f"v_cndmask_b32_e64 v{PV+8*a+r}, v{PV+8*a+r}, v{vOne}, s[{sMask24}:{sMask24+1}]")
        KV = acc(0, 0)
        A("s_nop 1")
        for a in range(2):
            for t in range(2):
                c = "0" if (a == 0 and t == 0) else vr(KV, 16)
                A(f"v_mfma_f32_32x32x16_bf16 {vr(KV,16)}, {vr(PK+8*a+4*t,4)}, {vr(PV+8*a+4*t,4)}, {c}")
        Lz, Lzo = "K1_A0_zslow", "K1_A0_zok"
        A(f"s_lshl_b32 s{sT2}, s{sH}, 12")
        A(f"s_add_u32 s{sT2}, s{sT2}, {OFF_KVS}")
        A("v_lshlrev_b32 v1, 2, v0")
        if not opts.get("znochk"):
            E("@wait zl")
            if opts.get("ztag", 1):
                for l in granule_check(vZ0, 2, sOk):
                    A(l)
                A(f"s_and_b32 s{sOk}, s{sOk}, 15")
                A(f"s_cmp_eq_u32 s{sOk}, 15")
            else:
                A(f"v_readfirstlane_b32 s{sT3}, v{vZ0+2}")
                A(f"s_cmp_eq_u32 s{sT3}, 4")
            A(f"s_cbranch_scc0 {Lz}")
        A.label(Lzo)
        A("s_nop 7")
        for r in range(16):
            A(f"buffer_atomic_add_f32 v{KV+r}, v1, s[{SRD_WS}:{SRD_WS+3}], s{sT2} offen offset:{r*256} sc1")
    else:
        if var == "B0":
            ft_index(1)
            ffn_tile(1, sT3, 112)
            PQ = 120
            T = list(range(48, 64))
            for a in range(2):
                rs = [vR + a] * 8
                for half in range(2):
                    t1 = phi8(acc(0, a) + 8 * half, rs, None, T)
                    if half == 1:
                        for r in range(4, 8):
                            A(f"v_cndmask_b32_e64 v{t1[r]}, v{t1[r]}, 0, s[{sMaskLo32}:{sMaskLo32+1}]")
                    for r in range(4):
                        A(f"v_cvt_pk_bf16_f32 v{PQ+8*a+4*half+r}, v{t1[2*r]}, v{t1[2*r+1]}")
                A(f"s_add_u32 s{sT2}, s{sT0}, {a}")
                A(f"s_lshl_b32 s{sT2}, s{sT2}, 4")
                A(f"s_add_u32 s{sT2}, s{sT2}, s{sH}")
                A(f"s_lshl_b32 s{sT2}, s{sT2}, 11")
                A(f"s_add_u32 s{sT2}, s{sT2}, {OFF_PQ}")
                A(f"buffer_store_dwordx4 {vr(PQ+8*a,4)}, v{vL16}, s[{SRD_WS}:{SRD_WS+3}], s{sT2} offen{STSC}")
                A(f"buffer_store_dwordx4 {vr(PQ+8*a+4,4)}, v{vL16}, s[{SRD_WS}:{SRD_WS+3}], s{sT2} offen offset:1024{STSC}")
        else:
            for j in range(3):
                ft_index(j)
                ffn_tile(j, sT3, 48 + 8 * j)
    STM(3)
    if grp == 1:
        if prio:
            A("s_setprio 0")
        if opts.get("b6", 0):
            A("s_barrier")
    A("s_branch F_bridge")
    if var == "A0":
        A.label("K1_A0_zslow")
        A(f"s_mov_b32 s{sCnt}, 0")
        A.label("K1_A0_zspin")
        A("s_sleep 2")
        if opts.get("ztag", 1):
            A(f"buffer_load_dwordx4 {vr(vZ0,4)}, v{vZo}, s[{SRD_WS}:{SRD_WS+3}], s{sZo} offen sc1")
            A("s_waitcnt vmcnt(0)")
            for l in granule_check(vZ0, 2, sOk):
                A(l)
            A(f"s_and_b32 s{sOk}, s{sOk}, 15")
            A(f"s_cmp_eq_u32 s{sOk}, 15")
        else:
            A(f"buffer_load_dword v{vZ0+2}, v{vZ0}, s[{SRD_DBG}:{SRD_DBG+3}], s{sZo} offen sc1")
            A("s_waitcnt vmcnt(0)")
            A(f"v_readfirstlane_b32 s{sT3}, v{vZ0+2}")
            A(f"s_cmp_eq_u32 s{sT3}, 4")
        A("s_cbranch_scc1 K1_A0_zok")
        A(f"s_add_u32 s{sCnt}, s{sCnt}, 1")
        A(f"s_cmp_lt_u32 s{sCnt}, {SPINMAX}")
        A("s_cbranch_scc1 K1_A0_zspin")
        A("s_branch K1_A0_zok")
    G1, G2 = 96, 100
    Lfb = A.newlabel("K1_fb")
    A.label(Lslow)
    A(f"s_add_u32 s{sCnt}, s{sCnt}, 1")
    A(f"s_cmp_ge_u32 s{sCnt}, {0 if opts.get('forcefb') else NRETRY}")
    A(f"s_cbranch_scc1 {Lfb}")
    A("s_sleep 2")
    for u in gather(1):
        for l in u.split("\n"):
            if not l.startswith("@"):
                A(l)
    A("s_waitcnt vmcnt(0)")
    for l in granule_check(G1, 108, sOk) + granule_check(G2, 110, sOk2):
        A(l)
    A(check_tail())
    A(f"s_cbranch_scc0 {Lslow}")
    A(f"s_branch {Lok}")
    A.label(Lfb)
    if grp == 0:
        fb_rows(A, G1)
    else:
        A(f"s_lshl_b32 s{sT5}, s{sWp}, 6")
        fb_cols(A, typ, G1, sT5)
    A(f"s_lshl_b32 s{sT5}, s{sW}, 6")
    A(f"s_add_u32 s{sT5}, s{sT5}, 256")
    fb_cols(A, typ, G2, sT5)
    A(f"s_branch {Lok}")


LBW = 20480
pL16, pT0, pT1, pW, pWsp, pL4, pOut, pStg = 8, 9, 10, 11, 12, 13, 14, 15
RING = 16
WF = [96, 104]
pX = 112
pIr = 116
pRf = 118
pTmp = 120
WRAW = 128
ACC2 = 192
qLB, qWD, qWO, qH0, qH1, qP0, qP1, qKV, qXo, qST, qRB = 37, 38, 39, 40, 41, 42, 43, 44, 45, 46, 47


def acc2(ci, ri):
    return ACC2 + (ci * 2 + ri) * 16


def phase2(A, opts):
    prio = opts.get("prio", 1)
    A.label("F_bridge")
    A(f"s_load_dwordx2 s[{SRD_OUT}:{SRD_OUT+1}], s[0:1], 56")
    A(f"s_and_b32 s{sT0}, s2, 7")
    A(f"s_lshr_b32 s{sT1}, s2, 3")
    A(f"s_cmp_lt_u32 s{sT1}, 4")
    A("s_cbranch_scc1 F_spare")
    A(f"s_sub_u32 s{sT1}, s{sT1}, 4")
    A(f"s_mul_i32 s{sT2}, s{sT1}, 37")
    A(f"s_lshr_b32 s{sT2}, s{sT2}, 8")
    A(f"s_mul_i32 s{sT3}, s{sT2}, 7")
    A(f"s_sub_u32 s{sT3}, s{sT1}, s{sT3}")
    if opts.get("rbmap", 1):
        A(f"s_and_b32 s{sT4}, s{sT0}, 1")
        A(f"s_lshl_b32 s{sT4}, s{sT4}, 2")
        A(f"s_lshr_b32 s{sT0}, s{sT0}, 1")
        A(f"s_add_u32 s{sT0}, s{sT0}, s{sT4}")
    A(f"s_mov_b32 s{qRB}, s{sT0}")
    A(f"s_lshl_b32 s{sT4}, s{sT0}, 2")
    A(f"s_add_u32 s{sT4}, s{sT4}, s{sT2}")
    A(f"s_lshl_b32 s{sT3}, s{sT3}, 7")
    A(f"s_mul_i32 s{qLB}, s{sW}, {LBW}")
    A(f"s_mul_i32 s{qWD}, s{sW}, {224*896}")
    A(f"s_add_u32 s{qWD}, s{qWD}, s{sT3}")
    A(f"s_mul_i32 s{qWO}, s{sW}, {56*896}")
    A(f"s_add_u32 s{qWO}, s{qWO}, s{sT3}")
    A("v_lshrrev_b32 v1, 3, v0")
    A("v_lshrrev_b32 v2, 4, v0")
    A("v_and_b32 v2, 1, v2")
    A("v_lshlrev_b32 v2, 2, v2")
    A("v_and_b32 v3, 7, v0")
    A("v_xor_b32 v3, v3, v2")
    A("v_lshlrev_b32 v3, 4, v3")
    A(f"v_mul_u32_u24 v{pW}, 896, v1")
    A(f"v_add_u32 v{pW}, v{pW}, v3")
    A(f"v_lshlrev_b32 v{pL16}, 4, v0")
    def w_loads():
        nld = 0
        A(f"s_mov_b32 m0, s{qLB}")
        for i in range(12):
            if i:
                A("s_add_u32 m0, m0, 1024")
                A(f"s_add_u32 s{qWD}, s{qWD}, 7168")
            else:
                A("s_nop 0")
            A(f"buffer_load_dwordx4 v{pW}, s[{SRD_WD}:{SRD_WD+3}], s{qWD} offen lds")
            nld += 1
            if i == 0:
                A(f"v_subrev_u32 v{pWsp}, {4*896}, v{pW}")
                A(f"v_mov_b32 v1, 0x{OOB:x}")
                A("v_cmp_gt_u32 vcc, 32, v0")
                A(f"v_cndmask_b32 v{pWsp}, v{pWsp}, v1, vcc")
        for hh in range(2):
            for j in range(4):
                A("s_add_u32 m0, m0, 1024")
                if hh or j:
                    A(f"s_add_u32 s{qWO}, s{qWO}, {7168 if j else 4*896}")
                else:
                    A("s_nop 0")
                A(f"buffer_load_dwordx4 v{pWsp if j == 3 else pW}, s[{SRD_WO}:{SRD_WO+3}], s{qWO} offen lds")
                nld += 1
        for i in range(16):
            A(f"s_add_u32 s{qWD}, s{qWD}, 7168")
            A(f"buffer_load_dwordx4 {vr(WRAW+4*i,4)}, v{pW}, s[{SRD_WD}:{SRD_WD+3}], s{qWD} offen")
            nld += 1
        return nld
    wpos = opts.get("wpos", 1)
    nld = 0
    if wpos == 1:
        if not opts.get("b6", 0):
            A("s_barrier")
        nld = w_loads()
    A(f"s_lshl_b32 s{sT5}, s{sW}, 3")
    A("v_lshrrev_b32 v1, 3, v0")
    A(f"v_add_u32 v1, s{sT5}, v1")
    A("v_and_b32 v2, 7, v0")
    A(f"v_mul_u32_u24 v{pOut}, 896, v1")
    A(f"v_lshl_add_u32 v{pOut}, v2, 4, v{pOut}")
    A(f"s_mul_i32 s{qXo}, s{sT4}, {64*896}")
    A(f"s_add_u32 s{qXo}, s{qXo}, s{sT3}")
    A(f"buffer_load_dwordx4 {vr(pX,4)}, v{pOut}, s[{SRD_X}:{SRD_X+3}], s{qXo} offen")
    nld += 1
    A("v_lshlrev_b32 v7, 4, v1")
    A("v_and_b32 v6, 31, v0")
    A("v_lshlrev_b32 v6, 4, v6")
    A(f"v_lshlrev_b32 v{pL4}, 2, v0")
    A(f"v_add_u32 v{pStg}, s{qLB}, v{pL16}")
    A("v_lshrrev_b32 v1, 2, v0")
    A("v_and_b32 v1, 3, v1")
    A("v_and_b32 v2, 3, v0")
    A("v_lshrrev_b32 v3, 5, v0")
    A("v_lshrrev_b32 v4, 4, v0")
    A("v_and_b32 v4, 1, v4")
    A("v_lshl_add_u32 v5, v3, 2, v1")
    A("v_lshrrev_b32 v1, 1, v1")
    A("v_lshrrev_b32 v3, 1, v2")
    A("v_lshl_add_u32 v3, v4, 1, v3")
    A("v_lshlrev_b32 v1, 2, v1")
    A("v_xor_b32 v3, v3, v1")
    A("v_lshlrev_b32 v3, 4, v3")
    A("v_and_b32 v2, 1, v2")
    A("v_lshl_add_u32 v3, v2, 3, v3")
    A("v_lshl_add_u32 v3, v5, 7, v3")
    A(f"v_add_u32 v{pT0}, s{qLB}, v3")
    A(f"v_xor_b32 v{pT1}, 64, v{pT0}")
    A(f"s_mul_i32 s{qH0}, s{sT4}, {2*112*1024}")
    A(f"s_mul_i32 s{sT0}, s{sW}, {14*1024}")
    A(f"s_add_u32 s{qH0}, s{qH0}, s{sT0}")
    if OFF_H:
        A(f"s_add_u32 s{qH0}, s{qH0}, {OFF_H}")
    A(f"s_add_u32 s{qH1}, s{qH0}, {112*1024}")
    A(f"s_lshl_b32 s{sT0}, s{sW}, 12")
    A(f"s_lshl_b32 s{qP0}, s{sT4}, 16")
    A(f"s_add_u32 s{qP0}, s{qP0}, s{sT0}")
    A(f"s_add_u32 s{qP0}, s{qP0}, {OFF_PQ}")
    A(f"s_add_u32 s{qP1}, s{qP0}, 32768")
    A(f"s_lshl_b32 s{qKV}, s{sW}, 13")
    A(f"s_add_u32 s{qKV}, s{qKV}, {OFF_KVS}")
    A(f"s_lshl_b32 s{qST}, s{sT4}, 10")
    A(f"s_add_u32 s{qST}, s{qST}, {OFF_ST + 4}")
    A(f"s_mov_b32 s{SRD_OUT+2}, {X_BYTES}")
    A(f"s_mov_b32 s{SRD_OUT+3}, 0x20000")
    A(f"s_mov_b32 s{sT5}, 0x{EPS6:x}")
    assert nld <= 63
    A(f"s_waitcnt vmcnt({nld})")
    A("s_barrier")
    ST.mark(4)
    A(f"s_cmp_lg_u32 s{sW}, 4")
    A("s_cbranch_scc1 F_wait")

    fmode = opts.get("fmode", 0)

    def flag():
        A(f"v_mov_b32 v1, 0x{OOB:x}")
        A("v_cmp_eq_u32 vcc, 0, v0")
        if fmode == 0:
            A(f"s_lshl_b32 s{sT0}, s{sRB}, 2")
            A(f"v_mov_b32 v2, s{sT0}")
            A("v_cndmask_b32 v1, v1, v2, vcc")
            A(f"s_lshl_b32 s{sT0}, 1, s{sCB}")
            A(f"v_mov_b32 v2, s{sT0}")
            A(f"buffer_atomic_or v2, v1, s[{SRD_DBG}:{SRD_DBG+3}], 0 offen sc1")
        elif fmode == 1:
            A(f"s_lshl_b32 s{sT0}, s{sRB}, 5")
            A(f"s_add_u32 s{sT0}, s{sT0}, s{sCB}")
            A(f"v_mov_b32 v2, s{sT0}")
            A("v_cndmask_b32 v1, v1, v2, vcc")
            A("v_mov_b32 v2, 1")
            A(f"buffer_store_byte v2, v1, s[{SRD_DBG}:{SRD_DBG+3}], 0 offen sc1")
        else:
            A(f"s_lshl_b32 s{sT0}, s{sRB}, 5")
            A(f"s_add_u32 s{sT0}, s{sT0}, s{sCB}")
            A(f"s_lshl_b32 s{sT0}, s{sT0}, 4")
            A(f"s_add_u32 s{sT0}, s{sT0}, {OFF_FL}")
            A(f"v_mov_b32 v2, s{sT0}")
            A("v_cndmask_b32 v1, v1, v2, vcc")
            A("v_mov_b32 v2, 1")
            A("v_mov_b32 v3, 2")
            for l in granule_finish(2):
                A(l)
            A(f"buffer_store_dwordx4 v[2:5], v1, s[{SRD_WS}:{SRD_WS+3}], 0 offen sc1")
    if prio:
        A("s_setprio 3")
    flag()
    if wpos == 2:
        w_loads()
    DONE = "F_wait2" if wpos == 2 else "F_wait"
    if fmode == 0:
        A(f"v_mov_b32 v1, 0x{OOB:x}")
        A("v_cmp_gt_u32 vcc, 8, v0")
        A(f"v_cndmask_b32 v1, v1, v{pL4}, vcc")
    A(f"s_mov_b32 s{sCnt}, 0")
    A.label("F_poll")
    if fmode == 0:
        A(f"buffer_load_dword v2, v1, s[{SRD_DBG}:{SRD_DBG+3}], 0 offen sc1")
        A("s_waitcnt vmcnt(0)")
        A("v_cmp_eq_u32 vcc, -1, v2")
        A("s_nop 1")
        A(f"s_and_b32 s{sT0}, vcc_lo, 0xff")
        A(f"s_cmp_eq_u32 s{sT0}, 0xff")
    elif fmode == 1:
        A(f"buffer_load_dword v2, v{pL4}, s[{SRD_DBG}:{SRD_DBG+3}], 0 offen sc1")
        A("s_waitcnt vmcnt(0)")
        A("v_and_b32 v2, 0x01010101, v2")
        A("v_cmp_eq_u32 vcc, 0x01010101, v2")
        A("s_nop 1")
        A("s_cmp_eq_u64 vcc, -1")
    else:
        if fmode == 3:
            A(f"s_lshl_b32 s{sT0}, s{qRB}, 9")
            A(f"s_add_u32 s{sT0}, s{sT0}, {OFF_FL}")
            A(f"v_mov_b32 v1, 0x{OOB:x}")
            A("v_cmp_gt_u32 vcc, 32, v0")
            A(f"v_cndmask_b32 v1, v1, v{pL16}, vcc")
            A.label("F_poll0")
            A(f"buffer_load_dwordx4 {vr(96,4)}, v1, s[{SRD_WS}:{SRD_WS+3}], s{sT0} offen sc1")
            A("s_waitcnt vmcnt(0)")
            for l in granule_check(96, 2, sOk):
                A(l)
            A(f"s_cmp_eq_u32 s{sOk}, -1")
            A("s_cbranch_scc1 F_poll1")
            A(f"s_add_u32 s{sCnt}, s{sCnt}, 1")
            if opts.get("psleep"):
                A(f"s_sleep {opts.get('psleep')}")
            A(f"s_cmp_lt_u32 s{sCnt}, {SPINMAX}")
            A("s_cbranch_scc1 F_poll0")
            A.label("F_poll1")
        A(f"s_mov_b32 s{sT0}, {OFF_FL}")
        for j in range(4):
            A(f"buffer_load_dwordx4 {vr(96+4*j,4)}, v{pL16}, s[{SRD_WS}:{SRD_WS+3}], s{sT0} offen offset:{j*1024} sc1")
        A(f"s_mov_b64 s[{sOk2}:{sOk2+1}], -1")
        for j in range(4):
            A(f"s_waitcnt vmcnt({3-j})")
            for l in granule_check(96 + 4 * j, 2, sOk):
                A(l)
            A(f"s_and_b64 s[{sOk2}:{sOk2+1}], s[{sOk2}:{sOk2+1}], s[{sOk}:{sOk+1}]")
        A(f"s_cmp_eq_u64 s[{sOk2}:{sOk2+1}], -1")
    A(f"s_cbranch_scc1 {DONE}")
    A(f"s_add_u32 s{sCnt}, s{sCnt}, 1")
    if opts.get("psleep"):
        A(f"s_sleep {opts.get('psleep')}")
    A(f"s_cmp_lt_u32 s{sCnt}, {SPINMAX}")
    A("s_cbranch_scc1 F_poll1" if fmode == 3 else "s_cbranch_scc1 F_poll")
    if wpos == 2:
        A("s_branch F_wait2")
    A.label("F_wait")
    if wpos == 2:
        w_loads()
        A.label("F_wait2")
    A("s_waitcnt vmcnt(0) lgkmcnt(0)")
    if prio:
        A("s_setprio 0")
    A("s_barrier")
    ST.mark(5)
    if wpos == 0:
        w_loads()
        A("s_waitcnt vmcnt(0)")

    issued = []

    def ld(tag, ins):
        A(ins)
        issued.append(tag)

    def wait_for(tag):
        idx = max(i for i, t in enumerate(issued) if t == tag)
        A(f"s_waitcnt vmcnt({min(63, len(issued) - 1 - idx)})")

    def hslot(ks):
        return RING + (ks % 10) * 8

    def h_loads(ks):
        if ks % 4 == 0 and ks > 0:
            A(f"s_add_u32 s{qH0}, s{qH0}, 4096")
            A(f"s_add_u32 s{qH1}, s{qH1}, 4096")
        for ri, so in enumerate((qH0, qH1)):
            ld(("h", ks), f"buffer_load_dwordx4 {vr(hslot(ks)+4*ri,4)}, v{pL16}, s[{SRD_WS}:{SRD_WS+3}], s{so} offen offset:{(ks%4)*1024}")

    def wslot(ks):
        return ks if ks < 6 else (ks - 6) % 6

    def tr_reads(dst, slot):
        o = []
        for ci, va in enumerate((pT0, pT1)):
            o.append(f"ds_read_b64_tr_b16 {vr(dst+4*ci,2)}, v{va} offset:{slot*2048}")
            o.append(f"ds_read_b64_tr_b16 {vr(dst+4*ci+2,2)}, v{va} offset:{slot*2048+1024}")
        return o

    for s_ in tr_reads(WF[0], 0):
        A(s_)
    for ks in range(10):
        h_loads(ks)
        if ks == 0:
            ld("r", f"buffer_load_dword v{pIr}, v6, s[{SRD_WS}:{SRD_WS+3}], s{qST} offen sc1")
            ld("r", f"buffer_load_dword v{pIr+1}, v6, s[{SRD_WS}:{SRD_WS+3}], s{qST} offen offset:512 sc1")
            ld("r", f"buffer_load_dword v{pRf}, v7, s[{SRD_WS}:{SRD_WS+3}], s{qST} offen sc1")
    KVR = [WRAW, WRAW + 16]
    PQR = [WRAW + 32, WRAW + 48]
    DB = [RING + 32, RING]
    OP = [RING + 64, WRAW + 32]
    WOF = [None, WRAW]

    def extra_loads(i):
        o = []
        if 1 <= i <= 4:
            hh, half = (i - 1) >> 1, (i - 1) & 1
            if i == 3:
                o.append((None, f"s_add_u32 s{qKV}, s{qKV}, 4096"))
            for r in range(8 * half, 8 * half + 8):
                o.append((("kv", hh), f"buffer_load_dword v{KVR[hh]+r}, v{pL4}, s[{SRD_WS}:{SRD_WS+3}], s{qKV} offen offset:{r*256}"))
        if 5 <= i <= 8:
            hh, t = (i - 5) >> 1, (i - 5) & 1
            for ri, so in enumerate((qP0, qP1)):
                o.append((("pq", hh), f"buffer_load_dwordx4 {vr(PQR[hh]+8*t+4*ri,4)}, v{pL16}, s[{SRD_WS}:{SRD_WS+3}], s{so} offen offset:{(hh*2+t)*1024}"))
        return o

    def att_kv(hh):
        o = []
        for ri in range(2):
            for t in range(2):
                c = "0" if t == 0 else vr(DB[hh] + 16 * ri, 16)
                o.append(f"v_mfma_f32_32x32x16_bf16 {vr(DB[hh]+16*ri,16)}, {vr(KVR[hh]+4*t,4)}, {vr(PQR[hh]+8*t+4*ri,4)}, {c}")
        return o

    def att_norm(hh):
        o = []
        D_ = DB[hh]
        for ri in range(2):
            t0, t1 = pTmp + 2 * ri, pTmp + 2 * ri + 1
            o.append(f"v_mov_b32 v{t0}, v{D_+16*ri+12}\nv_mov_b32 v{t1}, v{D_+16*ri+12}")
        o.append("s_nop 0\n" + "\n".join(f"v_permlane32_swap_b32 v{pTmp+2*ri}, v{pTmp+2*ri+1}" for ri in range(2)))
        o.append("s_nop 0\n" + "\n".join(f"v_add_f32 v{pTmp+2*ri}, s{sT5}, v{pTmp+2*ri}" for ri in range(2)))
        o.append("\n".join(f"v_rcp_f32 v{pTmp+2*ri}, v{pTmp+2*ri}" for ri in range(2)))
        o.append("s_nop 0\n" + "\n".join(f"v_mul_f32 v{pTmp+2*ri}, v{pTmp+2*ri}, v{pIr+ri}" for ri in range(2)))
        for ri in range(2):
            d = D_ + 16 * ri
            t0 = pTmp + 2 * ri
            for r in range(8):
                o.append(f"v_mul_f32 v{d+2*r}, v{d+2*r}, v{t0}\nv_mul_f32 v{d+2*r+1}, v{d+2*r+1}, v{t0}\n"
                         f"v_cvt_pk_bf16_f32 v{OP[hh]+8*ri+r}, v{d+2*r}, v{d+2*r+1}")
        return o

    def att_wo(hh, wf):
        o = []
        for t in range(2):
            for ci in range(2):
                for ri in range(2):
                    d = acc2(ci, ri)
                    o.append(f"v_mfma_f32_32x32x16_bf16 {vr(d,16)}, {vr(wf[t]+4*ci,4)}, {vr(OP[hh]+8*ri+4*t,4)}, {vr(d,16)}")
        return o

    def run(mf, fills):
        n = len(mf)
        for i, m in enumerate(mf):
            A(m)
            for u in fills[i * len(fills) // n:(i + 1) * len(fills) // n]:
                if isinstance(u, tuple):
                    if u[0] is None:
                        A(u[1])
                    else:
                        ld(u[0], u[1])
                else:
                    A(u)

    def kv_cvt(hh):
        return [f"v_cvt_pk_bf16_f32 v{KVR[hh]+r}, v{KVR[hh]+2*r}, v{KVR[hh]+2*r+1}" for r in range(8)]

    for i in range(14):
        A("s_waitcnt lgkmcnt(0)")
        wait_for(("h", i))
        wf = WF[i & 1]
        hs = hslot(i)
        mf = []
        for ci in range(2):
            for ri in range(2):
                c = "0" if i == 0 else vr(acc2(ci, ri), 16)
                mf.append(f"v_mfma_f32_32x32x16_bf16 {vr(acc2(ci,ri),16)}, {vr(wf+4*ci,4)}, {vr(hs+4*ri,4)}, {c}")
        fills = []
        fills += tr_reads(WF[(i + 1) & 1], wslot(i + 1) if i < 13 else 6)
        if i <= 7:
            for j in range(2):
                fills.append(f"ds_write_b128 v{pStg}, {vr(WRAW+8*i+4*j,4)} offset:{(i%6)*2048+j*1024}")
        fills += extra_loads(i)
        if i == 1:
            fills.append(f"v_mul_f32 v{pIr}, v{pIr}, v{pIr}\nv_mul_f32 v{pIr+1}, v{pIr+1}, v{pIr+1}\nv_mul_f32 v{pRf}, v{pRf}, v{pRf}")
            fills.append(f"v_rcp_f32 v{pIr}, v{pIr}\nv_rcp_f32 v{pIr+1}, v{pIr+1}")
        if i == 11:
            fills += kv_cvt(0)
        if i == 12:
            fills += att_norm(0)[:8]
        if i == 13:
            fills += att_norm(0)[8:] + kv_cvt(1)
        run(mf, fills)
        if i + 10 < 14:
            h_loads(i + 10)
        if i == 10:
            wait_for(("kv", 1))
        if i == 11:
            wait_for(("pq", 0))
            A("s_nop 1")
            run(att_kv(0), [])
            A("s_nop 7")
            A("s_nop 3")
    ST.mark(6)
    wait_for(("pq", 1))
    run(att_kv(1), tr_reads(WF[1], 7) + tr_reads(WOF[1], 8) + tr_reads(WOF[1] + 8, 9))
    A("s_waitcnt lgkmcnt(0)")
    n1 = att_norm(1)
    mf = att_wo(0, WF)
    for i, m in enumerate(mf):
        A(m)
        if i >= 2:
            k0 = (i - 2) * len(n1) // 6
            k1 = (i - 1) * len(n1) // 6
            for u in n1[k0:k1]:
                A(u)
    A("s_nop 1")
    run(att_wo(1, [WOF[1], WOF[1] + 8]), [])
    A("v_and_b32 v4, 31, v0")
    A("v_mul_u32_u24 v4, 272, v4")
    A("v_lshrrev_b32 v5, 5, v0")
    A("v_lshl_add_u32 v4, v5, 4, v4")
    A(f"v_add_u32 v4, s{qLB}, v4")
    A(f"s_lshl_b32 s{sT0}, s{sW}, 3")
    A("v_lshrrev_b32 v5, 3, v0")
    A(f"v_add_u32 v5, s{sT0}, v5")
    A("v_mul_u32_u24 v5, 272, v5")
    A("v_and_b32 v6, 7, v0")
    A("v_lshl_add_u32 v5, v6, 5, v5")
    A(f"v_add_u32 v6, {3*LBW}, v5")
    A(f"v_add_u32 v7, {6*LBW}, v5")
    A("s_nop 3")
    for ri in range(2):
        for ci in range(2):
            d = acc2(ci, ri)
            for j in range(4):
                A(f"ds_write_b128 v4, {vr(d+4*j,4)} offset:{ri*32*272 + ci*128 + j*32}")
    X = 96
    for i in range(4):
        A(f"v_lshlrev_b32 v{X+2*i}, 16, v{pX+i}")
        A(f"v_and_b32 v{X+2*i+1}, s{sHi}, v{pX+i}")
    A("s_waitcnt lgkmcnt(0)")
    A("s_barrier")
    R = 16
    for p_ in range(8):
        va = (5, 6, 7)[p_ // 3]
        for i in range(2):
            A(f"ds_read_b128 {vr(R+8*p_+4*i,4)}, v{va} offset:{(p_%3)*LBW + i*16}")
    for st_, wl in ((1, 12), (1, 8), (1, 4), (1, 0)):
        pass
    for p_ in range(0, 8, 2):
        A(f"s_waitcnt lgkmcnt({12 - 2*p_})")
        for r in range(8):
            A(f"v_add_f32 v{R+8*p_+r}, v{R+8*p_+r}, v{R+8*p_+8+r}")
    for r in range(8):
        A(f"v_add_f32 v{R+r}, v{R+r}, v{R+16+r}")
        A(f"v_add_f32 v{R+32+r}, v{R+32+r}, v{R+48+r}")
    for r in range(8):
        A(f"v_add_f32 v{R+r}, v{R+r}, v{R+32+r}")
    for r in range(8):
        A(f"v_fma_f32 v{R+r}, v{R+r}, v{pRf}, v{X+r}")
    for r in range(4):
        A(f"v_cvt_pk_bf16_f32 v{104+r}, v{R+2*r}, v{R+2*r+1}")
    A("s_waitcnt lgkmcnt(0)")
    A(f"buffer_store_dwordx4 v[104:107], v{pOut}, s[{SRD_OUT}:{SRD_OUT+3}], s{qXo} offen" + {0: "", 1: " sc1", 2: " nt", 3: " sc0 sc1", 4: " sc1 nt"}[opts.get("osc", 0)])
    ST.dump(sW, SRD_WS, sT2)
    A("s_endpgm")
    A.label("F_spare")
    A("s_waitcnt vmcnt(0) lgkmcnt(0)")
    A("s_barrier")
    A(f"s_cmp_lg_u32 s{sW}, 4")
    A("s_cbranch_scc1 F_spare_end")
    flag()
    A.label("F_spare_end")
    ST.dump(sW, SRD_WS, sT2)
    A("s_endpgm")


pTB = [(9, 10), (124, 125), (126, 127)]
pStg1, pStg2, pTch = 15, 119, 120
qKh, qKw, qA0, qA1, qRB64 = 48, 28, 30, 31, 29


def phase2b(A, opts):
    prio = opts.get("prio", 1)
    POLLW = opts.get("pollw", 4)
    rot2 = opts.get("rot2", 1)
    A.label("F_bridge")
    A(f"s_load_dwordx2 s[{SRD_OUT}:{SRD_OUT+1}], s[0:1], 56")
    A(f"s_and_b32 s{sT0}, s2, 7")
    A(f"s_lshr_b32 s{sT1}, s2, 3")
    A(f"s_cmp_lt_u32 s{sT1}, 4")
    A("s_cbranch_scc1 F_spare")
    A(f"s_sub_u32 s{sT1}, s{sT1}, 4")
    A(f"s_mul_i32 s{sT2}, s{sT1}, 37")
    A(f"s_lshr_b32 s{sT2}, s{sT2}, 8")
    A(f"s_mul_i32 s{sT3}, s{sT2}, 7")
    A(f"s_sub_u32 s{sT3}, s{sT1}, s{sT3}")
    if opts.get("rbmap", 1):
        A(f"s_and_b32 s{sT4}, s{sT0}, 1")
        A(f"s_lshl_b32 s{sT4}, s{sT4}, 2")
        A(f"s_lshr_b32 s{sT0}, s{sT0}, 1")
        A(f"s_add_u32 s{sT0}, s{sT0}, s{sT4}")
    A(f"s_mov_b32 s{qRB}, s{sT0}")
    A(f"s_lshl_b32 s{qRB64}, s{sT0}, 2")
    A(f"s_add_u32 s{qRB64}, s{qRB64}, s{sT2}")
    A(f"s_mul_i32 s{qKh}, s{sT3}, {2048 if rot2 else 0}")
    A(f"s_mul_i32 s{qKw}, s{sT3}, {2 if rot2 else 0}")
    A(f"s_add_u32 s{qKw}, s{qKw}, 6")
    A(f"s_cmp_ge_u32 s{qKw}, 14")
    A(f"s_cselect_b32 s{sT5}, 14, 0")
    A(f"s_sub_u32 s{qKw}, s{qKw}, s{sT5}")
    A(f"s_mul_i32 s{qKw}, s{qKw}, 14336")
    A(f"s_lshl_b32 s{sT5}, s{sT3}, 3")
    A(f"s_add_u32 s{sT5}, s{sT5}, s{sW}")
    A(f"s_mul_i32 s{sT0}, s{sT5}, 10")
    A(f"v_add_u32 v1, s{sT0}, v0")
    A("v_cmp_gt_u32 vcc, 512, v1")
    A(f"v_mov_b32 v3, 0x{OOB:x}")
    A(f"s_lshl_b32 s{sT0}, s{qRB64}, 16")
    A(f"s_add_u32 s{sT0}, s{sT0}, {OFF_PQ}")
    A("v_lshlrev_b32 v1, 7, v1")
    A(f"v_add_u32 v1, s{sT0}, v1")
    A("v_cndmask_b32 v1, v3, v1, vcc")
    A("v_cmp_gt_u32 vcc, 10, v0")
    A(f"v_cndmask_b32 v{pTch}, v3, v1, vcc")
    A(f"s_mul_i32 s{sT0}, s{sT5}, 3")
    A(f"s_sub_u32 s{sT0}, s{sT0}, 10")
    A(f"v_add_u32 v1, s{sT0}, v0")
    A(f"s_and_b32 s{sT0}, s{qRB64}, 3")
    A(f"s_lshl_b32 s{sT0}, s{sT0}, 14")
    A(f"s_add_u32 s{sT0}, s{sT0}, {OFF_KVS}")
    A("v_cmp_gt_u32 vcc, 128, v1")
    A("v_lshlrev_b32 v1, 7, v1")
    A(f"v_add_u32 v1, s{sT0}, v1")
    A("v_cndmask_b32 v1, v3, v1, vcc")
    A("v_subrev_u32 v2, 10, v0")
    A("v_cmp_gt_u32 vcc, 3, v2")
    A(f"v_cndmask_b32 v{pTch}, v{pTch}, v1, vcc")
    A(f"s_lshl_b32 s{sT3}, s{sT3}, 7")
    A(f"s_lshl_b32 s{qLB}, s{sW}, 10")
    A(f"s_mul_i32 s{qWD}, s{sW}, {224*896}")
    A(f"s_add_u32 s{qWD}, s{qWD}, s{sT3}")
    A(f"s_mul_i32 s{qWO}, s{sW}, {56*896}")
    A(f"s_add_u32 s{qWO}, s{qWO}, s{sT3}")
    A("v_lshrrev_b32 v1, 3, v0")
    A("v_lshrrev_b32 v2, 4, v0")
    A("v_and_b32 v2, 1, v2")
    A("v_lshlrev_b32 v2, 2, v2")
    A("v_and_b32 v3, 7, v0")
    A("v_xor_b32 v3, v3, v2")
    A("v_lshlrev_b32 v3, 4, v3")
    A(f"v_mul_u32_u24 v{pW}, 896, v1")
    A(f"v_add_u32 v{pW}, v{pW}, v3")
    A(f"v_lshlrev_b32 v{pL16}, 4, v0")
    A(f"v_subrev_u32 v{pWsp}, {4*896}, v{pW}")
    A(f"v_mov_b32 v1, 0x{OOB:x}")
    A("v_cmp_gt_u32 vcc, 32, v0")
    A(f"v_cndmask_b32 v{pWsp}, v{pWsp}, v1, vcc")

    def w_late():
        if not opts.get("early", 1):
            A(f"s_mul_i32 s{sT0}, s{qKh}, 14")
            for s_ in range(6):
                for h_ in range(2):
                    A(f"s_add_u32 m0, s{qLB}, {(8 + 2*s_ + h_)*8192}")
                    A(f"s_add_u32 s{sT1}, s{qWD}, s{sT0}")
                    if h_:
                        A(f"s_add_u32 s{sT1}, s{sT1}, 7168")
                    A(f"buffer_load_dwordx4 v{pW}, s[{SRD_WD}:{SRD_WD+3}], s{sT1} offen lds")
                A(f"s_add_u32 s{sT0}, s{sT0}, 14336")
                A(f"s_cmp_eq_u32 s{sT0}, {14*14336}")
                A(f"s_cselect_b32 s{sT0}, 0, s{sT0}")

        def wo_loads():
            A(f"s_mov_b32 m0, s{qLB}")
            A(f"s_mov_b32 s{sT1}, s{qWO}")
            for hh in range(2):
                for j in range(4):
                    if hh or j:
                        A("s_add_u32 m0, m0, 8192")
                        A(f"s_add_u32 s{sT1}, s{sT1}, {7168 if j else 4*896}")
                    else:
                        A("s_nop 0")
                    A(f"buffer_load_dwordx4 v{pWsp if j == 3 else pW}, s[{SRD_WO}:{SRD_WO+3}], s{sT1} offen lds")

        def raw_loads():
            A(f"s_mov_b32 s{sT2}, s{qKw}")
            for i in range(8):
                A(f"s_add_u32 s{sT1}, s{qWD}, s{sT2}")
                A(f"buffer_load_dwordx4 {vr(WRAW+8*i,4)}, v{pW}, s[{SRD_WD}:{SRD_WD+3}], s{sT1} offen")
                A(f"s_add_u32 s{sT1}, s{sT1}, 7168")
                A(f"buffer_load_dwordx4 {vr(WRAW+8*i+4,4)}, v{pW}, s[{SRD_WD}:{SRD_WD+3}], s{sT1} offen")
                if i < 7:
                    A(f"s_add_u32 s{sT2}, s{sT2}, 14336")
                    A(f"s_cmp_eq_u32 s{sT2}, {14*14336}")
                    A(f"s_cselect_b32 s{sT2}, 0, s{sT2}")
        if opts.get("wofirst", 0):
            wo_loads()
            raw_loads()
        else:
            raw_loads()
            wo_loads()

    A(f"s_lshl_b32 s{sT5}, s{sW}, 3")
    A("v_lshrrev_b32 v1, 3, v0")
    A(f"v_add_u32 v1, s{sT5}, v1")
    A("v_and_b32 v2, 7, v0")
    A(f"v_mul_u32_u24 v{pOut}, 896, v1")
    A(f"v_lshl_add_u32 v{pOut}, v2, 4, v{pOut}")
    A(f"s_mul_i32 s{qXo}, s{qRB64}, {64*896}")
    A(f"s_add_u32 s{qXo}, s{qXo}, s{sT3}")
    A(f"buffer_load_dwordx4 {vr(pX,4)}, v{pOut}, s[{SRD_X}:{SRD_X+3}], s{qXo} offen")
    A("v_lshlrev_b32 v7, 4, v1")
    A("v_and_b32 v6, 31, v0")
    A("v_lshlrev_b32 v6, 4, v6")
    A(f"v_lshlrev_b32 v{pL4}, 2, v0")
    A(f"v_add_u32 v{pStg1}, s{qLB}, v{pL16}")
    A(f"v_add_u32 v{pStg2}, {2*65536}, v{pStg1}")
    A(f"v_add_u32 v{pStg1}, {65536}, v{pStg1}")
    A("v_lshrrev_b32 v1, 2, v0")
    A("v_and_b32 v1, 3, v1")
    A("v_and_b32 v2, 3, v0")
    A("v_lshrrev_b32 v3, 5, v0")
    A("v_lshrrev_b32 v4, 4, v0")
    A("v_and_b32 v4, 1, v4")
    A("v_lshl_add_u32 v5, v3, 2, v1")
    A("v_lshrrev_b32 v1, 1, v1")
    A("v_lshrrev_b32 v3, 1, v2")
    A("v_lshl_add_u32 v3, v4, 1, v3")
    A("v_lshlrev_b32 v1, 2, v1")
    A("v_xor_b32 v3, v3, v1")
    A("v_lshlrev_b32 v3, 4, v3")
    A("v_and_b32 v2, 1, v2")
    A("v_lshl_add_u32 v3, v2, 3, v3")
    A("v_lshl_add_u32 v3, v5, 7, v3")
    A(f"v_add_u32 v{pTB[0][0]}, s{qLB}, v3")
    A(f"v_xor_b32 v{pTB[0][1]}, 64, v{pTB[0][0]}")
    for b in (1, 2):
        for ci in range(2):
            A(f"v_add_u32 v{pTB[b][ci]}, {b*65536}, v{pTB[0][ci]}")
    A(f"s_mul_i32 s{qH0}, s{qRB64}, {2*112*1024}")
    A(f"s_mul_i32 s{sT0}, s{sW}, {14*1024}")
    A(f"s_add_u32 s{qH0}, s{qH0}, s{sT0}")
    if OFF_H:
        A(f"s_add_u32 s{qH0}, s{qH0}, {OFF_H}")
    A(f"s_add_u32 s{qH1}, s{qH0}, {112*1024}")
    A(f"s_lshl_b32 s{sT0}, s{sW}, 12")
    A(f"s_lshl_b32 s{qP0}, s{qRB64}, 16")
    A(f"s_add_u32 s{qP0}, s{qP0}, s{sT0}")
    A(f"s_add_u32 s{qP0}, s{qP0}, {OFF_PQ}")
    A(f"s_add_u32 s{qP1}, s{qP0}, 32768")
    A(f"s_lshl_b32 s{qKV}, s{sW}, 13")
    A(f"s_add_u32 s{qKV}, s{qKV}, {OFF_KVS}")
    A(f"s_lshl_b32 s{qST}, s{qRB64}, 10")
    A(f"s_add_u32 s{qST}, s{qST}, {OFF_ST + 4}")
    A(f"s_mov_b32 s{SRD_OUT+2}, {X_BYTES}")
    A(f"s_mov_b32 s{SRD_OUT+3}, 0x20000")
    A(f"s_mov_b32 s{sT5}, 0x{EPS6:x}")
    A("s_waitcnt vmcnt(0)")
    A("s_barrier")
    STM(4)
    P2M(0)
    A(f"s_cmp_eq_u32 s{sW}, {POLLW}")
    A("s_cbranch_scc1 F_pollw")
    w_late()
    A("s_barrier")
    A("s_branch F_go")

    def flag():
        A(f"v_mov_b32 v1, 0x{OOB:x}")
        A("v_cmp_eq_u32 vcc, 0, v0")
        A(f"s_lshl_b32 s{sT0}, s{sRB}, 5")
        A(f"s_add_u32 s{sT0}, s{sT0}, s{sCB}")
        A(f"s_lshl_b32 s{sT0}, s{sT0}, 4")
        A(f"s_add_u32 s{sT0}, s{sT0}, {OFF_FL}")
        A(f"v_mov_b32 v2, s{sT0}")
        A("v_cndmask_b32 v1, v1, v2, vcc")
        A("v_mov_b32 v2, 1")
        A("v_mov_b32 v3, 2")
        for l in granule_finish(2):
            A(l)
        A(f"buffer_store_dwordx4 v[2:5], v1, s[{SRD_WS}:{SRD_WS+3}], 0 offen sc1")
    A.label("F_pollw")
    if prio:
        A("s_setprio 3")
    flag()
    A(f"s_mov_b32 s{sCnt}, 0")
    A(f"s_lshl_b32 s{sT0}, s{qRB}, 9")
    A(f"s_add_u32 s{sT0}, s{sT0}, {OFF_FL}")
    A(f"v_mov_b32 v1, 0x{OOB:x}")
    A("v_cmp_gt_u32 vcc, 32, v0")
    A(f"v_cndmask_b32 v1, v1, v{pL16}, vcc")
    A.label("F_poll0")
    A(f"buffer_load_dwordx4 {vr(96,4)}, v1, s[{SRD_WS}:{SRD_WS+3}], s{sT0} offen sc1")
    A("s_waitcnt vmcnt(0)")
    for l in granule_check(96, 2, sOk):
        A(l)
    A(f"s_cmp_eq_u32 s{sOk}, -1")
    A("s_cbranch_scc1 F_poll1")
    A(f"s_add_u32 s{sCnt}, s{sCnt}, 1")
    if opts.get("psleep", 4):
        A(f"s_sleep {opts.get('psleep', 4)}")
    A(f"s_cmp_lt_u32 s{sCnt}, {SPINMAX}")
    A("s_cbranch_scc1 F_poll0")
    A.label("F_poll1")
    A(f"s_mov_b32 s{sT0}, {OFF_FL}")
    for j in range(4):
        A(f"buffer_load_dwordx4 {vr(96+4*j,4)}, v{pL16}, s[{SRD_WS}:{SRD_WS+3}], s{sT0} offen offset:{j*1024} sc1")
    A(f"s_mov_b64 s[{sOk2}:{sOk2+1}], -1")
    for j in range(4):
        A(f"s_waitcnt vmcnt({3-j})")
        for l in granule_check(96 + 4 * j, 2, sOk):
            A(l)
        A(f"s_and_b64 s[{sOk2}:{sOk2+1}], s[{sOk2}:{sOk2+1}], s[{sOk}:{sOk+1}]")
    A(f"s_cmp_eq_u64 s[{sOk2}:{sOk2+1}], -1")
    A("s_cbranch_scc1 F_polled")
    A(f"s_add_u32 s{sCnt}, s{sCnt}, 1")
    if opts.get("psleep", 4):
        A(f"s_sleep {opts.get('psleep', 4)}")
    A(f"s_cmp_lt_u32 s{sCnt}, {SPINMAX}")
    A("s_cbranch_scc1 F_poll1")
    A.label("F_polled")
    if prio:
        A("s_setprio 0")
    A("s_barrier")
    w_late()
    A.label("F_go")
    STM(5)
    P2M(1)

    issued = []

    def ld(tag, ins):
        A(ins)
        issued.append(tag)

    def wait_for(tag):
        idx = max(i for i, t in enumerate(issued) if t == tag)
        A(f"s_waitcnt vmcnt({min(63, len(issued) - 1 - idx)})")

    NR = opts.get("ring", 10)

    def hslot(ks):
        return RING + (ks % NR) * 8

    def h_loads(ks):
        A(f"s_add_u32 s{qA0}, s{qH0}, s{qKh}")
        A(f"s_add_u32 s{qA1}, s{qH1}, s{qKh}")
        for ri, so in enumerate((qA0, qA1)):
            ld(("h", ks), f"buffer_load_dwordx4 {vr(hslot(ks)+4*ri,4)}, v{pL16}, s[{SRD_WS}:{SRD_WS+3}], s{so} offen")
        if ks < 13:
            A(f"s_add_u32 s{qKh}, s{qKh}, 1024")
            A(f"s_cmp_eq_u32 s{qKh}, 14336")
            A(f"s_cselect_b32 s{qKh}, 0, s{qKh}")

    def wslot(ks):
        return ks if ks < 6 else (ks - 6) % 6

    def rowof(slot, h):
        return 8 + 2 * slot + h if slot < 6 else 2 * (slot - 6) + h

    def tr_reads(dst, slot):
        o = []
        for ci in range(2):
            for h in range(2):
                r = rowof(slot, h)
                o.append(f"ds_read_b64_tr_b16 {vr(dst+4*ci+2*h,2)}, v{pTB[r//8][ci]} offset:{(r%8)*8192}")
        return o

    if opts.get("touch", 1):
        ld("t", f"buffer_load_dword v1, v{pTch}, s[{SRD_WS}:{SRD_WS+3}], 0 offen")
    for s_ in tr_reads(WF[0], 0):
        A(s_)
    for ks in range(NR):
        h_loads(ks)
        if ks == 0:
            ld("r", f"buffer_load_dword v{pIr}, v6, s[{SRD_WS}:{SRD_WS+3}], s{qST} offen sc1")
            ld("r", f"buffer_load_dword v{pIr+1}, v6, s[{SRD_WS}:{SRD_WS+3}], s{qST} offen offset:512 sc1")
            ld("r", f"buffer_load_dword v{pRf}, v7, s[{SRD_WS}:{SRD_WS+3}], s{qST} offen sc1")
    KVR = [WRAW, WRAW + 16]
    PQR = [WRAW + 32, WRAW + 48]
    DB = [RING + 32, RING]
    OP = [RING + 64, WRAW + 32]
    WOF = [None, WRAW]

    def extra_loads(i):
        o = []
        if 1 <= i <= 4:
            hh, half = (i - 1) >> 1, (i - 1) & 1
            if i == 3:
                o.append((None, f"s_add_u32 s{qKV}, s{qKV}, 4096"))
            for r in range(8 * half, 8 * half + 8):
                o.append((("kv", hh), f"buffer_load_dword v{KVR[hh]+r}, v{pL4}, s[{SRD_WS}:{SRD_WS+3}], s{qKV} offen offset:{r*256}"))
        if 5 <= i <= 8:
            hh, t = (i - 5) >> 1, (i - 5) & 1
            for ri, so in enumerate((qP0, qP1)):
                o.append((("pq", hh), f"buffer_load_dwordx4 {vr(PQR[hh]+8*t+4*ri,4)}, v{pL16}, s[{SRD_WS}:{SRD_WS+3}], s{so} offen offset:{(hh*2+t)*1024}"))
        return o

    def att_kv(hh):
        o = []
        for ri in range(2):
            for t in range(2):
                c = "0" if t == 0 else vr(DB[hh] + 16 * ri, 16)
                o.append(f"v_mfma_f32_32x32x16_bf16 {vr(DB[hh]+16*ri,16)}, {vr(KVR[hh]+4*t,4)}, {vr(PQR[hh]+8*t+4*ri,4)}, {c}")
        return o

    def att_norm(hh):
        o = []
        D_ = DB[hh]
        for ri in range(2):
            t0, t1 = pTmp + 2 * ri, pTmp + 2 * ri + 1
            o.append(f"v_mov_b32 v{t0}, v{D_+16*ri+12}\nv_mov_b32 v{t1}, v{D_+16*ri+12}")
        o.append("s_nop 0\n" + "\n".join(f"v_permlane32_swap_b32 v{pTmp+2*ri}, v{pTmp+2*ri+1}" for ri in range(2)))
        o.append("s_nop 0\n" + "\n".join(f"v_add_f32 v{pTmp+2*ri}, s{sT5}, v{pTmp+2*ri}" for ri in range(2)))
        o.append("\n".join(f"v_rcp_f32 v{pTmp+2*ri}, v{pTmp+2*ri}" for ri in range(2)))
        o.append("s_nop 0\n" + "\n".join(f"v_mul_f32 v{pTmp+2*ri}, v{pTmp+2*ri}, v{pIr+ri}" for ri in range(2)))
        for ri in range(2):
            d = D_ + 16 * ri
            t0 = pTmp + 2 * ri
            for r in range(8):
                o.append(f"v_mul_f32 v{d+2*r}, v{d+2*r}, v{t0}\nv_mul_f32 v{d+2*r+1}, v{d+2*r+1}, v{t0}\n"
                         f"v_cvt_pk_bf16_f32 v{OP[hh]+8*ri+r}, v{d+2*r}, v{d+2*r+1}")
        return o

    def att_wo(hh, wf):
        o = []
        for t in range(2):
            for ci in range(2):
                for ri in range(2):
                    d = acc2(ci, ri)
                    o.append(f"v_mfma_f32_32x32x16_bf16 {vr(d,16)}, {vr(wf[t]+4*ci,4)}, {vr(OP[hh]+8*ri+4*t,4)}, {vr(d,16)}")
        return o

    def run(mf, fills):
        n = len(mf)
        for i, m in enumerate(mf):
            A(m)
            for u in fills[i * len(fills) // n:(i + 1) * len(fills) // n]:
                if isinstance(u, tuple):
                    if u[0] is None:
                        A(u[1])
                    else:
                        ld(u[0], u[1])
                else:
                    A(u)

    def kv_cvt(hh):
        return [f"v_cvt_pk_bf16_f32 v{KVR[hh]+r}, v{KVR[hh]+2*r}, v{KVR[hh]+2*r+1}" for r in range(8)]

    assert NR == 10
    P2M(2)
    for i in range(14):
        A("s_waitcnt lgkmcnt(0)")
        wait_for(("h", i))
        if i in (0, 4, 8):
            P2M(3 + i // 4)
        wf = WF[i & 1]
        hs = hslot(i)
        mf = []
        for ci in range(2):
            for ri in range(2):
                c = "0" if i == 0 else vr(acc2(ci, ri), 16)
                mf.append(f"v_mfma_f32_32x32x16_bf16 {vr(acc2(ci,ri),16)}, {vr(wf+4*ci,4)}, {vr(hs+4*ri,4)}, {c}")
        fills = []
        fills += tr_reads(WF[(i + 1) & 1], wslot(i + 1) if i < 13 else 6)
        if i <= 7:
            for j in range(2):
                r = rowof(i % 6, j)
                fills.append(f"ds_write_b128 v{pStg1 if r < 16 else pStg2}, {vr(WRAW+8*i+4*j,4)} offset:{(r%8)*8192}")
        fills += extra_loads(i)
        if i == 1:
            fills.append(f"v_mul_f32 v{pIr}, v{pIr}, v{pIr}\nv_mul_f32 v{pIr+1}, v{pIr+1}, v{pIr+1}\nv_mul_f32 v{pRf}, v{pRf}, v{pRf}")
            fills.append(f"v_rcp_f32 v{pIr}, v{pIr}\nv_rcp_f32 v{pIr+1}, v{pIr+1}")
        if i == 11:
            fills += kv_cvt(0)
        if i == 12:
            fills += att_norm(0)[:8]
        if i == 13:
            fills += att_norm(0)[8:] + kv_cvt(1)
        run(mf, fills)
        if i + NR < 14:
            h_loads(i + NR)
        if i == 10:
            wait_for(("kv", 1))
        if i == 11:
            wait_for(("pq", 0))
            A("s_nop 1")
            run(att_kv(0), [])
            A("s_nop 7")
            A("s_nop 3")
    ST.mark(6)
    wait_for(("pq", 1))
    run(att_kv(1), tr_reads(WF[1], 7) + tr_reads(WOF[1], 8) + tr_reads(WOF[1] + 8, 9))
    A("s_waitcnt lgkmcnt(0)")
    n1 = att_norm(1)
    mf = att_wo(0, WF)
    for i, m in enumerate(mf):
        A(m)
        if i >= 2:
            k0 = (i - 2) * len(n1) // 6
            k1 = (i - 1) * len(n1) // 6
            for u in n1[k0:k1]:
                A(u)
    A("s_nop 1")
    run(att_wo(1, [WOF[1], WOF[1] + 8]), [])
    A("v_and_b32 v4, 31, v0")
    A("v_lshrrev_b32 v5, 2, v4")
    A("v_lshlrev_b32 v5, 14, v5")
    A("v_and_b32 v6, 3, v0")
    A("v_lshl_add_u32 v5, v6, 8, v5")
    A("v_lshrrev_b32 v6, 5, v0")
    A("v_and_b32 v4, 15, v4")
    A("v_xor_b32 v4, v4, v6")
    A("v_lshl_add_u32 v4, v4, 4, v5")
    A(f"v_add_u32 v4, s{qLB}, v4")
    for k in range(1, 8):
        A(f"v_xor_b32 v{RING+k}, {k << 5}, v4")
    wa = [4] + [RING + k for k in range(1, 8)]
    A(f"s_and_b32 s{sT0}, s{sW}, 3")
    A(f"s_lshl_b32 s{sT0}, s{sT0}, 15")
    A(f"s_lshr_b32 s{sT1}, s{sW}, 2")
    A(f"s_lshl_b32 s{sT1}, s{sT1}, 13")
    A(f"s_add_u32 s{sT0}, s{sT0}, s{sT1}")
    A("v_lshrrev_b32 v5, 5, v0")
    A("v_lshlrev_b32 v5, 14, v5")
    A("v_lshrrev_b32 v6, 3, v0")
    A("v_and_b32 v7, 3, v6")
    A("v_lshl_add_u32 v5, v7, 8, v5")
    A(f"s_and_b32 s{sT1}, s{sW}, 1")
    A(f"s_lshl_b32 s{sT1}, s{sT1}, 3")
    A(f"v_add_u32 v6, s{sT1}, v6")
    A("v_and_b32 v7, 7, v0")
    A("v_lshlrev_b32 v7, 1, v7")
    A("v_xor_b32 v6, v6, v7")
    A("v_lshl_add_u32 v5, v6, 4, v5")
    A(f"v_add_u32 v5, s{sT0}, v5")
    A("v_xor_b32 v6, 16, v5")
    for ri in range(2):
        for ci in range(2):
            d = acc2(ci, ri)
            for j in range(4):
                A(f"ds_write_b128 v{wa[ci*4+j]}, {vr(d+4*j,4)} offset:{ri*8192}")
    X = 96
    for i in range(4):
        A(f"v_lshlrev_b32 v{X+2*i}, 16, v{pX+i}")
        A(f"v_and_b32 v{X+2*i+1}, s{sHi}, v{pX+i}")
    A("s_waitcnt lgkmcnt(0)")
    A("s_barrier")
    R = 24
    for p_ in range(8):
        for i in range(2):
            A(f"ds_read_b128 {vr(R+8*p_+4*i,4)}, v{5+i} offset:{p_*1024}")
    for p_ in range(0, 8, 2):
        A(f"s_waitcnt lgkmcnt({12 - 2*p_})")
        for r in range(8):
            A(f"v_add_f32 v{R+8*p_+r}, v{R+8*p_+r}, v{R+8*p_+8+r}")
    for r in range(8):
        A(f"v_add_f32 v{R+r}, v{R+r}, v{R+16+r}")
        A(f"v_add_f32 v{R+32+r}, v{R+32+r}, v{R+48+r}")
    for r in range(8):
        A(f"v_add_f32 v{R+r}, v{R+r}, v{R+32+r}")
    for r in range(8):
        A(f"v_fma_f32 v{R+r}, v{R+r}, v{pRf}, v{X+r}")
    for r in range(4):
        A(f"v_cvt_pk_bf16_f32 v{104+r}, v{R+2*r}, v{R+2*r+1}")
    A("s_waitcnt lgkmcnt(0)")
    A(f"buffer_store_dwordx4 v[104:107], v{pOut}, s[{SRD_OUT}:{SRD_OUT+3}], s{qXo} offen" + {0: "", 1: " sc1", 2: " nt", 3: " sc0 sc1", 4: " sc1 nt"}[opts.get("osc", 0)])
    ST.dump(sW, SRD_WS, sT2)
    A("s_endpgm")
    A.label("F_spare")
    A("s_waitcnt vmcnt(0) lgkmcnt(0)")
    A("s_barrier")
    A(f"s_cmp_lg_u32 s{sW}, {POLLW}")
    A("s_cbranch_scc1 F_spare_end")
    flag()
    A.label("F_spare_end")
    ST.dump(sW, SRD_WS, sT2)
    A("s_endpgm")


pKVF, pPol, pRfA = 7, 121, 120
qKF, qPF = 56, 57


def phase2c(A, opts):
    prio = opts.get("prio", 1)
    POLLW = opts.get("pollw", 0)
    rot2 = opts.get("rot2", 1)
    A.label("F_bridge")
    A(f"s_load_dwordx2 s[{SRD_OUT}:{SRD_OUT+1}], s[0:1], 56")
    A(f"s_and_b32 s{sT0}, s2, 7")
    A(f"s_lshr_b32 s{sT1}, s2, 3")
    A(f"s_cmp_lt_u32 s{sT1}, 4")
    A("s_cbranch_scc1 F_spare")
    A(f"s_sub_u32 s{sT1}, s{sT1}, 4")
    A(f"s_mul_i32 s{sT2}, s{sT1}, 37")
    A(f"s_lshr_b32 s{sT2}, s{sT2}, 8")
    A(f"s_mul_i32 s{sT3}, s{sT2}, 7")
    A(f"s_sub_u32 s{sT3}, s{sT1}, s{sT3}")
    if opts.get("rbmap", 1):
        A(f"s_and_b32 s{sT4}, s{sT0}, 1")
        A(f"s_lshl_b32 s{sT4}, s{sT4}, 2")
        A(f"s_lshr_b32 s{sT0}, s{sT0}, 1")
        A(f"s_add_u32 s{sT0}, s{sT0}, s{sT4}")
    A(f"s_mov_b32 s{qRB}, s{sT0}")
    A(f"s_lshl_b32 s{qRB64}, s{sT0}, 2")
    A(f"s_add_u32 s{qRB64}, s{qRB64}, s{sT2}")
    A(f"s_mul_i32 s{qKh}, s{sT3}, {2048 if rot2 else 0}")
    A(f"s_mul_i32 s{qKw}, s{sT3}, {2 if rot2 else 0}")
    A(f"s_add_u32 s{qKw}, s{qKw}, 6")
    A(f"s_cmp_ge_u32 s{qKw}, 14")
    A(f"s_cselect_b32 s{sT5}, 14, 0")
    A(f"s_sub_u32 s{qKw}, s{qKw}, s{sT5}")
    A(f"s_mul_i32 s{qKw}, s{qKw}, 14336")
    A(f"s_lshl_b32 s{sT3}, s{sT3}, 7")
    A(f"s_lshl_b32 s{qLB}, s{sW}, 10")
    A(f"s_mul_i32 s{qWD}, s{sW}, {224*896}")
    A(f"s_add_u32 s{qWD}, s{qWD}, s{sT3}")
    A(f"s_mul_i32 s{qWO}, s{sW}, {56*896}")
    A(f"s_add_u32 s{qWO}, s{qWO}, s{sT3}")
    A("v_lshrrev_b32 v1, 3, v0")
    A("v_lshrrev_b32 v2, 4, v0")
    A("v_and_b32 v2, 1, v2")
    A("v_lshlrev_b32 v2, 2, v2")
    A("v_and_b32 v3, 7, v0")
    A("v_xor_b32 v3, v3, v2")
    A("v_lshlrev_b32 v3, 4, v3")
    A(f"v_mul_u32_u24 v{pW}, 896, v1")
    A(f"v_add_u32 v{pW}, v{pW}, v3")
    A(f"v_lshlrev_b32 v{pL16}, 4, v0")
    A(f"v_subrev_u32 v{pWsp}, {4*896}, v{pW}")
    A(f"v_mov_b32 v1, 0x{OOB:x}")
    A("v_cmp_gt_u32 vcc, 32, v0")
    A(f"v_cndmask_b32 v{pWsp}, v{pWsp}, v1, vcc")

    def w_late():
        if not opts.get("early", 1):
            A(f"s_mul_i32 s{sT0}, s{qKh}, 14")
            for s_ in range(6):
                for h_ in range(2):
                    A(f"s_add_u32 m0, s{qLB}, {(8 + 2*s_ + h_)*8192}")
                    A(f"s_add_u32 s{sT1}, s{qWD}, s{sT0}")
                    if h_:
                        A(f"s_add_u32 s{sT1}, s{sT1}, 7168")
                    A(f"buffer_load_dwordx4 v{pW}, s[{SRD_WD}:{SRD_WD+3}], s{sT1} offen lds")
                A(f"s_add_u32 s{sT0}, s{sT0}, 14336")
                A(f"s_cmp_eq_u32 s{sT0}, {14*14336}")
                A(f"s_cselect_b32 s{sT0}, 0, s{sT0}")

        def wo_loads():
            A(f"s_mov_b32 m0, s{qLB}")
            A(f"s_mov_b32 s{sT1}, s{qWO}")
            for hh in range(2):
                for j in range(4):
                    if hh or j:
                        A("s_add_u32 m0, m0, 8192")
                        A(f"s_add_u32 s{sT1}, s{sT1}, {7168 if j else 4*896}")
                    else:
                        A("s_nop 0")
                    A(f"buffer_load_dwordx4 v{pWsp if j == 3 else pW}, s[{SRD_WO}:{SRD_WO+3}], s{sT1} offen lds")

        def raw_loads():
            A(f"s_mov_b32 s{sT2}, s{qKw}")
            for i in range(8):
                A(f"s_add_u32 s{sT1}, s{qWD}, s{sT2}")
                A(f"buffer_load_dwordx4 {vr(WRAW+8*i,4)}, v{pW}, s[{SRD_WD}:{SRD_WD+3}], s{sT1} offen")
                A(f"s_add_u32 s{sT1}, s{sT1}, 7168")
                A(f"buffer_load_dwordx4 {vr(WRAW+8*i+4,4)}, v{pW}, s[{SRD_WD}:{SRD_WD+3}], s{sT1} offen")
                if i < 7:
                    A(f"s_add_u32 s{sT2}, s{sT2}, 14336")
                    A(f"s_cmp_eq_u32 s{sT2}, {14*14336}")
                    A(f"s_cselect_b32 s{sT2}, 0, s{sT2}")
        if opts.get("wofirst", 0):
            wo_loads()
            raw_loads()
        else:
            raw_loads()
            wo_loads()

    A(f"s_lshl_b32 s{sT5}, s{sW}, 3")
    A("v_lshrrev_b32 v1, 3, v0")
    A(f"v_add_u32 v1, s{sT5}, v1")
    A("v_and_b32 v2, 7, v0")
    A(f"v_mul_u32_u24 v{pOut}, 896, v1")
    A(f"v_lshl_add_u32 v{pOut}, v2, 4, v{pOut}")
    A(f"s_mul_i32 s{qXo}, s{qRB64}, {64*896}")
    A(f"s_add_u32 s{qXo}, s{qXo}, s{sT3}")
    A(f"buffer_load_dwordx4 {vr(pX,4)}, v{pOut}, s[{SRD_X}:{SRD_X+3}], s{qXo} offen")
    A(f"v_lshlrev_b32 v{pRfA}, 4, v1")
    A("v_and_b32 v6, 31, v0")
    A("v_lshlrev_b32 v6, 4, v6")
    A(f"v_lshlrev_b32 v{pL4}, 2, v0")
    A(f"v_add_u32 v{pStg1}, s{qLB}, v{pL16}")
    A(f"v_add_u32 v{pStg2}, {2*65536}, v{pStg1}")
    A(f"v_add_u32 v{pStg1}, {65536}, v{pStg1}")
    A("v_lshrrev_b32 v1, 2, v0")
    A("v_and_b32 v1, 3, v1")
    A("v_and_b32 v2, 3, v0")
    A("v_lshrrev_b32 v3, 5, v0")
    A("v_lshrrev_b32 v4, 4, v0")
    A("v_and_b32 v4, 1, v4")
    A("v_lshl_add_u32 v5, v3, 2, v1")
    A("v_lshrrev_b32 v1, 1, v1")
    A("v_lshrrev_b32 v3, 1, v2")
    A("v_lshl_add_u32 v3, v4, 1, v3")
    A("v_lshlrev_b32 v1, 2, v1")
    A("v_xor_b32 v3, v3, v1")
    A("v_lshlrev_b32 v3, 4, v3")
    A("v_and_b32 v2, 1, v2")
    A("v_lshl_add_u32 v3, v2, 3, v3")
    A("v_lshl_add_u32 v3, v5, 7, v3")
    A(f"v_add_u32 v{pTB[0][0]}, s{qLB}, v3")
    A(f"v_xor_b32 v{pTB[0][1]}, 64, v{pTB[0][0]}")
    for b in (1, 2):
        for ci in range(2):
            A(f"v_add_u32 v{pTB[b][ci]}, {b*65536}, v{pTB[0][ci]}")
    A(f"s_mul_i32 s{qH0}, s{qRB64}, {2*112*1024}")
    A(f"s_mul_i32 s{sT0}, s{sW}, {14*1024}")
    A(f"s_add_u32 s{qH0}, s{qH0}, s{sT0}")
    if OFF_H:
        A(f"s_add_u32 s{qH0}, s{qH0}, {OFF_H}")
    A(f"s_add_u32 s{qH1}, s{qH0}, {112*1024}")
    A(f"s_lshl_b32 s{sT0}, s{sW}, 12")
    A(f"s_lshl_b32 s{qP0}, s{qRB64}, 16")
    A(f"s_add_u32 s{qP0}, s{qP0}, s{sT0}")
    A(f"s_add_u32 s{qP0}, s{qP0}, {OFF_PQ}")
    A(f"s_add_u32 s{qP1}, s{qP0}, 32768")
    A(f"s_lshl_b32 s{qKV}, s{sW}, 13")
    A(f"s_add_u32 s{qKV}, s{qKV}, {OFF_KVS}")
    A(f"s_lshl_b32 s{qST}, s{qRB64}, 10")
    A(f"s_add_u32 s{qST}, s{qST}, {OFF_ST + 4}")
    A(f"s_mov_b32 s{SRD_OUT+2}, {X_BYTES}")
    A(f"s_mov_b32 s{SRD_OUT+3}, 0x20000")
    A(f"s_mov_b32 s{sT5}, 0x{EPS6:x}")
    A(f"v_mov_b32 v1, 0x{OOB:x}")
    A("v_cmp_gt_u32 vcc, 16, v0")
    A(f"v_cndmask_b32 v{pKVF}, v1, v{pL16}, vcc")
    A(f"s_lshl_b32 s{qKF}, s{sW}, 8")
    A(f"s_add_u32 s{qKF}, s{qKF}, {OFF_FL + 4096}")

    def flag_prep():
        A(f"s_lshl_b32 s{sT0}, s{sRB}, 5")
        A(f"s_add_u32 s{sT0}, s{sT0}, s{sCB}")
        A(f"s_lshl_b32 s{sT0}, s{sT0}, 4")
        A(f"s_add_u32 s{sT0}, s{sT0}, {OFF_FL}")
        A(f"s_lshl_b32 s{sT1}, s{sCB}, 3")
        A(f"s_add_u32 s{sT1}, s{sT1}, s{sRB}")
        A(f"s_lshl_b32 s{sT1}, s{sT1}, 4")
        A(f"s_add_u32 s{sT1}, s{sT1}, {OFF_FL + 4096}")
        A(f"s_cmp_lt_u32 s{sCB}, 16")
        A(f"s_cselect_b32 s{sT1}, s{sT1}, 0x{OOB:x}")
        A(f"v_mov_b32 v1, 0x{OOB:x}")
        A(f"v_mov_b32 v2, s{sT0}")
        A("v_cmp_eq_u32 vcc, 0, v0")
        A("v_cndmask_b32 v1, v1, v2, vcc")
        A(f"v_mov_b32 v2, s{sT1}")
        A("v_cmp_eq_u32 vcc, 1, v0")
        A("v_cndmask_b32 v1, v1, v2, vcc")
        A("v_mov_b32 v2, 1")
        A("v_mov_b32 v3, 2")
        for l in granule_finish(2):
            A(l)

    def flag_store():
        A(f"buffer_store_dwordx4 v[2:5], v1, s[{SRD_WS}:{SRD_WS+3}], 0 offen sc1")
    flag_prep()
    A(f"s_lshl_b32 s{qPF}, s{qRB}, 9")
    A(f"s_add_u32 s{qPF}, s{qPF}, {OFF_FL}")
    A(f"v_mov_b32 v{pPol}, 0x{OOB:x}")
    A("v_cmp_gt_u32 vcc, 32, v0")
    A(f"v_cndmask_b32 v{pPol}, v{pPol}, v{pL16}, vcc")
    A(f"s_cmp_eq_u32 s{sW}, {POLLW}")
    A("s_cbranch_scc0 F_np0")
    if prio:
        A("s_setprio 3")
    A.label("F_np0")
    A("s_waitcnt vmcnt(0)")
    A("s_barrier")
    A(f"s_cmp_eq_u32 s{sW}, {POLLW}")
    A("s_cbranch_scc1 F_pollw")
    STM(4)
    P2M(0)
    if opts.get("wdelay"):
        A(f"s_sleep {opts.get('wdelay')}")
    w_late()
    A("s_barrier")
    A("s_branch F_go")
    A.label("F_pollw")
    flag_store()
    STM(4)
    P2M(0)
    A(f"s_mov_b32 s{sCnt}, 0")
    NP = opts.get("npoll", 3)
    PR = [RING + 4 * k for k in range(NP)]

    def poll(k):
        A(f"buffer_load_dwordx4 {vr(PR[k],4)}, v{pPol}, s[{SRD_WS}:{SRD_WS+3}], s{qPF} offen sc1")
    for k in range(NP):
        poll(k)
        if k < NP - 1:
            A(f"s_sleep {opts.get('pgap', 4)}")
    A.label("F_poll0")
    for k in range(NP):
        A(f"s_waitcnt vmcnt({NP-1})")
        for l in granule_check(PR[k], 2, sOk):
            A(l)
        A(f"s_cmp_eq_u32 s{sOk}, -1")
        A("s_cbranch_scc1 F_polled")
        if NP == 1 and opts.get("psleep", 4):
            A(f"s_sleep {opts.get('psleep', 4)}")
        poll(k)
    A(f"s_add_u32 s{sCnt}, s{sCnt}, 1")
    A(f"s_cmp_lt_u32 s{sCnt}, {SPINMAX}")
    A("s_cbranch_scc1 F_poll0")
    A.label("F_polled")
    if prio:
        A("s_setprio 0")
    A("s_barrier")
    w_late()
    A.label("F_go")
    STM(5)
    P2M(1)

    issued = []

    def ld(tag, ins):
        A(ins)
        issued.append(tag)

    def wait_for(tag):
        idx = max(i for i, t in enumerate(issued) if t == tag)
        A(f"s_waitcnt vmcnt({min(63, len(issued) - 1 - idx)})")

    NR = 6
    D = opts.get("hd", 5)

    def hslot(ks):
        return RING + (ks % NR) * 8

    def h_loads(ks):
        A(f"s_add_u32 s{qA0}, s{qH0}, s{qKh}")
        A(f"s_add_u32 s{qA1}, s{qH1}, s{qKh}")
        for ri, so in enumerate((qA0, qA1)):
            ld(("h", ks), f"buffer_load_dwordx4 {vr(hslot(ks)+4*ri,4)}, v{pL16}, s[{SRD_WS}:{SRD_WS+3}], s{so} offen")
        if ks < 13:
            A(f"s_add_u32 s{qKh}, s{qKh}, 1024")
            A(f"s_cmp_eq_u32 s{qKh}, 14336")
            A(f"s_cselect_b32 s{qKh}, 0, s{qKh}")

    def wslot(ks):
        return ks if ks < 6 else (ks - 6) % 6

    def rowof(slot, h):
        return 8 + 2 * slot + h if slot < 6 else 2 * (slot - 6) + h

    def tr_reads(dst, slot):
        o = []
        for ci in range(2):
            for h in range(2):
                r = rowof(slot, h)
                o.append(f"ds_read_b64_tr_b16 {vr(dst+4*ci+2*h,2)}, v{pTB[r//8][ci]} offset:{(r%8)*8192}")
        return o

    for s_ in tr_reads(WF[0], 0):
        A(s_)
    for ks in range(D):
        h_loads(ks)
        if ks == 0:
            ld("r", f"buffer_load_dword v{pIr}, v6, s[{SRD_WS}:{SRD_WS+3}], s{qST} offen sc1")
            ld("r", f"buffer_load_dword v{pIr+1}, v6, s[{SRD_WS}:{SRD_WS+3}], s{qST} offen offset:512 sc1")
            ld("r", f"buffer_load_dword v{pRf}, v{pRfA}, s[{SRD_WS}:{SRD_WS+3}], s{qST} offen sc1")
    KVR = [64, 80]
    PQR = [WRAW, WRAW + 16]
    DB = [[WRAW + 32, WRAW + 48], [KVR[0], PQR[0]]]

    def kv_loads(hh):
        o = []
        if hh == 1:
            o.append((None, f"s_add_u32 s{qKV}, s{qKV}, 4096"))
        for r in range(16):
            o.append((("kv", hh), f"buffer_load_dword v{KVR[hh]+r}, v{pL4}, s[{SRD_WS}:{SRD_WS+3}], s{qKV} offen offset:{r*256}"))
        return o

    def pq_loads(hh):
        o = []
        for t in range(2):
            for ri, so in enumerate((qP0, qP1)):
                o.append((("pq", hh), f"buffer_load_dwordx4 {vr(PQR[hh]+8*t+4*ri,4)}, v{pL16}, s[{SRD_WS}:{SRD_WS+3}], s{so} offen offset:{(hh*2+t)*1024}"))
        return o

    def att_kv(hh):
        o = []
        for ri in range(2):
            for t in range(2):
                c = "0" if t == 0 else vr(DB[hh][ri], 16)
                o.append(f"v_mfma_f32_32x32x16_bf16 {vr(DB[hh][ri],16)}, {vr(KVR[hh]+4*t,4)}, {vr(PQR[hh]+8*t+4*ri,4)}, {c}")
        return o

    def att_norm(hh):
        o = []
        for ri in range(2):
            t0, t1 = pTmp + 2 * ri, pTmp + 2 * ri + 1
            o.append(f"v_mov_b32 v{t0}, v{DB[hh][ri]+12}\nv_mov_b32 v{t1}, v{DB[hh][ri]+12}")
        o.append("s_nop 0\n" + "\n".join(f"v_permlane32_swap_b32 v{pTmp+2*ri}, v{pTmp+2*ri+1}" for ri in range(2)))
        o.append("s_nop 0\n" + "\n".join(f"v_add_f32 v{pTmp+2*ri}, s{sT5}, v{pTmp+2*ri}" for ri in range(2)))
        o.append("\n".join(f"v_rcp_f32 v{pTmp+2*ri}, v{pTmp+2*ri}" for ri in range(2)))
        o.append("s_nop 0\n" + "\n".join(f"v_mul_f32 v{pTmp+2*ri}, v{pTmp+2*ri}, v{pIr+ri}" for ri in range(2)))
        for ri in range(2):
            d = DB[hh][ri]
            t0 = pTmp + 2 * ri
            for r in range(8):
                o.append(f"v_mul_f32 v{d+2*r}, v{d+2*r}, v{t0}\nv_mul_f32 v{d+2*r+1}, v{d+2*r+1}, v{t0}\n"
                         f"v_cvt_pk_bf16_f32 v{d+r}, v{d+2*r}, v{d+2*r+1}")
        return o

    def wo_reads(hh):
        o = []
        for t in range(2):
            o += tr_reads(DB[hh][t] + 8, 6 + 2 * hh + t)
        return o

    def att_wo(hh):
        o = []
        for t in range(2):
            for ci in range(2):
                for ri in range(2):
                    d = acc2(ci, ri)
                    o.append(f"v_mfma_f32_32x32x16_bf16 {vr(d,16)}, {vr(DB[hh][t]+8+4*ci,4)}, {vr(DB[hh][ri]+4*t,4)}, {vr(d,16)}")
        return o

    def run(mf, fills):
        n = len(mf)
        for i, m in enumerate(mf):
            A(m)
            for u in fills[i * len(fills) // n:(i + 1) * len(fills) // n]:
                if isinstance(u, tuple):
                    if u[0] is None:
                        A(u[1])
                    else:
                        ld(u[0], u[1])
                elif callable(u):
                    u()
                else:
                    A(u)

    def kv_cvt(hh):
        return [f"v_cvt_pk_bf16_f32 v{KVR[hh]+r}, v{KVR[hh]+2*r}, v{KVR[hh]+2*r+1}" for r in range(8)]

    def kvf_check():
        wait_for("kvf")
        for l in granule_check(pTmp, 2, sOk):
            A(l)
        A(f"s_and_b32 s{sOk}, s{sOk}, 0xffff")
        A(f"s_cmp_eq_u32 s{sOk}, 0xffff")
        A("s_cbranch_scc0 F_kvslow")
        A.label("F_kvok")

    red_setup = []
    red_setup.append("v_and_b32 v4, 31, v0\nv_lshrrev_b32 v5, 2, v4\nv_lshlrev_b32 v5, 14, v5\nv_and_b32 v6, 3, v0\nv_lshl_add_u32 v5, v6, 8, v5")
    red_setup.append(f"v_lshrrev_b32 v6, 5, v0\nv_and_b32 v4, 15, v4\nv_xor_b32 v4, v4, v6\nv_lshl_add_u32 v4, v4, 4, v5\nv_add_u32 v4, s{qLB}, v4")
    red_setup.append(f"s_and_b32 s{sT0}, s{sW}, 3\ns_lshl_b32 s{sT0}, s{sT0}, 15\ns_lshr_b32 s{sT1}, s{sW}, 2\ns_lshl_b32 s{sT1}, s{sT1}, 13\n"
                     f"s_add_u32 s{sT0}, s{sT0}, s{sT1}\nv_lshrrev_b32 v5, 5, v0\nv_lshlrev_b32 v5, 14, v5\nv_lshrrev_b32 v6, 3, v0\n"
                     f"v_and_b32 v7, 3, v6\nv_lshl_add_u32 v5, v7, 8, v5\nv_add_u32 v5, s{sT0}, v5")
    red_setup.append(f"s_and_b32 s{sT1}, s{sW}, 1\ns_lshl_b32 s{sT1}, s{sT1}, 3\nv_add_u32 v6, s{sT1}, v6\nv_and_b32 v7, 7, v0\n"
                     f"v_lshlrev_b32 v7, 1, v7\nv_xor_b32 v6, v6, v7\nv_lshl_add_u32 v5, v6, 4, v5\nv_xor_b32 v6, 16, v5")

    IT_PQ = opts.get("itpq", (2, 4))
    IT_KVF, IT_KV = opts.get("itkvf", 1), (opts.get("itkv0", 3), opts.get("itkv1", 5))
    P2M(2)
    if opts.get("prio2"):
        A(f"s_cmp_ge_u32 s{sW}, 4")
        A("s_cbranch_scc0 F_pr2")
        A(f"s_setprio {opts.get('prio2')}")
        A.label("F_pr2")
    for i in range(14):
        lock = opts.get("lock", 0)
        if lock and i % lock == 0 and i <= opts.get("lockmax", 13):
            A("s_barrier")
        A("s_waitcnt lgkmcnt(0)")
        wait_for(("h", i))
        if i in (0, 4, 8):
            P2M(3 + i // 4)
        wf = WF[i & 1]
        hs = hslot(i)
        mf = []
        for ci in range(2):
            for ri in range(2):
                c = "0" if i == 0 else vr(acc2(ci, ri), 16)
                mf.append(f"v_mfma_f32_32x32x16_bf16 {vr(acc2(ci,ri),16)}, {vr(wf+4*ci,4)}, {vr(hs+4*ri,4)}, {c}")
        fills = []
        if i + D < 14:
            fills.append(lambda ks=i + D: h_loads(ks))
        if i < 13:
            fills += tr_reads(WF[(i + 1) & 1], wslot(i + 1))
        if i <= 7:
            for j in range(2):
                r = rowof(i % 6, j)
                fills.append(f"ds_write_b128 v{pStg1 if r < 16 else pStg2}, {vr(WRAW+8*i+4*j,4)} offset:{(r%8)*8192}")
        if i == IT_KVF:
            fills.append(("kvf", f"buffer_load_dwordx4 {vr(pTmp,4)}, v{pKVF}, s[{SRD_WS}:{SRD_WS+3}], s{qKF} offen sc1"))
        if i in IT_PQ:
            fills += pq_loads(IT_PQ.index(i))
        if i == IT_KV[0]:
            fills.append(kvf_check)
        if i in IT_KV:
            fills += kv_loads(IT_KV.index(i))
        if i == 1:
            fills.append(f"v_mul_f32 v{pIr}, v{pIr}, v{pIr}\nv_mul_f32 v{pIr+1}, v{pIr+1}, v{pIr+1}\nv_mul_f32 v{pRf}, v{pRf}, v{pRf}")
            fills.append(f"v_rcp_f32 v{pIr}, v{pIr}\nv_rcp_f32 v{pIr+1}, v{pIr+1}")
        if i == 6:
            fills += red_setup
        if i == 7:
            X = pX
        if i == 8:
            fills.append(lambda: wait_for(("kv", 0)))
            fills += kv_cvt(0)
            mf2 = att_kv(0)
        elif i == 9:
            n0 = att_norm(0)
            fills += ["s_nop 3"] + n0[:9]
            fills.append(lambda: wait_for(("kv", 1)))
            fills += kv_cvt(1)
            mf2 = att_kv(1)
        elif i == 10:
            fills += n0[9:] + wo_reads(0)
            mf2 = []
        elif i == 11:
            n1 = att_norm(1)
            fills += n1[:10]
            mf2 = att_wo(0)
        elif i == 12:
            fills += n1[10:] + wo_reads(1)
            mf2 = []
        elif i == 13:
            mf2 = att_wo(1)
        else:
            mf2 = []
        if i in (8, 9):
            run(mf, fills)
            wait_for(("pq", i - 8))
            A("s_nop 1")
            run(mf2, [])
        else:
            run(mf + mf2, fills)
    ST.mark(6)
    for k in range(1, 8):
        A(f"v_xor_b32 v{RING+k}, {k << 5}, v4")
    wa = [4] + [RING + k for k in range(1, 8)]
    A("s_nop 3")
    for ri in range(2):
        for ci in range(2):
            d = acc2(ci, ri)
            for j in range(4):
                A(f"ds_write_b128 v{wa[ci*4+j]}, {vr(d+4*j,4)} offset:{ri*8192}")
    X = 96
    for i in range(4):
        A(f"v_lshlrev_b32 v{X+2*i}, 16, v{pX+i}")
        A(f"v_and_b32 v{X+2*i+1}, s{sHi}, v{pX+i}")
    A("s_waitcnt lgkmcnt(0)")
    A("s_barrier")
    R = 24
    for p_ in range(8):
        for i in range(2):
            A(f"ds_read_b128 {vr(R+8*p_+4*i,4)}, v{5+i} offset:{p_*1024}")
    for p_ in range(0, 8, 2):
        A(f"s_waitcnt lgkmcnt({12 - 2*p_})")
        for r in range(8):
            A(f"v_add_f32 v{R+8*p_+r}, v{R+8*p_+r}, v{R+8*p_+8+r}")
    for r in range(8):
        A(f"v_add_f32 v{R+r}, v{R+r}, v{R+16+r}")
        A(f"v_add_f32 v{R+32+r}, v{R+32+r}, v{R+48+r}")
    for r in range(8):
        A(f"v_add_f32 v{R+r}, v{R+r}, v{R+32+r}")
    for r in range(8):
        A(f"v_fma_f32 v{R+r}, v{R+r}, v{pRf}, v{X+r}")
    for r in range(4):
        A(f"v_cvt_pk_bf16_f32 v{104+r}, v{R+2*r}, v{R+2*r+1}")
    A("s_waitcnt lgkmcnt(0)")
    A(f"buffer_store_dwordx4 v[104:107], v{pOut}, s[{SRD_OUT}:{SRD_OUT+3}], s{qXo} offen" + {0: "", 1: " sc1", 2: " nt", 3: " sc0 sc1", 4: " sc1 nt"}[opts.get("osc", 0)])
    ST.dump(sW, SRD_WS, sT2)
    A("s_endpgm")
    A.label("F_kvslow")
    A(f"s_mov_b32 s{sCnt}, 0")
    A.label("F_kvspin")
    A("s_sleep 2")
    A(f"buffer_load_dwordx4 {vr(pTmp,4)}, v{pKVF}, s[{SRD_WS}:{SRD_WS+3}], s{qKF} offen sc1")
    A("s_waitcnt vmcnt(0)")
    for l in granule_check(pTmp, 2, sOk):
        A(l)
    A(f"s_and_b32 s{sOk}, s{sOk}, 0xffff")
    A(f"s_cmp_eq_u32 s{sOk}, 0xffff")
    A("s_cbranch_scc1 F_kvok")
    A(f"s_add_u32 s{sCnt}, s{sCnt}, 1")
    A(f"s_cmp_lt_u32 s{sCnt}, {SPINMAX}")
    A("s_cbranch_scc1 F_kvspin")
    A("s_branch F_kvok")
    A.label("F_spare")
    flag_prep()
    A("s_waitcnt vmcnt(0) lgkmcnt(0)")
    A("s_barrier")
    A(f"s_cmp_lg_u32 s{sW}, {POLLW}")
    A("s_cbranch_scc1 F_spare_end")
    flag_store()
    A.label("F_spare_end")
    ST.dump(sW, SRD_WS, sT2)
    A("s_endpgm")
```

```python
from gen_common import *
import struct

STAGE = 53376
LDS_BYTES = 163840
NVGPR = 256
ACCOFF = 256
NSGPR = 102

S1 = STAGE
S2 = 2 * STAGE
TOP = 3 * STAGE
M_OFF = S1
R_OFF = S1 + 1024
CP_OFF = S1 + 2048
KVR_OFF = S1 + 8192
OOB = 0x40000000
OFF_KVS = OFF_KVF
OFF_FL = 0xC80000
OFF_ZF = OFF_FL + 8192
DBG_Z = 64

SRD_X, SRD_Q, SRD_G, SRD_U, SRD_WS, SRD_WD = 4, 8, 12, 16, 20, 24
SRD_DBG, SRD_WO, SRD_OUT = 64, 80, 16
sW, sWp, sRB, sH, sCB = 32, 33, 34, 35, 36
sXbase, sHbase, sGbase = 37, 38, 39
sLx, sLh, sLg, sLu = 40, 41, 42, 43
sC, sXc, sHc, sGc = 44, 45, 46, 47
sHb2, sLh2 = 48, 28
sFG = 29
sChk = 59
FGPERM = [7, 1, 0, 2, 3, 5, 4, 6, 15, 8, 9, 11, 10, 12, 13, 14]
sT0, sT1, sT2, sT3, sT4, sT5 = 49, 50, 51, 52, 53, 54
sWin = 55
sMaskP = 56
sHi = 58
sTag = 60
sMaskLo32 = 62
sMask24 = 30
sOk = 68
sNeed = 70
sKT, sK2 = 72, 73
sD0, sD1 = 74, 75
sCSo = 76
sZo = 77
sCnt = 78
sLim = 79
sOk2 = 84
eWB, eKo, eS, eT, eL = 37, 38, 39, 40, 41
sPF = 72

vXA = [[16, 17, 18, 19], [124, 125, 126, 127]]
vWA0 = [[20, 21, 22, 23], [128, 129, 130, 131]]
vWA1 = [[24, 25, 26, 27], [132, 133, 134, 135]]
vX, vH, vG = 28, 29, 30
vL16 = 31
vCS = [32, 33, 34, 35, 36, 37]
vCT = [38, 39, 40, 41]
vZo, vCSo = 42, 43
vZ0 = 44
FB = [48, 68]
XC = 88
WC = 96
ACC = 160

F1_448 = 0x3B124925
EPS5 = 0x3727C5AC
EPS6 = 0x358637BD
LOG2E = 0x3FB8AA3B
CHK = 0x5BD1E995
DELTA = 800
NRETRY = 40
SPINMAX = 200000
NEG_EPS_LOG2E = struct.unpack("<I", struct.pack("<f", -1e-6 * 1.4426950408889634))[0]

OPTS = {}
ST = None


def acc(j, a):
    return ACC + (j * 2 + a) * 16


VARIANTS = {
    "A0": ("A", 0, ["k", "v"]),
    "A1": ("A", 1, ["f", "f", "f"]),
    "B0": ("B", 0, ["q", "f"]),
    "B1": ("B", 1, ["f", "f", "f"]),
}


class Em:
    def __init__(self, A):
        self.A = A
        self.ops = []

    def copy_state(self):
        return list(self.ops)

    def __call__(self, s):
        for l in s.split("\n"):
            l = l.strip()
            if not l:
                continue
            if l.startswith("@vm "):
                self.ops.append(l[4:].strip())
            elif l.startswith("@wait "):
                tag = l[6:].strip()
                idx = max(i for i, t in enumerate(self.ops) if t == tag)
                n = len(self.ops) - 1 - idx
                assert n <= 63
                self.A(f"s_waitcnt vmcnt({n})")
            else:
                self.A(l)


def stage_sel(n):
    s = n % 3
    return (1 if s == 2 else 0), (STAGE if s == 1 else 0)


def wread_list(var, n, t, buf):
    b = FB[buf] + 8
    st, ib = stage_sel(n)
    w0, w1 = vWA0[st][t], vWA1[st][t]
    if var == "A0":
        spec = [(w0, 0, 512), (w1, 0, 512)]
    elif var == "A1":
        spec = [(w0, 32 * j, 384) for j in range(3)]
    elif var == "B0":
        spec = [(w0, 0, 256), (w1, 0, 512)]
    else:
        spec = [(w0, 0, 512), (w1, 64, 512), (w0, 64, 512)]
    out = []
    for j, (reg, imm, d2) in enumerate(spec):
        out.append(f"ds_read_b64_tr_b16 {vr(b+4*j,2)}, v{reg} offset:{ib+imm}")
        out.append(f"ds_read_b64_tr_b16 {vr(b+4*j+2,2)}, v{reg} offset:{ib+imm+d2}")
    return out


def reads(var, n, t, buf):
    b = FB[buf]
    st, ib = stage_sel(n)
    xa = vXA[st][t]
    xs = [f"ds_read_b128 {vr(b,4)}, v{xa} offset:{ib}", f"ds_read_b128 {vr(b+4,4)}, v{xa} offset:{ib+4096}"]
    ws = wread_list(var, n, t, buf)
    if OPTS.get("nowr") and n >= 1:
        return xs
    if OPTS.get("noxr") and n >= 1:
        return ws
    if OPTS.get("nord") and n >= 1:
        return []
    return [xs[0], ws[0], ws[1], xs[1]] + ws[2:]


def mfmas_regs(var, xb, wb, zero=False):
    tiles = VARIANTS[var][2]
    out = []
    for j, kind in enumerate(tiles):
        for a in range(2):
            d = acc(j, a)
            xf = vr(xb + 4 * a, 4)
            wf = vr(wb + 4 * j, 4)
            c = "0" if zero else vr(d, 16)
            if kind in ("k", "v"):
                out.append(f"v_mfma_f32_32x32x16_bf16 {vr(d,16)}, {xf}, {wf}, {c}")
            else:
                out.append(f"v_mfma_f32_32x32x16_bf16 {vr(d,16)}, {wf}, {xf}, {c}")
    return out


def mfmas(var, buf, zero=False):
    return mfmas_regs(var, FB[buf], FB[buf] + 8, zero)


def cs_duty(var, buf, j):
    b = FB[buf] + 8
    out = []
    for r in range(4):
        ta = vCT[(r % 2) * 2]
        src = b + 4 * j + r
        out.append(f"v_lshlrev_b32 v{ta}, 16, v{src}")
        out.append(f"v_and_b32 v{ta+1}, s{sHi}, v{src}")
        if r == 0:
            out.append(f"v_add_f32 v{vCS[2*j]}, 0, v{ta}")
            out.append(f"v_add_f32 v{vCS[2*j]+1}, 0, v{ta+1}")
        else:
            out.append(f"v_add_f32 v{vCS[2*j]}, v{vCS[2*j]}, v{ta}")
            out.append(f"v_add_f32 v{vCS[2*j]+1}, v{vCS[2*j]+1}, v{ta+1}")
    return out


def dma_units(typ, stage_off, tag):
    vm = f"@vm {tag}\n"
    u = []
    u.append(f"s_lshl_b32 s{sD0}, s{sC}, 7\ns_add_u32 s{sD0}, s{sD0}, s{sXbase}\ns_add_u32 m0, s{sLx}, {stage_off}\ns_mul_i32 s{sD1}, s{sC}, {64*2688}\n"
             + vm + f"buffer_load_dwordx4 v{vX}, s[{SRD_X}:{SRD_X+3}], s{sD0} offen lds")
    for j in range(1, 4):
        u.append(f"s_add_u32 m0, m0, 8192\ns_add_u32 s{sD0}, s{sD0}, {64*896}\n"
                 + vm + f"buffer_load_dwordx4 v{vX}, s[{SRD_X}:{SRD_X+3}], s{sD0} offen lds")
    head = (f"s_add_u32 m0, s{sLh}, {stage_off}\ns_add_u32 s{sD1}, s{sD1}, s{sHbase}\n")
    headld = vm + f"buffer_load_dwordx4 v{vH}, s[{SRD_Q}:{SRD_Q+3}], s{sD1} offen lds"
    gpre = f"s_mul_i32 s{sD0}, s{sC}, {64*3584}\ns_add_u32 m0, s{sLg}, {stage_off}\ns_add_u32 s{sD0}, s{sD0}, s{sGbase}\n"
    gld = vm + f"buffer_load_dwordx4 v{vG}, s[{SRD_G}:{SRD_G+3}], s{sD0} offen lds"
    upre = f"s_add_u32 m0, s{sLu}, {stage_off}\ns_nop 0\n"
    uld = vm + f"buffer_load_dwordx4 v{vG}, s[{SRD_U}:{SRD_U+3}], s{sD0} offen lds"
    mon = f"s_mov_b64 exec, s[{sMaskP}:{sMaskP+1}]\n"
    moff = "\ns_mov_b64 exec, -1"
    if typ == "A":
        u.append(head + headld)
        u.append(gpre + mon + gld + moff)
        u.append(upre + mon + uld + moff)
    else:
        u.append(head + mon + headld + moff)
        u.append(gpre + gld)
        u.append(upre + uld + "")
    u[-1] += f"\ns_add_u32 s{sC}, s{sC}, 1\ns_cmp_eq_u32 s{sC}, 7\ns_cselect_b32 s{sC}, 0, s{sC}"
    return u


def dma14(typ, n):
    SB = (n % 3) * STAGE
    vm = f"@vm c{n}\n"
    hb = sHbase if typ == "A" else sHb2
    pre = (f"s_lshl_b32 s{sXc}, s{sC}, 7\ns_mul_i32 s{sHc}, s{sC}, {64*2688}\ns_mul_i32 s{sGc}, s{sC}, {64*3584}\n"
           f"s_add_u32 s{sXc}, s{sXc}, s{sXbase}\ns_add_u32 s{sHc}, s{sHc}, s{hb}\ns_add_u32 s{sGc}, s{sGc}, s{sGbase}\n"
           f"s_add_u32 s{sC}, s{sC}, 1\ns_cmp_eq_u32 s{sC}, 7\ns_cselect_b32 s{sC}, 0, s{sC}\n")
    mon = f"s_mov_b64 exec, s[{sMaskP}:{sMaskP+1}]\n"
    moff = "\ns_mov_b64 exec, -1"
    u = []

    def piece(lds_s, lds_imm, base_s, goff, vaddr, srd, masked):
        s = f"s_add_u32 m0, s{lds_s}, {SB + lds_imm}\n"
        if goff:
            s += f"s_add_u32 s{sD0}, s{base_s}, {goff}\n"
            so = sD0
        else:
            s += "s_nop 0\n" if not masked else ""
            so = base_s
        if masked:
            s += mon
        s += vm + f"buffer_load_dwordx4 v{vaddr}, s[{srd}:{srd+3}], s{so} offen lds"
        if masked:
            s += moff
        return s
    for j in range(8):
        u.append(piece(sLx, j * 4096, sXc, j * 32 * 896, vX, SRD_X, False))
    if typ == "A":
        for j in range(2):
            u.append(piece(sLh, j * 4096, sHc, j * 32 * 2688, vH, SRD_Q, False))
        for j in range(2):
            u.append(piece(sLg, j * 3072, sGc, j * 32 * 3584, vG, SRD_G, True))
            u.append(piece(sLu, j * 3072, sGc, j * 32 * 3584, vG, SRD_U, True))
    else:
        u.append(piece(sLh2, 0, sHc, 0, vH, SRD_Q, False))
        for j in range(2):
            u.append(piece(sLg, j * 4096, sGc, j * 32 * 3584, vG, SRD_G, False))
            u.append(piece(sLu, j * 4096, sGc, j * 32 * 3584, vG, SRD_U, False))
    u[0] = pre + u[0]
    return u


def granule_finish(g):
    return [f"v_mov_b32 v{g+2}, s{sTag}",
            f"v_xor_b32 v{g+3}, v{g}, v{g+1}",
            f"v_xor_b32 v{g+3}, s{sChk}, v{g+3}",
            f"v_xor_b32 v{g+3}, s{sTag}, v{g+3}"]


def granule_check(g, t, dst):
    return [f"v_xor_b32 v{t}, v{g}, v{g+1}",
            f"v_xor_b32 v{t}, s{sChk}, v{t}",
            f"v_xor_b32 v{t}, v{g+2}, v{t}",
            f"v_subrev_u32 v{t+1}, s{sWin}, v{g+2}",
            f"v_cmp_eq_u32 vcc, v{t}, v{g+3}",
            f"v_cmp_gt_u32_e64 s[{dst}:{dst+1}], s{sLim}, v{t+1}",
            "s_nop 1",
            f"s_and_b64 s[{dst}:{dst+1}], s[{dst}:{dst+1}], vcc"]


def STM(i, first=False):
    if OPTS.get("chst") or (OPTS.get("pst") and i > 2) or OPTS.get("p2st"):
        return
    ST.mark(i)


def P2M(i):
    if OPTS.get("p2st") and OPTS.get("p2it") is None:
        ST.mark(i)


def CHM(i):
    if OPTS.get("chst"):
        ST.mark(i)


def emit(A, opts):
    global ST
    OPTS.update(opts)
    stamps = opts.get("stamps", 0)
    A("s_cmp_ge_u32 s2, 256")
    A("s_cbranch_scc1 K1_end")
    cpf = opts.get("cpf", 0)
    if cpf:
        A("s_getpc_b64 s[64:65]")
        A("s_and_b32 s64, s64, 0xffffff00")
        A("s_mov_b32 s66, K1_codeend-" + K1NAME)
        A("s_mov_b32 s67, 0x20000")
        A("s_lshr_b32 s68, s2, 3")
        A("s_and_b32 s68, s68, 7")
        A("v_lshrrev_b32 v2, 3, v0")
        A("v_and_b32 v2, 7, v2")
        A("v_lshlrev_b32 v1, 7, v0")
        A(f"v_mov_b32 v3, 0x{OOB:x}")
        A("v_cmp_eq_u32 vcc, s68, v2")
        A("v_cndmask_b32 v1, v3, v1, vcc")
        A("buffer_load_dword v255, v1, s[64:67], 0 offen")
    A(f"s_memrealtime s[{sTag}:{sTag+1}]")
    A(f"s_load_dwordx2 s[{SRD_X}:{SRD_X+1}], s[0:1], 0")
    A(f"s_load_dwordx2 s[{SRD_Q}:{SRD_Q+1}], s[0:1], 8")
    A(f"s_load_dwordx2 s[{SRD_G}:{SRD_G+1}], s[0:1], 32")
    A(f"s_load_dwordx2 s[{SRD_U}:{SRD_U+1}], s[0:1], 40")
    A(f"s_load_dwordx2 s[{SRD_WS}:{SRD_WS+1}], s[0:1], 72")
    A(f"s_load_dwordx2 s[{SRD_WD}:{SRD_WD+1}], s[0:1], 48")
    A(f"s_load_dwordx2 s[{SRD_WO}:{SRD_WO+1}], s[0:1], 16")
    usedbg = not (opts.get("ztag", 1) and (opts.get("p2", 0) == 2 or opts.get("fmode", 0) >= 2))
    global sPF
    sPF = 72 if usedbg else SRD_DBG
    assert not (usedbg and ((opts.get("pfp", 4) < 4 and opts.get("pf", 1) in (1, 2)) or opts.get("pf", 1) == 5))
    if usedbg:
        A(f"s_load_dwordx2 s[{SRD_DBG}:{SRD_DBG+1}], s[0:1], 64")
    if opts.get("prio", 1):
        A("s_setprio 3")
    ST = Stamps(A, 86, 0, stamps)
    ST.zero()
    STM(0)
    A("v_lshrrev_b32 v1, 6, v0")
    A("v_and_b32 v0, 63, v0")
    A(f"v_readfirstlane_b32 s{sW}, v1")
    for srd, nb in ((SRD_X, X_BYTES), (SRD_Q, Q_BYTES), (SRD_G, G_BYTES), (SRD_U, G_BYTES), (SRD_WS, WS_BYTES if not stamps else 0x10000000),
                    (SRD_WD, WD_BYTES), (SRD_WO, WO_BYTES), (SRD_DBG, 256)):
        if srd == SRD_DBG and not usedbg:
            continue
        A(f"s_mov_b32 s{srd+2}, {nb}")
        A(f"s_mov_b32 s{srd+3}, 0x20000")
    A(f"s_and_b32 s{sT0}, s2, 7")
    A(f"s_lshr_b32 s{sT1}, s2, 3")
    xmap = opts.get("xmap", 0)
    if xmap == 0:
        A(f"s_and_b32 s{sRB}, s{sT0}, 1")
        A(f"s_lshl_b32 s{sRB}, s{sRB}, 2")
        A(f"s_and_b32 s{sT2}, s{sT1}, 3")
        A(f"s_add_u32 s{sRB}, s{sRB}, s{sT2}")
        A(f"s_lshr_b32 s{sCB}, s{sT0}, 1")
        A(f"s_lshl_b32 s{sCB}, s{sCB}, 3")
        A(f"s_lshr_b32 s{sT2}, s{sT1}, 2")
        A(f"s_add_u32 s{sCB}, s{sCB}, s{sT2}")
    elif xmap == 1:
        A(f"s_mov_b32 s{sRB}, s{sT0}")
        A(f"s_mov_b32 s{sCB}, s{sT1}")
    else:
        A(f"s_and_b32 s{sRB}, s{sT0}, 6")
        A(f"s_and_b32 s{sT2}, s{sT1}, 1")
        A(f"s_add_u32 s{sRB}, s{sRB}, s{sT2}")
        A(f"s_and_b32 s{sCB}, s{sT0}, 1")
        A(f"s_lshl_b32 s{sCB}, s{sCB}, 4")
        A(f"s_lshr_b32 s{sT2}, s{sT1}, 1")
        A(f"s_add_u32 s{sCB}, s{sCB}, s{sT2}")
    A(f"s_and_b32 s{sH}, s{sCB}, 15")
    A(f"s_and_b32 s{sWp}, s{sW}, 3")
    A(f"s_lshl_b32 s{sT0}, s{sRB}, 8")
    A(f"s_lshl_b32 s{sT1}, s{sW}, 3")
    A(f"s_add_u32 s{sT0}, s{sT0}, s{sT1}")
    A(f"s_mul_i32 s{sXbase}, s{sT0}, 896")
    A(f"s_lshl_b32 s{sLx}, s{sW}, 10")
    A(f"v_lshrrev_b32 v1, 3, v0")
    A(f"v_lshrrev_b32 v2, 4, v0")
    A(f"s_and_b32 s{sT1}, s{sW}, 1")
    A(f"s_lshl_b32 s{sT1}, s{sT1}, 2")
    A(f"v_add_u32 v3, s{sT1}, v2")
    A(f"v_and_b32 v4, 7, v0")
    A(f"v_xor_b32 v4, v4, v3")
    A(f"v_lshlrev_b32 v4, 4, v4")
    A(f"v_mul_u32_u24 v{vX}, 896, v1")
    A(f"v_add_u32 v{vX}, v{vX}, v4")
    A(f"v_lshlrev_b32 v{vL16}, 4, v0")
    A(f"v_mov_b32 v5, 0x{OOB:x}")
    A(f"v_cmp_gt_u32 vcc, 56, v0")
    A(f"v_cndmask_b32 v5, v5, v{vL16}, vcc")
    A(f"s_lshl_b32 s{sT4}, s{sRB}, 8")
    A(f"s_lshl_b32 s{sT5}, s{sCB}, 3")
    A(f"s_add_u32 s{sT4}, s{sT4}, s{sT5}")
    A(f"s_add_u32 s{sK2}, s{sT4}, s{sW}")
    A(f"s_mul_i32 s{sKT}, s{sK2}, 896")
    A(f"s_cmp_eq_u32 s{sRB}, 7")
    A(f"s_cselect_b32 s{sC}, 0, s{sRB}")
    if opts.get("rot", 1) == 0:
        A(f"s_mov_b32 s{sC}, 0")
    elif opts.get("rot", 1) == 2:
        A(f"s_and_b32 s{sC}, s{sRB}, 6")
    elif opts.get("rot", 1) == 4:
        A(f"s_and_b32 s{sC}, s{sRB}, 4")
    A(f"s_cmp_ge_u32 s{sCB}, 16")
    A("s_cbranch_scc1 K1_typeB")
    for typ in ("A", "B"):
        A.label(f"K1_type{typ}")
        if typ == "A":
            A("v_lshrrev_b32 v1, 3, v0")
            A("v_lshrrev_b32 v2, 4, v0")
            A("v_and_b32 v2, 1, v2")
            A("v_lshlrev_b32 v2, 2, v2")
            A("v_and_b32 v3, 7, v0")
            A("v_xor_b32 v3, v3, v2")
            A("v_and_b32 v4, 3, v3")
            A("v_lshrrev_b32 v3, 2, v3")
            A("v_lshlrev_b32 v6, 4, v4")
            A("v_cmp_eq_u32 vcc, 3, v4")
            A("v_mul_u32_u24 v3, 896, v3")
            A("v_add_u32 v3, 896, v3")
            A("v_mov_b32 v7, 40")
            A("v_cndmask_b32 v6, v6, v7, vcc")
            A(f"v_mul_u32_u24 v{vH}, 2688, v1")
            A(f"v_add3_u32 v{vH}, v{vH}, v3, v6")
            A("v_mul_u32_u24 v1, 43, v0")
            A("v_lshrrev_b32 v1, 8, v1")
            A("v_mul_u32_u24 v2, 6, v1")
            A("v_sub_u32 v2, v0, v2")
            A("v_lshlrev_b32 v2, 4, v2")
            A(f"v_mul_u32_u24 v{vG}, 3584, v1")
            A(f"v_add_u32 v{vG}, v{vG}, v2")
            A(f"s_mov_b32 s{sMaskP}, -1")
            A(f"s_mov_b32 s{sMaskP+1}, 0xffff")
            perm = FGPERM if opts.get("fgp", 1) else list(range(16))
            pv = sum(f << (4 * h) for h, f in enumerate(perm))
            A(f"s_mov_b32 s{sT3}, 0x{pv & 0xffffffff:x}")
            A(f"s_mov_b32 s{sT4}, 0x{pv >> 32:x}")
            A(f"s_lshl_b32 s{sT1}, s{sH}, 2")
            A(f"s_lshr_b64 s[{sT3}:{sT4}], s[{sT3}:{sT4}], s{sT1}")
            A(f"s_and_b32 s{sFG}, s{sT3}, 15")
            A(f"s_mul_i32 s{sT1}, s{sFG}, 96")
            A(f"s_lshl_b32 s{sLh}, s{sW}, 10")
            A(f"s_add_u32 s{sLh}, s{sLh}, 32768")
            A(f"s_mul_i32 s{sLg}, s{sW}, 768")
            A(f"s_add_u32 s{sLu}, s{sLg}, 47232")
            A(f"s_add_u32 s{sLg}, s{sLg}, 40960")
        else:
            A("v_lshrrev_b32 v1, 2, v0")
            A("v_and_b32 v4, 3, v0")
            A("v_lshlrev_b32 v6, 4, v4")
            A("v_cmp_eq_u32 vcc, 3, v4")
            A("v_mov_b32 v7, 40")
            A(f"v_mul_u32_u24 v{vH}, 2688, v1")
            A("v_cndmask_b32 v6, v6, v7, vcc")
            A(f"v_add_u32 v{vH}, v{vH}, v6")
            A("v_lshrrev_b32 v1, 3, v0")
            A("v_lshrrev_b32 v2, 4, v0")
            A("v_and_b32 v2, 1, v2")
            A("v_lshlrev_b32 v2, 1, v2")
            A("v_and_b32 v3, 7, v0")
            A("v_xor_b32 v3, v3, v2")
            A("v_lshlrev_b32 v3, 4, v3")
            A(f"v_mul_u32_u24 v{vG}, 3584, v1")
            A(f"v_add_u32 v{vG}, v{vG}, v3")
            A(f"s_mov_b32 s{sMaskP}, -1")
            A(f"s_mov_b32 s{sMaskP+1}, 0")
            A(f"s_lshl_b32 s{sT1}, s{sH}, 7")
            A(f"s_add_u32 s{sT1}, s{sT1}, 1536")
            A(f"s_lshl_b32 s{sLh}, s{sW}, 9")
            A(f"s_add_u32 s{sLh}, s{sLh}, 32768")
            A(f"s_lshl_b32 s{sLg}, s{sW}, 10")
            A(f"s_add_u32 s{sLu}, s{sLg}, 45120")
            A(f"s_add_u32 s{sLg}, s{sLg}, 36864")
        A(f"s_mul_i32 s{sGbase}, s{sW}, {8*3584}")
        A(f"s_add_u32 s{sGbase}, s{sGbase}, s{sT1}")
        A(f"s_mul_i32 s{sHbase}, s{sW}, {8*2688}")
        A(f"s_mul_i32 s{sT1}, s{sH}, 56")
        A(f"s_add_u32 s{sHbase}, s{sHbase}, s{sT1}")
        if typ == "B":
            A(f"s_mul_i32 s{sHb2}, s{sWp}, {16*2688}")
            A(f"s_add_u32 s{sHb2}, s{sHb2}, s{sT1}")
            A(f"s_lshl_b32 s{sLh2}, s{sWp}, 10")
            A(f"s_add_u32 s{sLh2}, s{sLh2}, 32768")
        A("s_waitcnt lgkmcnt(0)")
        E0 = Em(A)
        if cpf:
            E0.ops.append("cpf")
        RW = 88
        E0("@vm row")
        E0(f"buffer_load_dwordx4 {vr(RW,4)}, v5, s[{SRD_X}:{SRD_X+3}], s{sKT} offen")
        for u in dma_units(typ, 0, "c0"):
            E0(u)
        if opts.get("pst") == 1:
            for i, n in enumerate((7, 3, 2, 0)):
                A(f"s_waitcnt vmcnt({n})")
                ST.mark(3 + i)
        A(f"s_cmp_ge_u32 s{sW}, 4")
        A(f"s_cbranch_scc1 K1_{typ}1")
        for g in (0, 1):
            var = f"{typ}{g}"
            A.label(f"K1_{var}")
            E = Em(A)
            E.ops = E0.copy_state()
            variant(E, A, var, opts)
    {0: phase2, 1: phase2b, 2: phase2c}[opts.get("p2", 0)](A, opts)
    A.label("K1_end")
    A("s_endpgm")
    A.label("K1_codeend")


def common_setup(var):
    opts = OPTS
    o = []
    o.append(f"s_mov_b32 s{sHi}, 0xffff0000")
    o.append(f"s_mov_b32 s{sMaskLo32}, -1")
    o.append(f"s_mov_b32 s{sMaskLo32+1}, 0")
    o.append(f"s_mov_b32 s{sMask24}, 0x01000000")
    o.append(f"s_mov_b32 s{sMask24+1}, 0x01000000")
    o.append(f"s_sub_u32 s{sWin}, s{sTag}, {DELTA}")
    o.append(f"s_xor_b32 s{sChk}, s{sTag+1}, 0x{CHK:x}")
    o.append(f"s_mov_b32 s{sLim}, {0 if opts.get('forcefb') else 1 << 24}")
    if var[1] == "1":
        o.append(f"s_mul_i32 s{sT0}, s{sCB}, 8960")
        o.append(f"s_mul_i32 s{sT1}, s{sRB}, 1280")
        o.append(f"s_add_u32 s{sT0}, s{sT0}, s{sT1}")
        o.append(f"s_lshl_b32 s{sT1}, s{sWp}, 10")
        o.append(f"s_add_u32 s{sT0}, s{sT0}, s{sT1}")
        o.append(f"s_add_u32 s{sCSo}, s{sT0}, {OFF_CS}")
        o.append(f"v_mov_b32 v1, 0x{OOB:x}\n"
                 f"s_cmp_eq_u32 s{sWp}, 1\n"
                 f"s_cselect_b32 s{sOk}, 0xffff, 0\n"
                 f"s_mov_b32 s{sOk+1}, 0\n"
                 f"s_cmp_eq_u32 s{sWp}, 0\n"
                 f"s_cselect_b32 s{sOk}, -1, s{sOk}\n"
                 f"s_cselect_b32 s{sOk+1}, -1, 0\n"
                 f"s_cmp_lt_u32 s{sRB}, 7\n"
                 f"s_cselect_b32 s{sOk}, s{sOk}, 0\n"
                 f"s_cselect_b32 s{sOk+1}, s{sOk+1}, 0\n"
                 f"s_cselect_b32 s{sCSo}, s{sCSo}, 0\n"
                 f"v_cndmask_b32_e64 v{vCSo}, v1, v{vL16}, s[{sOk}:{sOk+1}]")
    ztag = opts.get("ztag", 1)
    if var[0] == "A" and not ztag:
        o.append(f"s_lshl_b32 s{sZo}, s{sH}, 2\ns_add_u32 s{sZo}, s{sZo}, {DBG_Z}\nv_mov_b32 v{vZ0}, 0")
    if var == "A0" and ztag:
        o.append(f"s_lshl_b32 s{sZo}, s{sH}, 6\ns_add_u32 s{sZo}, s{sZo}, {OFF_ZF}\n"
                 f"v_mov_b32 v1, 0x{OOB:x}\nv_cmp_gt_u32 vcc, 4, v0\nv_cndmask_b32 v{vZo}, v1, v{vL16}, vcc")
    if var == "A1" and ztag:
        o.append(f"s_lshl_b32 s{sZo}, s{sH}, 6\ns_lshl_b32 s{sT0}, s{sWp}, 4\ns_add_u32 s{sZo}, s{sZo}, s{sT0}\n"
                 f"s_add_u32 s{sZo}, s{sZo}, {OFF_ZF}\n"
                 f"v_mov_b32 v{vZ0}, 0\n"
                 f"v_mov_b32 v{vZ0+1}, 0\n"
                 f"v_mov_b32 v1, 0x{OOB:x}\n"
                 f"v_lshlrev_b32 v2, 3, v0\n"
                 f"s_cmp_eq_u32 s{sRB}, 0\n"
                 f"s_cselect_b64 vcc, -1, 0\n"
                 f"s_cselect_b64 s[{sOk}:{sOk+1}], 1, 0\n"
                 f"v_cndmask_b32 v{vZo}, v1, v2, vcc\n"
                 f"v_cndmask_b32_e64 v{vZ0+2}, v1, v{vZ0}, s[{sOk}:{sOk+1}]")
    if var == "A1" and not ztag:
        o.append(f"v_mov_b32 v{vZ0+1}, 0\n"
                 f"v_mov_b32 v{vZ0+3}, 1\n"
                 f"v_mov_b32 v1, 0x{OOB:x}\n"
                 f"v_lshlrev_b32 v2, 3, v0\n"
                 f"s_cmp_eq_u32 s{sRB}, 0\n"
                 f"s_cselect_b64 vcc, -1, 0\n"
                 f"s_cselect_b64 s[{sOk}:{sOk+1}], 1, 0\n"
                 f"v_cndmask_b32 v{vZo}, v1, v2, vcc\n"
                 f"v_cndmask_b32_e64 v{vZ0+2}, v1, v{vZ0}, s[{sOk}:{sOk+1}]")
    o.append("v_and_b32 v1, 31, v0\n"
             "v_lshrrev_b32 v2, 5, v0\n"
             "v_lshrrev_b32 v3, 1, v1\n"
             "v_and_b32 v3, 7, v3\n"
             f"s_lshl_b32 s{sT0}, s{sWp}, 13\n"
             "v_lshlrev_b32 v4, 7, v1\n"
             f"v_add_u32 v4, s{sT0}, v4")
    for t in range(4):
        o.append(f"s_add_u32 s{sT1}, s{sWp}, {t}\n"
                 f"s_and_b32 s{sT1}, s{sT1}, 3\n"
                 f"s_lshl_b32 s{sT1}, s{sT1}, 1\n"
                 f"v_add_u32 v5, s{sT1}, v2\n"
                 f"v_xor_b32 v5, v5, v3\n"
                 f"v_lshlrev_b32 v5, 4, v5\n"
                 f"v_add_u32 v{vXA[0][t]}, v4, v5\n"
                 f"v_add_u32 v{vXA[1][t]}, {S2}, v{vXA[0][t]}")
    return o


def w_addr_setup(var):
    o = []
    s = ("v_lshrrev_b32 v1, 2, v0\n"
         "v_and_b32 v1, 3, v1\n"
         "v_and_b32 v2, 3, v0\n"
         "v_lshrrev_b32 v3, 5, v0\n"
         "v_lshrrev_b32 v4, 4, v0\n"
         "v_and_b32 v4, 1, v4\n"
         "v_lshlrev_b32 v5, 3, v3\n"
         "v_add_u32 v5, v5, v1\n"
         "v_lshrrev_b32 v6, 1, v1\n"
         "v_lshlrev_b32 v7, 3, v2\n")
    if var == "A0":
        s += ("v_lshrrev_b32 v8, 1, v2\n"
              "v_lshl_add_u32 v8, v4, 1, v8\n"
              "v_lshlrev_b32 v9, 2, v6\n"
              "v_xor_b32 v8, v8, v9\n"
              "v_lshlrev_b32 v8, 4, v8\n"
              "v_and_b32 v9, 1, v2\n"
              "v_lshl_add_u32 v8, v9, 3, v8\n"
              "v_lshl_add_u32 v8, v5, 7, v8\n"
              "v_add_u32 v8, 32768, v8\n"
              "v_xor_b32 v9, 64, v8\n")
        p0 = p1 = 128
    elif var == "A1":
        s += ("v_mul_u32_u24 v8, 96, v5\n"
              "v_add_u32 v8, v8, v7\n"
              f"v_mul_u32_u24 v9, {47232-40960}, v4\n"
              "v_add3_u32 v8, v8, v9, 0\n"
              "v_add_u32 v8, 40960, v8\n")
        p0 = p1 = 96
    else:
        s += ("v_lshl_add_u32 v10, v5, 7, v7\n"
              f"v_mul_u32_u24 v9, {45120-36864}, v4\n"
              "v_add_u32 v10, v10, v9\n"
              "v_add_u32 v10, 36864, v10\n"
              "v_lshlrev_b32 v11, 5, v6\n")
        if var == "B0":
            s += ("v_lshl_add_u32 v8, v5, 6, v7\n"
                  "v_lshl_add_u32 v8, v4, 5, v8\n"
                  "v_add_u32 v8, 32768, v8\n"
                  "v_add_u32 v9, v10, v11\n")
            p0, p1 = 64, 128
        else:
            s += ("v_xor_b32 v12, 32, v11\n"
                  "v_add_u32 v8, v10, v12\n"
                  "v_add_u32 v9, v10, v11\n")
            p0 = p1 = 128
    o.append(s)
    for t in range(4):
        s = (f"s_add_u32 s{sT1}, s{sWp}, {t}\n"
             f"s_and_b32 s{sT1}, s{sT1}, 3\n"
             f"s_mul_i32 s{sT2}, s{sT1}, {16*p0}\n"
             f"v_add_u32 v{vWA0[0][t]}, s{sT2}, v8\n"
             f"v_add_u32 v{vWA0[1][t]}, {S2}, v{vWA0[0][t]}\n")
        if var != "A1":
            s += (f"s_mul_i32 s{sT2}, s{sT1}, {16*p1}\n"
                  f"v_add_u32 v{vWA1[0][t]}, s{sT2}, v9\n"
                  f"v_add_u32 v{vWA1[1][t]}, {S2}, v{vWA1[0][t]}\n")
        o.append(s)
    return o


def row_stats_publish(E):
    A = E
    RW = 88
    f = list(range(92, 100))
    s, q = 100, 101
    A("@wait row")
    for i in range(4):
        A(f"v_lshlrev_b32 v{f[2*i]}, 16, v{RW+i}")
        A(f"v_and_b32 v{f[2*i+1]}, s{sHi}, v{RW+i}")
    A(f"v_add_f32 v{s}, v{f[0]}, v{f[1]}")
    A(f"v_mul_f32 v{q}, v{f[0]}, v{f[0]}")
    A(f"v_fmac_f32 v{q}, v{f[1]}, v{f[1]}")
    for i in range(2, 8):
        A(f"v_add_f32 v{s}, v{s}, v{f[i]}")
        A(f"v_fmac_f32 v{q}, v{f[i]}, v{f[i]}")
    A("s_nop 0")
    for sh in (1, 2, 4, 8):
        for v in (s, q):
            A(f"v_add_f32_dpp v{v}, v{v}, v{v} row_shr:{sh} row_mask:0xf bank_mask:0xf bound_ctrl:0")
        A("s_nop 0")
    for v in (s, q):
        A(f"v_add_f32_dpp v{v}, v{v}, v{v} row_bcast:15 row_mask:0xa bank_mask:0xf")
    A("s_nop 0")
    for v in (s, q):
        A(f"v_add_f32_dpp v{v}, v{v}, v{v} row_bcast:31 row_mask:0xc bank_mask:0xf")
    G = 104
    A(f"v_mul_f32 v{G}, 0x{F1_448:x}, v{s}")
    A(f"v_mul_f32 v{q}, 0x{F1_448:x}, v{q}")
    A(f"v_fma_f32 v{q}, -v{G}, v{G}, v{q}")
    A(f"v_max_f32 v{q}, 0, v{q}")
    A(f"v_add_f32 v{q}, 0x{EPS5:x}, v{q}")
    A(f"v_rsq_f32 v{G+1}, v{q}")
    A(f"s_lshl_b32 s{sT0}, s{sK2}, 4")
    A(f"s_add_u32 s{sT0}, s{sT0}, {OFF_ST}")
    A("v_mov_b32 v1, 0")
    for l in granule_finish(G):
        A(l)
    A(f"s_mov_b32 s{sKT}, s{sT0}")
    return (f"s_mov_b32 s{sOk}, 0\ns_mov_b32 s{sOk+1}, 0x80000000\nv_mov_b32 v1, 0\n"
            f"s_mov_b64 exec, s[{sOk}:{sOk+1}]\n@vm st\n"
            f"buffer_store_dwordx4 {vr(G,4)}, v1, s[{SRD_WS}:{SRD_WS+3}], s{sKT} offen sc1\n"
            "s_mov_b64 exec, -1")


def fb_rows(A, g):
    L = A.newlabel("K1_fbr")
    t = list(range(108, 120))
    A(f"s_lshl_b32 s{sT0}, s{sRB}, 8")
    A(f"s_lshl_b32 s{sT1}, s{sW}, 6")
    A(f"s_add_u32 s{sT0}, s{sT0}, s{sT1}")
    A(f"v_add_u32 v{t[0]}, s{sT0}, v0")
    A(f"v_mul_u32_u24 v{t[0]}, 896, v{t[0]}")
    A(f"v_mov_b32 v{g}, 0")
    A(f"v_mov_b32 v{g+1}, 0")
    A(f"s_mov_b32 s{sT2}, 0")
    A.label(L)
    A(f"buffer_load_dwordx4 {vr(t[4],4)}, v{t[0]}, s[{SRD_X}:{SRD_X+3}], s{sT2} offen")
    A("s_waitcnt vmcnt(0)")
    for i in range(4):
        A(f"v_lshlrev_b32 v{t[1]}, 16, v{t[4]+i}")
        A(f"v_and_b32 v{t[2]}, s{sHi}, v{t[4]+i}")
        A(f"v_add_f32 v{g}, v{g}, v{t[1]}")
        A(f"v_fmac_f32 v{g+1}, v{t[1]}, v{t[1]}")
        A(f"v_add_f32 v{g}, v{g}, v{t[2]}")
        A(f"v_fmac_f32 v{g+1}, v{t[2]}, v{t[2]}")
    A(f"s_add_u32 s{sT2}, s{sT2}, 16")
    A(f"s_cmp_lt_u32 s{sT2}, 896")
    A(f"s_cbranch_scc1 {L}")
    A(f"v_mul_f32 v{g}, 0x{F1_448:x}, v{g}")
    A(f"v_mul_f32 v{g+1}, 0x{F1_448:x}, v{g+1}")
    A(f"v_fma_f32 v{g+1}, -v{g}, v{g}, v{g+1}")
    A(f"v_max_f32 v{g+1}, 0, v{g+1}")
    A(f"v_add_f32 v{g+1}, 0x{EPS5:x}, v{g+1}")
    A(f"v_rsq_f32 v{g+1}, v{g+1}")
    A("s_nop 0")


def fb_cols(A, typ, g, gbase_sgpr):
    L = A.newlabel("K1_fbc")
    t = list(range(108, 124))
    gi, c, rem, j, p, oq, og, ou, e, d0, d1, d2 = t[:12]
    A(f"v_add_u32 v{gi}, s{gbase_sgpr}, v0")
    A(f"v_mul_u32_u24 v{c}, 205, v{gi}")
    A(f"v_lshrrev_b32 v{c}, 14, v{c}")
    A(f"v_mul_u32_u24 v{rem}, 80, v{c}")
    A(f"v_sub_u32 v{rem}, v{gi}, v{rem}")
    A(f"v_lshrrev_b32 v{j}, 4, v{rem}")
    A(f"v_and_b32 v{p}, 15, v{rem}")
    A(f"v_lshlrev_b32 v{e}, 1, v{p}")
    A(f"v_subrev_u32 v{d0}, 4, v{e}")
    A(f"v_cmp_gt_u32 vcc, 24, v{e}")
    A(f"v_cndmask_b32 v{e}, v{d0}, v{e}, vcc")
    A(f"s_mul_i32 s{sT0}, s{sH}, 28")
    A(f"v_add_u32 v{e}, s{sT0}, v{e}")
    nh = 2 if typ == "A" else 1
    if typ == "A":
        A(f"v_mul_u32_u24 v{d0}, 448, v{j}")
        A(f"v_add_u32 v{e}, v{e}, v{d0}")
        A(f"v_add_u32 v{e}, 448, v{e}")
    A(f"v_lshlrev_b32 v{oq}, 1, v{e}")
    A(f"v_mul_u32_u24 v{d0}, {64*2688//64}, v{c}")
    A(f"v_lshlrev_b32 v{d0}, 6, v{d0}")
    A(f"v_add_u32 v{oq}, v{oq}, v{d0}")
    A(f"v_mov_b32 v{d1}, {OOB}")
    A(f"v_cmp_gt_u32 vcc, {nh}, v{j}")
    A(f"v_cndmask_b32 v{oq}, v{d1}, v{oq}, vcc")
    A(f"v_subrev_u32 v{e}, {nh}, v{j}")
    A(f"v_lshlrev_b32 v{e}, 4, v{e}")
    A(f"v_and_b32 v{d0}, 7, v{p}")
    A(f"v_lshl_add_u32 v{e}, v{d0}, 1, v{e}")
    if typ == "A":
        A(f"s_mul_i32 s{sT0}, s{sFG}, 48")
    else:
        A(f"s_lshl_b32 s{sT0}, s{sH}, 6")
        A(f"s_add_u32 s{sT0}, s{sT0}, 768")
    A(f"v_add_u32 v{e}, s{sT0}, v{e}")
    A(f"v_lshlrev_b32 v{og}, 1, v{e}")
    A(f"v_mul_u32_u24 v{d0}, 3584, v{c}")
    A(f"v_lshlrev_b32 v{d0}, 6, v{d0}")
    A(f"v_add_u32 v{og}, v{og}, v{d0}")
    A(f"v_cndmask_b32 v{og}, v{og}, v{d1}, vcc")
    A(f"v_cmp_gt_u32 vcc, 8, v{p}")
    A(f"v_cndmask_b32 v{ou}, v{og}, v{d1}, vcc")
    A(f"v_cndmask_b32 v{og}, v{d1}, v{og}, vcc")
    A(f"v_mov_b32 v{g}, 0")
    A(f"v_mov_b32 v{g+1}, 0")
    A(f"s_mov_b32 s{sT2}, 0")
    A(f"s_mov_b32 s{sT3}, 0")
    A(f"s_mov_b32 s{sT4}, 0")
    A.label(L)
    A(f"buffer_load_dword v{d0}, v{oq}, s[{SRD_Q}:{SRD_Q+3}], s{sT2} offen")
    A(f"buffer_load_dword v{d1}, v{og}, s[{SRD_G}:{SRD_G+3}], s{sT3} offen")
    A(f"buffer_load_dword v{d2}, v{ou}, s[{SRD_U}:{SRD_U+3}], s{sT3} offen")
    A("s_waitcnt vmcnt(0)")
    A(f"v_or_b32 v{d0}, v{d0}, v{d1}")
    A(f"v_or_b32 v{d0}, v{d0}, v{d2}")
    A(f"v_lshlrev_b32 v{d1}, 16, v{d0}")
    A(f"v_and_b32 v{d2}, s{sHi}, v{d0}")
    A(f"v_add_f32 v{g}, v{g}, v{d1}")
    A(f"v_add_f32 v{g+1}, v{g+1}, v{d2}")
    A(f"s_add_u32 s{sT2}, s{sT2}, 2688")
    A(f"s_add_u32 s{sT3}, s{sT3}, 3584")
    A(f"s_add_u32 s{sT4}, s{sT4}, 1")
    A(f"s_cmp_lt_u32 s{sT4}, 64")
    A(f"s_cbranch_scc1 {L}")


def spread(units, nslots, first=0):
    out = [[] for _ in range(nslots)]
    n = nslots - first
    for i, u in enumerate(units):
        out[first + i * n // len(units)].append(u)
    return out


def variant(E, A, var, opts):
    typ, grp, tiles = VARIANTS[var]
    nt = len(tiles)
    nm = 2 * nt
    prio = opts.get("prio", 1)
    if prio:
        A(f"s_setprio {2 if grp == 0 else 1}")
    setup = common_setup(var) + w_addr_setup(var)
    c1 = dma_units(typ, STAGE, "c1")
    c1pos = opts.get("c1pos", 1)
    if c1pos == 0:
        k = 0
        for i, u in enumerate(c1):
            E(u)
            hi = (i + 1) * len(setup) // len(c1)
            for s_ in setup[k:hi]:
                E(s_)
            k = hi
    else:
        for s_ in setup:
            E(s_)
    if opts.get("pst") == 2:
        ST.mark(3)
        E("@wait row")
        ST.mark(4)
    st_store = row_stats_publish(E)
    if not opts.get("stlate", 1):
        E(st_store)
    if c1pos == 1 or (c1pos == 3 and grp == 0):
        for u in c1:
            E(u)
    if opts.get("stlate", 1):
        E(st_store)
    if var == "A1":
        E(f"s_lshl_b32 s{sT0}, s{sH}, 12\ns_lshl_b32 s{sT1}, s{sWp}, 10\ns_add_u32 s{sT0}, s{sT0}, s{sT1}\n"
          f"s_add_u32 s{sT0}, s{sT0}, {OFF_KVS}\n"
          f"@vm zr\nbuffer_atomic_swap_x2 {vr(vZ0,2)}, v{vZo}, s[{SRD_WS}:{SRD_WS+3}], s{sT0} offen sc1\n"
          f"@vm zr\nbuffer_atomic_swap_x2 {vr(vZ0,2)}, v{vZo}, s[{SRD_WS}:{SRD_WS+3}], s{sT0} offen offset:512 sc1")
    if opts.get("pst") == 2:
        ST.mark(5)
    E("@wait c0")
    if opts.get("pst") == 2:
        ST.mark(6)
    A("s_barrier")
    STM(1)
    CHM(0)
    c1_late = c1pos == 2 or (c1pos == 3 and grp == 1)
    c2split = opts.get("c2split", 14)

    rdper = opts.get("rdper0" if grp == 0 else "rdper1", 2)

    def step(mf, rd, slots, bar=None, rper=None):
        rper = rper or rdper
        k = 0
        for i, m in enumerate(mf):
            E(m)
            r = rd[k:k + rper] if i < len(mf) - 1 else rd[k:]
            k += len(r)
            for s_ in r:
                E(s_)
            for u in slots[i]:
                E(u)
            if bar is not None and bar[0] == i:
                bar[1]()

    def empty(n):
        return [[] for _ in range(n)]

    def merge(*ss):
        out = empty(len(ss[0]))
        for s_ in ss:
            for i, l in enumerate(s_):
                out[i].extend(l)
        return out

    if var == "A0":
        vR, vCP, vM = 104, 136, 150
    else:
        vR, vCP, vM = 108, 136, 157
    jb = 0 if grp == 0 else 2
    G1, G2 = 96, 100

    def gather(sc=None):
        o = []
        SC = " sc1" if (opts.get("gsc", 1) if sc is None else sc) else ""
        if grp == 0:
            o.append(f"s_lshl_b32 s{sT0}, s{sRB}, 12\n"
                     f"s_lshl_b32 s{sT1}, s{sW}, 10\n"
                     f"s_add_u32 s{sT0}, s{sT0}, s{sT1}\n"
                     f"s_add_u32 s{sT0}, s{sT0}, {OFF_ST}\n"
                     f"@vm ga\n"
                     f"buffer_load_dwordx4 {vr(G1,4)}, v{vL16}, s[{SRD_WS}:{SRD_WS+3}], s{sT0} offen{SC}")
        else:
            o.append(f"s_mul_i32 s{sT0}, s{sCB}, 8960\n"
                     f"s_lshl_b32 s{sT1}, s{sWp}, 10\n"
                     f"s_add_u32 s{sT0}, s{sT0}, s{sT1}\n"
                     f"s_add_u32 s{sT0}, s{sT0}, {OFF_CS}\n"
                     f"@vm ga\n"
                     f"buffer_load_dwordx4 {vr(G1,4)}, v{vL16}, s[{SRD_WS}:{SRD_WS+3}], s{sT0} offen{SC}")
        o.append(f"s_mul_i32 s{sT0}, s{sCB}, 8960\n"
                 f"s_lshl_b32 s{sT1}, s{sW}, 10\n"
                 f"s_add_u32 s{sT0}, s{sT0}, s{sT1}\n"
                 f"s_add_u32 s{sT0}, s{sT0}, {OFF_CS + 4096}\n"
                 f"@vm ga\n"
                 f"buffer_load_dwordx4 {vr(G2,4)}, v{vL16}, s[{SRD_WS}:{SRD_WS+3}], s{sT0} offen{SC}")
        return o

    def check_tail():
        return (f"s_orn2_b64 s[{sOk2}:{sOk2+1}], s[{sOk2}:{sOk2+1}], s[{sNeed}:{sNeed+1}]\n"
                f"s_and_b64 s[{sOk}:{sOk+1}], s[{sOk}:{sOk+1}], s[{sOk2}:{sOk2+1}]\n"
                f"s_cmp_eq_u64 s[{sOk}:{sOk+1}], -1\n")

    Lslow = f"K1_{var}_slow"
    Lok = f"K1_{var}_ok"

    for p in range(-1, 6):
        n = p + 1
        nsl = 4 * nm
        fill = empty(nsl)
        add = lambda units, first, last: [fill[first + i * (last - first) // len(units)].append(u) for i, u in enumerate(units)]
        first_slot = nm if p == -1 else 0
        if p == -1 and c1_late:
            for i, u in enumerate(c1):
                fill[first_slot + i].append(u)
        if grp == 0 and p + 3 <= 6 and not (opts.get("nodma") and p >= 0):
            d = dma14(typ, p + 3)
            if p == -1:
                carry = d[c2split:]
                d = d[:c2split]
                if c1_late:
                    add(d, first_slot + 7, nsl)
                else:
                    add(d, first_slot, nsl)
            else:
                if p == 0:
                    d = carry + d
                if len(d) <= nsl:
                    for i, u in enumerate(d):
                        fill[i].append(u)
                else:
                    add(d, 0, nsl)
        if p == -1:
            for t in range(nt):
                add(cs_duty(var, t & 1, t), nm * (1 + t), nm * (1 + t) + (nm if t < 2 else nm // 2))
            red = []
            red.append("\n".join([f"v_add_f32 v{vCS[2*j]}, v{vCS[2*j]}, v{vCS[2*j]+1}" for j in range(nt)] +
                                 [f"v_mov_b32 v{vCS[2*j]+1}, v{vCS[2*j]}" for j in range(nt)] + ["s_nop 1"] +
                                 [f"v_permlane32_swap_b32 v{vCS[2*j]}, v{vCS[2*j]+1}" for j in range(nt)]))
            red.append("v_and_b32 v1, 31, v0\nv_lshlrev_b32 v1, 2, v1\n"
                       f"s_mul_i32 s{sT0}, s{sWp}, 640\ns_add_u32 s{sT0}, s{sT0}, {TOP + jb*128}\nv_add_u32 v1, s{sT0}, v1\n" +
                       "\n".join([f"v_add_f32 v{vCS[2*j]}, v{vCS[2*j]}, v{vCS[2*j]+1}" for j in range(nt)] +
                                 [f"ds_write_b32 v1, v{vCS[2*j]} offset:{j*128}" for j in range(nt)]))
            fill[4 * nm - 3].append(red[0])
            fill[4 * nm - 2].append(red[1])
        if p == 0 and grp == 1:
            P = 104
            G = 112
            fill[nm - 1].append("v_lshlrev_b32 v1, 3, v0\n"
                                f"s_and_b32 s{sT0}, s{sWp}, 1\ns_lshl_b32 s{sT0}, s{sT0}, 9\ns_add_u32 s{sT0}, s{sT0}, {TOP}\nv_add_u32 v1, s{sT0}, v1\n" +
                                "\n".join(f"ds_read_b64 {vr(P+2*q,2)}, v1 offset:{q*640}" for q in range(4)))
            pub = []
            for e in range(2):
                pub.append(f"v_add_f32 v{P+e}, v{P+e}, v{P+2+e}")
                pub.append(f"v_add_f32 v{P+4+e}, v{P+4+e}, v{P+6+e}")
            for e in range(2):
                pub.append(f"v_add_f32 v{G+e}, v{P+e}, v{P+4+e}")
            pub += granule_finish(G)
            pub.append(f"@vm cs\nbuffer_store_dwordx4 {vr(G,4)}, v{vCSo}, s[{SRD_WS}:{SRD_WS+3}], s{sCSo} offen sc1")
            add(pub, nm, 2 * nm)
        if p == 1 and var == "A1" and not opts.get("znochk"):
            if opts.get("ztag", 1):
                ZG = vCT[0]
                fill[nm].append(f"v_mov_b32 v{ZG}, 1\nv_mov_b32 v{ZG+1}, 2\n" + "\n".join(granule_finish(ZG)))
                fill[nm + 1].append(f"@wait zr\n@vm zs\nbuffer_store_dwordx4 {vr(ZG,4)}, v{vZ0+2}, s[{SRD_WS}:{SRD_WS+3}], s{sZo} offen sc1")
            else:
                fill[nm].append(f"@wait zr\n@vm zs\nbuffer_atomic_add v{vZ0+3}, v{vZ0+2}, s[{SRD_DBG}:{SRD_DBG+3}], s{sZo} offen sc1")
        if p == opts.get("gp", 4):
            gs = opts.get("gslot", 0)
            if opts.get("gend"):
                gs = nsl - opts.get("gend")
            add(gather(), gs, gs + 2)
        if p == opts.get("pfp", 4) and opts.get("pf", 1) in (1, 2):
            PFV = 38
            pfu = [f"s_lshr_b32 s{sT4}, s2, 3\ns_lshl_b32 s{sT4}, s{sT4}, 3\ns_add_u32 s{sT4}, s{sT4}, s{sW}\n"
                   f"v_lshlrev_b32 v{PFV}, 7, v0\n"
                   f"s_cmp_lt_u32 s{sT4}, 196\n"
                   f"s_cselect_b32 s{sPF}, s{SRD_WD}, s{SRD_WO}\n"
                   f"s_cselect_b32 s{sPF+1}, s{SRD_WD+1}, s{SRD_WO+1}\n"
                   f"s_mov_b32 s{sPF+2}, {WO_BYTES}\n"
                   f"s_cselect_b32 s{sPF+2}, {WD_BYTES}, s{sPF+2}\n"
                   f"s_mov_b32 s{sPF+3}, 0x20000\n"
                   f"s_cselect_b32 s{sT5}, 0, 196\n"
                   f"s_sub_u32 s{sT4}, s{sT4}, s{sT5}\n"
                   f"s_lshl_b32 s{sT4}, s{sT4}, 13\n"
                   f"v_add_u32 v{PFV}, s{sT4}, v{PFV}",
                   f"@vm pf\nbuffer_load_dword v{PFV+1}, v{PFV}, s[{sPF}:{sPF+3}], 0 offen"]
            if opts.get("pf", 1) == 2:
                pfu.append(f"@vm pf\nbuffer_load_dword v{PFV+2}, v{PFV}, s[{sPF}:{sPF+3}], 0 offen offset:64")
            ps = opts.get("pfslot", 3)
            if opts.get("pfend"):
                ps = nsl - opts.get("pfend")
            add(pfu, ps, ps + len(pfu))
        if opts.get("pf", 1) == 5:
            pf0, pf1 = opts.get("pf0", 0), opts.get("pf1", 6)
            PFV = 32
            if pf0 <= p < pf1:
                npc = pf1 - pf0
                k = p - pf0
                lo, hi = 64 * k // npc, 64 * (k + 1) // npc
                mask = ((1 << hi) - 1) ^ ((1 << lo) - 1)
                pfu = []
                if k == 0:
                    pfu.append(f"s_lshr_b32 s{sT4}, s2, 3\ns_lshl_b32 s{sT4}, s{sT4}, 3\ns_add_u32 s{sT4}, s{sT4}, s{sW}\n"
                               f"v_lshlrev_b32 v{PFV}, 7, v0\n"
                               f"s_cmp_lt_u32 s{sT4}, 196\n"
                               f"s_cselect_b32 s{sPF}, s{SRD_WD}, s{SRD_WO}\n"
                               f"s_cselect_b32 s{sPF+1}, s{SRD_WD+1}, s{SRD_WO+1}\n"
                               f"s_mov_b32 s{sPF+2}, {WO_BYTES}\n"
                               f"s_cselect_b32 s{sPF+2}, {WD_BYTES}, s{sPF+2}\n"
                               f"s_mov_b32 s{sPF+3}, 0x20000\n"
                               f"s_cselect_b32 s{sT5}, 0, 196\n"
                               f"s_sub_u32 s{sT4}, s{sT4}, s{sT5}\n"
                               f"s_lshl_b32 s{sT4}, s{sT4}, 13\n"
                               f"v_add_u32 v{PFV}, s{sT4}, v{PFV}")
                pfu.append(f"s_mov_b32 exec_lo, 0x{mask & 0xffffffff:x}\ns_mov_b32 exec_hi, 0x{mask >> 32:x}\n"
                           f"@vm pf\nbuffer_load_dword v{PFV+1}, v{PFV}, s[{sPF}:{sPF+3}], 0 offen\ns_mov_b64 exec, -1")
                ps = opts.get("pfslot", 3)
                if opts.get("pfend"):
                    ps = nsl - opts.get("pfend")
                add(pfu, ps, ps + len(pfu))
        if p == opts.get("pfp", 4) and opts.get("pf", 1) == 3 and grp == 1:
            PFV = 38
            pfu = [f"s_lshr_b32 s{sT4}, s2, 3\ns_lshl_b32 s{sT4}, s{sT4}, 2\ns_add_u32 s{sT4}, s{sT4}, s{sWp}\n"
                   f"v_lshlrev_b32 v{PFV}, 7, v0\n"
                   f"s_cmp_lt_u32 s{sT4}, 98\n"
                   f"s_cselect_b32 s{sPF}, s{SRD_WD}, s{SRD_WO}\n"
                   f"s_cselect_b32 s{sPF+1}, s{SRD_WD+1}, s{SRD_WO+1}\n"
                   f"s_mov_b32 s{sPF+2}, {WO_BYTES}\n"
                   f"s_cselect_b32 s{sPF+2}, {WD_BYTES}, s{sPF+2}\n"
                   f"s_mov_b32 s{sPF+3}, 0x20000\n"
                   f"s_cselect_b32 s{sT5}, 0, 98\n"
                   f"s_sub_u32 s{sT4}, s{sT4}, s{sT5}\n"
                   f"s_lshl_b32 s{sT4}, s{sT4}, 14\n"
                   f"v_add_u32 v{PFV}, s{sT4}, v{PFV}\n"
                   f"v_add_u32 v{PFV+1}, 0x2000, v{PFV}",
                   f"@vm pf\nbuffer_load_dword v{PFV+2}, v{PFV}, s[{sPF}:{sPF+3}], 0 offen",
                   f"@vm pf\nbuffer_load_dword v{PFV+3}, v{PFV+1}, s[{sPF}:{sPF+3}], 0 offen"]
            ps = opts.get("pfslot", 3)
            add(pfu, ps, ps + 2 * len(pfu))
        if opts.get("p2", 0) and grp == 0 and p in (4, 5) and opts.get("early", 1):
            eu = []
            if p == 4:
                eu.append(f"s_lshr_b32 s{sT4}, s2, 3\ns_sub_u32 s{sT4}, s{sT4}, 4\ns_max_i32 s{sT4}, s{sT4}, 0\n"
                          f"s_mul_i32 s{sT5}, s{sT4}, 37\ns_lshr_b32 s{sT5}, s{sT5}, 8\ns_mul_i32 s{sT5}, s{sT5}, 7\n"
                          f"s_sub_u32 s{sT4}, s{sT4}, s{sT5}\n"
                          f"s_mul_i32 s{eKo}, s{sT4}, {2*14336 if opts.get('rot2', 1) else 0}\n"
                          f"s_lshl_b32 s{sT4}, s{sT4}, 7\n"
                          f"s_mul_i32 s{eWB}, s{sWp}, {224*896}\ns_add_u32 s{eWB}, s{eWB}, s{sT4}\n"
                          f"s_add_u32 s{eS}, s{eWB}, s{eKo}\ns_lshl_b32 s{eL}, s{sWp}, 10\n"
                          "v_lshrrev_b32 v1, 3, v0\nv_lshrrev_b32 v2, 4, v0\nv_and_b32 v2, 1, v2\nv_lshlrev_b32 v2, 2, v2\n"
                          "v_and_b32 v3, 7, v0\nv_xor_b32 v3, v3, v2\nv_lshlrev_b32 v3, 4, v3\n"
                          f"v_mul_u32_u24 v{vX}, 896, v1\nv_add_u32 v{vX}, v{vX}, v3")
            for row in (range(8, 13) if p == 4 else range(13, 20)):
                s_, h_ = (row - 8) // 2, (row - 8) % 2
                for t_ in (0, 1):
                    u = ""
                    if h_ == 0 and t_ == 0 and s_ > 0:
                        u += (f"s_add_u32 s{eKo}, s{eKo}, 14336\ns_cmp_eq_u32 s{eKo}, {14*14336}\ns_cselect_b32 s{eKo}, 0, s{eKo}\n"
                              f"s_add_u32 s{eS}, s{eWB}, s{eKo}\n")
                    u += f"s_add_u32 m0, s{eL}, {row*8192 + t_*4096}\n"
                    c_ = h_ * 7168 + t_ * 4 * 224 * 896
                    if c_:
                        u += f"s_add_u32 s{eT}, s{eS}, {c_}\n"
                        so = eT
                    else:
                        u += "s_nop 0\n"
                        so = eS
                    u += f"@vm ew\nbuffer_load_dwordx4 v{vX}, s[{SRD_WD}:{SRD_WD+3}], s{so} offen lds"
                    eu.append(u)
            e0 = opts.get("e4s", 4) if p == 4 else opts.get("e5s", 0)
            e1 = opts.get("e4e", 3 * nm + 2) if p == 4 else opts.get("e5e", 3 * nm)
            add(eu, e0, e1)
        if p == 4:
            val = []
            if grp == 0:
                val.append(f"s_mov_b64 s[{sNeed}:{sNeed+1}], -1")
            else:
                val.append(f"s_cmp_eq_u32 s{sW}, 4\ns_cselect_b32 s{sNeed}, -1, 0\ns_cselect_b32 s{sNeed+1}, 0xffff, 0")
            val.append(f"s_mov_b32 s{sCnt}, 0\n@wait ga")
            val += granule_check(G1, 108, sOk)
            val += granule_check(G2, 110, sOk2)
            val.append(check_tail() + f"s_cbranch_scc0 {Lslow}\n@label {Lok}" + (f"\ns_mov_b32 s{sLim}, {1 << 24}" if opts.get("forcefb") else ""))
            wr = []
            if grp == 0:
                wr.append(f"s_lshl_b32 s{sT0}, s{sW}, 8\ns_add_u32 s{sT0}, s{sT0}, {M_OFF}\nv_lshlrev_b32 v1, 2, v0\nv_add_u32 v1, s{sT0}, v1\n"
                          f"ds_write_b32 v1, v{G1}\nds_write_b32 v1, v{G1+1} offset:1024")
            else:
                wr.append(f"s_lshl_b32 s{sT0}, s{sWp}, 9\ns_add_u32 s{sT0}, s{sT0}, {CP_OFF}\nv_lshlrev_b32 v1, 3, v0\nv_add_u32 v1, s{sT0}, v1\n"
                          f"ds_write_b64 v1, {vr(G1,2)}")
            wr.append(f"s_lshl_b32 s{sT0}, s{sW}, 9\ns_add_u32 s{sT0}, s{sT0}, {CP_OFF + 2048}\nv_lshlrev_b32 v1, 3, v0\nv_add_u32 v2, s{sT0}, v1\n"
                      f"v_add_u32 v1, {TOP}, v1\n"
                      f"v_cndmask_b32_e64 v1, v1, v2, s[{sNeed}:{sNeed+1}]\n"
                      f"ds_write_b64 v1, {vr(G2,2)}")
            if opts.get("vspread", 1):
                bat_ = opts.get("bat1", 4) if grp == 1 else opts.get("bat0", 3)
                v0_ = opts.get("vs0", 2) * nm
                add(val + wr, v0_, 3 * nm + bat_)
            else:
                vs = opts.get("vstep", 3) * nm
                fill[vs].append("\n".join(val))
                fill[vs + 1].append(wr[0])
                fill[vs + 2].append(wr[1])
        if p == 5:
            fr = ("v_and_b32 v1, 31, v0\nv_lshlrev_b32 v1, 2, v1\n"
                  f"s_lshl_b32 s{sT0}, s{sWp}, 8\ns_add_u32 s{sT0}, s{sT0}, {M_OFF}\nv_add_u32 v2, s{sT0}, v1\n"
                  f"ds_read_b32 v{vM}, v2\nds_read_b32 v{vM+1}, v2 offset:128\n"
                  f"v_add_u32 v3, {CP_OFF + jb*128}, v1")
            lst = [fr]
            for j in range(nt):
                for c in range(7):
                    lst.append(f"ds_read_b32 v{vCP+7*j+c}, v3 offset:{j*128 + c*640}")
            if var == "A0":
                lst.append(f"v_lshrrev_b32 v4, 5, v0\nv_lshlrev_b32 v4, 4, v4\nv_add_u32 v4, s{sT0}, v4")
                for a in range(2):
                    for j in range(4):
                        lst.append(f"ds_read_b128 {vr(vR+16*a+4*j,4)}, v4 offset:{1024 + a*128 + j*32}")
            elif var == "B0":
                lst.append(f"ds_read_b32 v{vR}, v2 offset:1024\nds_read_b32 v{vR+1}, v2 offset:{1024+128}")
            if var == "A0" and not opts.get("znochk"):
                if opts.get("ztag", 1):
                    lst.append(f"@vm zl\nbuffer_load_dwordx4 {vr(vZ0,4)}, v{vZo}, s[{SRD_WS}:{SRD_WS+3}], s{sZo} offen sc1")
                else:
                    lst.append(f"@vm zl\nbuffer_load_dword v{vZ0+2}, v{vZ0}, s[{SRD_DBG}:{SRD_DBG+3}], s{sZo} offen sc1")
            add(lst, 0, 2 * nm)
            prep = []
            for a in range(2):
                m = vM + a
                prep.append(f"v_sub_f32 v{m}, 0, v{m}")
                prep.append(f"v_cndmask_b32_e64 v{m}, 0, v{m}, s[{sMaskLo32}:{sMaskLo32+1}]")
            for a in range(2):
                prep.append(f"v_cvt_pk_bf16_f32 v{XC+4*a+1}, v{vM+a}, 0")
            for a in range(2):
                prep.append(f"v_lshlrev_b32 v{1+a}, 16, v{XC+4*a+1}")
            for a in range(2):
                prep.append(f"v_sub_f32 v{1+a}, v{vM+a}, v{1+a}")
            for a in range(2):
                prep.append(f"v_cvt_pk_bf16_f32 v{XC+4*a}, v{vM+a}, v{1+a}")
                prep.append(f"v_mov_b32 v{XC+4*a+2}, 0")
                prep.append(f"v_mov_b32 v{XC+4*a+3}, 0")
            for j in range(nt):
                c = vCP + 7 * j
                prep.append(f"v_add_f32 v{c}, v{c}, v{c+1}")
                prep.append(f"v_add_f32 v{c+2}, v{c+2}, v{c+3}")
                prep.append(f"v_add_f32 v{c+4}, v{c+4}, v{c+5}")
                prep.append(f"v_add_f32 v{c}, v{c}, v{c+6}")
                prep.append(f"v_add_f32 v{c+2}, v{c+2}, v{c+4}")
                prep.append(f"v_add_f32 v{c}, v{c}, v{c+2}")
                prep.append(f"v_cvt_pk_bf16_f32 v{WC+4*j}, v{c}, v{c}")
                prep.append(f"v_lshlrev_b32 v{c+1}, 16, v{WC+4*j}")
                prep.append(f"v_sub_f32 v{c+1}, v{c}, v{c+1}")
                prep.append(f"v_cvt_pk_bf16_f32 v{WC+4*j+1}, v{c+1}, 0")
                prep.append(f"v_mov_b32 v{WC+4*j+2}, 0")
                prep.append(f"v_mov_b32 v{WC+4*j+3}, 0")
            if grp == 0:
                prep.append(f"v_mov_b32 v12, 0x{EPS6:x}")
                prep.append(f"v_mov_b32 v13, 0x{LOG2E:x}")
                prep.append(f"v_mov_b32 v14, 0x{NEG_EPS_LOG2E:x}")
            last_fill = empty(nm)
            np_ = len(prep)
            tot = 3 * nm
            for i, u in enumerate(prep):
                sl = 2 * nm + i * tot // np_
                (fill[sl] if sl < nsl else last_fill[sl - nsl]).append(u)

        def fix(units):
            return units

        def barrier_fn(pp):
            def f():
                A("s_waitcnt lgkmcnt(0)")
                need = pp + 1
                tag = f"c{need}"
                if tag in E.ops:
                    E(f"@wait {tag}")
                if prio and opts.get("eprio", 3) == 3 and pp == opts.get("swp", 5):
                    A(f"s_setprio {0 if grp == 0 else 3}")
                A("s_barrier")
                CHM(pp + 1)
            return f

        def EM(u):
            for l in u.split("\n"):
                if l.startswith("@label "):
                    A.label(l[7:])
                else:
                    E(l)

        def step2(mf, rd, slots, bar=None, rper=None, wait=True):
            rper = rper or rdper
            if wait:
                A("s_waitcnt lgkmcnt(0)")
            k = 0
            for i, m in enumerate(mf):
                E(m)
                r = rd[k:k + rper] if i < len(mf) - 1 else rd[k:]
                k += len(r)
                for s_ in r:
                    E(s_)
                for u in slots[i]:
                    EM(u)
                if bar is not None and bar[0] == i:
                    bar[1]()

        if p == -1:
            for s_ in reads(var, 0, 0, 0):
                E(s_)
        else:
            step2(mfmas(var, 1), reads(var, n, 0, 0), fill[0:nm], wait=False)
        step2(mfmas(var, 0, zero=(p == -1)), reads(var, n, 1, 1), fill[nm:2*nm])
        step2(mfmas(var, 1), reads(var, n, 2, 0), fill[2*nm:3*nm])
        if p < 5:
            bat = opts.get("bat1", 4) if grp == 1 else opts.get("bat0", 3)
            step2(mfmas(var, 0), reads(var, n, 3, 1), fill[3*nm:4*nm], bar=(bat, barrier_fn(p + 1)),
                  rper=(opts.get("rb1", 3) if grp == 1 else None))
            rest = []
        else:
            step2(mfmas(var, 0), reads(var, n, 3, 1), fill[3*nm:4*nm])
            if grp == 0 and opts.get("b6", 0):
                A("s_waitcnt lgkmcnt(0)")
                A("s_barrier")
                step2(mfmas(var, 1), [], last_fill, wait=False)
            else:
                step2(mfmas(var, 1), [], last_fill)
    STM(2)
    if prio and grp == 0:
        A("s_setprio 3")
    if prio and opts.get("eprio", 3) == 1 and grp == 0:
        A("s_setprio 0")
    if prio and opts.get("eprio", 3) == 2:
        A("s_setprio 0")
    if not opts.get("nocorr"):
        for s_ in mfmas_regs(var, XC, WC):
            A(s_)
    vEps, vL2e, vNeg = 12, 13, 14
    A(f"s_lshl_b32 s{sT0}, s{sRB}, 3")
    A(f"s_lshl_b32 s{sT1}, s{sWp}, 1")
    A(f"s_add_u32 s{sT0}, s{sT0}, s{sT1}")

    STSC = {0: "", 1: " sc1", 2: " nt", 3: " sc0 sc1", 4: " sc1 nt"}[opts.get("stsc", 1)]

    def ffn_tile(j, ft_sgpr, P0):
        for a in range(2):
            d = acc(j, a)
            P = P0 + 4 * a
            for r in range(8):
                A(f"v_max_f32 v{d+r}, 0, v{d+r}")
            if opts.get("epk", 1):
                for r in range(0, 8, 2):
                    A(f"v_pk_mul_f32 {vr(d+r,2)}, {vr(d+r,2)}, {vr(d+8+r,2)}")
            else:
                for r in range(8):
                    A(f"v_mul_f32 v{d+r}, v{d+r}, v{d+8+r}")
            for r in range(4):
                A(f"v_cvt_pk_bf16_f32 v{P+r}, v{d+2*r}, v{d+2*r+1}")
            A(f"s_add_u32 s{sT2}, s{sT0}, {a}")
            A(f"s_mul_i32 s{sT2}, s{sT2}, 112")
            A(f"s_add_u32 s{sT2}, s{sT2}, s{ft_sgpr}")
            A(f"s_lshl_b32 s{sT2}, s{sT2}, 10")
            if OFF_H:
                A(f"s_add_u32 s{sT2}, s{sT2}, {OFF_H}")
            A(f"buffer_store_dwordx4 {vr(P,4)}, v{vL16}, s[{SRD_WS}:{SRD_WS+3}], s{sT2} offen{STSC}")

    def phi8(d, rs, out4, T):
        t1, t2 = T[0:8], T[8:16]
        for r in range(8):
            A(f"v_fma_f32 v{t1[r]}, v{d+r}, v{rs[r]}, v{vEps}")
        for r in range(8):
            A(f"v_fma_f32 v{t2[r]}, v{t1[r]}, v{vL2e}, v{vNeg}")
        for r in range(8):
            A(f"v_exp_f32_e64 v{t2[r]}, v{t2[r]} clamp")
        for r in range(8):
            A(f"v_max_f32 v{t1[r]}, v{vEps}, v{t1[r]}")
        for r in range(8):
            A(f"v_add_f32 v{t1[r]}, v{t1[r]}, v{t2[r]}")
        return t1

    A("s_nop 7")
    A("s_nop 3" if nt == 3 else "s_nop 7")

    def ft_index(j):
        if typ == "A":
            A(f"s_mul_i32 s{sT3}, s{sFG}, 3")
            A(f"s_add_u32 s{sT3}, s{sT3}, {j}")
        else:
            jj = 0 if grp == 0 else j + 1
            A(f"s_lshl_b32 s{sT3}, s{sH}, 2")
            A(f"s_add_u32 s{sT3}, s{sT3}, {48 + jj}")

    if var == "A0":
        PK, PV, vOne = 48, 136, 152
        T = list(range(64, 88))
        A(f"v_mov_b32 v{vOne}, 0x3f803f80")
        for a in range(2):
            rs = [vR + 16 * a + r for r in range(16)]
            for half in range(2):
                t1 = phi8(acc(0, a) + 8 * half, rs[8 * half:8 * half + 8], None, T)
                for r in range(4):
                    A(f"v_cvt_pk_bf16_f32 v{PK+8*a+4*half+r}, v{t1[2*r]}, v{t1[2*r+1]}")
            d = acc(1, a)
            for r in range(0, 16, 2):
                A(f"v_pk_mul_f32 {vr(d+r,2)}, {vr(d+r,2)}, {vr(rs[r],2)}")
            for r in range(8):
                A(f"v_cvt_pk_bf16_f32 v{PV+8*a+r}, v{d+2*r}, v{d+2*r+1}")
            for r in range(8):
                A(f"v_cndmask_b32_e64 v{PV+8*a+r}, v{PV+8*a+r}, v{vOne}, s[{sMask24}:{sMask24+1}]")
        KV = acc(0, 0)
        A("s_nop 1")
        for a in range(2):
            for t in range(2):
                c = "0" if (a == 0 and t == 0) else vr(KV, 16)
                A(f"v_mfma_f32_32x32x16_bf16 {vr(KV,16)}, {vr(PK+8*a+4*t,4)}, {vr(PV+8*a+4*t,4)}, {c}")
        Lz, Lzo = "K1_A0_zslow", "K1_A0_zok"
        A(f"s_lshl_b32 s{sT2}, s{sH}, 12")
        A(f"s_add_u32 s{sT2}, s{sT2}, {OFF_KVS}")
        A(f"v_lshlrev_b32 v1, {4 if opts.get('kvx4') == 1 else 2}, v0")
        kvred = opts.get("kvred", 0)
        assert not (kvred and opts.get("p2", 0) and opts.get("early", 1))
        if kvred:
            A(f"s_lshl_b32 s{sT3}, s{sWp}, 12")
            A(f"s_add_u32 s{sT3}, s{sT3}, {KVR_OFF}")
            A(f"v_add_u32 v2, s{sT3}, v{vL16}")
            A(f"s_lshl_b32 s{sT3}, s{sWp}, 10")
            A(f"s_add_u32 s{sT2}, s{sT2}, s{sT3}")
            A(f"s_add_u32 s{sT3}, s{sT3}, {KVR_OFF}")
            A(f"v_add_u32 v3, s{sT3}, v1")
            A("s_nop 7")
            A("s_nop 1")
            for q in range(4):
                A(f"ds_write_b128 v2, {vr(KV+4*q,4)} offset:{q*1024}")
            A("s_waitcnt lgkmcnt(0)")
            A("s_barrier")
            RD = 64
            for p_ in range(4):
                for i in range(2):
                    A(f"ds_read2st64_b32 {vr(RD+4*p_+2*i,2)}, v3 offset0:{16*p_+2*i} offset1:{16*p_+2*i+1}")
        if not opts.get("znochk"):
            E("@wait zl")
            if opts.get("ztag", 1):
                for l in granule_check(vZ0, 2, sOk):
                    A(l)
                A(f"s_and_b32 s{sOk}, s{sOk}, 15")
                A(f"s_cmp_eq_u32 s{sOk}, 15")
            else:
                A(f"v_readfirstlane_b32 s{sT3}, v{vZ0+2}")
                A(f"s_cmp_eq_u32 s{sT3}, 4")
            A(f"s_cbranch_scc0 {Lz}")
        A.label(Lzo)
        if kvred:
            A("s_waitcnt lgkmcnt(4)")
            for i in range(4):
                A(f"v_add_f32 v{RD+i}, v{RD+i}, v{RD+4+i}")
            A("s_waitcnt lgkmcnt(0)")
            for i in range(4):
                A(f"v_add_f32 v{RD+8+i}, v{RD+8+i}, v{RD+12+i}")
            for i in range(4):
                A(f"v_add_f32 v{RD+i}, v{RD+i}, v{RD+8+i}")
            for i in range(4):
                A(f"buffer_atomic_add_f32 v{RD+i}, v1, s[{SRD_WS}:{SRD_WS+3}], s{sT2} offen offset:{i*256} sc1")
        else:
            A("s_nop 7")
        if opts.get("atw"):
            A(f"s_cmp_lt_u32 s{sWp}, {opts.get('atw')}")
            A("s_cbranch_scc0 K1_A0_noat")
        for r in range(16 if not kvred else 0):
            off = (r >> 2) * 1024 + (r & 3) * 4 if opts.get("kvx4") == 1 else r * 256
            A(f"buffer_atomic_add_f32 v{KV+r}, v1, s[{SRD_WS}:{SRD_WS+3}], s{sT2} offen offset:{off} sc1")
        if opts.get("atw"):
            A.label("K1_A0_noat")
    else:
        if var == "B0":
            ft_index(1)
            ffn_tile(1, sT3, 112)
            PQ = 120
            T = list(range(48, 64))
            for a in range(2):
                rs = [vR + a] * 8
                for half in range(2):
                    t1 = phi8(acc(0, a) + 8 * half, rs, None, T)
                    if half == 1:
                        for r in range(4, 8):
                            A(f"v_cndmask_b32_e64 v{t1[r]}, v{t1[r]}, 0, s[{sMaskLo32}:{sMaskLo32+1}]")
                    for r in range(4):
                        A(f"v_cvt_pk_bf16_f32 v{PQ+8*a+4*half+r}, v{t1[2*r]}, v{t1[2*r+1]}")
                A(f"s_add_u32 s{sT2}, s{sT0}, {a}")
                A(f"s_lshl_b32 s{sT2}, s{sT2}, 4")
                A(f"s_add_u32 s{sT2}, s{sT2}, s{sH}")
                A(f"s_lshl_b32 s{sT2}, s{sT2}, 11")
                A(f"s_add_u32 s{sT2}, s{sT2}, {OFF_PQ}")
                A(f"buffer_store_dwordx4 {vr(PQ+8*a,4)}, v{vL16}, s[{SRD_WS}:{SRD_WS+3}], s{sT2} offen{STSC}")
                A(f"buffer_store_dwordx4 {vr(PQ+8*a+4,4)}, v{vL16}, s[{SRD_WS}:{SRD_WS+3}], s{sT2} offen offset:1024{STSC}")
        else:
            for j in range(3):
                ft_index(j)
                ffn_tile(j, sT3, 48 + 8 * j)
    STM(3)
    if var == "A1" and opts.get("kvred", 0):
        A("s_barrier")
    if grp == 1:
        if prio:
            A("s_setprio 0")
        if opts.get("b6", 0):
            A("s_barrier")
    A("s_branch F_bridge")
    if var == "A0":
        A.label("K1_A0_zslow")
        A(f"s_mov_b32 s{sCnt}, 0")
        A.label("K1_A0_zspin")
        A("s_sleep 2")
        if opts.get("ztag", 1):
            A(f"buffer_load_dwordx4 {vr(vZ0,4)}, v{vZo}, s[{SRD_WS}:{SRD_WS+3}], s{sZo} offen sc1")
            A("s_waitcnt vmcnt(0)")
            for l in granule_check(vZ0, 2, sOk):
                A(l)
            A(f"s_and_b32 s{sOk}, s{sOk}, 15")
            A(f"s_cmp_eq_u32 s{sOk}, 15")
        else:
            A(f"buffer_load_dword v{vZ0+2}, v{vZ0}, s[{SRD_DBG}:{SRD_DBG+3}], s{sZo} offen sc1")
            A("s_waitcnt vmcnt(0)")
            A(f"v_readfirstlane_b32 s{sT3}, v{vZ0+2}")
            A(f"s_cmp_eq_u32 s{sT3}, 4")
        A("s_cbranch_scc1 K1_A0_zok")
        A(f"s_add_u32 s{sCnt}, s{sCnt}, 1")
        A(f"s_cmp_lt_u32 s{sCnt}, {SPINMAX}")
        A("s_cbranch_scc1 K1_A0_zspin")
        A("s_branch K1_A0_zok")
    G1, G2 = 96, 100
    Lfb = A.newlabel("K1_fb")
    A.label(Lslow)
    A(f"s_add_u32 s{sCnt}, s{sCnt}, 1")
    A(f"s_cmp_ge_u32 s{sCnt}, {0 if opts.get('forcefb') else NRETRY}")
    A(f"s_cbranch_scc1 {Lfb}")
    A("s_sleep 2")
    for u in gather(1):
        for l in u.split("\n"):
            if not l.startswith("@"):
                A(l)
    A("s_waitcnt vmcnt(0)")
    for l in granule_check(G1, 108, sOk) + granule_check(G2, 110, sOk2):
        A(l)
    A(check_tail())
    A(f"s_cbranch_scc0 {Lslow}")
    A(f"s_branch {Lok}")
    A.label(Lfb)
    if grp == 0:
        fb_rows(A, G1)
    else:
        A(f"s_lshl_b32 s{sT5}, s{sWp}, 6")
        fb_cols(A, typ, G1, sT5)
    A(f"s_lshl_b32 s{sT5}, s{sW}, 6")
    A(f"s_add_u32 s{sT5}, s{sT5}, 256")
    fb_cols(A, typ, G2, sT5)
    A(f"s_branch {Lok}")


LBW = 20480
pL16, pT0, pT1, pW, pWsp, pL4, pOut, pStg = 8, 9, 10, 11, 12, 13, 14, 15
RING = 16
WF = [96, 104]
pX = 112
pIr = 116
pRf = 118
pTmp = 120
WRAW = 128
ACC2 = 192
qLB, qWD, qWO, qH0, qH1, qP0, qP1, qKV, qXo, qST, qRB = 37, 38, 39, 40, 41, 42, 43, 44, 45, 46, 47


def acc2(ci, ri):
    return ACC2 + (ci * 2 + ri) * 16


def phase2(A, opts):
    prio = opts.get("prio", 1)
    A.label("F_bridge")
    A(f"s_load_dwordx2 s[{SRD_OUT}:{SRD_OUT+1}], s[0:1], 56")
    A(f"s_and_b32 s{sT0}, s2, 7")
    A(f"s_lshr_b32 s{sT1}, s2, 3")
    A(f"s_cmp_lt_u32 s{sT1}, 4")
    A("s_cbranch_scc1 F_spare")
    A(f"s_sub_u32 s{sT1}, s{sT1}, 4")
    A(f"s_mul_i32 s{sT2}, s{sT1}, 37")
    A(f"s_lshr_b32 s{sT2}, s{sT2}, 8")
    A(f"s_mul_i32 s{sT3}, s{sT2}, 7")
    A(f"s_sub_u32 s{sT3}, s{sT1}, s{sT3}")
    if opts.get("rbmap", 1) and not opts.get("xmap", 0):
        A(f"s_and_b32 s{sT4}, s{sT0}, 1")
        A(f"s_lshl_b32 s{sT4}, s{sT4}, 2")
        A(f"s_lshr_b32 s{sT0}, s{sT0}, 1")
        A(f"s_add_u32 s{sT0}, s{sT0}, s{sT4}")
    A(f"s_mov_b32 s{qRB}, s{sT0}")
    A(f"s_lshl_b32 s{sT4}, s{sT0}, 2")
    A(f"s_add_u32 s{sT4}, s{sT4}, s{sT2}")
    A(f"s_lshl_b32 s{sT3}, s{sT3}, 7")
    A(f"s_mul_i32 s{qLB}, s{sW}, {LBW}")
    A(f"s_mul_i32 s{qWD}, s{sW}, {224*896}")
    A(f"s_add_u32 s{qWD}, s{qWD}, s{sT3}")
    A(f"s_mul_i32 s{qWO}, s{sW}, {56*896}")
    A(f"s_add_u32 s{qWO}, s{qWO}, s{sT3}")
    A("v_lshrrev_b32 v1, 3, v0")
    A("v_lshrrev_b32 v2, 4, v0")
    A("v_and_b32 v2, 1, v2")
    A("v_lshlrev_b32 v2, 2, v2")
    A("v_and_b32 v3, 7, v0")
    A("v_xor_b32 v3, v3, v2")
    A("v_lshlrev_b32 v3, 4, v3")
    A(f"v_mul_u32_u24 v{pW}, 896, v1")
    A(f"v_add_u32 v{pW}, v{pW}, v3")
    A(f"v_lshlrev_b32 v{pL16}, 4, v0")
    def w_loads():
        nld = 0
        A(f"s_mov_b32 m0, s{qLB}")
        for i in range(12):
            if i:
                A("s_add_u32 m0, m0, 1024")
                A(f"s_add_u32 s{qWD}, s{qWD}, 7168")
            else:
                A("s_nop 0")
            A(f"buffer_load_dwordx4 v{pW}, s[{SRD_WD}:{SRD_WD+3}], s{qWD} offen lds")
            nld += 1
            if i == 0:
                A(f"v_subrev_u32 v{pWsp}, {4*896}, v{pW}")
                A(f"v_mov_b32 v1, 0x{OOB:x}")
                A("v_cmp_gt_u32 vcc, 32, v0")
                A(f"v_cndmask_b32 v{pWsp}, v{pWsp}, v1, vcc")
        for hh in range(2):
            for j in range(4):
                A("s_add_u32 m0, m0, 1024")
                if hh or j:
                    A(f"s_add_u32 s{qWO}, s{qWO}, {7168 if j else 4*896}")
                else:
                    A("s_nop 0")
                A(f"buffer_load_dwordx4 v{pWsp if j == 3 else pW}, s[{SRD_WO}:{SRD_WO+3}], s{qWO} offen lds")
                nld += 1
        for i in range(16):
            A(f"s_add_u32 s{qWD}, s{qWD}, 7168")
            A(f"buffer_load_dwordx4 {vr(WRAW+4*i,4)}, v{pW}, s[{SRD_WD}:{SRD_WD+3}], s{qWD} offen")
            nld += 1
        return nld
    wpos = opts.get("wpos", 1)
    nld = 0
    if wpos == 1:
        if not opts.get("b6", 0):
            A("s_barrier")
        nld = w_loads()
    A(f"s_lshl_b32 s{sT5}, s{sW}, 3")
    A("v_lshrrev_b32 v1, 3, v0")
    A(f"v_add_u32 v1, s{sT5}, v1")
    A("v_and_b32 v2, 7, v0")
    A(f"v_mul_u32_u24 v{pOut}, 896, v1")
    A(f"v_lshl_add_u32 v{pOut}, v2, 4, v{pOut}")
    A(f"s_mul_i32 s{qXo}, s{sT4}, {64*896}")
    A(f"s_add_u32 s{qXo}, s{qXo}, s{sT3}")
    A(f"buffer_load_dwordx4 {vr(pX,4)}, v{pOut}, s[{SRD_X}:{SRD_X+3}], s{qXo} offen")
    nld += 1
    A("v_lshlrev_b32 v7, 4, v1")
    A("v_and_b32 v6, 31, v0")
    A("v_lshlrev_b32 v6, 4, v6")
    A(f"v_lshlrev_b32 v{pL4}, 2, v0")
    A(f"v_add_u32 v{pStg}, s{qLB}, v{pL16}")
    A("v_lshrrev_b32 v1, 2, v0")
    A("v_and_b32 v1, 3, v1")
    A("v_and_b32 v2, 3, v0")
    A("v_lshrrev_b32 v3, 5, v0")
    A("v_lshrrev_b32 v4, 4, v0")
    A("v_and_b32 v4, 1, v4")
    A("v_lshl_add_u32 v5, v3, 2, v1")
    A("v_lshrrev_b32 v1, 1, v1")
    A("v_lshrrev_b32 v3, 1, v2")
    A("v_lshl_add_u32 v3, v4, 1, v3")
    A("v_lshlrev_b32 v1, 2, v1")
    A("v_xor_b32 v3, v3, v1")
    A("v_lshlrev_b32 v3, 4, v3")
    A("v_and_b32 v2, 1, v2")
    A("v_lshl_add_u32 v3, v2, 3, v3")
    A("v_lshl_add_u32 v3, v5, 7, v3")
    A(f"v_add_u32 v{pT0}, s{qLB}, v3")
    A(f"v_xor_b32 v{pT1}, 64, v{pT0}")
    A(f"s_mul_i32 s{qH0}, s{sT4}, {2*112*1024}")
    A(f"s_mul_i32 s{sT0}, s{sW}, {14*1024}")
    A(f"s_add_u32 s{qH0}, s{qH0}, s{sT0}")
    if OFF_H:
        A(f"s_add_u32 s{qH0}, s{qH0}, {OFF_H}")
    A(f"s_add_u32 s{qH1}, s{qH0}, {112*1024}")
    A(f"s_lshl_b32 s{sT0}, s{sW}, 12")
    A(f"s_lshl_b32 s{qP0}, s{sT4}, 16")
    A(f"s_add_u32 s{qP0}, s{qP0}, s{sT0}")
    A(f"s_add_u32 s{qP0}, s{qP0}, {OFF_PQ}")
    A(f"s_add_u32 s{qP1}, s{qP0}, 32768")
    A(f"s_lshl_b32 s{qKV}, s{sW}, 13")
    A(f"s_add_u32 s{qKV}, s{qKV}, {OFF_KVS}")
    A(f"s_lshl_b32 s{qST}, s{sT4}, 10")
    A(f"s_add_u32 s{qST}, s{qST}, {OFF_ST + 4}")
    A(f"s_mov_b32 s{SRD_OUT+2}, {X_BYTES}")
    A(f"s_mov_b32 s{SRD_OUT+3}, 0x20000")
    A(f"s_mov_b32 s{sT5}, 0x{EPS6:x}")
    assert nld <= 63
    A(f"s_waitcnt vmcnt({nld})")
    A("s_barrier")
    STM(4)
    A(f"s_cmp_lg_u32 s{sW}, 4")
    A("s_cbranch_scc1 F_wait")

    fmode = opts.get("fmode", 0)

    def flag():
        A(f"v_mov_b32 v1, 0x{OOB:x}")
        A("v_cmp_eq_u32 vcc, 0, v0")
        if fmode == 0:
            A(f"s_lshl_b32 s{sT0}, s{sRB}, 2")
            A(f"v_mov_b32 v2, s{sT0}")
            A("v_cndmask_b32 v1, v1, v2, vcc")
            A(f"s_lshl_b32 s{sT0}, 1, s{sCB}")
            A(f"v_mov_b32 v2, s{sT0}")
            A(f"buffer_atomic_or v2, v1, s[{SRD_DBG}:{SRD_DBG+3}], 0 offen sc1")
        elif fmode == 1:
            A(f"s_lshl_b32 s{sT0}, s{sRB}, 5")
            A(f"s_add_u32 s{sT0}, s{sT0}, s{sCB}")
            A(f"v_mov_b32 v2, s{sT0}")
            A("v_cndmask_b32 v1, v1, v2, vcc")
            A("v_mov_b32 v2, 1")
            A(f"buffer_store_byte v2, v1, s[{SRD_DBG}:{SRD_DBG+3}], 0 offen sc1")
        else:
            A(f"s_lshl_b32 s{sT0}, s{sRB}, 5")
            A(f"s_add_u32 s{sT0}, s{sT0}, s{sCB}")
            A(f"s_lshl_b32 s{sT0}, s{sT0}, 4")
            A(f"s_add_u32 s{sT0}, s{sT0}, {OFF_FL}")
            A(f"v_mov_b32 v2, s{sT0}")
            A("v_cndmask_b32 v1, v1, v2, vcc")
            A("v_mov_b32 v2, 1")
            A("v_mov_b32 v3, 2")
            for l in granule_finish(2):
                A(l)
            A(f"buffer_store_dwordx4 v[2:5], v1, s[{SRD_WS}:{SRD_WS+3}], 0 offen sc1")
    if prio:
        A("s_setprio 3")
    flag()
    if wpos == 2:
        w_loads()
    DONE = "F_wait2" if wpos == 2 else "F_wait"
    if fmode == 0:
        A(f"v_mov_b32 v1, 0x{OOB:x}")
        A("v_cmp_gt_u32 vcc, 8, v0")
        A(f"v_cndmask_b32 v1, v1, v{pL4}, vcc")
    A(f"s_mov_b32 s{sCnt}, 0")
    A.label("F_poll")
    if fmode == 0:
        A(f"buffer_load_dword v2, v1, s[{SRD_DBG}:{SRD_DBG+3}], 0 offen sc1")
        A("s_waitcnt vmcnt(0)")
        A("v_cmp_eq_u32 vcc, -1, v2")
        A("s_nop 1")
        A(f"s_and_b32 s{sT0}, vcc_lo, 0xff")
        A(f"s_cmp_eq_u32 s{sT0}, 0xff")
    elif fmode == 1:
        A(f"buffer_load_dword v2, v{pL4}, s[{SRD_DBG}:{SRD_DBG+3}], 0 offen sc1")
        A("s_waitcnt vmcnt(0)")
        A("v_and_b32 v2, 0x01010101, v2")
        A("v_cmp_eq_u32 vcc, 0x01010101, v2")
        A("s_nop 1")
        A("s_cmp_eq_u64 vcc, -1")
    else:
        if fmode == 3:
            A(f"s_lshl_b32 s{sT0}, s{qRB}, 9")
            A(f"s_add_u32 s{sT0}, s{sT0}, {OFF_FL}")
            A(f"v_mov_b32 v1, 0x{OOB:x}")
            A("v_cmp_gt_u32 vcc, 32, v0")
            A(f"v_cndmask_b32 v1, v1, v{pL16}, vcc")
            A.label("F_poll0")
            A(f"buffer_load_dwordx4 {vr(96,4)}, v1, s[{SRD_WS}:{SRD_WS+3}], s{sT0} offen sc1")
            A("s_waitcnt vmcnt(0)")
            for l in granule_check(96, 2, sOk):
                A(l)
            A(f"s_cmp_eq_u32 s{sOk}, -1")
            A("s_cbranch_scc1 F_poll1")
            A(f"s_add_u32 s{sCnt}, s{sCnt}, 1")
            if opts.get("psleep"):
                A(f"s_sleep {opts.get('psleep')}")
            A(f"s_cmp_lt_u32 s{sCnt}, {SPINMAX}")
            A("s_cbranch_scc1 F_poll0")
            A.label("F_poll1")
        A(f"s_mov_b32 s{sT0}, {OFF_FL}")
        for j in range(4):
            A(f"buffer_load_dwordx4 {vr(96+4*j,4)}, v{pL16}, s[{SRD_WS}:{SRD_WS+3}], s{sT0} offen offset:{j*1024} sc1")
        A(f"s_mov_b64 s[{sOk2}:{sOk2+1}], -1")
        for j in range(4):
            A(f"s_waitcnt vmcnt({3-j})")
            for l in granule_check(96 + 4 * j, 2, sOk):
                A(l)
            A(f"s_and_b64 s[{sOk2}:{sOk2+1}], s[{sOk2}:{sOk2+1}], s[{sOk}:{sOk+1}]")
        A(f"s_cmp_eq_u64 s[{sOk2}:{sOk2+1}], -1")
    A(f"s_cbranch_scc1 {DONE}")
    A(f"s_add_u32 s{sCnt}, s{sCnt}, 1")
    if opts.get("psleep"):
        A(f"s_sleep {opts.get('psleep')}")
    A(f"s_cmp_lt_u32 s{sCnt}, {SPINMAX}")
    A("s_cbranch_scc1 F_poll1" if fmode == 3 else "s_cbranch_scc1 F_poll")
    if wpos == 2:
        A("s_branch F_wait2")
    A.label("F_wait")
    if wpos == 2:
        w_loads()
        A.label("F_wait2")
    A("s_waitcnt vmcnt(0) lgkmcnt(0)")
    if prio:
        A("s_setprio 0")
    A("s_barrier")
    STM(5)
    if wpos == 0:
        w_loads()
        A("s_waitcnt vmcnt(0)")

    issued = []

    def ld(tag, ins):
        A(ins)
        issued.append(tag)

    def wait_for(tag):
        idx = max(i for i, t in enumerate(issued) if t == tag)
        A(f"s_waitcnt vmcnt({min(63, len(issued) - 1 - idx)})")

    def hslot(ks):
        return RING + (ks % 10) * 8

    def h_loads(ks):
        if ks % 4 == 0 and ks > 0:
            A(f"s_add_u32 s{qH0}, s{qH0}, 4096")
            A(f"s_add_u32 s{qH1}, s{qH1}, 4096")
        for ri, so in enumerate((qH0, qH1)):
            ld(("h", ks), f"buffer_load_dwordx4 {vr(hslot(ks)+4*ri,4)}, v{pL16}, s[{SRD_WS}:{SRD_WS+3}], s{so} offen offset:{(ks%4)*1024}")

    def wslot(ks):
        return ks if ks < 6 else (ks - 6) % 6

    def tr_reads(dst, slot):
        o = []
        for ci, va in enumerate((pT0, pT1)):
            o.append(f"ds_read_b64_tr_b16 {vr(dst+4*ci,2)}, v{va} offset:{slot*2048}")
            o.append(f"ds_read_b64_tr_b16 {vr(dst+4*ci+2,2)}, v{va} offset:{slot*2048+1024}")
        return o

    for s_ in tr_reads(WF[0], 0):
        A(s_)
    for ks in range(10):
        h_loads(ks)
        if ks == 0:
            ld("r", f"buffer_load_dword v{pIr}, v6, s[{SRD_WS}:{SRD_WS+3}], s{qST} offen sc1")
            ld("r", f"buffer_load_dword v{pIr+1}, v6, s[{SRD_WS}:{SRD_WS+3}], s{qST} offen offset:512 sc1")
            ld("r", f"buffer_load_dword v{pRf}, v7, s[{SRD_WS}:{SRD_WS+3}], s{qST} offen sc1")
    KVR = [WRAW, WRAW + 16]
    PQR = [WRAW + 32, WRAW + 48]
    DB = [RING + 32, RING]
    OP = [RING + 64, WRAW + 32]
    WOF = [None, WRAW]

    def extra_loads(i):
        o = []
        if 1 <= i <= 4:
            hh, half = (i - 1) >> 1, (i - 1) & 1
            if i == 3:
                o.append((None, f"s_add_u32 s{qKV}, s{qKV}, 4096"))
            if opts.get("kvx4") or opts.get("kvred"):
                for q in range(2 * half, 2 * half + 2):
                    o.append((("kv", hh), f"buffer_load_dwordx4 {vr(KVR[hh]+4*q,4)}, v{pL16}, s[{SRD_WS}:{SRD_WS+3}], s{qKV} offen offset:{q*1024}"))
            else:
                for r in range(8 * half, 8 * half + 8):
                    o.append((("kv", hh), f"buffer_load_dword v{KVR[hh]+r}, v{pL4}, s[{SRD_WS}:{SRD_WS+3}], s{qKV} offen offset:{r*256}"))
        if 5 <= i <= 8:
            hh, t = (i - 5) >> 1, (i - 5) & 1
            for ri, so in enumerate((qP0, qP1)):
                o.append((("pq", hh), f"buffer_load_dwordx4 {vr(PQR[hh]+8*t+4*ri,4)}, v{pL16}, s[{SRD_WS}:{SRD_WS+3}], s{so} offen offset:{(hh*2+t)*1024}"))
        return o

    def att_kv(hh):
        o = []
        for ri in range(2):
            for t in range(2):
                c = "0" if t == 0 else vr(DB[hh] + 16 * ri, 16)
                o.append(f"v_mfma_f32_32x32x16_bf16 {vr(DB[hh]+16*ri,16)}, {vr(KVR[hh]+4*t,4)}, {vr(PQR[hh]+8*t+4*ri,4)}, {c}")
        return o

    def att_norm(hh):
        o = []
        D_ = DB[hh]
        for ri in range(2):
            t0, t1 = pTmp + 2 * ri, pTmp + 2 * ri + 1
            o.append(f"v_mov_b32 v{t0}, v{D_+16*ri+12}\nv_mov_b32 v{t1}, v{D_+16*ri+12}")
        o.append("s_nop 0\n" + "\n".join(f"v_permlane32_swap_b32 v{pTmp+2*ri}, v{pTmp+2*ri+1}" for ri in range(2)))
        o.append("s_nop 0\n" + "\n".join(f"v_add_f32 v{pTmp+2*ri}, s{sT5}, v{pTmp+2*ri}" for ri in range(2)))
        o.append("\n".join(f"v_rcp_f32 v{pTmp+2*ri}, v{pTmp+2*ri}" for ri in range(2)))
        o.append("s_nop 0\n" + "\n".join(f"v_mul_f32 v{pTmp+2*ri}, v{pTmp+2*ri}, v{pIr+ri}" for ri in range(2)))
        for ri in range(2):
            d = D_ + 16 * ri
            t0 = pTmp + 2 * ri
            for r in range(8):
                o.append(f"v_mul_f32 v{d+2*r}, v{d+2*r}, v{t0}\nv_mul_f32 v{d+2*r+1}, v{d+2*r+1}, v{t0}\n"
                         f"v_cvt_pk_bf16_f32 v{OP[hh]+8*ri+r}, v{d+2*r}, v{d+2*r+1}")
        return o

    def att_wo(hh, wf):
        o = []
        for t in range(2):
            for ci in range(2):
                for ri in range(2):
                    d = acc2(ci, ri)
                    o.append(f"v_mfma_f32_32x32x16_bf16 {vr(d,16)}, {vr(wf[t]+4*ci,4)}, {vr(OP[hh]+8*ri+4*t,4)}, {vr(d,16)}")
        return o

    def run(mf, fills):
        n = len(mf)
        for i, m in enumerate(mf):
            A(m)
            for u in fills[i * len(fills) // n:(i + 1) * len(fills) // n]:
                if isinstance(u, tuple):
                    if u[0] is None:
                        A(u[1])
                    else:
                        ld(u[0], u[1])
                else:
                    A(u)

    def kv_cvt(hh):
        return [f"v_cvt_pk_bf16_f32 v{KVR[hh]+r}, v{KVR[hh]+2*r}, v{KVR[hh]+2*r+1}" for r in range(8)]

    for i in range(14):
        A("s_waitcnt lgkmcnt(0)")
        wait_for(("h", i))
        wf = WF[i & 1]
        hs = hslot(i)
        mf = []
        for ci in range(2):
            for ri in range(2):
                c = "0" if i == 0 else vr(acc2(ci, ri), 16)
                mf.append(f"v_mfma_f32_32x32x16_bf16 {vr(acc2(ci,ri),16)}, {vr(wf+4*ci,4)}, {vr(hs+4*ri,4)}, {c}")
        fills = []
        fills += tr_reads(WF[(i + 1) & 1], wslot(i + 1) if i < 13 else 6)
        if i <= 7:
            for j in range(2):
                fills.append(f"ds_write_b128 v{pStg}, {vr(WRAW+8*i+4*j,4)} offset:{(i%6)*2048+j*1024}")
        fills += extra_loads(i)
        if i == 1:
            fills.append(f"v_mul_f32 v{pIr}, v{pIr}, v{pIr}\nv_mul_f32 v{pIr+1}, v{pIr+1}, v{pIr+1}\nv_mul_f32 v{pRf}, v{pRf}, v{pRf}")
            fills.append(f"v_rcp_f32 v{pIr}, v{pIr}\nv_rcp_f32 v{pIr+1}, v{pIr+1}")
        if i == 11:
            fills += kv_cvt(0)
        if i == 12:
            fills += att_norm(0)[:8]
        if i == 13:
            fills += att_norm(0)[8:] + kv_cvt(1)
        run(mf, fills)
        if i + 10 < 14:
            h_loads(i + 10)
        if i == 10:
            wait_for(("kv", 1))
        if i == 11:
            wait_for(("pq", 0))
            A("s_nop 1")
            run(att_kv(0), [])
            A("s_nop 7")
            A("s_nop 3")
    STM(6)
    wait_for(("pq", 1))
    run(att_kv(1), tr_reads(WF[1], 7) + tr_reads(WOF[1], 8) + tr_reads(WOF[1] + 8, 9))
    A("s_waitcnt lgkmcnt(0)")
    n1 = att_norm(1)
    mf = att_wo(0, WF)
    for i, m in enumerate(mf):
        A(m)
        if i >= 2:
            k0 = (i - 2) * len(n1) // 6
            k1 = (i - 1) * len(n1) // 6
            for u in n1[k0:k1]:
                A(u)
    A("s_nop 1")
    run(att_wo(1, [WOF[1], WOF[1] + 8]), [])
    A("v_and_b32 v4, 31, v0")
    A("v_mul_u32_u24 v4, 272, v4")
    A("v_lshrrev_b32 v5, 5, v0")
    A("v_lshl_add_u32 v4, v5, 4, v4")
    A(f"v_add_u32 v4, s{qLB}, v4")
    A(f"s_lshl_b32 s{sT0}, s{sW}, 3")
    A("v_lshrrev_b32 v5, 3, v0")
    A(f"v_add_u32 v5, s{sT0}, v5")
    A("v_mul_u32_u24 v5, 272, v5")
    A("v_and_b32 v6, 7, v0")
    A("v_lshl_add_u32 v5, v6, 5, v5")
    A(f"v_add_u32 v6, {3*LBW}, v5")
    A(f"v_add_u32 v7, {6*LBW}, v5")
    A("s_nop 3")
    for ri in range(2):
        for ci in range(2):
            d = acc2(ci, ri)
            for j in range(4):
                A(f"ds_write_b128 v4, {vr(d+4*j,4)} offset:{ri*32*272 + ci*128 + j*32}")
    X = 96
    for i in range(4):
        A(f"v_lshlrev_b32 v{X+2*i}, 16, v{pX+i}")
        A(f"v_and_b32 v{X+2*i+1}, s{sHi}, v{pX+i}")
    A("s_waitcnt lgkmcnt(0)")
    A("s_barrier")
    R = 16
    for p_ in range(8):
        va = (5, 6, 7)[p_ // 3]
        for i in range(2):
            A(f"ds_read_b128 {vr(R+8*p_+4*i,4)}, v{va} offset:{(p_%3)*LBW + i*16}")
    for st_, wl in ((1, 12), (1, 8), (1, 4), (1, 0)):
        pass
    for p_ in range(0, 8, 2):
        A(f"s_waitcnt lgkmcnt({12 - 2*p_})")
        for r in range(8):
            A(f"v_add_f32 v{R+8*p_+r}, v{R+8*p_+r}, v{R+8*p_+8+r}")
    for r in range(8):
        A(f"v_add_f32 v{R+r}, v{R+r}, v{R+16+r}")
        A(f"v_add_f32 v{R+32+r}, v{R+32+r}, v{R+48+r}")
    for r in range(8):
        A(f"v_add_f32 v{R+r}, v{R+r}, v{R+32+r}")
    for r in range(8):
        A(f"v_fma_f32 v{R+r}, v{R+r}, v{pRf}, v{X+r}")
    for r in range(4):
        A(f"v_cvt_pk_bf16_f32 v{104+r}, v{R+2*r}, v{R+2*r+1}")
    A("s_waitcnt lgkmcnt(0)")
    A(f"buffer_store_dwordx4 v[104:107], v{pOut}, s[{SRD_OUT}:{SRD_OUT+3}], s{qXo} offen" + {0: "", 1: " sc1", 2: " nt", 3: " sc0 sc1", 4: " sc1 nt"}[opts.get("osc", 0)])
    ST.dump(sW, SRD_WS, sT2)
    A("s_endpgm")
    A.label("F_spare")
    A("s_waitcnt vmcnt(0) lgkmcnt(0)")
    A("s_barrier")
    A(f"s_cmp_lg_u32 s{sW}, 4")
    A("s_cbranch_scc1 F_spare_end")
    flag()
    A.label("F_spare_end")
    ST.dump(sW, SRD_WS, sT2)
    A("s_endpgm")


pTB = [(9, 10), (124, 125), (126, 127)]
pStg1, pStg2, pTch = 15, 119, 120
qKh, qKw, qA0, qA1, qRB64 = 48, 28, 30, 31, 29


def phase2b(A, opts):
    prio = opts.get("prio", 1)
    POLLW = opts.get("pollw", 4)
    rot2 = opts.get("rot2", 1)
    A.label("F_bridge")
    A(f"s_load_dwordx2 s[{SRD_OUT}:{SRD_OUT+1}], s[0:1], 56")
    A(f"s_and_b32 s{sT0}, s2, 7")
    A(f"s_lshr_b32 s{sT1}, s2, 3")
    A(f"s_cmp_lt_u32 s{sT1}, 4")
    A("s_cbranch_scc1 F_spare")
    A(f"s_sub_u32 s{sT1}, s{sT1}, 4")
    A(f"s_mul_i32 s{sT2}, s{sT1}, 37")
    A(f"s_lshr_b32 s{sT2}, s{sT2}, 8")
    A(f"s_mul_i32 s{sT3}, s{sT2}, 7")
    A(f"s_sub_u32 s{sT3}, s{sT1}, s{sT3}")
    if opts.get("rbmap", 1) and not opts.get("xmap", 0):
        A(f"s_and_b32 s{sT4}, s{sT0}, 1")
        A(f"s_lshl_b32 s{sT4}, s{sT4}, 2")
        A(f"s_lshr_b32 s{sT0}, s{sT0}, 1")
        A(f"s_add_u32 s{sT0}, s{sT0}, s{sT4}")
    A(f"s_mov_b32 s{qRB}, s{sT0}")
    A(f"s_lshl_b32 s{qRB64}, s{sT0}, 2")
    A(f"s_add_u32 s{qRB64}, s{qRB64}, s{sT2}")
    A(f"s_mul_i32 s{qKh}, s{sT3}, {2048 if rot2 else 0}")
    A(f"s_mul_i32 s{qKw}, s{sT3}, {2 if rot2 else 0}")
    A(f"s_add_u32 s{qKw}, s{qKw}, 6")
    A(f"s_cmp_ge_u32 s{qKw}, 14")
    A(f"s_cselect_b32 s{sT5}, 14, 0")
    A(f"s_sub_u32 s{qKw}, s{qKw}, s{sT5}")
    A(f"s_mul_i32 s{qKw}, s{qKw}, 14336")
    A(f"s_lshl_b32 s{sT5}, s{sT3}, 3")
    A(f"s_add_u32 s{sT5}, s{sT5}, s{sW}")
    A(f"s_mul_i32 s{sT0}, s{sT5}, 10")
    A(f"v_add_u32 v1, s{sT0}, v0")
    A("v_cmp_gt_u32 vcc, 512, v1")
    A(f"v_mov_b32 v3, 0x{OOB:x}")
    A(f"s_lshl_b32 s{sT0}, s{qRB64}, 16")
    A(f"s_add_u32 s{sT0}, s{sT0}, {OFF_PQ}")
    A("v_lshlrev_b32 v1, 7, v1")
    A(f"v_add_u32 v1, s{sT0}, v1")
    A("v_cndmask_b32 v1, v3, v1, vcc")
    A("v_cmp_gt_u32 vcc, 10, v0")
    A(f"v_cndmask_b32 v{pTch}, v3, v1, vcc")
    A(f"s_mul_i32 s{sT0}, s{sT5}, 3")
    A(f"s_sub_u32 s{sT0}, s{sT0}, 10")
    A(f"v_add_u32 v1, s{sT0}, v0")
    A(f"s_and_b32 s{sT0}, s{qRB64}, 3")
    A(f"s_lshl_b32 s{sT0}, s{sT0}, 14")
    A(f"s_add_u32 s{sT0}, s{sT0}, {OFF_KVS}")
    A("v_cmp_gt_u32 vcc, 128, v1")
    A("v_lshlrev_b32 v1, 7, v1")
    A(f"v_add_u32 v1, s{sT0}, v1")
    A("v_cndmask_b32 v1, v3, v1, vcc")
    A("v_subrev_u32 v2, 10, v0")
    A("v_cmp_gt_u32 vcc, 3, v2")
    A(f"v_cndmask_b32 v{pTch}, v{pTch}, v1, vcc")
    A(f"s_lshl_b32 s{sT3}, s{sT3}, 7")
    A(f"s_lshl_b32 s{qLB}, s{sW}, 10")
    A(f"s_mul_i32 s{qWD}, s{sW}, {224*896}")
    A(f"s_add_u32 s{qWD}, s{qWD}, s{sT3}")
    A(f"s_mul_i32 s{qWO}, s{sW}, {56*896}")
    A(f"s_add_u32 s{qWO}, s{qWO}, s{sT3}")
    A("v_lshrrev_b32 v1, 3, v0")
    A("v_lshrrev_b32 v2, 4, v0")
    A("v_and_b32 v2, 1, v2")
    A("v_lshlrev_b32 v2, 2, v2")
    A("v_and_b32 v3, 7, v0")
    A("v_xor_b32 v3, v3, v2")
    A("v_lshlrev_b32 v3, 4, v3")
    A(f"v_mul_u32_u24 v{pW}, 896, v1")
    A(f"v_add_u32 v{pW}, v{pW}, v3")
    A(f"v_lshlrev_b32 v{pL16}, 4, v0")
    A(f"v_subrev_u32 v{pWsp}, {4*896}, v{pW}")
    A(f"v_mov_b32 v1, 0x{OOB:x}")
    A("v_cmp_gt_u32 vcc, 32, v0")
    A(f"v_cndmask_b32 v{pWsp}, v{pWsp}, v1, vcc")

    def w_late():
        if not opts.get("early", 1):
            A(f"s_mul_i32 s{sT0}, s{qKh}, 14")
            for s_ in range(6):
                for h_ in range(2):
                    A(f"s_add_u32 m0, s{qLB}, {(8 + 2*s_ + h_)*8192}")
                    A(f"s_add_u32 s{sT1}, s{qWD}, s{sT0}")
                    if h_:
                        A(f"s_add_u32 s{sT1}, s{sT1}, 7168")
                    A(f"buffer_load_dwordx4 v{pW}, s[{SRD_WD}:{SRD_WD+3}], s{sT1} offen lds")
                A(f"s_add_u32 s{sT0}, s{sT0}, 14336")
                A(f"s_cmp_eq_u32 s{sT0}, {14*14336}")
                A(f"s_cselect_b32 s{sT0}, 0, s{sT0}")

        def wo_loads():
            A(f"s_mov_b32 m0, s{qLB}")
            A(f"s_mov_b32 s{sT1}, s{qWO}")
            for hh in range(2):
                for j in range(4):
                    if hh or j:
                        A("s_add_u32 m0, m0, 8192")
                        A(f"s_add_u32 s{sT1}, s{sT1}, {7168 if j else 4*896}")
                    else:
                        A("s_nop 0")
                    A(f"buffer_load_dwordx4 v{pWsp if j == 3 else pW}, s[{SRD_WO}:{SRD_WO+3}], s{sT1} offen lds")

        def raw_loads():
            A(f"s_mov_b32 s{sT2}, s{qKw}")
            for i in range(8):
                A(f"s_add_u32 s{sT1}, s{qWD}, s{sT2}")
                A(f"buffer_load_dwordx4 {vr(WRAW+8*i,4)}, v{pW}, s[{SRD_WD}:{SRD_WD+3}], s{sT1} offen")
                A(f"s_add_u32 s{sT1}, s{sT1}, 7168")
                A(f"buffer_load_dwordx4 {vr(WRAW+8*i+4,4)}, v{pW}, s[{SRD_WD}:{SRD_WD+3}], s{sT1} offen")
                if i < 7:
                    A(f"s_add_u32 s{sT2}, s{sT2}, 14336")
                    A(f"s_cmp_eq_u32 s{sT2}, {14*14336}")
                    A(f"s_cselect_b32 s{sT2}, 0, s{sT2}")
        if opts.get("wofirst", 0):
            wo_loads()
            raw_loads()
        else:
            raw_loads()
            wo_loads()

    A(f"s_lshl_b32 s{sT5}, s{sW}, 3")
    A("v_lshrrev_b32 v1, 3, v0")
    A(f"v_add_u32 v1, s{sT5}, v1")
    A("v_and_b32 v2, 7, v0")
    A(f"v_mul_u32_u24 v{pOut}, 896, v1")
    A(f"v_lshl_add_u32 v{pOut}, v2, 4, v{pOut}")
    A(f"s_mul_i32 s{qXo}, s{qRB64}, {64*896}")
    A(f"s_add_u32 s{qXo}, s{qXo}, s{sT3}")
    A(f"buffer_load_dwordx4 {vr(pX,4)}, v{pOut}, s[{SRD_X}:{SRD_X+3}], s{qXo} offen")
    A("v_lshlrev_b32 v7, 4, v1")
    A("v_and_b32 v6, 31, v0")
    A("v_lshlrev_b32 v6, 4, v6")
    A(f"v_lshlrev_b32 v{pL4}, 2, v0")
    A(f"v_add_u32 v{pStg1}, s{qLB}, v{pL16}")
    A(f"v_add_u32 v{pStg2}, {2*65536}, v{pStg1}")
    A(f"v_add_u32 v{pStg1}, {65536}, v{pStg1}")
    A("v_lshrrev_b32 v1, 2, v0")
    A("v_and_b32 v1, 3, v1")
    A("v_and_b32 v2, 3, v0")
    A("v_lshrrev_b32 v3, 5, v0")
    A("v_lshrrev_b32 v4, 4, v0")
    A("v_and_b32 v4, 1, v4")
    A("v_lshl_add_u32 v5, v3, 2, v1")
    A("v_lshrrev_b32 v1, 1, v1")
    A("v_lshrrev_b32 v3, 1, v2")
    A("v_lshl_add_u32 v3, v4, 1, v3")
    A("v_lshlrev_b32 v1, 2, v1")
    A("v_xor_b32 v3, v3, v1")
    A("v_lshlrev_b32 v3, 4, v3")
    A("v_and_b32 v2, 1, v2")
    A("v_lshl_add_u32 v3, v2, 3, v3")
    A("v_lshl_add_u32 v3, v5, 7, v3")
    A(f"v_add_u32 v{pTB[0][0]}, s{qLB}, v3")
    A(f"v_xor_b32 v{pTB[0][1]}, 64, v{pTB[0][0]}")
    for b in (1, 2):
        for ci in range(2):
            A(f"v_add_u32 v{pTB[b][ci]}, {b*65536}, v{pTB[0][ci]}")
    A(f"s_mul_i32 s{qH0}, s{qRB64}, {2*112*1024}")
    A(f"s_mul_i32 s{sT0}, s{sW}, {14*1024}")
    A(f"s_add_u32 s{qH0}, s{qH0}, s{sT0}")
    if OFF_H:
        A(f"s_add_u32 s{qH0}, s{qH0}, {OFF_H}")
    A(f"s_add_u32 s{qH1}, s{qH0}, {112*1024}")
    A(f"s_lshl_b32 s{sT0}, s{sW}, 12")
    A(f"s_lshl_b32 s{qP0}, s{qRB64}, 16")
    A(f"s_add_u32 s{qP0}, s{qP0}, s{sT0}")
    A(f"s_add_u32 s{qP0}, s{qP0}, {OFF_PQ}")
    A(f"s_add_u32 s{qP1}, s{qP0}, 32768")
    A(f"s_lshl_b32 s{qKV}, s{sW}, 13")
    A(f"s_add_u32 s{qKV}, s{qKV}, {OFF_KVS}")
    A(f"s_lshl_b32 s{qST}, s{qRB64}, 10")
    A(f"s_add_u32 s{qST}, s{qST}, {OFF_ST + 4}")
    A(f"s_mov_b32 s{SRD_OUT+2}, {X_BYTES}")
    A(f"s_mov_b32 s{SRD_OUT+3}, 0x20000")
    A(f"s_mov_b32 s{sT5}, 0x{EPS6:x}")
    A("s_waitcnt vmcnt(0)")
    A("s_barrier")
    STM(4)
    P2M(0)
    A(f"s_cmp_eq_u32 s{sW}, {POLLW}")
    A("s_cbranch_scc1 F_pollw")
    w_late()
    A("s_barrier")
    A("s_branch F_go")

    def flag():
        A(f"v_mov_b32 v1, 0x{OOB:x}")
        A("v_cmp_eq_u32 vcc, 0, v0")
        A(f"s_lshl_b32 s{sT0}, s{sRB}, 5")
        A(f"s_add_u32 s{sT0}, s{sT0}, s{sCB}")
        A(f"s_lshl_b32 s{sT0}, s{sT0}, 4")
        A(f"s_add_u32 s{sT0}, s{sT0}, {OFF_FL}")
        A(f"v_mov_b32 v2, s{sT0}")
        A("v_cndmask_b32 v1, v1, v2, vcc")
        A("v_mov_b32 v2, 1")
        A("v_mov_b32 v3, 2")
        for l in granule_finish(2):
            A(l)
        A(f"buffer_store_dwordx4 v[2:5], v1, s[{SRD_WS}:{SRD_WS+3}], 0 offen sc1")
    A.label("F_pollw")
    if prio:
        A("s_setprio 3")
    flag()
    A(f"s_mov_b32 s{sCnt}, 0")
    A(f"s_lshl_b32 s{sT0}, s{qRB}, 9")
    A(f"s_add_u32 s{sT0}, s{sT0}, {OFF_FL}")
    A(f"v_mov_b32 v1, 0x{OOB:x}")
    A("v_cmp_gt_u32 vcc, 32, v0")
    A(f"v_cndmask_b32 v1, v1, v{pL16}, vcc")
    A.label("F_poll0")
    A(f"buffer_load_dwordx4 {vr(96,4)}, v1, s[{SRD_WS}:{SRD_WS+3}], s{sT0} offen sc1")
    A("s_waitcnt vmcnt(0)")
    for l in granule_check(96, 2, sOk):
        A(l)
    A(f"s_cmp_eq_u32 s{sOk}, -1")
    A("s_cbranch_scc1 F_poll1")
    A(f"s_add_u32 s{sCnt}, s{sCnt}, 1")
    if opts.get("psleep", 4):
        A(f"s_sleep {opts.get('psleep', 4)}")
    A(f"s_cmp_lt_u32 s{sCnt}, {SPINMAX}")
    A("s_cbranch_scc1 F_poll0")
    A.label("F_poll1")
    A(f"s_mov_b32 s{sT0}, {OFF_FL}")
    for j in range(4):
        A(f"buffer_load_dwordx4 {vr(96+4*j,4)}, v{pL16}, s[{SRD_WS}:{SRD_WS+3}], s{sT0} offen offset:{j*1024} sc1")
    A(f"s_mov_b64 s[{sOk2}:{sOk2+1}], -1")
    for j in range(4):
        A(f"s_waitcnt vmcnt({3-j})")
        for l in granule_check(96 + 4 * j, 2, sOk):
            A(l)
        A(f"s_and_b64 s[{sOk2}:{sOk2+1}], s[{sOk2}:{sOk2+1}], s[{sOk}:{sOk+1}]")
    A(f"s_cmp_eq_u64 s[{sOk2}:{sOk2+1}], -1")
    A("s_cbranch_scc1 F_polled")
    A(f"s_add_u32 s{sCnt}, s{sCnt}, 1")
    if opts.get("psleep", 4):
        A(f"s_sleep {opts.get('psleep', 4)}")
    A(f"s_cmp_lt_u32 s{sCnt}, {SPINMAX}")
    A("s_cbranch_scc1 F_poll1")
    A.label("F_polled")
    if prio:
        A("s_setprio 0")
    A("s_barrier")
    w_late()
    A.label("F_go")
    STM(5)
    P2M(1)

    issued = []

    def ld(tag, ins):
        A(ins)
        issued.append(tag)

    def wait_for(tag):
        idx = max(i for i, t in enumerate(issued) if t == tag)
        A(f"s_waitcnt vmcnt({min(63, len(issued) - 1 - idx)})")

    NR = opts.get("ring", 10)

    def hslot(ks):
        return RING + (ks % NR) * 8

    def h_loads(ks):
        A(f"s_add_u32 s{qA0}, s{qH0}, s{qKh}")
        A(f"s_add_u32 s{qA1}, s{qH1}, s{qKh}")
        for ri, so in enumerate((qA0, qA1)):
            ld(("h", ks), f"buffer_load_dwordx4 {vr(hslot(ks)+4*ri,4)}, v{pL16}, s[{SRD_WS}:{SRD_WS+3}], s{so} offen")
        if ks < 13:
            A(f"s_add_u32 s{qKh}, s{qKh}, 1024")
            A(f"s_cmp_eq_u32 s{qKh}, 14336")
            A(f"s_cselect_b32 s{qKh}, 0, s{qKh}")

    def wslot(ks):
        return ks if ks < 6 else (ks - 6) % 6

    def rowof(slot, h):
        return 8 + 2 * slot + h if slot < 6 else 2 * (slot - 6) + h

    def tr_reads(dst, slot):
        o = []
        for ci in range(2):
            for h in range(2):
                r = rowof(slot, h)
                o.append(f"ds_read_b64_tr_b16 {vr(dst+4*ci+2*h,2)}, v{pTB[r//8][ci]} offset:{(r%8)*8192}")
        return o

    if opts.get("touch", 1):
        ld("t", f"buffer_load_dword v1, v{pTch}, s[{SRD_WS}:{SRD_WS+3}], 0 offen")
    for s_ in tr_reads(WF[0], 0):
        A(s_)
    for ks in range(NR):
        h_loads(ks)
        if ks == 0:
            ld("r", f"buffer_load_dword v{pIr}, v6, s[{SRD_WS}:{SRD_WS+3}], s{qST} offen sc1")
            ld("r", f"buffer_load_dword v{pIr+1}, v6, s[{SRD_WS}:{SRD_WS+3}], s{qST} offen offset:512 sc1")
            ld("r", f"buffer_load_dword v{pRf}, v7, s[{SRD_WS}:{SRD_WS+3}], s{qST} offen sc1")
    KVR = [WRAW, WRAW + 16]
    PQR = [WRAW + 32, WRAW + 48]
    DB = [RING + 32, RING]
    OP = [RING + 64, WRAW + 32]
    WOF = [None, WRAW]

    def extra_loads(i):
        o = []
        if 1 <= i <= 4:
            hh, half = (i - 1) >> 1, (i - 1) & 1
            if i == 3:
                o.append((None, f"s_add_u32 s{qKV}, s{qKV}, 4096"))
            if opts.get("kvx4") or opts.get("kvred"):
                for q in range(2 * half, 2 * half + 2):
                    o.append((("kv", hh), f"buffer_load_dwordx4 {vr(KVR[hh]+4*q,4)}, v{pL16}, s[{SRD_WS}:{SRD_WS+3}], s{qKV} offen offset:{q*1024}"))
            else:
                for r in range(8 * half, 8 * half + 8):
                    o.append((("kv", hh), f"buffer_load_dword v{KVR[hh]+r}, v{pL4}, s[{SRD_WS}:{SRD_WS+3}], s{qKV} offen offset:{r*256}"))
        if 5 <= i <= 8:
            hh, t = (i - 5) >> 1, (i - 5) & 1
            for ri, so in enumerate((qP0, qP1)):
                o.append((("pq", hh), f"buffer_load_dwordx4 {vr(PQR[hh]+8*t+4*ri,4)}, v{pL16}, s[{SRD_WS}:{SRD_WS+3}], s{so} offen offset:{(hh*2+t)*1024}"))
        return o

    def att_kv(hh):
        o = []
        for ri in range(2):
            for t in range(2):
                c = "0" if t == 0 else vr(DB[hh] + 16 * ri, 16)
                o.append(f"v_mfma_f32_32x32x16_bf16 {vr(DB[hh]+16*ri,16)}, {vr(KVR[hh]+4*t,4)}, {vr(PQR[hh]+8*t+4*ri,4)}, {c}")
        return o

    def att_norm(hh):
        o = []
        D_ = DB[hh]
        for ri in range(2):
            t0, t1 = pTmp + 2 * ri, pTmp + 2 * ri + 1
            o.append(f"v_mov_b32 v{t0}, v{D_+16*ri+12}\nv_mov_b32 v{t1}, v{D_+16*ri+12}")
        o.append("s_nop 0\n" + "\n".join(f"v_permlane32_swap_b32 v{pTmp+2*ri}, v{pTmp+2*ri+1}" for ri in range(2)))
        o.append("s_nop 0\n" + "\n".join(f"v_add_f32 v{pTmp+2*ri}, s{sT5}, v{pTmp+2*ri}" for ri in range(2)))
        o.append("\n".join(f"v_rcp_f32 v{pTmp+2*ri}, v{pTmp+2*ri}" for ri in range(2)))
        o.append("s_nop 0\n" + "\n".join(f"v_mul_f32 v{pTmp+2*ri}, v{pTmp+2*ri}, v{pIr+ri}" for ri in range(2)))
        for ri in range(2):
            d = D_ + 16 * ri
            t0 = pTmp + 2 * ri
            for r in range(8):
                o.append(f"v_mul_f32 v{d+2*r}, v{d+2*r}, v{t0}\nv_mul_f32 v{d+2*r+1}, v{d+2*r+1}, v{t0}\n"
                         f"v_cvt_pk_bf16_f32 v{OP[hh]+8*ri+r}, v{d+2*r}, v{d+2*r+1}")
        return o

    def att_wo(hh, wf):
        o = []
        for t in range(2):
            for ci in range(2):
                for ri in range(2):
                    d = acc2(ci, ri)
                    o.append(f"v_mfma_f32_32x32x16_bf16 {vr(d,16)}, {vr(wf[t]+4*ci,4)}, {vr(OP[hh]+8*ri+4*t,4)}, {vr(d,16)}")
        return o

    def run(mf, fills):
        n = len(mf)
        for i, m in enumerate(mf):
            A(m)
            for u in fills[i * len(fills) // n:(i + 1) * len(fills) // n]:
                if isinstance(u, tuple):
                    if u[0] is None:
                        A(u[1])
                    else:
                        ld(u[0], u[1])
                else:
                    A(u)

    def kv_cvt(hh):
        return [f"v_cvt_pk_bf16_f32 v{KVR[hh]+r}, v{KVR[hh]+2*r}, v{KVR[hh]+2*r+1}" for r in range(8)]

    assert NR == 10
    P2M(2)
    for i in range(14):
        A("s_waitcnt lgkmcnt(0)")
        wait_for(("h", i))
        if i in (0, 4, 8):
            P2M(3 + i // 4)
        wf = WF[i & 1]
        hs = hslot(i)
        mf = []
        for ci in range(2):
            for ri in range(2):
                c = "0" if i == 0 else vr(acc2(ci, ri), 16)
                mf.append(f"v_mfma_f32_32x32x16_bf16 {vr(acc2(ci,ri),16)}, {vr(wf+4*ci,4)}, {vr(hs+4*ri,4)}, {c}")
        fills = []
        fills += tr_reads(WF[(i + 1) & 1], wslot(i + 1) if i < 13 else 6)
        if i <= 7:
            for j in range(2):
                r = rowof(i % 6, j)
                fills.append(f"ds_write_b128 v{pStg1 if r < 16 else pStg2}, {vr(WRAW+8*i+4*j,4)} offset:{(r%8)*8192}")
        fills += extra_loads(i)
        if i == 1:
            fills.append(f"v_mul_f32 v{pIr}, v{pIr}, v{pIr}\nv_mul_f32 v{pIr+1}, v{pIr+1}, v{pIr+1}\nv_mul_f32 v{pRf}, v{pRf}, v{pRf}")
            fills.append(f"v_rcp_f32 v{pIr}, v{pIr}\nv_rcp_f32 v{pIr+1}, v{pIr+1}")
        if i == 11:
            fills += kv_cvt(0)
        if i == 12:
            fills += att_norm(0)[:8]
        if i == 13:
            fills += att_norm(0)[8:] + kv_cvt(1)
        run(mf, fills)
        if i + NR < 14:
            h_loads(i + NR)
        if i == 10:
            wait_for(("kv", 1))
        if i == 11:
            wait_for(("pq", 0))
            A("s_nop 1")
            run(att_kv(0), [])
            A("s_nop 7")
            A("s_nop 3")
    STM(6)
    wait_for(("pq", 1))
    run(att_kv(1), tr_reads(WF[1], 7) + tr_reads(WOF[1], 8) + tr_reads(WOF[1] + 8, 9))
    A("s_waitcnt lgkmcnt(0)")
    n1 = att_norm(1)
    mf = att_wo(0, WF)
    for i, m in enumerate(mf):
        A(m)
        if i >= 2:
            k0 = (i - 2) * len(n1) // 6
            k1 = (i - 1) * len(n1) // 6
            for u in n1[k0:k1]:
                A(u)
    A("s_nop 1")
    run(att_wo(1, [WOF[1], WOF[1] + 8]), [])
    A("v_and_b32 v4, 31, v0")
    A("v_lshrrev_b32 v5, 2, v4")
    A("v_lshlrev_b32 v5, 14, v5")
    A("v_and_b32 v6, 3, v0")
    A("v_lshl_add_u32 v5, v6, 8, v5")
    A("v_lshrrev_b32 v6, 5, v0")
    A("v_and_b32 v4, 15, v4")
    A("v_xor_b32 v4, v4, v6")
    A("v_lshl_add_u32 v4, v4, 4, v5")
    A(f"v_add_u32 v4, s{qLB}, v4")
    for k in range(1, 8):
        A(f"v_xor_b32 v{RING+k}, {k << 5}, v4")
    wa = [4] + [RING + k for k in range(1, 8)]
    A(f"s_and_b32 s{sT0}, s{sW}, 3")
    A(f"s_lshl_b32 s{sT0}, s{sT0}, 15")
    A(f"s_lshr_b32 s{sT1}, s{sW}, 2")
    A(f"s_lshl_b32 s{sT1}, s{sT1}, 13")
    A(f"s_add_u32 s{sT0}, s{sT0}, s{sT1}")
    A("v_lshrrev_b32 v5, 5, v0")
    A("v_lshlrev_b32 v5, 14, v5")
    A("v_lshrrev_b32 v6, 3, v0")
    A("v_and_b32 v7, 3, v6")
    A("v_lshl_add_u32 v5, v7, 8, v5")
    A(f"s_and_b32 s{sT1}, s{sW}, 1")
    A(f"s_lshl_b32 s{sT1}, s{sT1}, 3")
    A(f"v_add_u32 v6, s{sT1}, v6")
    A("v_and_b32 v7, 7, v0")
    A("v_lshlrev_b32 v7, 1, v7")
    A("v_xor_b32 v6, v6, v7")
    A("v_lshl_add_u32 v5, v6, 4, v5")
    A(f"v_add_u32 v5, s{sT0}, v5")
    A("v_xor_b32 v6, 16, v5")
    for ri in range(2):
        for ci in range(2):
            d = acc2(ci, ri)
            for j in range(4):
                A(f"ds_write_b128 v{wa[ci*4+j]}, {vr(d+4*j,4)} offset:{ri*8192}")
    X = 96
    for i in range(4):
        A(f"v_lshlrev_b32 v{X+2*i}, 16, v{pX+i}")
        A(f"v_and_b32 v{X+2*i+1}, s{sHi}, v{pX+i}")
    A("s_waitcnt lgkmcnt(0)")
    A("s_barrier")
    R = 24
    for p_ in range(8):
        for i in range(2):
            A(f"ds_read_b128 {vr(R+8*p_+4*i,4)}, v{5+i} offset:{p_*1024}")
    for p_ in range(0, 8, 2):
        A(f"s_waitcnt lgkmcnt({12 - 2*p_})")
        for r in range(8):
            A(f"v_add_f32 v{R+8*p_+r}, v{R+8*p_+r}, v{R+8*p_+8+r}")
    for r in range(8):
        A(f"v_add_f32 v{R+r}, v{R+r}, v{R+16+r}")
        A(f"v_add_f32 v{R+32+r}, v{R+32+r}, v{R+48+r}")
    for r in range(8):
        A(f"v_add_f32 v{R+r}, v{R+r}, v{R+32+r}")
    for r in range(8):
        A(f"v_fma_f32 v{R+r}, v{R+r}, v{pRf}, v{X+r}")
    for r in range(4):
        A(f"v_cvt_pk_bf16_f32 v{104+r}, v{R+2*r}, v{R+2*r+1}")
    A("s_waitcnt lgkmcnt(0)")
    A(f"buffer_store_dwordx4 v[104:107], v{pOut}, s[{SRD_OUT}:{SRD_OUT+3}], s{qXo} offen" + {0: "", 1: " sc1", 2: " nt", 3: " sc0 sc1", 4: " sc1 nt"}[opts.get("osc", 0)])
    ST.dump(sW, SRD_WS, sT2)
    A("s_endpgm")
    A.label("F_spare")
    A("s_waitcnt vmcnt(0) lgkmcnt(0)")
    A("s_barrier")
    A(f"s_cmp_lg_u32 s{sW}, {POLLW}")
    A("s_cbranch_scc1 F_spare_end")
    flag()
    A.label("F_spare_end")
    ST.dump(sW, SRD_WS, sT2)
    A("s_endpgm")


pKVF, pPol, pRfA = 7, 121, 120
pRl = 6
qKF, qPF = 56, 57


def phase2c(A, opts):
    prio = opts.get("prio", 1)
    POLLW = opts.get("pollw", 0)
    rot2 = opts.get("rot2", 1)
    A.label("F_bridge")
    A(f"s_load_dwordx2 s[{SRD_OUT}:{SRD_OUT+1}], s[0:1], 56")
    A(f"s_and_b32 s{sT0}, s2, 7")
    A(f"s_lshr_b32 s{sT1}, s2, 3")
    A(f"s_cmp_lt_u32 s{sT1}, 4")
    A("s_cbranch_scc1 F_spare")
    A(f"s_sub_u32 s{sT1}, s{sT1}, 4")
    A(f"s_mul_i32 s{sT2}, s{sT1}, 37")
    A(f"s_lshr_b32 s{sT2}, s{sT2}, 8")
    A(f"s_mul_i32 s{sT3}, s{sT2}, 7")
    A(f"s_sub_u32 s{sT3}, s{sT1}, s{sT3}")
    if opts.get("rbmap", 1) and not opts.get("xmap", 0):
        A(f"s_and_b32 s{sT4}, s{sT0}, 1")
        A(f"s_lshl_b32 s{sT4}, s{sT4}, 2")
        A(f"s_lshr_b32 s{sT0}, s{sT0}, 1")
        A(f"s_add_u32 s{sT0}, s{sT0}, s{sT4}")
    A(f"s_mov_b32 s{qRB}, s{sT0}")
    A(f"s_lshl_b32 s{qRB64}, s{sT0}, 2")
    A(f"s_add_u32 s{qRB64}, s{qRB64}, s{sT2}")
    A(f"s_mul_i32 s{qKh}, s{sT3}, {2048 if rot2 else 0}")
    A(f"s_mul_i32 s{qKw}, s{sT3}, {2 if rot2 else 0}")
    A(f"s_add_u32 s{qKw}, s{qKw}, 6")
    A(f"s_cmp_ge_u32 s{qKw}, 14")
    A(f"s_cselect_b32 s{sT5}, 14, 0")
    A(f"s_sub_u32 s{qKw}, s{qKw}, s{sT5}")
    A(f"s_mul_i32 s{qKw}, s{qKw}, 14336")
    A(f"s_lshl_b32 s{sT3}, s{sT3}, 7")
    A(f"s_lshl_b32 s{qLB}, s{sW}, 10")
    A(f"s_mul_i32 s{qWD}, s{sW}, {224*896}")
    A(f"s_add_u32 s{qWD}, s{qWD}, s{sT3}")
    A(f"s_mul_i32 s{qWO}, s{sW}, {56*896}")
    A(f"s_add_u32 s{qWO}, s{qWO}, s{sT3}")
    A("v_lshrrev_b32 v1, 3, v0")
    A("v_lshrrev_b32 v2, 4, v0")
    A("v_and_b32 v2, 1, v2")
    A("v_lshlrev_b32 v2, 2, v2")
    A("v_and_b32 v3, 7, v0")
    A("v_xor_b32 v3, v3, v2")
    A("v_lshlrev_b32 v3, 4, v3")
    A(f"v_mul_u32_u24 v{pW}, 896, v1")
    A(f"v_add_u32 v{pW}, v{pW}, v3")
    A(f"v_lshlrev_b32 v{pL16}, 4, v0")
    A(f"v_subrev_u32 v{pWsp}, {4*896}, v{pW}")
    A(f"v_mov_b32 v1, 0x{OOB:x}")
    A("v_cmp_gt_u32 vcc, 32, v0")
    A(f"v_cndmask_b32 v{pWsp}, v{pWsp}, v1, vcc")

    def w_late():
        if not opts.get("early", 1):
            A(f"s_mul_i32 s{sT0}, s{qKh}, 14")
            for s_ in range(6):
                for h_ in range(2):
                    A(f"s_add_u32 m0, s{qLB}, {(8 + 2*s_ + h_)*8192}")
                    A(f"s_add_u32 s{sT1}, s{qWD}, s{sT0}")
                    if h_:
                        A(f"s_add_u32 s{sT1}, s{sT1}, 7168")
                    A(f"buffer_load_dwordx4 v{pW}, s[{SRD_WD}:{SRD_WD+3}], s{sT1} offen lds")
                A(f"s_add_u32 s{sT0}, s{sT0}, 14336")
                A(f"s_cmp_eq_u32 s{sT0}, {14*14336}")
                A(f"s_cselect_b32 s{sT0}, 0, s{sT0}")

        def wo_loads():
            A(f"s_mov_b32 m0, s{qLB}")
            A(f"s_mov_b32 s{sT1}, s{qWO}")
            for hh in range(2):
                for j in range(4):
                    if hh or j:
                        A("s_add_u32 m0, m0, 8192")
                        A(f"s_add_u32 s{sT1}, s{sT1}, {7168 if j else 4*896}")
                    else:
                        A("s_nop 0")
                    A(f"buffer_load_dwordx4 v{pWsp if j == 3 else pW}, s[{SRD_WO}:{SRD_WO+3}], s{sT1} offen lds")

        def raw_loads():
            A(f"s_mov_b32 s{sT2}, s{qKw}")
            for i in range(8):
                A(f"s_add_u32 s{sT1}, s{qWD}, s{sT2}")
                A(f"buffer_load_dwordx4 {vr(WRAW+8*i,4)}, v{pW}, s[{SRD_WD}:{SRD_WD+3}], s{sT1} offen")
                A(f"s_add_u32 s{sT1}, s{sT1}, 7168")
                A(f"buffer_load_dwordx4 {vr(WRAW+8*i+4,4)}, v{pW}, s[{SRD_WD}:{SRD_WD+3}], s{sT1} offen")
                if i < 7:
                    A(f"s_add_u32 s{sT2}, s{sT2}, 14336")
                    A(f"s_cmp_eq_u32 s{sT2}, {14*14336}")
                    A(f"s_cselect_b32 s{sT2}, 0, s{sT2}")
        if opts.get("wofirst", 0):
            wo_loads()
            raw_loads()
        else:
            raw_loads()
            wo_loads()

    A(f"s_lshl_b32 s{sT5}, s{sW}, 3")
    A("v_lshrrev_b32 v1, 3, v0")
    A(f"v_add_u32 v1, s{sT5}, v1")
    A("v_and_b32 v2, 7, v0")
    A(f"v_mul_u32_u24 v{pOut}, 896, v1")
    A(f"v_lshl_add_u32 v{pOut}, v2, 4, v{pOut}")
    A(f"s_mul_i32 s{qXo}, s{qRB64}, {64*896}")
    A(f"s_add_u32 s{qXo}, s{qXo}, s{sT3}")
    A(f"buffer_load_dwordx4 {vr(pX,4)}, v{pOut}, s[{SRD_X}:{SRD_X+3}], s{qXo} offen")
    A(f"v_lshlrev_b32 v{pRfA}, 4, v1")
    A("v_and_b32 v6, 31, v0")
    A("v_lshlrev_b32 v6, 4, v6")
    A(f"v_lshlrev_b32 v{pL4}, 2, v0")
    A(f"v_add_u32 v{pStg1}, s{qLB}, v{pL16}")
    A(f"v_add_u32 v{pStg2}, {2*65536}, v{pStg1}")
    A(f"v_add_u32 v{pStg1}, {65536}, v{pStg1}")
    A("v_lshrrev_b32 v1, 2, v0")
    A("v_and_b32 v1, 3, v1")
    A("v_and_b32 v2, 3, v0")
    A("v_lshrrev_b32 v3, 5, v0")
    A("v_lshrrev_b32 v4, 4, v0")
    A("v_and_b32 v4, 1, v4")
    A("v_lshl_add_u32 v5, v3, 2, v1")
    A("v_lshrrev_b32 v1, 1, v1")
    A("v_lshrrev_b32 v3, 1, v2")
    A("v_lshl_add_u32 v3, v4, 1, v3")
    A("v_lshlrev_b32 v1, 2, v1")
    A("v_xor_b32 v3, v3, v1")
    A("v_lshlrev_b32 v3, 4, v3")
    A("v_and_b32 v2, 1, v2")
    A("v_lshl_add_u32 v3, v2, 3, v3")
    A("v_lshl_add_u32 v3, v5, 7, v3")
    A(f"v_add_u32 v{pTB[0][0]}, s{qLB}, v3")
    A(f"v_xor_b32 v{pTB[0][1]}, 64, v{pTB[0][0]}")
    for b in (1, 2):
        for ci in range(2):
            A(f"v_add_u32 v{pTB[b][ci]}, {b*65536}, v{pTB[0][ci]}")
    A(f"s_mul_i32 s{qH0}, s{qRB64}, {2*112*1024}")
    A(f"s_mul_i32 s{sT0}, s{sW}, {14*1024}")
    A(f"s_add_u32 s{qH0}, s{qH0}, s{sT0}")
    if OFF_H:
        A(f"s_add_u32 s{qH0}, s{qH0}, {OFF_H}")
    A(f"s_add_u32 s{qH1}, s{qH0}, {112*1024}")
    A(f"s_lshl_b32 s{sT0}, s{sW}, 12")
    A(f"s_lshl_b32 s{qP0}, s{qRB64}, 16")
    A(f"s_add_u32 s{qP0}, s{qP0}, s{sT0}")
    A(f"s_add_u32 s{qP0}, s{qP0}, {OFF_PQ}")
    A(f"s_add_u32 s{qP1}, s{qP0}, 32768")
    A(f"s_lshl_b32 s{qKV}, s{sW}, 13")
    A(f"s_add_u32 s{qKV}, s{qKV}, {OFF_KVS}")
    A(f"s_lshl_b32 s{qST}, s{qRB64}, 10")
    A(f"s_add_u32 s{qST}, s{qST}, {OFF_ST + 4}")
    A(f"s_mov_b32 s{SRD_OUT+2}, {X_BYTES}")
    A(f"s_mov_b32 s{SRD_OUT+3}, 0x20000")
    A(f"s_mov_b32 s{sT5}, 0x{EPS6:x}")
    rpre = opts.get("rpre", 1)
    RG = [64, 68, 72]
    sRok = 70

    def r_loads():
        A(f"s_sub_u32 s{sT0}, s{qST}, 4")
        A(f"buffer_load_dwordx4 {vr(RG[0],4)}, v{pRl}, s[{SRD_WS}:{SRD_WS+3}], s{sT0} offen sc1")
        A(f"buffer_load_dwordx4 {vr(RG[1],4)}, v{pRl}, s[{SRD_WS}:{SRD_WS+3}], s{sT0} offen offset:512 sc1")
        A(f"buffer_load_dwordx4 {vr(RG[2],4)}, v{pRfA}, s[{SRD_WS}:{SRD_WS+3}], s{sT0} offen sc1")

    def r_check():
        A(f"s_mov_b64 s[{sNeed}:{sNeed+1}], -1")
        for g in RG:
            for l in granule_check(g, 2, sOk):
                A(l)
            A(f"s_and_b64 s[{sNeed}:{sNeed+1}], s[{sNeed}:{sNeed+1}], s[{sOk}:{sOk+1}]")
        A(f"s_cmp_eq_u64 s[{sNeed}:{sNeed+1}], -1")
        A(f"s_cselect_b32 s{sRok}, {0 if opts.get('rfail') else 1}, 0")
    if rpre:
        r_loads()
    A(f"v_mov_b32 v1, 0x{OOB:x}")
    A("v_cmp_gt_u32 vcc, 16, v0")
    A(f"v_cndmask_b32 v{pKVF}, v1, v{pL16}, vcc")
    kvpoll = opts.get("kvpoll", 1)
    if kvpoll:
        A(f"s_mov_b32 s{qKF}, {OFF_FL + 4096}")
    else:
        A(f"s_lshl_b32 s{qKF}, s{sW}, 8")
        A(f"s_add_u32 s{qKF}, s{qKF}, {OFF_FL + 4096}")

    def flag_prep():
        A(f"s_lshl_b32 s{sT0}, s{sRB}, 5")
        A(f"s_add_u32 s{sT0}, s{sT0}, s{sCB}")
        A(f"s_lshl_b32 s{sT0}, s{sT0}, 4")
        A(f"s_add_u32 s{sT0}, s{sT0}, {OFF_FL}")
        A(f"s_lshl_b32 s{sT1}, s{sCB}, 3")
        A(f"s_add_u32 s{sT1}, s{sT1}, s{sRB}")
        A(f"s_lshl_b32 s{sT1}, s{sT1}, 4")
        A(f"s_add_u32 s{sT1}, s{sT1}, {OFF_FL + 4096}")
        A(f"s_cmp_lt_u32 s{sCB}, 16")
        A(f"s_cselect_b32 s{sT1}, s{sT1}, 0x{OOB:x}")
        A(f"v_mov_b32 v1, 0x{OOB:x}")
        A(f"v_mov_b32 v2, s{sT0}")
        A("v_cmp_eq_u32 vcc, 0, v0")
        A("v_cndmask_b32 v1, v1, v2, vcc")
        A(f"v_mov_b32 v2, s{sT1}")
        A("v_cmp_eq_u32 vcc, 1, v0")
        A("v_cndmask_b32 v1, v1, v2, vcc")
        A("v_mov_b32 v2, 1")
        A("v_mov_b32 v3, 2")
        for l in granule_finish(2):
            A(l)

    def flag_store():
        A(f"buffer_store_dwordx4 v[2:5], v1, s[{SRD_WS}:{SRD_WS+3}], 0 offen sc1")
    flag_prep()
    A(f"s_lshl_b32 s{qPF}, s{qRB}, 9")
    A(f"s_add_u32 s{qPF}, s{qPF}, {OFF_FL}")
    A(f"v_mov_b32 v{pPol}, 0x{OOB:x}")
    A("v_cmp_gt_u32 vcc, 32, v0")
    A(f"v_cndmask_b32 v{pPol}, v{pPol}, v{pL16}, vcc")
    A(f"s_cmp_eq_u32 s{sW}, {POLLW}")
    A("s_cbranch_scc0 F_np0")
    if prio:
        A("s_setprio 3")
    A.label("F_np0")
    A("s_waitcnt vmcnt(0)")
    A("s_barrier")
    A(f"s_cmp_eq_u32 s{sW}, {POLLW}")
    A("s_cbranch_scc1 F_pollw")
    STM(4)
    P2M(0)
    if opts.get("wdelay"):
        A(f"s_sleep {opts.get('wdelay')}")
    w_late()
    if rpre:
        r_check()
    A("s_barrier")
    A("s_branch F_go")
    A.label("F_pollw")
    flag_store()
    STM(4)
    P2M(0)
    A(f"s_mov_b32 s{sCnt}, 0")
    NP = opts.get("npoll", 3)
    NL = 3 if kvpoll else 1
    PR = [RING + 4 * NL * k for k in range(NP)]

    def poll(k):
        A(f"buffer_load_dwordx4 {vr(PR[k],4)}, v{pPol}, s[{SRD_WS}:{SRD_WS+3}], s{qPF} offen sc1")
        if kvpoll:
            A(f"buffer_load_dwordx4 {vr(PR[k]+4,4)}, v{pL16}, s[{SRD_WS}:{SRD_WS+3}], s{qKF} offen sc1")
            A(f"buffer_load_dwordx4 {vr(PR[k]+8,4)}, v{pL16}, s[{SRD_WS}:{SRD_WS+3}], s{qKF} offen offset:1024 sc1")
    for k in range(NP):
        poll(k)
        if k < NP - 1:
            A(f"s_sleep {opts.get('pgap', 4)}")
    if rpre:
        r_check()
    A.label("F_poll0")
    for k in range(NP):
        A(f"s_waitcnt vmcnt({NL*(NP-1)})")
        for l in granule_check(PR[k], 2, sOk):
            A(l)
        if kvpoll:
            A(f"s_mov_b32 s{sOk+1}, -1")
            for j in (1, 2):
                for l in granule_check(PR[k] + 4 * j, 2, sOk2):
                    A(l)
                A(f"s_and_b64 s[{sOk}:{sOk+1}], s[{sOk}:{sOk+1}], s[{sOk2}:{sOk2+1}]")
            A(f"s_cmp_eq_u64 s[{sOk}:{sOk+1}], -1")
        else:
            A(f"s_cmp_eq_u32 s{sOk}, -1")
        A("s_cbranch_scc1 F_polled")
        if NP == 1 and opts.get("psleep", 4):
            A(f"s_sleep {opts.get('psleep', 4)}")
        poll(k)
    A(f"s_add_u32 s{sCnt}, s{sCnt}, 1")
    A(f"s_cmp_lt_u32 s{sCnt}, {SPINMAX}")
    A("s_cbranch_scc1 F_poll0")
    A.label("F_polled")
    if prio:
        A("s_setprio 0")
    A("s_barrier")
    w_late()
    A.label("F_go")
    STM(5)
    P2M(1)
    if rpre:
        A(f"s_cmp_eq_u32 s{sRok}, 1")
        A("s_cbranch_scc0 F_rslow")
        A.label("F_rok")

    issued = []

    def ld(tag, ins):
        A(ins)
        issued.append(tag)

    def wait_for(tag):
        idx = max(i for i, t in enumerate(issued) if t == tag)
        A(f"s_waitcnt vmcnt({min(63, len(issued) - 1 - idx)})")

    NR = 6
    D = opts.get("hd", 5)

    def hslot(ks):
        return RING + (ks % NR) * 8

    def h_loads(ks):
        A(f"s_add_u32 s{qA0}, s{qH0}, s{qKh}")
        A(f"s_add_u32 s{qA1}, s{qH1}, s{qKh}")
        for ri, so in enumerate((qA0, qA1)):
            ld(("h", ks), f"buffer_load_dwordx4 {vr(hslot(ks)+4*ri,4)}, v{pL16}, s[{SRD_WS}:{SRD_WS+3}], s{so} offen")
        if ks < 13:
            A(f"s_add_u32 s{qKh}, s{qKh}, 1024")
            A(f"s_cmp_eq_u32 s{qKh}, 14336")
            A(f"s_cselect_b32 s{qKh}, 0, s{qKh}")

    def wslot(ks):
        return ks if ks < 6 else (ks - 6) % 6

    def rowof(slot, h):
        return 8 + 2 * slot + h if slot < 6 else 2 * (slot - 6) + h

    def tr_reads(dst, slot):
        o = []
        for ci in range(2):
            for h in range(2):
                r = rowof(slot, h)
                o.append(f"ds_read_b64_tr_b16 {vr(dst+4*ci+2*h,2)}, v{pTB[r//8][ci]} offset:{(r%8)*8192}")
        return o

    for s_ in tr_reads(WF[0], 0):
        A(s_)
    for ks in range(D):
        h_loads(ks)
        if ks == 0 and not rpre:
            ld("r", f"buffer_load_dword v{pIr}, v6, s[{SRD_WS}:{SRD_WS+3}], s{qST} offen sc1")
            ld("r", f"buffer_load_dword v{pIr+1}, v6, s[{SRD_WS}:{SRD_WS+3}], s{qST} offen offset:512 sc1")
            ld("r", f"buffer_load_dword v{pRf}, v{pRfA}, s[{SRD_WS}:{SRD_WS+3}], s{qST} offen sc1")
    KVR = [64, 80]
    PQR = [WRAW, WRAW + 16]
    DB = [[WRAW + 32, WRAW + 48], [KVR[0], PQR[0]]]

    def kv_loads(hh):
        o = []
        if hh == 1:
            o.append((None, f"s_add_u32 s{qKV}, s{qKV}, 4096"))
        if opts.get("kvx4") or opts.get("kvred"):
            for q in range(4):
                o.append((("kv", hh), f"buffer_load_dwordx4 {vr(KVR[hh]+4*q,4)}, v{pL16}, s[{SRD_WS}:{SRD_WS+3}], s{qKV} offen offset:{q*1024}"))
            return o
        for r in range(16):
            o.append((("kv", hh), f"buffer_load_dword v{KVR[hh]+r}, v{pL4}, s[{SRD_WS}:{SRD_WS+3}], s{qKV} offen offset:{r*256}"))
        return o

    def pq_loads(hh):
        o = []
        for t in range(2):
            for ri, so in enumerate((qP0, qP1)):
                o.append((("pq", hh), f"buffer_load_dwordx4 {vr(PQR[hh]+8*t+4*ri,4)}, v{pL16}, s[{SRD_WS}:{SRD_WS+3}], s{so} offen offset:{(hh*2+t)*1024}"))
        return o

    def att_kv(hh):
        o = []
        for ri in range(2):
            for t in range(2):
                c = "0" if t == 0 else vr(DB[hh][ri], 16)
                o.append(f"v_mfma_f32_32x32x16_bf16 {vr(DB[hh][ri],16)}, {vr(KVR[hh]+4*t,4)}, {vr(PQR[hh]+8*t+4*ri,4)}, {c}")
        return o

    def att_norm(hh):
        o = []
        for ri in range(2):
            t0, t1 = pTmp + 2 * ri, pTmp + 2 * ri + 1
            o.append(f"v_mov_b32 v{t0}, v{DB[hh][ri]+12}\nv_mov_b32 v{t1}, v{DB[hh][ri]+12}")
        o.append("s_nop 0\n" + "\n".join(f"v_permlane32_swap_b32 v{pTmp+2*ri}, v{pTmp+2*ri+1}" for ri in range(2)))
        o.append("s_nop 0\n" + "\n".join(f"v_add_f32 v{pTmp+2*ri}, s{sT5}, v{pTmp+2*ri}" for ri in range(2)))
        o.append("\n".join(f"v_rcp_f32 v{pTmp+2*ri}, v{pTmp+2*ri}" for ri in range(2)))
        o.append("s_nop 0\n" + "\n".join(f"v_mul_f32 v{pTmp+2*ri}, v{pTmp+2*ri}, v{pIr+ri}" for ri in range(2)))
        for ri in range(2):
            d = DB[hh][ri]
            t0 = pTmp + 2 * ri
            for r in range(8):
                o.append(f"v_mul_f32 v{d+2*r}, v{d+2*r}, v{t0}\nv_mul_f32 v{d+2*r+1}, v{d+2*r+1}, v{t0}\n"
                         f"v_cvt_pk_bf16_f32 v{d+r}, v{d+2*r}, v{d+2*r+1}")
        return o

    def wo_reads(hh):
        o = []
        for t in range(2):
            o += tr_reads(DB[hh][t] + 8, 6 + 2 * hh + t)
        return o

    def att_wo(hh):
        o = []
        for t in range(2):
            for ci in range(2):
                for ri in range(2):
                    d = acc2(ci, ri)
                    o.append(f"v_mfma_f32_32x32x16_bf16 {vr(d,16)}, {vr(DB[hh][t]+8+4*ci,4)}, {vr(DB[hh][ri]+4*t,4)}, {vr(d,16)}")
        return o

    def run(mf, fills):
        n = len(mf)
        for i, m in enumerate(mf):
            A(m)
            for u in fills[i * len(fills) // n:(i + 1) * len(fills) // n]:
                if isinstance(u, tuple):
                    if u[0] is None:
                        A(u[1])
                    else:
                        ld(u[0], u[1])
                elif callable(u):
                    u()
                else:
                    A(u)

    def kv_cvt(hh):
        return [f"v_cvt_pk_bf16_f32 v{KVR[hh]+r}, v{KVR[hh]+2*r}, v{KVR[hh]+2*r+1}" for r in range(8)]

    def kvf_check():
        wait_for("kvf")
        for l in granule_check(pTmp, 2, sOk):
            A(l)
        A(f"s_and_b32 s{sOk}, s{sOk}, 0xffff")
        A(f"s_cmp_eq_u32 s{sOk}, 0xffff")
        A("s_cbranch_scc0 F_kvslow")
        A.label("F_kvok")

    red_setup = []
    red_setup.append("v_and_b32 v4, 31, v0\nv_lshrrev_b32 v5, 2, v4\nv_lshlrev_b32 v5, 14, v5\nv_and_b32 v6, 3, v0\nv_lshl_add_u32 v5, v6, 8, v5")
    red_setup.append(f"v_lshrrev_b32 v6, 5, v0\nv_and_b32 v4, 15, v4\nv_xor_b32 v4, v4, v6\nv_lshl_add_u32 v4, v4, 4, v5\nv_add_u32 v4, s{qLB}, v4")
    red_setup.append(f"s_and_b32 s{sT0}, s{sW}, 3\ns_lshl_b32 s{sT0}, s{sT0}, 15\ns_lshr_b32 s{sT1}, s{sW}, 2\ns_lshl_b32 s{sT1}, s{sT1}, 13\n"
                     f"s_add_u32 s{sT0}, s{sT0}, s{sT1}\nv_lshrrev_b32 v5, 5, v0\nv_lshlrev_b32 v5, 14, v5\nv_lshrrev_b32 v6, 3, v0\n"
                     f"v_and_b32 v7, 3, v6\nv_lshl_add_u32 v5, v7, 8, v5\nv_add_u32 v5, s{sT0}, v5")
    red_setup.append(f"s_and_b32 s{sT1}, s{sW}, 1\ns_lshl_b32 s{sT1}, s{sT1}, 3\nv_add_u32 v6, s{sT1}, v6\nv_and_b32 v7, 7, v0\n"
                     f"v_lshlrev_b32 v7, 1, v7\nv_xor_b32 v6, v6, v7\nv_lshl_add_u32 v5, v6, 4, v5\nv_xor_b32 v6, 16, v5")

    lpipe = opts.get("lpipe", 1)
    IT_PQ = (opts.get("itpq0", 3 if lpipe else 2), opts.get("itpq1", 5 if lpipe else 4))
    IT_KVF, IT_KV = opts.get("itkvf", 1), (opts.get("itkv0", 4 if lpipe else 3), opts.get("itkv1", 6 if lpipe else 5))
    if lpipe:
        assert IT_PQ[0] >= 3 and IT_PQ[1] >= 5
    P2M(2)
    if opts.get("prio2"):
        A(f"s_cmp_ge_u32 s{sW}, 4")
        A("s_cbranch_scc0 F_pr2")
        A(f"s_setprio {opts.get('prio2')}")
        A.label("F_pr2")
    for i in range(14):
        lock = opts.get("lock", 0)
        if lock and i % lock == 0 and i <= opts.get("lockmax", 13):
            A("s_barrier")
        A(f"s_waitcnt lgkmcnt({2 if lpipe and 1 <= i <= 8 else 0})")
        if lpipe and i < 13:
            for s_ in tr_reads(WF[(i + 1) & 1], wslot(i + 1)):
                A(s_)
        wait_for(("h", i))
        if opts.get("p2it") is not None:
            b_ = opts.get("p2it")
            if b_ <= i < b_ + 7:
                ST.mark(i - b_)
        elif i in (0, 4, 8):
            P2M(3 + i // 4)
        wf = WF[i & 1]
        hs = hslot(i)
        mf = []
        for ci in range(2):
            for ri in range(2):
                c = "0" if i == 0 else vr(acc2(ci, ri), 16)
                mf.append(f"v_mfma_f32_32x32x16_bf16 {vr(acc2(ci,ri),16)}, {vr(wf+4*ci,4)}, {vr(hs+4*ri,4)}, {c}")
        fills = []
        if i + D < 14:
            fills.append(lambda ks=i + D: h_loads(ks))
        if i < 13 and not lpipe:
            fills += tr_reads(WF[(i + 1) & 1], wslot(i + 1))
        if i <= 7:
            for j in range(2):
                r = rowof(i % 6, j)
                fills.append(f"ds_write_b128 v{pStg1 if r < 16 else pStg2}, {vr(WRAW+8*i+4*j,4)} offset:{(r%8)*8192}")
        if i == IT_KVF and not kvpoll:
            fills.append(("kvf", f"buffer_load_dwordx4 {vr(pTmp,4)}, v{pKVF}, s[{SRD_WS}:{SRD_WS+3}], s{qKF} offen sc1"))
        if i in IT_PQ:
            fills += pq_loads(IT_PQ.index(i))
        if i == IT_KV[0] and not kvpoll:
            fills.append(kvf_check)
        if i in IT_KV:
            fills += kv_loads(IT_KV.index(i))
        if i == opts.get("itr", 1):
            if rpre:
                fills.append(f"v_mul_f32 v{pIr}, v{RG[0]+1}, v{RG[0]+1}\nv_mul_f32 v{pIr+1}, v{RG[1]+1}, v{RG[1]+1}\nv_mul_f32 v{pRf}, v{RG[2]+1}, v{RG[2]+1}")
            else:
                fills.append(lambda: wait_for("r"))
                fills.append(f"v_mul_f32 v{pIr}, v{pIr}, v{pIr}\nv_mul_f32 v{pIr+1}, v{pIr+1}, v{pIr+1}\nv_mul_f32 v{pRf}, v{pRf}, v{pRf}")
            fills.append(f"v_rcp_f32 v{pIr}, v{pIr}\nv_rcp_f32 v{pIr+1}, v{pIr+1}")
        if i == 6:
            fills += red_setup
        if i == 7:
            X = pX
        if i == 8:
            fills.append(lambda: wait_for(("kv", 0)))
            fills += kv_cvt(0)
            mf2 = att_kv(0)
        elif i == 9:
            n0 = att_norm(0)
            fills += ["s_nop 3"] + n0[:9]
            fills.append(lambda: wait_for(("kv", 1)))
            fills += kv_cvt(1)
            mf2 = att_kv(1)
        elif i == 10:
            fills += n0[9:] + wo_reads(0)
            mf2 = []
        elif i == 11:
            n1 = att_norm(1)
            fills += n1[:10]
            mf2 = att_wo(0)
        elif i == 12:
            fills += n1[10:] + wo_reads(1)
            mf2 = []
        elif i == 13:
            mf2 = att_wo(1)
        else:
            mf2 = []
        if i in (8, 9):
            run(mf, fills)
            wait_for(("pq", i - 8))
            if lpipe and i == 8:
                A("s_waitcnt lgkmcnt(4)")
            A("s_nop 1")
            run(mf2, [])
        else:
            run(mf + mf2, fills)
    (P2M(6) if opts.get("p2st") else STM(6))
    for k in range(1, 8):
        A(f"v_xor_b32 v{RING+k}, {k << 5}, v4")
    wa = [4] + [RING + k for k in range(1, 8)]
    A("s_nop 3")
    for ri in range(2):
        for ci in range(2):
            d = acc2(ci, ri)
            for j in range(4):
                A(f"ds_write_b128 v{wa[ci*4+j]}, {vr(d+4*j,4)} offset:{ri*8192}")
    X = 96
    for i in range(4):
        A(f"v_lshlrev_b32 v{X+2*i}, 16, v{pX+i}")
        A(f"v_and_b32 v{X+2*i+1}, s{sHi}, v{pX+i}")
    A("s_waitcnt lgkmcnt(0)")
    A("s_barrier")
    R = 24
    for p_ in range(8):
        for i in range(2):
            A(f"ds_read_b128 {vr(R+8*p_+4*i,4)}, v{5+i} offset:{p_*1024}")
    for p_ in range(0, 8, 2):
        A(f"s_waitcnt lgkmcnt({12 - 2*p_})")
        for r in range(8):
            A(f"v_add_f32 v{R+8*p_+r}, v{R+8*p_+r}, v{R+8*p_+8+r}")
    for r in range(8):
        A(f"v_add_f32 v{R+r}, v{R+r}, v{R+16+r}")
        A(f"v_add_f32 v{R+32+r}, v{R+32+r}, v{R+48+r}")
    for r in range(8):
        A(f"v_add_f32 v{R+r}, v{R+r}, v{R+32+r}")
    for r in range(8):
        A(f"v_fma_f32 v{R+r}, v{R+r}, v{pRf}, v{X+r}")
    for r in range(4):
        A(f"v_cvt_pk_bf16_f32 v{104+r}, v{R+2*r}, v{R+2*r+1}")
    A("s_waitcnt lgkmcnt(0)")
    A(f"buffer_store_dwordx4 v[104:107], v{pOut}, s[{SRD_OUT}:{SRD_OUT+3}], s{qXo} offen" + {0: "", 1: " sc1", 2: " nt", 3: " sc0 sc1", 4: " sc1 nt"}[opts.get("osc", 0)])
    ST.dump(sW, SRD_WS, sT2)
    A("s_endpgm")
    if rpre:
        A.label("F_rslow")
        r_loads()
        A("s_waitcnt vmcnt(0)")
        A("s_branch F_rok")
    if not kvpoll:
        A.label("F_kvslow")
        A(f"s_mov_b32 s{sCnt}, 0")
        A.label("F_kvspin")
        A("s_sleep 2")
        A(f"buffer_load_dwordx4 {vr(pTmp,4)}, v{pKVF}, s[{SRD_WS}:{SRD_WS+3}], s{qKF} offen sc1")
        A("s_waitcnt vmcnt(0)")
        for l in granule_check(pTmp, 2, sOk):
            A(l)
        A(f"s_and_b32 s{sOk}, s{sOk}, 0xffff")
        A(f"s_cmp_eq_u32 s{sOk}, 0xffff")
        A("s_cbranch_scc1 F_kvok")
        A(f"s_add_u32 s{sCnt}, s{sCnt}, 1")
        A(f"s_cmp_lt_u32 s{sCnt}, {SPINMAX}")
        A("s_cbranch_scc1 F_kvspin")
        A("s_branch F_kvok")
    A.label("F_spare")
    flag_prep()
    A("s_waitcnt vmcnt(0) lgkmcnt(0)")
    A("s_barrier")
    A(f"s_cmp_lg_u32 s{sW}, {POLLW}")
    A("s_cbranch_scc1 F_spare_end")
    flag_store()
    A.label("F_spare_end")
    ST.dump(sW, SRD_WS, sT2)
    A("s_endpgm")
```

```python
from gen_common import *
import struct

STAGE = 53376
LDS_BYTES = 163840
NVGPR = 256
ACCOFF = 256
NSGPR = 102

S1 = STAGE
S2 = 2 * STAGE
TOP = 3 * STAGE
M_OFF = S1
R_OFF = S1 + 1024
CP_OFF = S1 + 2048
KVR_OFF = S1 + 8192
OOB = 0x40000000
OFF_KVS = OFF_KVF
OFF_FL = 0xC80000
OFF_ZF = OFF_FL + 8192
OFF_O = 0x700000
OMARK = 0x3f80
DBG_Z = 64

SRD_X, SRD_Q, SRD_G, SRD_U, SRD_WS, SRD_WD = 4, 8, 12, 16, 20, 24
SRD_DBG, SRD_WO, SRD_OUT = 64, 80, 16
sW, sWp, sRB, sH, sCB = 32, 33, 34, 35, 36
sXbase, sHbase, sGbase = 37, 38, 39
sLx, sLh, sLg, sLu = 40, 41, 42, 43
sC, sXc, sHc, sGc = 44, 45, 46, 47
sHb2, sLh2 = 48, 28
sFG = 29
sChk = 59
FGPERM = [7, 1, 0, 2, 3, 5, 4, 6, 15, 8, 9, 11, 10, 12, 13, 14]
sT0, sT1, sT2, sT3, sT4, sT5 = 49, 50, 51, 52, 53, 54
sWin = 55
sMaskP = 56
sHi = 58
sTag = 60
sMaskLo32 = 62
sMask24 = 30
sOk = 68
sNeed = 70
sKT, sK2 = 72, 73
sD0, sD1 = 74, 75
sCSo = 76
sZo = 77
sCnt = 78
sLim = 79
sOk2 = 84
eWB, eKo, eS, eT, eL = 37, 38, 39, 40, 41
sPF = 72

vXA = [[16, 17, 18, 19], [124, 125, 126, 127]]
vWA0 = [[20, 21, 22, 23], [128, 129, 130, 131]]
vWA1 = [[24, 25, 26, 27], [132, 133, 134, 135]]
vX, vH, vG = 28, 29, 30
vL16 = 31
vCS = [32, 33, 34, 35, 36, 37]
vCT = [38, 39, 40, 41]
vZo, vCSo = 42, 43
vZ0 = 44
FB = [48, 68]
XC = 88
WC = 96
ACC = 160

F1_448 = 0x3B124925
EPS5 = 0x3727C5AC
EPS6 = 0x358637BD
LOG2E = 0x3FB8AA3B
CHK = 0x5BD1E995
DELTA = 800
NRETRY = 40
SPINMAX = 200000
NEG_EPS_LOG2E = struct.unpack("<I", struct.pack("<f", -1e-6 * 1.4426950408889634))[0]

OPTS = {}
ST = None


def acc(j, a):
    return ACC + (j * 2 + a) * 16


VARIANTS = {
    "A0": ("A", 0, ["k", "v"]),
    "A1": ("A", 1, ["f", "f", "f"]),
    "B0": ("B", 0, ["q", "f"]),
    "B1": ("B", 1, ["f", "f", "f"]),
}


class Em:
    def __init__(self, A):
        self.A = A
        self.ops = []

    def copy_state(self):
        return list(self.ops)

    def __call__(self, s):
        for l in s.split("\n"):
            l = l.strip()
            if not l:
                continue
            if l.startswith("@vm "):
                self.ops.append(l[4:].strip())
            elif l.startswith("@wait "):
                tag = l[6:].strip()
                idx = max(i for i, t in enumerate(self.ops) if t == tag)
                n = len(self.ops) - 1 - idx
                assert n <= 63
                self.A(f"s_waitcnt vmcnt({n})")
            else:
                self.A(l)


def stage_sel(n):
    s = n % 3
    return (1 if s == 2 else 0), (STAGE if s == 1 else 0)


def wread_list(var, n, t, buf):
    b = FB[buf] + 8
    st, ib = stage_sel(n)
    w0, w1 = vWA0[st][t], vWA1[st][t]
    if var == "A0":
        spec = [(w0, 0, 512), (w1, 0, 512)]
    elif var == "A1":
        spec = [(w0, 32 * j, 384) for j in range(3)]
    elif var == "B0":
        spec = [(w0, 0, 256), (w1, 0, 512)]
    else:
        spec = [(w0, 0, 512), (w1, 64, 512), (w0, 64, 512)]
    out = []
    for j, (reg, imm, d2) in enumerate(spec):
        out.append(f"ds_read_b64_tr_b16 {vr(b+4*j,2)}, v{reg} offset:{ib+imm}")
        out.append(f"ds_read_b64_tr_b16 {vr(b+4*j+2,2)}, v{reg} offset:{ib+imm+d2}")
    return out


def reads(var, n, t, buf):
    b = FB[buf]
    st, ib = stage_sel(n)
    xa = vXA[st][t]
    xs = [f"ds_read_b128 {vr(b,4)}, v{xa} offset:{ib}", f"ds_read_b128 {vr(b+4,4)}, v{xa} offset:{ib+4096}"]
    ws = wread_list(var, n, t, buf)
    if OPTS.get("nowr") and n >= 1:
        return xs
    if OPTS.get("noxr") and n >= 1:
        return ws
    if OPTS.get("nord") and n >= 1:
        return []
    return [xs[0], ws[0], ws[1], xs[1]] + ws[2:]


def mfmas_regs(var, xb, wb, zero=False):
    tiles = VARIANTS[var][2]
    out = []
    for j, kind in enumerate(tiles):
        for a in range(2):
            d = acc(j, a)
            xf = vr(xb + 4 * a, 4)
            wf = vr(wb + 4 * j, 4)
            c = "0" if zero else vr(d, 16)
            if kind in ("k", "v"):
                out.append(f"v_mfma_f32_32x32x16_bf16 {vr(d,16)}, {xf}, {wf}, {c}")
            else:
                out.append(f"v_mfma_f32_32x32x16_bf16 {vr(d,16)}, {wf}, {xf}, {c}")
    return out


def mfmas(var, buf, zero=False):
    if OPTS.get("m16"):
        tiles = VARIANTS[var][2]
        xb, wb = FB[buf], FB[buf] + 8
        out = []
        for j, kind in enumerate(tiles):
            for a in range(2):
                for h in range(2):
                    d = acc(j, a) + 8 * buf + 4 * h
                    xf = vr(xb + 4 * (a if h == 0 else 1 - a), 4)
                    wf = vr(wb + 4 * j, 4)
                    c = "0" if zero else vr(d, 4)
                    out.append(f"v_mfma_f32_16x16x32_bf16 {vr(d,4)}, {wf}, {xf}, {c}")
        return [out[2*i] + "\n" + out[2*i+1] for i in range(len(out)//2)]
    return mfmas_regs(var, FB[buf], FB[buf] + 8, zero)


def cs_duty(var, buf, j):
    b = FB[buf] + 8
    out = []
    for r in range(4):
        ta = vCT[(r % 2) * 2]
        src = b + 4 * j + r
        out.append(f"v_lshlrev_b32 v{ta}, 16, v{src}")
        out.append(f"v_and_b32 v{ta+1}, s{sHi}, v{src}")
        if r == 0:
            out.append(f"v_add_f32 v{vCS[2*j]}, 0, v{ta}")
            out.append(f"v_add_f32 v{vCS[2*j]+1}, 0, v{ta+1}")
        else:
            out.append(f"v_add_f32 v{vCS[2*j]}, v{vCS[2*j]}, v{ta}")
            out.append(f"v_add_f32 v{vCS[2*j]+1}, v{vCS[2*j]+1}, v{ta+1}")
    return out


def dma_units(typ, stage_off, tag):
    vm = f"@vm {tag}\n"
    u = []
    u.append(f"s_lshl_b32 s{sD0}, s{sC}, 7\ns_add_u32 s{sD0}, s{sD0}, s{sXbase}\ns_add_u32 m0, s{sLx}, {stage_off}\ns_mul_i32 s{sD1}, s{sC}, {64*2688}\n"
             + vm + f"buffer_load_dwordx4 v{vX}, s[{SRD_X}:{SRD_X+3}], s{sD0} offen lds")
    for j in range(1, 4):
        u.append(f"s_add_u32 m0, m0, 8192\ns_add_u32 s{sD0}, s{sD0}, {64*896}\n"
                 + vm + f"buffer_load_dwordx4 v{vX}, s[{SRD_X}:{SRD_X+3}], s{sD0} offen lds")
    head = (f"s_add_u32 m0, s{sLh}, {stage_off}\ns_add_u32 s{sD1}, s{sD1}, s{sHbase}\n")
    headld = vm + f"buffer_load_dwordx4 v{vH}, s[{SRD_Q}:{SRD_Q+3}], s{sD1} offen lds"
    gpre = f"s_mul_i32 s{sD0}, s{sC}, {64*3584}\ns_add_u32 m0, s{sLg}, {stage_off}\ns_add_u32 s{sD0}, s{sD0}, s{sGbase}\n"
    gld = vm + f"buffer_load_dwordx4 v{vG}, s[{SRD_G}:{SRD_G+3}], s{sD0} offen lds"
    upre = f"s_add_u32 m0, s{sLu}, {stage_off}\ns_nop 0\n"
    uld = vm + f"buffer_load_dwordx4 v{vG}, s[{SRD_U}:{SRD_U+3}], s{sD0} offen lds"
    mon = f"s_mov_b64 exec, s[{sMaskP}:{sMaskP+1}]\n"
    moff = "\ns_mov_b64 exec, -1"
    if typ == "A":
        u.append(head + headld)
        u.append(gpre + mon + gld + moff)
        u.append(upre + mon + uld + moff)
    else:
        u.append(head + mon + headld + moff)
        u.append(gpre + gld)
        u.append(upre + uld + "")
    u[-1] += f"\ns_add_u32 s{sC}, s{sC}, 1\ns_cmp_eq_u32 s{sC}, 7\ns_cselect_b32 s{sC}, 0, s{sC}"
    return u


def dma14(typ, n):
    SB = (n % 3) * STAGE
    vm = f"@vm c{n}\n"
    hb = sHbase if typ == "A" else sHb2
    pre = (f"s_lshl_b32 s{sXc}, s{sC}, 7\ns_mul_i32 s{sHc}, s{sC}, {64*2688}\ns_mul_i32 s{sGc}, s{sC}, {64*3584}\n"
           f"s_add_u32 s{sXc}, s{sXc}, s{sXbase}\ns_add_u32 s{sHc}, s{sHc}, s{hb}\ns_add_u32 s{sGc}, s{sGc}, s{sGbase}\n"
           f"s_add_u32 s{sC}, s{sC}, 1\ns_cmp_eq_u32 s{sC}, 7\ns_cselect_b32 s{sC}, 0, s{sC}\n")
    mon = f"s_mov_b64 exec, s[{sMaskP}:{sMaskP+1}]\n"
    moff = "\ns_mov_b64 exec, -1"
    u = []

    def piece(lds_s, lds_imm, base_s, goff, vaddr, srd, masked):
        s = f"s_add_u32 m0, s{lds_s}, {SB + lds_imm}\n"
        if goff:
            s += f"s_add_u32 s{sD0}, s{base_s}, {goff}\n"
            so = sD0
        else:
            s += "s_nop 0\n" if not masked else ""
            so = base_s
        if masked:
            s += mon
        s += vm + f"buffer_load_dwordx4 v{vaddr}, s[{srd}:{srd+3}], s{so} offen lds"
        if masked:
            s += moff
        return s
    for j in range(8):
        u.append(piece(sLx, j * 4096, sXc, j * 32 * 896, vX, SRD_X, False))
    if typ == "A":
        for j in range(2):
            u.append(piece(sLh, j * 4096, sHc, j * 32 * 2688, vH, SRD_Q, False))
        for j in range(2):
            u.append(piece(sLg, j * 3072, sGc, j * 32 * 3584, vG, SRD_G, True))
            u.append(piece(sLu, j * 3072, sGc, j * 32 * 3584, vG, SRD_U, True))
    else:
        u.append(piece(sLh2, 0, sHc, 0, vH, SRD_Q, False))
        for j in range(2):
            u.append(piece(sLg, j * 4096, sGc, j * 32 * 3584, vG, SRD_G, False))
            u.append(piece(sLu, j * 4096, sGc, j * 32 * 3584, vG, SRD_U, False))
    u[0] = pre + u[0]
    return u


def granule_finish(g):
    return [f"v_mov_b32 v{g+2}, s{sTag}",
            f"v_xor_b32 v{g+3}, v{g}, v{g+1}",
            f"v_xor_b32 v{g+3}, s{sChk}, v{g+3}",
            f"v_xor_b32 v{g+3}, s{sTag}, v{g+3}"]


def granule_check(g, t, dst):
    return [f"v_xor_b32 v{t}, v{g}, v{g+1}",
            f"v_xor_b32 v{t}, s{sChk}, v{t}",
            f"v_xor_b32 v{t}, v{g+2}, v{t}",
            f"v_subrev_u32 v{t+1}, s{sWin}, v{g+2}",
            f"v_cmp_eq_u32 vcc, v{t}, v{g+3}",
            f"v_cmp_gt_u32_e64 s[{dst}:{dst+1}], s{sLim}, v{t+1}",
            "s_nop 1",
            f"s_and_b64 s[{dst}:{dst+1}], s[{dst}:{dst+1}], vcc"]


def STM(i, first=False):
    if OPTS.get("chst") or (OPTS.get("pst") and i > 2) or OPTS.get("p2st"):
        return
    ST.mark(i)


def P2M(i):
    if OPTS.get("p2st") and OPTS.get("p2it") is None:
        ST.mark(i)


def CHM(i):
    if OPTS.get("chst"):
        ST.mark(i)


def emit(A, opts):
    global ST
    OPTS.update(opts)
    stamps = opts.get("stamps", 0)
    A("s_cmp_ge_u32 s2, 256")
    A("s_cbranch_scc1 K1_end")
    cpf = opts.get("cpf", 0)
    if cpf:
        A("s_getpc_b64 s[64:65]")
        A("s_and_b32 s64, s64, 0xffffff00")
        A("s_mov_b32 s66, K1_codeend-" + K1NAME)
        A("s_mov_b32 s67, 0x20000")
        A("s_lshr_b32 s68, s2, 3")
        A("s_and_b32 s68, s68, 7")
        A("v_lshrrev_b32 v2, 3, v0")
        A("v_and_b32 v2, 7, v2")
        A("v_lshlrev_b32 v1, 7, v0")
        A(f"v_mov_b32 v3, 0x{OOB:x}")
        A("v_cmp_eq_u32 vcc, s68, v2")
        A("v_cndmask_b32 v1, v3, v1, vcc")
        A("buffer_load_dword v255, v1, s[64:67], 0 offen")
    A(f"s_memrealtime s[{sTag}:{sTag+1}]")
    A(f"s_load_dwordx2 s[{SRD_X}:{SRD_X+1}], s[0:1], 0")
    A(f"s_load_dwordx2 s[{SRD_Q}:{SRD_Q+1}], s[0:1], 8")
    A(f"s_load_dwordx2 s[{SRD_G}:{SRD_G+1}], s[0:1], 32")
    A(f"s_load_dwordx2 s[{SRD_U}:{SRD_U+1}], s[0:1], 40")
    A(f"s_load_dwordx2 s[{SRD_WS}:{SRD_WS+1}], s[0:1], 72")
    A(f"s_load_dwordx2 s[{SRD_WD}:{SRD_WD+1}], s[0:1], 48")
    A(f"s_load_dwordx2 s[{SRD_WO}:{SRD_WO+1}], s[0:1], 16")
    usedbg = not (opts.get("ztag", 1) and (opts.get("p2", 0) == 2 or opts.get("fmode", 0) >= 2))
    global sPF
    sPF = 72 if usedbg else SRD_DBG
    assert not (usedbg and ((opts.get("pfp", 4) < 4 and opts.get("pf", 1) in (1, 2)) or opts.get("pf", 1) == 5))
    if usedbg:
        A(f"s_load_dwordx2 s[{SRD_DBG}:{SRD_DBG+1}], s[0:1], 64")
    if opts.get("prio", 1):
        A("s_setprio 3")
    ST = Stamps(A, 86, 0, stamps)
    ST.zero()
    STM(0)
    A("v_lshrrev_b32 v1, 6, v0")
    A("v_and_b32 v0, 63, v0")
    A(f"v_readfirstlane_b32 s{sW}, v1")
    for srd, nb in ((SRD_X, X_BYTES), (SRD_Q, Q_BYTES), (SRD_G, G_BYTES), (SRD_U, G_BYTES), (SRD_WS, WS_BYTES if not stamps else 0x10000000),
                    (SRD_WD, WD_BYTES), (SRD_WO, WO_BYTES), (SRD_DBG, 256)):
        if srd == SRD_DBG and not usedbg:
            continue
        A(f"s_mov_b32 s{srd+2}, {nb}")
        A(f"s_mov_b32 s{srd+3}, 0x20000")
    A(f"s_and_b32 s{sT0}, s2, 7")
    A(f"s_lshr_b32 s{sT1}, s2, 3")
    xmap = opts.get("xmap", 0)
    if xmap == 0:
        A(f"s_and_b32 s{sRB}, s{sT0}, 1")
        A(f"s_lshl_b32 s{sRB}, s{sRB}, 2")
        A(f"s_and_b32 s{sT2}, s{sT1}, 3")
        A(f"s_add_u32 s{sRB}, s{sRB}, s{sT2}")
        A(f"s_lshr_b32 s{sCB}, s{sT0}, 1")
        A(f"s_lshl_b32 s{sCB}, s{sCB}, 3")
        A(f"s_lshr_b32 s{sT2}, s{sT1}, 2")
        A(f"s_add_u32 s{sCB}, s{sCB}, s{sT2}")
    elif xmap == 1:
        A(f"s_mov_b32 s{sRB}, s{sT0}")
        A(f"s_mov_b32 s{sCB}, s{sT1}")
    else:
        A(f"s_and_b32 s{sRB}, s{sT0}, 6")
        A(f"s_and_b32 s{sT2}, s{sT1}, 1")
        A(f"s_add_u32 s{sRB}, s{sRB}, s{sT2}")
        A(f"s_and_b32 s{sCB}, s{sT0}, 1")
        A(f"s_lshl_b32 s{sCB}, s{sCB}, 4")
        A(f"s_lshr_b32 s{sT2}, s{sT1}, 1")
        A(f"s_add_u32 s{sCB}, s{sCB}, s{sT2}")
    A(f"s_and_b32 s{sH}, s{sCB}, 15")
    A(f"s_and_b32 s{sWp}, s{sW}, 3")
    A(f"s_lshl_b32 s{sT0}, s{sRB}, 8")
    A(f"s_lshl_b32 s{sT1}, s{sW}, 3")
    A(f"s_add_u32 s{sT0}, s{sT0}, s{sT1}")
    A(f"s_mul_i32 s{sXbase}, s{sT0}, 896")
    A(f"s_lshl_b32 s{sLx}, s{sW}, 10")
    A(f"v_lshrrev_b32 v1, 3, v0")
    A(f"v_lshrrev_b32 v2, 4, v0")
    A(f"s_and_b32 s{sT1}, s{sW}, 1")
    A(f"s_lshl_b32 s{sT1}, s{sT1}, 2")
    A(f"v_add_u32 v3, s{sT1}, v2")
    A(f"v_and_b32 v4, 7, v0")
    A(f"v_xor_b32 v4, v4, v3")
    A(f"v_lshlrev_b32 v4, 4, v4")
    A(f"v_mul_u32_u24 v{vX}, 896, v1")
    A(f"v_add_u32 v{vX}, v{vX}, v4")
    A(f"v_lshlrev_b32 v{vL16}, 4, v0")
    A(f"v_mov_b32 v5, 0x{OOB:x}")
    A(f"v_cmp_gt_u32 vcc, 56, v0")
    A(f"v_cndmask_b32 v5, v5, v{vL16}, vcc")
    A(f"s_lshl_b32 s{sT4}, s{sRB}, 8")
    A(f"s_lshl_b32 s{sT5}, s{sCB}, 3")
    A(f"s_add_u32 s{sT4}, s{sT4}, s{sT5}")
    A(f"s_add_u32 s{sK2}, s{sT4}, s{sW}")
    A(f"s_mul_i32 s{sKT}, s{sK2}, 896")
    A(f"s_cmp_eq_u32 s{sRB}, 7")
    A(f"s_cselect_b32 s{sC}, 0, s{sRB}")
    if opts.get("rot", 1) == 0:
        A(f"s_mov_b32 s{sC}, 0")
    elif opts.get("rot", 1) == 2:
        A(f"s_and_b32 s{sC}, s{sRB}, 6")
    elif opts.get("rot", 1) == 4:
        A(f"s_and_b32 s{sC}, s{sRB}, 4")
    A(f"s_cmp_ge_u32 s{sCB}, 16")
    A("s_cbranch_scc1 K1_typeB")
    for typ in ("A", "B"):
        A.label(f"K1_type{typ}")
        if typ == "A":
            A("v_lshrrev_b32 v1, 3, v0")
            A("v_lshrrev_b32 v2, 4, v0")
            A("v_and_b32 v2, 1, v2")
            A("v_lshlrev_b32 v2, 2, v2")
            A("v_and_b32 v3, 7, v0")
            A("v_xor_b32 v3, v3, v2")
            A("v_and_b32 v4, 3, v3")
            A("v_lshrrev_b32 v3, 2, v3")
            A("v_lshlrev_b32 v6, 4, v4")
            A("v_cmp_eq_u32 vcc, 3, v4")
            A("v_mul_u32_u24 v3, 896, v3")
            A("v_add_u32 v3, 896, v3")
            A("v_mov_b32 v7, 40")
            A("v_cndmask_b32 v6, v6, v7, vcc")
            A(f"v_mul_u32_u24 v{vH}, 2688, v1")
            A(f"v_add3_u32 v{vH}, v{vH}, v3, v6")
            A("v_mul_u32_u24 v1, 43, v0")
            A("v_lshrrev_b32 v1, 8, v1")
            A("v_mul_u32_u24 v2, 6, v1")
            A("v_sub_u32 v2, v0, v2")
            A("v_lshlrev_b32 v2, 4, v2")
            A(f"v_mul_u32_u24 v{vG}, 3584, v1")
            A(f"v_add_u32 v{vG}, v{vG}, v2")
            A(f"s_mov_b32 s{sMaskP}, -1")
            A(f"s_mov_b32 s{sMaskP+1}, 0xffff")
            perm = FGPERM if opts.get("fgp", 1) else list(range(16))
            pv = sum(f << (4 * h) for h, f in enumerate(perm))
            A(f"s_mov_b32 s{sT3}, 0x{pv & 0xffffffff:x}")
            A(f"s_mov_b32 s{sT4}, 0x{pv >> 32:x}")
            A(f"s_lshl_b32 s{sT1}, s{sH}, 2")
            A(f"s_lshr_b64 s[{sT3}:{sT4}], s[{sT3}:{sT4}], s{sT1}")
            A(f"s_and_b32 s{sFG}, s{sT3}, 15")
            A(f"s_mul_i32 s{sT1}, s{sFG}, 96")
            A(f"s_lshl_b32 s{sLh}, s{sW}, 10")
            A(f"s_add_u32 s{sLh}, s{sLh}, 32768")
            A(f"s_mul_i32 s{sLg}, s{sW}, 768")
            A(f"s_add_u32 s{sLu}, s{sLg}, 47232")
            A(f"s_add_u32 s{sLg}, s{sLg}, 40960")
        else:
            A("v_lshrrev_b32 v1, 2, v0")
            A("v_and_b32 v4, 3, v0")
            A("v_lshlrev_b32 v6, 4, v4")
            A("v_cmp_eq_u32 vcc, 3, v4")
            A("v_mov_b32 v7, 40")
            A(f"v_mul_u32_u24 v{vH}, 2688, v1")
            A("v_cndmask_b32 v6, v6, v7, vcc")
            A(f"v_add_u32 v{vH}, v{vH}, v6")
            A("v_lshrrev_b32 v1, 3, v0")
            A("v_lshrrev_b32 v2, 4, v0")
            A("v_and_b32 v2, 1, v2")
            A("v_lshlrev_b32 v2, 1, v2")
            A("v_and_b32 v3, 7, v0")
            A("v_xor_b32 v3, v3, v2")
            A("v_lshlrev_b32 v3, 4, v3")
            A(f"v_mul_u32_u24 v{vG}, 3584, v1")
            A(f"v_add_u32 v{vG}, v{vG}, v3")
            A(f"s_mov_b32 s{sMaskP}, -1")
            A(f"s_mov_b32 s{sMaskP+1}, 0")
            A(f"s_lshl_b32 s{sT1}, s{sH}, 7")
            A(f"s_add_u32 s{sT1}, s{sT1}, 1536")
            A(f"s_lshl_b32 s{sLh}, s{sW}, 9")
            A(f"s_add_u32 s{sLh}, s{sLh}, 32768")
            A(f"s_lshl_b32 s{sLg}, s{sW}, 10")
            A(f"s_add_u32 s{sLu}, s{sLg}, 45120")
            A(f"s_add_u32 s{sLg}, s{sLg}, 36864")
        A(f"s_mul_i32 s{sGbase}, s{sW}, {8*3584}")
        A(f"s_add_u32 s{sGbase}, s{sGbase}, s{sT1}")
        A(f"s_mul_i32 s{sHbase}, s{sW}, {8*2688}")
        A(f"s_mul_i32 s{sT1}, s{sH}, 56")
        A(f"s_add_u32 s{sHbase}, s{sHbase}, s{sT1}")
        if typ == "B":
            A(f"s_mul_i32 s{sHb2}, s{sWp}, {16*2688}")
            A(f"s_add_u32 s{sHb2}, s{sHb2}, s{sT1}")
            A(f"s_lshl_b32 s{sLh2}, s{sWp}, 10")
            A(f"s_add_u32 s{sLh2}, s{sLh2}, 32768")
        A("s_waitcnt lgkmcnt(0)")
        E0 = Em(A)
        if cpf:
            E0.ops.append("cpf")
        RW = 88
        E0("@vm row")
        E0(f"buffer_load_dwordx4 {vr(RW,4)}, v5, s[{SRD_X}:{SRD_X+3}], s{sKT} offen")
        for u in dma_units(typ, 0, "c0"):
            E0(u)
        if opts.get("pst") == 1:
            for i, n in enumerate((7, 3, 2, 0)):
                A(f"s_waitcnt vmcnt({n})")
                ST.mark(3 + i)
        A(f"s_cmp_ge_u32 s{sW}, 4")
        A(f"s_cbranch_scc1 K1_{typ}1")
        for g in (0, 1):
            var = f"{typ}{g}"
            A.label(f"K1_{var}")
            E = Em(A)
            E.ops = E0.copy_state()
            variant(E, A, var, opts)
    {0: phase2, 1: phase2b, 2: phase2c}[opts.get("p2", 0)](A, opts)
    A.label("K1_end")
    A("s_endpgm")
    A.label("K1_codeend")


def common_setup(var):
    opts = OPTS
    o = []
    o.append(f"s_mov_b32 s{sHi}, 0xffff0000")
    o.append(f"s_mov_b32 s{sMaskLo32}, -1")
    o.append(f"s_mov_b32 s{sMaskLo32+1}, 0")
    o.append(f"s_mov_b32 s{sMask24}, 0x01000000")
    o.append(f"s_mov_b32 s{sMask24+1}, 0x01000000")
    o.append(f"s_sub_u32 s{sWin}, s{sTag}, {DELTA}")
    o.append(f"s_xor_b32 s{sChk}, s{sTag+1}, 0x{CHK:x}")
    o.append(f"s_mov_b32 s{sLim}, {0 if opts.get('forcefb') else 1 << 24}")
    if var[1] == "1":
        o.append(f"s_mul_i32 s{sT0}, s{sCB}, 8960")
        o.append(f"s_mul_i32 s{sT1}, s{sRB}, 1280")
        o.append(f"s_add_u32 s{sT0}, s{sT0}, s{sT1}")
        o.append(f"s_lshl_b32 s{sT1}, s{sWp}, 10")
        o.append(f"s_add_u32 s{sT0}, s{sT0}, s{sT1}")
        o.append(f"s_add_u32 s{sCSo}, s{sT0}, {OFF_CS}")
        o.append(f"v_mov_b32 v1, 0x{OOB:x}\n"
                 f"s_cmp_eq_u32 s{sWp}, 1\n"
                 f"s_cselect_b32 s{sOk}, 0xffff, 0\n"
                 f"s_mov_b32 s{sOk+1}, 0\n"
                 f"s_cmp_eq_u32 s{sWp}, 0\n"
                 f"s_cselect_b32 s{sOk}, -1, s{sOk}\n"
                 f"s_cselect_b32 s{sOk+1}, -1, 0\n"
                 f"s_cmp_lt_u32 s{sRB}, 7\n"
                 f"s_cselect_b32 s{sOk}, s{sOk}, 0\n"
                 f"s_cselect_b32 s{sOk+1}, s{sOk+1}, 0\n"
                 f"s_cselect_b32 s{sCSo}, s{sCSo}, 0\n"
                 f"v_cndmask_b32_e64 v{vCSo}, v1, v{vL16}, s[{sOk}:{sOk+1}]")
    ztag = opts.get("ztag", 1)
    if var[0] == "A" and not ztag:
        o.append(f"s_lshl_b32 s{sZo}, s{sH}, 2\ns_add_u32 s{sZo}, s{sZo}, {DBG_Z}\nv_mov_b32 v{vZ0}, 0")
    if var == "A0" and ztag:
        o.append(f"s_lshl_b32 s{sZo}, s{sH}, 6\ns_add_u32 s{sZo}, s{sZo}, {OFF_ZF}\n"
                 f"v_mov_b32 v1, 0x{OOB:x}\nv_cmp_gt_u32 vcc, 4, v0\nv_cndmask_b32 v{vZo}, v1, v{vL16}, vcc")
    if var == "A1" and ztag:
        o.append(f"s_lshl_b32 s{sZo}, s{sH}, 6\ns_lshl_b32 s{sT0}, s{sWp}, 4\ns_add_u32 s{sZo}, s{sZo}, s{sT0}\n"
                 f"s_add_u32 s{sZo}, s{sZo}, {OFF_ZF}\n"
                 f"v_mov_b32 v{vZ0}, 0\n"
                 f"v_mov_b32 v{vZ0+1}, 0\n"
                 f"v_mov_b32 v1, 0x{OOB:x}\n"
                 f"v_lshlrev_b32 v2, 3, v0\n"
                 f"s_cmp_eq_u32 s{sRB}, 0\n"
                 f"s_cselect_b64 vcc, -1, 0\n"
                 f"s_cselect_b64 s[{sOk}:{sOk+1}], 1, 0\n"
                 f"v_cndmask_b32 v{vZo}, v1, v2, vcc\n"
                 f"v_cndmask_b32_e64 v{vZ0+2}, v1, v{vZ0}, s[{sOk}:{sOk+1}]")
    if var == "A1" and not ztag:
        o.append(f"v_mov_b32 v{vZ0+1}, 0\n"
                 f"v_mov_b32 v{vZ0+3}, 1\n"
                 f"v_mov_b32 v1, 0x{OOB:x}\n"
                 f"v_lshlrev_b32 v2, 3, v0\n"
                 f"s_cmp_eq_u32 s{sRB}, 0\n"
                 f"s_cselect_b64 vcc, -1, 0\n"
                 f"s_cselect_b64 s[{sOk}:{sOk+1}], 1, 0\n"
                 f"v_cndmask_b32 v{vZo}, v1, v2, vcc\n"
                 f"v_cndmask_b32_e64 v{vZ0+2}, v1, v{vZ0}, s[{sOk}:{sOk+1}]")
    o.append("v_and_b32 v1, 31, v0\n"
             "v_lshrrev_b32 v2, 5, v0\n"
             "v_lshrrev_b32 v3, 1, v1\n"
             "v_and_b32 v3, 7, v3\n"
             f"s_lshl_b32 s{sT0}, s{sWp}, 13\n"
             "v_lshlrev_b32 v4, 7, v1\n"
             f"v_add_u32 v4, s{sT0}, v4")
    for t in range(4):
        o.append(f"s_add_u32 s{sT1}, s{sWp}, {t}\n"
                 f"s_and_b32 s{sT1}, s{sT1}, 3\n"
                 f"s_lshl_b32 s{sT1}, s{sT1}, 1\n"
                 f"v_add_u32 v5, s{sT1}, v2\n"
                 f"v_xor_b32 v5, v5, v3\n"
                 f"v_lshlrev_b32 v5, 4, v5\n"
                 f"v_add_u32 v{vXA[0][t]}, v4, v5\n"
                 f"v_add_u32 v{vXA[1][t]}, {S2}, v{vXA[0][t]}")
    return o


def w_addr_setup(var):
    o = []
    s = ("v_lshrrev_b32 v1, 2, v0\n"
         "v_and_b32 v1, 3, v1\n"
         "v_and_b32 v2, 3, v0\n"
         "v_lshrrev_b32 v3, 5, v0\n"
         "v_lshrrev_b32 v4, 4, v0\n"
         "v_and_b32 v4, 1, v4\n"
         "v_lshlrev_b32 v5, 3, v3\n"
         "v_add_u32 v5, v5, v1\n"
         "v_lshrrev_b32 v6, 1, v1\n"
         "v_lshlrev_b32 v7, 3, v2\n")
    if var == "A0":
        s += ("v_lshrrev_b32 v8, 1, v2\n"
              "v_lshl_add_u32 v8, v4, 1, v8\n"
              "v_lshlrev_b32 v9, 2, v6\n"
              "v_xor_b32 v8, v8, v9\n"
              "v_lshlrev_b32 v8, 4, v8\n"
              "v_and_b32 v9, 1, v2\n"
              "v_lshl_add_u32 v8, v9, 3, v8\n"
              "v_lshl_add_u32 v8, v5, 7, v8\n"
              "v_add_u32 v8, 32768, v8\n"
              "v_xor_b32 v9, 64, v8\n")
        p0 = p1 = 128
    elif var == "A1":
        s += ("v_mul_u32_u24 v8, 96, v5\n"
              "v_add_u32 v8, v8, v7\n"
              f"v_mul_u32_u24 v9, {47232-40960}, v4\n"
              "v_add3_u32 v8, v8, v9, 0\n"
              "v_add_u32 v8, 40960, v8\n")
        p0 = p1 = 96
    else:
        s += ("v_lshl_add_u32 v10, v5, 7, v7\n"
              f"v_mul_u32_u24 v9, {45120-36864}, v4\n"
              "v_add_u32 v10, v10, v9\n"
              "v_add_u32 v10, 36864, v10\n"
              "v_lshlrev_b32 v11, 5, v6\n")
        if var == "B0":
            s += ("v_lshl_add_u32 v8, v5, 6, v7\n"
                  "v_lshl_add_u32 v8, v4, 5, v8\n"
                  "v_add_u32 v8, 32768, v8\n"
                  "v_add_u32 v9, v10, v11\n")
            p0, p1 = 64, 128
        else:
            s += ("v_xor_b32 v12, 32, v11\n"
                  "v_add_u32 v8, v10, v12\n"
                  "v_add_u32 v9, v10, v11\n")
            p0 = p1 = 128
    o.append(s)
    for t in range(4):
        s = (f"s_add_u32 s{sT1}, s{sWp}, {t}\n"
             f"s_and_b32 s{sT1}, s{sT1}, 3\n"
             f"s_mul_i32 s{sT2}, s{sT1}, {16*p0}\n"
             f"v_add_u32 v{vWA0[0][t]}, s{sT2}, v8\n"
             f"v_add_u32 v{vWA0[1][t]}, {S2}, v{vWA0[0][t]}\n")
        if var != "A1":
            s += (f"s_mul_i32 s{sT2}, s{sT1}, {16*p1}\n"
                  f"v_add_u32 v{vWA1[0][t]}, s{sT2}, v9\n"
                  f"v_add_u32 v{vWA1[1][t]}, {S2}, v{vWA1[0][t]}\n")
        o.append(s)
    return o


def row_stats_publish(E):
    A = E
    RW = 88
    f = list(range(92, 100))
    s, q = 100, 101
    A("@wait row")
    for i in range(4):
        A(f"v_lshlrev_b32 v{f[2*i]}, 16, v{RW+i}")
        A(f"v_and_b32 v{f[2*i+1]}, s{sHi}, v{RW+i}")
    A(f"v_add_f32 v{s}, v{f[0]}, v{f[1]}")
    A(f"v_mul_f32 v{q}, v{f[0]}, v{f[0]}")
    A(f"v_fmac_f32 v{q}, v{f[1]}, v{f[1]}")
    for i in range(2, 8):
        A(f"v_add_f32 v{s}, v{s}, v{f[i]}")
        A(f"v_fmac_f32 v{q}, v{f[i]}, v{f[i]}")
    A("s_nop 0")
    for sh in (1, 2, 4, 8):
        for v in (s, q):
            A(f"v_add_f32_dpp v{v}, v{v}, v{v} row_shr:{sh} row_mask:0xf bank_mask:0xf bound_ctrl:0")
        A("s_nop 0")
    for v in (s, q):
        A(f"v_add_f32_dpp v{v}, v{v}, v{v} row_bcast:15 row_mask:0xa bank_mask:0xf")
    A("s_nop 0")
    for v in (s, q):
        A(f"v_add_f32_dpp v{v}, v{v}, v{v} row_bcast:31 row_mask:0xc bank_mask:0xf")
    G = 104
    A(f"v_mul_f32 v{G}, 0x{F1_448:x}, v{s}")
    A(f"v_mul_f32 v{q}, 0x{F1_448:x}, v{q}")
    A(f"v_fma_f32 v{q}, -v{G}, v{G}, v{q}")
    A(f"v_max_f32 v{q}, 0, v{q}")
    A(f"v_add_f32 v{q}, 0x{EPS5:x}, v{q}")
    A(f"v_rsq_f32 v{G+1}, v{q}")
    A(f"s_lshl_b32 s{sT0}, s{sK2}, 4")
    A(f"s_add_u32 s{sT0}, s{sT0}, {OFF_ST}")
    A("v_mov_b32 v1, 0")
    for l in granule_finish(G):
        A(l)
    A(f"s_mov_b32 s{sKT}, s{sT0}")
    return (f"s_mov_b32 s{sOk}, 0\ns_mov_b32 s{sOk+1}, 0x80000000\nv_mov_b32 v1, 0\n"
            f"s_mov_b64 exec, s[{sOk}:{sOk+1}]\n@vm st\n"
            f"buffer_store_dwordx4 {vr(G,4)}, v1, s[{SRD_WS}:{SRD_WS+3}], s{sKT} offen sc1\n"
            "s_mov_b64 exec, -1")


def fb_rows(A, g):
    L = A.newlabel("K1_fbr")
    t = list(range(108, 120))
    A(f"s_lshl_b32 s{sT0}, s{sRB}, 8")
    A(f"s_lshl_b32 s{sT1}, s{sW}, 6")
    A(f"s_add_u32 s{sT0}, s{sT0}, s{sT1}")
    A(f"v_add_u32 v{t[0]}, s{sT0}, v0")
    A(f"v_mul_u32_u24 v{t[0]}, 896, v{t[0]}")
    A(f"v_mov_b32 v{g}, 0")
    A(f"v_mov_b32 v{g+1}, 0")
    A(f"s_mov_b32 s{sT2}, 0")
    A.label(L)
    A(f"buffer_load_dwordx4 {vr(t[4],4)}, v{t[0]}, s[{SRD_X}:{SRD_X+3}], s{sT2} offen")
    A("s_waitcnt vmcnt(0)")
    for i in range(4):
        A(f"v_lshlrev_b32 v{t[1]}, 16, v{t[4]+i}")
        A(f"v_and_b32 v{t[2]}, s{sHi}, v{t[4]+i}")
        A(f"v_add_f32 v{g}, v{g}, v{t[1]}")
        A(f"v_fmac_f32 v{g+1}, v{t[1]}, v{t[1]}")
        A(f"v_add_f32 v{g}, v{g}, v{t[2]}")
        A(f"v_fmac_f32 v{g+1}, v{t[2]}, v{t[2]}")
    A(f"s_add_u32 s{sT2}, s{sT2}, 16")
    A(f"s_cmp_lt_u32 s{sT2}, 896")
    A(f"s_cbranch_scc1 {L}")
    A(f"v_mul_f32 v{g}, 0x{F1_448:x}, v{g}")
    A(f"v_mul_f32 v{g+1}, 0x{F1_448:x}, v{g+1}")
    A(f"v_fma_f32 v{g+1}, -v{g}, v{g}, v{g+1}")
    A(f"v_max_f32 v{g+1}, 0, v{g+1}")
    A(f"v_add_f32 v{g+1}, 0x{EPS5:x}, v{g+1}")
    A(f"v_rsq_f32 v{g+1}, v{g+1}")
    A("s_nop 0")


def fb_cols(A, typ, g, gbase_sgpr):
    L = A.newlabel("K1_fbc")
    t = list(range(108, 124))
    gi, c, rem, j, p, oq, og, ou, e, d0, d1, d2 = t[:12]
    A(f"v_add_u32 v{gi}, s{gbase_sgpr}, v0")
    A(f"v_mul_u32_u24 v{c}, 205, v{gi}")
    A(f"v_lshrrev_b32 v{c}, 14, v{c}")
    A(f"v_mul_u32_u24 v{rem}, 80, v{c}")
    A(f"v_sub_u32 v{rem}, v{gi}, v{rem}")
    A(f"v_lshrrev_b32 v{j}, 4, v{rem}")
    A(f"v_and_b32 v{p}, 15, v{rem}")
    A(f"v_lshlrev_b32 v{e}, 1, v{p}")
    A(f"v_subrev_u32 v{d0}, 4, v{e}")
    A(f"v_cmp_gt_u32 vcc, 24, v{e}")
    A(f"v_cndmask_b32 v{e}, v{d0}, v{e}, vcc")
    A(f"s_mul_i32 s{sT0}, s{sH}, 28")
    A(f"v_add_u32 v{e}, s{sT0}, v{e}")
    nh = 2 if typ == "A" else 1
    if typ == "A":
        A(f"v_mul_u32_u24 v{d0}, 448, v{j}")
        A(f"v_add_u32 v{e}, v{e}, v{d0}")
        A(f"v_add_u32 v{e}, 448, v{e}")
    A(f"v_lshlrev_b32 v{oq}, 1, v{e}")
    A(f"v_mul_u32_u24 v{d0}, {64*2688//64}, v{c}")
    A(f"v_lshlrev_b32 v{d0}, 6, v{d0}")
    A(f"v_add_u32 v{oq}, v{oq}, v{d0}")
    A(f"v_mov_b32 v{d1}, {OOB}")
    A(f"v_cmp_gt_u32 vcc, {nh}, v{j}")
    A(f"v_cndmask_b32 v{oq}, v{d1}, v{oq}, vcc")
    A(f"v_subrev_u32 v{e}, {nh}, v{j}")
    A(f"v_lshlrev_b32 v{e}, 4, v{e}")
    A(f"v_and_b32 v{d0}, 7, v{p}")
    A(f"v_lshl_add_u32 v{e}, v{d0}, 1, v{e}")
    if typ == "A":
        A(f"s_mul_i32 s{sT0}, s{sFG}, 48")
    else:
        A(f"s_lshl_b32 s{sT0}, s{sH}, 6")
        A(f"s_add_u32 s{sT0}, s{sT0}, 768")
    A(f"v_add_u32 v{e}, s{sT0}, v{e}")
    A(f"v_lshlrev_b32 v{og}, 1, v{e}")
    A(f"v_mul_u32_u24 v{d0}, 3584, v{c}")
    A(f"v_lshlrev_b32 v{d0}, 6, v{d0}")
    A(f"v_add_u32 v{og}, v{og}, v{d0}")
    A(f"v_cndmask_b32 v{og}, v{og}, v{d1}, vcc")
    A(f"v_cmp_gt_u32 vcc, 8, v{p}")
    A(f"v_cndmask_b32 v{ou}, v{og}, v{d1}, vcc")
    A(f"v_cndmask_b32 v{og}, v{d1}, v{og}, vcc")
    A(f"v_mov_b32 v{g}, 0")
    A(f"v_mov_b32 v{g+1}, 0")
    A(f"s_mov_b32 s{sT2}, 0")
    A(f"s_mov_b32 s{sT3}, 0")
    A(f"s_mov_b32 s{sT4}, 0")
    A.label(L)
    A(f"buffer_load_dword v{d0}, v{oq}, s[{SRD_Q}:{SRD_Q+3}], s{sT2} offen")
    A(f"buffer_load_dword v{d1}, v{og}, s[{SRD_G}:{SRD_G+3}], s{sT3} offen")
    A(f"buffer_load_dword v{d2}, v{ou}, s[{SRD_U}:{SRD_U+3}], s{sT3} offen")
    A("s_waitcnt vmcnt(0)")
    A(f"v_or_b32 v{d0}, v{d0}, v{d1}")
    A(f"v_or_b32 v{d0}, v{d0}, v{d2}")
    A(f"v_lshlrev_b32 v{d1}, 16, v{d0}")
    A(f"v_and_b32 v{d2}, s{sHi}, v{d0}")
    A(f"v_add_f32 v{g}, v{g}, v{d1}")
    A(f"v_add_f32 v{g+1}, v{g+1}, v{d2}")
    A(f"s_add_u32 s{sT2}, s{sT2}, 2688")
    A(f"s_add_u32 s{sT3}, s{sT3}, 3584")
    A(f"s_add_u32 s{sT4}, s{sT4}, 1")
    A(f"s_cmp_lt_u32 s{sT4}, 64")
    A(f"s_cbranch_scc1 {L}")


def spread(units, nslots, first=0):
    out = [[] for _ in range(nslots)]
    n = nslots - first
    for i, u in enumerate(units):
        out[first + i * n // len(units)].append(u)
    return out


def variant(E, A, var, opts):
    typ, grp, tiles = VARIANTS[var]
    nt = len(tiles)
    nm = 2 * nt
    prio = opts.get("prio", 1)
    if prio:
        A(f"s_setprio {2 if grp == 0 else 1}")
    setup = common_setup(var) + w_addr_setup(var)
    c1 = dma_units(typ, STAGE, "c1")
    c1pos = opts.get("c1pos", 1)
    if c1pos == 0:
        k = 0
        for i, u in enumerate(c1):
            E(u)
            hi = (i + 1) * len(setup) // len(c1)
            for s_ in setup[k:hi]:
                E(s_)
            k = hi
    else:
        for s_ in setup:
            E(s_)
    if opts.get("pst") == 2:
        ST.mark(3)
        E("@wait row")
        ST.mark(4)
    st_store = row_stats_publish(E)
    if not opts.get("stlate", 1):
        E(st_store)
    if c1pos == 1 or (c1pos == 3 and grp == 0):
        for u in c1:
            E(u)
    if opts.get("stlate", 1):
        E(st_store)
    if var == "A1":
        E(f"s_lshl_b32 s{sT0}, s{sH}, 12\ns_lshl_b32 s{sT1}, s{sWp}, 10\ns_add_u32 s{sT0}, s{sT0}, s{sT1}\n"
          f"s_add_u32 s{sT0}, s{sT0}, {OFF_KVS}\n"
          f"@vm zr\nbuffer_atomic_swap_x2 {vr(vZ0,2)}, v{vZo}, s[{SRD_WS}:{SRD_WS+3}], s{sT0} offen sc1\n"
          f"@vm zr\nbuffer_atomic_swap_x2 {vr(vZ0,2)}, v{vZo}, s[{SRD_WS}:{SRD_WS+3}], s{sT0} offen offset:512 sc1")
    if opts.get("pst") == 2:
        ST.mark(5)
    E("@wait c0")
    if opts.get("pst") == 2:
        ST.mark(6)
    A("s_barrier")
    STM(1)
    CHM(0)
    c1_late = c1pos == 2 or (c1pos == 3 and grp == 1)
    c2split = opts.get("c2split", 14)

    rdper = opts.get("rdper0" if grp == 0 else "rdper1", 2)

    def step(mf, rd, slots, bar=None, rper=None):
        rper = rper or rdper
        k = 0
        for i, m in enumerate(mf):
            E(m)
            r = rd[k:k + rper] if i < len(mf) - 1 else rd[k:]
            k += len(r)
            for s_ in r:
                E(s_)
            for u in slots[i]:
                E(u)
            if bar is not None and bar[0] == i:
                bar[1]()

    def empty(n):
        return [[] for _ in range(n)]

    def merge(*ss):
        out = empty(len(ss[0]))
        for s_ in ss:
            for i, l in enumerate(s_):
                out[i].extend(l)
        return out

    if var == "A0":
        vR, vCP, vM = 104, 136, 150
    else:
        vR, vCP, vM = 108, 136, 157
    jb = 0 if grp == 0 else 2
    G1, G2 = 96, 100

    def gather(sc=None):
        o = []
        SC = " sc1" if (opts.get("gsc", 1) if sc is None else sc) else ""
        if grp == 0:
            o.append(f"s_lshl_b32 s{sT0}, s{sRB}, 12\n"
                     f"s_lshl_b32 s{sT1}, s{sW}, 10\n"
                     f"s_add_u32 s{sT0}, s{sT0}, s{sT1}\n"
                     f"s_add_u32 s{sT0}, s{sT0}, {OFF_ST}\n"
                     f"@vm ga\n"
                     f"buffer_load_dwordx4 {vr(G1,4)}, v{vL16}, s[{SRD_WS}:{SRD_WS+3}], s{sT0} offen{SC}")
        else:
            o.append(f"s_mul_i32 s{sT0}, s{sCB}, 8960\n"
                     f"s_lshl_b32 s{sT1}, s{sWp}, 10\n"
                     f"s_add_u32 s{sT0}, s{sT0}, s{sT1}\n"
                     f"s_add_u32 s{sT0}, s{sT0}, {OFF_CS}\n"
                     f"@vm ga\n"
                     f"buffer_load_dwordx4 {vr(G1,4)}, v{vL16}, s[{SRD_WS}:{SRD_WS+3}], s{sT0} offen{SC}")
        o.append(f"s_mul_i32 s{sT0}, s{sCB}, 8960\n"
                 f"s_lshl_b32 s{sT1}, s{sW}, 10\n"
                 f"s_add_u32 s{sT0}, s{sT0}, s{sT1}\n"
                 f"s_add_u32 s{sT0}, s{sT0}, {OFF_CS + 4096}\n"
                 f"@vm ga\n"
                 f"buffer_load_dwordx4 {vr(G2,4)}, v{vL16}, s[{SRD_WS}:{SRD_WS+3}], s{sT0} offen{SC}")
        return o

    def check_tail():
        return (f"s_orn2_b64 s[{sOk2}:{sOk2+1}], s[{sOk2}:{sOk2+1}], s[{sNeed}:{sNeed+1}]\n"
                f"s_and_b64 s[{sOk}:{sOk+1}], s[{sOk}:{sOk+1}], s[{sOk2}:{sOk2+1}]\n"
                f"s_cmp_eq_u64 s[{sOk}:{sOk+1}], -1\n")

    Lslow = f"K1_{var}_slow"
    Lok = f"K1_{var}_ok"

    for p in range(-1, 6):
        n = p + 1
        nsl = 4 * nm
        fill = empty(nsl)
        add = lambda units, first, last: [fill[first + i * (last - first) // len(units)].append(u) for i, u in enumerate(units)]
        first_slot = nm if p == -1 else 0
        if p == -1 and c1_late:
            for i, u in enumerate(c1):
                fill[first_slot + i].append(u)
        if grp == 0 and p + 3 <= 6 and not (opts.get("nodma") and p >= 0):
            d = dma14(typ, p + 3)
            if p == -1:
                carry = d[c2split:]
                d = d[:c2split]
                if c1_late:
                    add(d, first_slot + 7, nsl)
                else:
                    add(d, first_slot, nsl)
            else:
                if p == 0:
                    d = carry + d
                if len(d) <= nsl:
                    for i, u in enumerate(d):
                        fill[i].append(u)
                else:
                    add(d, 0, nsl)
        if p == -1:
            for t in range(nt):
                add(cs_duty(var, t & 1, t), nm * (1 + t), nm * (1 + t) + (nm if t < 2 else nm // 2))
            red = []
            red.append("\n".join([f"v_add_f32 v{vCS[2*j]}, v{vCS[2*j]}, v{vCS[2*j]+1}" for j in range(nt)] +
                                 [f"v_mov_b32 v{vCS[2*j]+1}, v{vCS[2*j]}" for j in range(nt)] + ["s_nop 1"] +
                                 [f"v_permlane32_swap_b32 v{vCS[2*j]}, v{vCS[2*j]+1}" for j in range(nt)]))
            red.append("v_and_b32 v1, 31, v0\nv_lshlrev_b32 v1, 2, v1\n"
                       f"s_mul_i32 s{sT0}, s{sWp}, 640\ns_add_u32 s{sT0}, s{sT0}, {TOP + jb*128}\nv_add_u32 v1, s{sT0}, v1\n" +
                       "\n".join([f"v_add_f32 v{vCS[2*j]}, v{vCS[2*j]}, v{vCS[2*j]+1}" for j in range(nt)] +
                                 [f"ds_write_b32 v1, v{vCS[2*j]} offset:{j*128}" for j in range(nt)]))
            fill[4 * nm - 3].append(red[0])
            fill[4 * nm - 2].append(red[1])
        if p == 0 and grp == 1:
            P = 104
            G = 112
            fill[nm - 1].append("v_lshlrev_b32 v1, 3, v0\n"
                                f"s_and_b32 s{sT0}, s{sWp}, 1\ns_lshl_b32 s{sT0}, s{sT0}, 9\ns_add_u32 s{sT0}, s{sT0}, {TOP}\nv_add_u32 v1, s{sT0}, v1\n" +
                                "\n".join(f"ds_read_b64 {vr(P+2*q,2)}, v1 offset:{q*640}" for q in range(4)))
            pub = []
            for e in range(2):
                pub.append(f"v_add_f32 v{P+e}, v{P+e}, v{P+2+e}")
                pub.append(f"v_add_f32 v{P+4+e}, v{P+4+e}, v{P+6+e}")
            for e in range(2):
                pub.append(f"v_add_f32 v{G+e}, v{P+e}, v{P+4+e}")
            pub += granule_finish(G)
            pub.append(f"@vm cs\nbuffer_store_dwordx4 {vr(G,4)}, v{vCSo}, s[{SRD_WS}:{SRD_WS+3}], s{sCSo} offen sc1")
            add(pub, nm, 2 * nm)
        if p == 1 and var == "A1" and not opts.get("znochk"):
            if opts.get("ztag", 1):
                ZG = vCT[0]
                fill[nm].append(f"v_mov_b32 v{ZG}, 1\nv_mov_b32 v{ZG+1}, 2\n" + "\n".join(granule_finish(ZG)))
                fill[nm + 1].append(f"@wait zr\n@vm zs\nbuffer_store_dwordx4 {vr(ZG,4)}, v{vZ0+2}, s[{SRD_WS}:{SRD_WS+3}], s{sZo} offen sc1")
            else:
                fill[nm].append(f"@wait zr\n@vm zs\nbuffer_atomic_add v{vZ0+3}, v{vZ0+2}, s[{SRD_DBG}:{SRD_DBG+3}], s{sZo} offen sc1")
        if p == opts.get("ozp", 2) and opts.get("opre") and (grp == 1 or opts.get("ozall")):
            OZ = vCT[0]
            fill[nm].append("\n".join(f"v_mov_b32 v{OZ+i}, 0" for i in range(4)))
            if opts.get("ozall"):
                fill[nm + 1].append(f"s_lshl_b32 s{sT4}, s2, 3\ns_add_u32 s{sT4}, s{sT4}, s{sW}\ns_lshl_b32 s{sT4}, s{sT4}, 10\n"
                                    f"s_add_u32 s{sT4}, s{sT4}, {OFF_O}\n"
                                    f"@vm oz\nbuffer_store_dwordx4 {vr(OZ,4)}, v{vL16}, s[{SRD_WS}:{SRD_WS+3}], s{sT4} offen sc1")
            else:
                fill[nm + 1].append(f"s_lshl_b32 s{sT4}, s{sRB}, 5\ns_add_u32 s{sT4}, s{sT4}, s{sCB}\n"
                                    f"s_lshl_b32 s{sT4}, s{sT4}, 2\ns_add_u32 s{sT4}, s{sT4}, s{sWp}\ns_lshl_b32 s{sT4}, s{sT4}, 11\n"
                                    f"s_add_u32 s{sT4}, s{sT4}, {OFF_O}\n"
                                    f"@vm oz\nbuffer_store_dwordx4 {vr(OZ,4)}, v{vL16}, s[{SRD_WS}:{SRD_WS+3}], s{sT4} offen sc1")
                fill[nm + 2].append(f"@vm oz\nbuffer_store_dwordx4 {vr(OZ,4)}, v{vL16}, s[{SRD_WS}:{SRD_WS+3}], s{sT4} offen offset:1024 sc1")
        if p == opts.get("gp", 4):
            gs = opts.get("gslot", 0)
            if opts.get("gend"):
                gs = nsl - opts.get("gend")
            add(gather(), gs, gs + 2)
        if p == opts.get("pfp", 4) and opts.get("pf", 1) in (1, 2):
            PFV = 38
            pfu = [f"s_lshr_b32 s{sT4}, s2, 3\ns_lshl_b32 s{sT4}, s{sT4}, 3\ns_add_u32 s{sT4}, s{sT4}, s{sW}\n"
                   f"v_lshlrev_b32 v{PFV}, 7, v0\n"
                   f"s_cmp_lt_u32 s{sT4}, 196\n"
                   f"s_cselect_b32 s{sPF}, s{SRD_WD}, s{SRD_WO}\n"
                   f"s_cselect_b32 s{sPF+1}, s{SRD_WD+1}, s{SRD_WO+1}\n"
                   f"s_mov_b32 s{sPF+2}, {WO_BYTES}\n"
                   f"s_cselect_b32 s{sPF+2}, {WD_BYTES}, s{sPF+2}\n"
                   f"s_mov_b32 s{sPF+3}, 0x20000\n"
                   f"s_cselect_b32 s{sT5}, 0, 196\n"
                   f"s_sub_u32 s{sT4}, s{sT4}, s{sT5}\n"
                   f"s_lshl_b32 s{sT4}, s{sT4}, 13\n"
                   f"v_add_u32 v{PFV}, s{sT4}, v{PFV}",
                   f"@vm pf\nbuffer_load_dword v{PFV+1}, v{PFV}, s[{sPF}:{sPF+3}], 0 offen"]
            if opts.get("pf", 1) == 2:
                pfu.append(f"@vm pf\nbuffer_load_dword v{PFV+2}, v{PFV}, s[{sPF}:{sPF+3}], 0 offen offset:64")
            ps = opts.get("pfslot", 3)
            if opts.get("pfend"):
                ps = nsl - opts.get("pfend")
            add(pfu, ps, ps + len(pfu))
        if opts.get("pf", 1) == 5:
            pf0, pf1 = opts.get("pf0", 0), opts.get("pf1", 6)
            PFV = 32
            if pf0 <= p < pf1:
                npc = pf1 - pf0
                k = p - pf0
                lo, hi = 64 * k // npc, 64 * (k + 1) // npc
                mask = ((1 << hi) - 1) ^ ((1 << lo) - 1)
                pfu = []
                if k == 0:
                    pfu.append(f"s_lshr_b32 s{sT4}, s2, 3\ns_lshl_b32 s{sT4}, s{sT4}, 3\ns_add_u32 s{sT4}, s{sT4}, s{sW}\n"
                               f"v_lshlrev_b32 v{PFV}, 7, v0\n"
                               f"s_cmp_lt_u32 s{sT4}, 196\n"
                               f"s_cselect_b32 s{sPF}, s{SRD_WD}, s{SRD_WO}\n"
                               f"s_cselect_b32 s{sPF+1}, s{SRD_WD+1}, s{SRD_WO+1}\n"
                               f"s_mov_b32 s{sPF+2}, {WO_BYTES}\n"
                               f"s_cselect_b32 s{sPF+2}, {WD_BYTES}, s{sPF+2}\n"
                               f"s_mov_b32 s{sPF+3}, 0x20000\n"
                               f"s_cselect_b32 s{sT5}, 0, 196\n"
                               f"s_sub_u32 s{sT4}, s{sT4}, s{sT5}\n"
                               f"s_lshl_b32 s{sT4}, s{sT4}, 13\n"
                               f"v_add_u32 v{PFV}, s{sT4}, v{PFV}")
                pfu.append(f"s_mov_b32 exec_lo, 0x{mask & 0xffffffff:x}\ns_mov_b32 exec_hi, 0x{mask >> 32:x}\n"
                           f"@vm pf\nbuffer_load_dword v{PFV+1}, v{PFV}, s[{sPF}:{sPF+3}], 0 offen\ns_mov_b64 exec, -1")
                ps = opts.get("pfslot", 3)
                if opts.get("pfend"):
                    ps = nsl - opts.get("pfend")
                add(pfu, ps, ps + len(pfu))
        if p == opts.get("pfp", 4) and opts.get("pf", 1) == 3 and grp == 1:
            PFV = 38
            pfu = [f"s_lshr_b32 s{sT4}, s2, 3\ns_lshl_b32 s{sT4}, s{sT4}, 2\ns_add_u32 s{sT4}, s{sT4}, s{sWp}\n"
                   f"v_lshlrev_b32 v{PFV}, 7, v0\n"
                   f"s_cmp_lt_u32 s{sT4}, 98\n"
                   f"s_cselect_b32 s{sPF}, s{SRD_WD}, s{SRD_WO}\n"
                   f"s_cselect_b32 s{sPF+1}, s{SRD_WD+1}, s{SRD_WO+1}\n"
                   f"s_mov_b32 s{sPF+2}, {WO_BYTES}\n"
                   f"s_cselect_b32 s{sPF+2}, {WD_BYTES}, s{sPF+2}\n"
                   f"s_mov_b32 s{sPF+3}, 0x20000\n"
                   f"s_cselect_b32 s{sT5}, 0, 98\n"
                   f"s_sub_u32 s{sT4}, s{sT4}, s{sT5}\n"
                   f"s_lshl_b32 s{sT4}, s{sT4}, 14\n"
                   f"v_add_u32 v{PFV}, s{sT4}, v{PFV}\n"
                   f"v_add_u32 v{PFV+1}, 0x2000, v{PFV}",
                   f"@vm pf\nbuffer_load_dword v{PFV+2}, v{PFV}, s[{sPF}:{sPF+3}], 0 offen",
                   f"@vm pf\nbuffer_load_dword v{PFV+3}, v{PFV+1}, s[{sPF}:{sPF+3}], 0 offen"]
            ps = opts.get("pfslot", 3)
            add(pfu, ps, ps + 2 * len(pfu))
        if opts.get("p2", 0) and grp == 0 and p in (4, 5) and opts.get("early", 1):
            eu = []
            if p == 4:
                eu.append(f"s_lshr_b32 s{sT4}, s2, 3\ns_sub_u32 s{sT4}, s{sT4}, 4\ns_max_i32 s{sT4}, s{sT4}, 0\n"
                          f"s_mul_i32 s{sT5}, s{sT4}, 37\ns_lshr_b32 s{sT5}, s{sT5}, 8\ns_mul_i32 s{sT5}, s{sT5}, 7\n"
                          f"s_sub_u32 s{sT4}, s{sT4}, s{sT5}\n"
                          f"s_mul_i32 s{eKo}, s{sT4}, {2*14336 if opts.get('rot2', 1) else 0}\n"
                          f"s_lshl_b32 s{sT4}, s{sT4}, 7\n"
                          f"s_mul_i32 s{eWB}, s{sWp}, {224*896}\ns_add_u32 s{eWB}, s{eWB}, s{sT4}\n"
                          f"s_add_u32 s{eS}, s{eWB}, s{eKo}\ns_lshl_b32 s{eL}, s{sWp}, 10\n"
                          "v_lshrrev_b32 v1, 3, v0\nv_lshrrev_b32 v2, 4, v0\nv_and_b32 v2, 1, v2\nv_lshlrev_b32 v2, 2, v2\n"
                          "v_and_b32 v3, 7, v0\nv_xor_b32 v3, v3, v2\nv_lshlrev_b32 v3, 4, v3\n"
                          f"v_mul_u32_u24 v{vX}, 896, v1\nv_add_u32 v{vX}, v{vX}, v3")
            for row in (range(8, 13) if p == 4 else range(13, 20)):
                s_, h_ = (row - 8) // 2, (row - 8) % 2
                for t_ in (0, 1):
                    u = ""
                    if h_ == 0 and t_ == 0 and s_ > 0:
                        u += (f"s_add_u32 s{eKo}, s{eKo}, 14336\ns_cmp_eq_u32 s{eKo}, {14*14336}\ns_cselect_b32 s{eKo}, 0, s{eKo}\n"
                              f"s_add_u32 s{eS}, s{eWB}, s{eKo}\n")
                    u += f"s_add_u32 m0, s{eL}, {row*8192 + t_*4096}\n"
                    c_ = h_ * 7168 + t_ * 4 * 224 * 896
                    if c_:
                        u += f"s_add_u32 s{eT}, s{eS}, {c_}\n"
                        so = eT
                    else:
                        u += "s_nop 0\n"
                        so = eS
                    u += f"@vm ew\nbuffer_load_dwordx4 v{vX}, s[{SRD_WD}:{SRD_WD+3}], s{so} offen lds"
                    eu.append(u)
            e0 = opts.get("e4s", 4) if p == 4 else opts.get("e5s", 0)
            e1 = opts.get("e4e", 3 * nm + 2) if p == 4 else opts.get("e5e", 3 * nm)
            add(eu, e0, e1)
        if p == 5 and opts.get("wearly") and grp == (0 if opts.get("wearly") == 1 else 1):
            opre_ = opts.get("opre", 0)
            wo_ = 4 if grp == 0 else 0
            eu = []
            su = (f"s_lshr_b32 s{sT4}, s2, 3\ns_sub_u32 s{sT4}, s{sT4}, 4\ns_max_i32 s{sT4}, s{sT4}, 0\n"
                  f"s_mul_i32 s{sT5}, s{sT4}, 37\ns_lshr_b32 s{sT5}, s{sT5}, 8\ns_mul_i32 s{sT5}, s{sT5}, 7\n"
                  f"s_sub_u32 s{sT4}, s{sT4}, s{sT5}\ns_lshl_b32 s{sT4}, s{sT4}, 7\n"
                  f"s_mul_i32 s{eWB}, s{sW}, {224*896}\ns_add_u32 s{eWB}, s{eWB}, s{sT4}\ns_add_u32 s{eWB}, s{eWB}, {wo_*224*896}\n"
                  f"s_mul_i32 s{eS}, s{sW}, {56*896}\ns_add_u32 s{eS}, s{eS}, s{sT4}\ns_add_u32 s{eS}, s{eS}, {wo_*56*896}\n"
                  f"s_mul_i32 s{eL}, s{sW}, {LBW}\ns_add_u32 s{eL}, s{eL}, {wo_*LBW}\n"
                  "v_lshrrev_b32 v5, 3, v0\nv_lshrrev_b32 v6, 4, v0\nv_and_b32 v6, 1, v6\nv_lshlrev_b32 v6, 2, v6\n"
                  "v_and_b32 v7, 7, v0\nv_xor_b32 v7, v7, v6\nv_lshlrev_b32 v7, 4, v7\n"
                  f"v_mul_u32_u24 v{vX}, 896, v5\nv_add_u32 v{vX}, v{vX}, v7\n")
            if opre_:
                su += (f"v_and_b32 v6, 3, v5\nv_subrev_u32 v{vH}, 896, v{vX}\nv_cmp_gt_u32 vcc, 32, v0\n"
                       f"v_cndmask_b32 v{vH}, v{vH}, v{vX}, vcc\nv_mov_b32 v7, 0x{OOB:x}\nv_cmp_eq_u32 vcc, 3, v6\n"
                       f"v_cndmask_b32 v{vH}, v{vH}, v7, vcc")
            else:
                su += (f"v_subrev_u32 v{vH}, {4*896}, v{vX}\nv_mov_b32 v5, 0x{OOB:x}\nv_cmp_gt_u32 vcc, 32, v0\n"
                       f"v_cndmask_b32 v{vH}, v{vH}, v5, vcc")
            for i in range(12):
                eu.append(f"s_add_u32 m0, s{eL}, {i*1024}\ns_add_u32 s{eT}, s{eWB}, {i*7168}\n"
                          f"@vm ew\nbuffer_load_dwordx4 v{vX}, s[{SRD_WD}:{SRD_WD+3}], s{eT} offen lds")
            for hh in range(2):
                for j in range(4):
                    if opre_:
                        rows, sp = hh * 28 + (0, 8, 14, 22)[j], j in (1, 3)
                    else:
                        rows, sp = hh * 28 + 8 * j, j == 3
                    eu.append(f"s_add_u32 m0, s{eL}, {(12 + hh*4 + j)*1024}\ns_add_u32 s{eT}, s{eS}, {rows*896}\n"
                              f"@vm ew\nbuffer_load_dwordx4 v{vH if sp else vX}, s[{SRD_WO}:{SRD_WO+3}], s{eT} offen lds")
            eu = eu[:opts.get("wen", 20)]
            e0 = opts.get("we0", 1)
            e1 = opts.get("we1", nsl)
            fill[e0 - 1].append(su)
            add(eu, e0, e1)
        if p == 4:
            val = []
            if grp == 0:
                val.append(f"s_mov_b64 s[{sNeed}:{sNeed+1}], -1")
            else:
                val.append(f"s_cmp_eq_u32 s{sW}, 4\ns_cselect_b32 s{sNeed}, -1, 0\ns_cselect_b32 s{sNeed+1}, 0xffff, 0")
            val.append(f"s_mov_b32 s{sCnt}, 0\n@wait ga")
            val += granule_check(G1, 108, sOk)
            val += granule_check(G2, 110, sOk2)
            val.append(check_tail() + f"s_cbranch_scc0 {Lslow}\n@label {Lok}" + (f"\ns_mov_b32 s{sLim}, {1 << 24}" if opts.get("forcefb") else ""))
            wr = []
            if grp == 0:
                wr.append(f"s_lshl_b32 s{sT0}, s{sW}, 8\ns_add_u32 s{sT0}, s{sT0}, {M_OFF}\nv_lshlrev_b32 v1, 2, v0\nv_add_u32 v1, s{sT0}, v1\n"
                          f"ds_write_b32 v1, v{G1}\nds_write_b32 v1, v{G1+1} offset:1024")
            else:
                wr.append(f"s_lshl_b32 s{sT0}, s{sWp}, 9\ns_add_u32 s{sT0}, s{sT0}, {CP_OFF}\nv_lshlrev_b32 v1, 3, v0\nv_add_u32 v1, s{sT0}, v1\n"
                          f"ds_write_b64 v1, {vr(G1,2)}")
            wr.append(f"s_lshl_b32 s{sT0}, s{sW}, 9\ns_add_u32 s{sT0}, s{sT0}, {CP_OFF + 2048}\nv_lshlrev_b32 v1, 3, v0\nv_add_u32 v2, s{sT0}, v1\n"
                      f"v_add_u32 v1, {TOP}, v1\n"
                      f"v_cndmask_b32_e64 v1, v1, v2, s[{sNeed}:{sNeed+1}]\n"
                      f"ds_write_b64 v1, {vr(G2,2)}")
            if opts.get("vspread", 1):
                bat_ = opts.get("bat1", 4) if grp == 1 else opts.get("bat0", 3)
                v0_ = opts.get("vs0", 2) * nm
                add(val + wr, v0_, 3 * nm + bat_)
            else:
                vs = opts.get("vstep", 3) * nm
                fill[vs].append("\n".join(val))
                fill[vs + 1].append(wr[0])
                fill[vs + 2].append(wr[1])
        if p == 5:
            fr = ("v_and_b32 v1, 31, v0\nv_lshlrev_b32 v1, 2, v1\n"
                  f"s_lshl_b32 s{sT0}, s{sWp}, 8\ns_add_u32 s{sT0}, s{sT0}, {M_OFF}\nv_add_u32 v2, s{sT0}, v1\n"
                  f"ds_read_b32 v{vM}, v2\nds_read_b32 v{vM+1}, v2 offset:128\n"
                  f"v_add_u32 v3, {CP_OFF + jb*128}, v1")
            lst = [fr]
            for j in range(nt):
                for c in range(7):
                    lst.append(f"ds_read_b32 v{vCP+7*j+c}, v3 offset:{j*128 + c*640}")
            if var == "A0":
                lst.append(f"v_lshrrev_b32 v4, 5, v0\nv_lshlrev_b32 v4, 4, v4\nv_add_u32 v4, s{sT0}, v4")
                for a in range(2):
                    for j in range(4):
                        lst.append(f"ds_read_b128 {vr(vR+16*a+4*j,4)}, v4 offset:{1024 + a*128 + j*32}")
            elif var == "B0":
                lst.append(f"ds_read_b32 v{vR}, v2 offset:1024\nds_read_b32 v{vR+1}, v2 offset:{1024+128}")
            if var == "A0" and not opts.get("znochk"):
                if opts.get("ztag", 1):
                    lst.append(f"@vm zl\nbuffer_load_dwordx4 {vr(vZ0,4)}, v{vZo}, s[{SRD_WS}:{SRD_WS+3}], s{sZo} offen sc1")
                else:
                    lst.append(f"@vm zl\nbuffer_load_dword v{vZ0+2}, v{vZ0}, s[{SRD_DBG}:{SRD_DBG+3}], s{sZo} offen sc1")
            add(lst, 0, 2 * nm)
            prep = []
            for a in range(2):
                m = vM + a
                prep.append(f"v_sub_f32 v{m}, 0, v{m}")
                prep.append(f"v_cndmask_b32_e64 v{m}, 0, v{m}, s[{sMaskLo32}:{sMaskLo32+1}]")
            for a in range(2):
                prep.append(f"v_cvt_pk_bf16_f32 v{XC+4*a+1}, v{vM+a}, 0")
            for a in range(2):
                prep.append(f"v_lshlrev_b32 v{1+a}, 16, v{XC+4*a+1}")
            for a in range(2):
                prep.append(f"v_sub_f32 v{1+a}, v{vM+a}, v{1+a}")
            for a in range(2):
                prep.append(f"v_cvt_pk_bf16_f32 v{XC+4*a}, v{vM+a}, v{1+a}")
                prep.append(f"v_mov_b32 v{XC+4*a+2}, 0")
                prep.append(f"v_mov_b32 v{XC+4*a+3}, 0")
            for j in range(nt):
                c = vCP + 7 * j
                prep.append(f"v_add_f32 v{c}, v{c}, v{c+1}")
                prep.append(f"v_add_f32 v{c+2}, v{c+2}, v{c+3}")
                prep.append(f"v_add_f32 v{c+4}, v{c+4}, v{c+5}")
                prep.append(f"v_add_f32 v{c}, v{c}, v{c+6}")
                prep.append(f"v_add_f32 v{c+2}, v{c+2}, v{c+4}")
                prep.append(f"v_add_f32 v{c}, v{c}, v{c+2}")
                prep.append(f"v_cvt_pk_bf16_f32 v{WC+4*j}, v{c}, v{c}")
                prep.append(f"v_lshlrev_b32 v{c+1}, 16, v{WC+4*j}")
                prep.append(f"v_sub_f32 v{c+1}, v{c}, v{c+1}")
                prep.append(f"v_cvt_pk_bf16_f32 v{WC+4*j+1}, v{c+1}, 0")
                prep.append(f"v_mov_b32 v{WC+4*j+2}, 0")
                prep.append(f"v_mov_b32 v{WC+4*j+3}, 0")
            if grp == 0:
                prep.append(f"v_mov_b32 v12, 0x{EPS6:x}")
                prep.append(f"v_mov_b32 v13, 0x{LOG2E:x}")
                prep.append(f"v_mov_b32 v14, 0x{NEG_EPS_LOG2E:x}")
            last_fill = empty(nm)
            np_ = len(prep)
            tot = 3 * nm
            for i, u in enumerate(prep):
                sl = 2 * nm + i * tot // np_
                (fill[sl] if sl < nsl else last_fill[sl - nsl]).append(u)

        def fix(units):
            return units

        def barrier_fn(pp):
            def f():
                A("s_waitcnt lgkmcnt(0)")
                need = pp + 1
                tag = f"c{need}"
                if tag in E.ops:
                    E(f"@wait {tag}")
                if prio and opts.get("eprio", 3) == 3 and pp == opts.get("swp", 5):
                    A(f"s_setprio {0 if grp == 0 else 3}")
                A("s_barrier")
                CHM(pp + 1)
            return f

        def EM(u):
            for l in u.split("\n"):
                if l.startswith("@label "):
                    A.label(l[7:])
                else:
                    E(l)

        def step2(mf, rd, slots, bar=None, rper=None, wait=True):
            rper = rper or rdper
            if wait:
                A("s_waitcnt lgkmcnt(0)")
            k = 0
            for i, m in enumerate(mf):
                E(m)
                r = rd[k:k + rper] if i < len(mf) - 1 else rd[k:]
                k += len(r)
                for s_ in r:
                    E(s_)
                for u in slots[i]:
                    EM(u)
                if bar is not None and bar[0] == i:
                    bar[1]()

        if p == -1:
            for s_ in reads(var, 0, 0, 0):
                E(s_)
        else:
            step2(mfmas(var, 1), reads(var, n, 0, 0), fill[0:nm], wait=False)
        step2(mfmas(var, 0, zero=(p == -1)), reads(var, n, 1, 1), fill[nm:2*nm])
        step2(mfmas(var, 1), reads(var, n, 2, 0), fill[2*nm:3*nm])
        if p < 5:
            bat = opts.get("bat1", 4) if grp == 1 else opts.get("bat0", 3)
            step2(mfmas(var, 0), reads(var, n, 3, 1), fill[3*nm:4*nm], bar=(bat, barrier_fn(p + 1)),
                  rper=(opts.get("rb1", 3) if grp == 1 else None))
            rest = []
        else:
            step2(mfmas(var, 0), reads(var, n, 3, 1), fill[3*nm:4*nm])
            if grp == 0 and opts.get("b6", 0):
                A("s_waitcnt lgkmcnt(0)")
                A("s_barrier")
                step2(mfmas(var, 1), [], last_fill, wait=False)
            else:
                step2(mfmas(var, 1), [], last_fill)
    STM(2)
    if prio and grp == 0:
        A("s_setprio 3")
    if prio and opts.get("eprio", 3) == 1 and grp == 0:
        A("s_setprio 0")
    if prio and opts.get("eprio", 3) == 2:
        A("s_setprio 0")
    if not opts.get("nocorr"):
        for s_ in mfmas_regs(var, XC, WC):
            A(s_)
    vEps, vL2e, vNeg = 12, 13, 14
    A(f"s_lshl_b32 s{sT0}, s{sRB}, 3")
    A(f"s_lshl_b32 s{sT1}, s{sWp}, 1")
    A(f"s_add_u32 s{sT0}, s{sT0}, s{sT1}")

    STSC = {0: "", 1: " sc1", 2: " nt", 3: " sc0 sc1", 4: " sc1 nt"}[opts.get("stsc", 1)]

    def ffn_tile(j, ft_sgpr, P0):
        for a in range(2):
            d = acc(j, a)
            P = P0 + 4 * a
            for r in range(8):
                A(f"v_max_f32 v{d+r}, 0, v{d+r}")
            if opts.get("epk", 1):
                for r in range(0, 8, 2):
                    A(f"v_pk_mul_f32 {vr(d+r,2)}, {vr(d+r,2)}, {vr(d+8+r,2)}")
            else:
                for r in range(8):
                    A(f"v_mul_f32 v{d+r}, v{d+r}, v{d+8+r}")
            for r in range(4):
                A(f"v_cvt_pk_bf16_f32 v{P+r}, v{d+2*r}, v{d+2*r+1}")
            A(f"s_add_u32 s{sT2}, s{sT0}, {a}")
            A(f"s_mul_i32 s{sT2}, s{sT2}, 112")
            A(f"s_add_u32 s{sT2}, s{sT2}, s{ft_sgpr}")
            A(f"s_lshl_b32 s{sT2}, s{sT2}, 10")
            if OFF_H:
                A(f"s_add_u32 s{sT2}, s{sT2}, {OFF_H}")
            A(f"buffer_store_dwordx4 {vr(P,4)}, v{vL16}, s[{SRD_WS}:{SRD_WS+3}], s{sT2} offen{STSC}")

    def phi8(d, rs, out4, T):
        t1, t2 = T[0:8], T[8:16]
        for r in range(8):
            A(f"v_fma_f32 v{t1[r]}, v{d+r}, v{rs[r]}, v{vEps}")
        for r in range(8):
            A(f"v_fma_f32 v{t2[r]}, v{t1[r]}, v{vL2e}, v{vNeg}")
        for r in range(8):
            A(f"v_exp_f32_e64 v{t2[r]}, v{t2[r]} clamp")
        for r in range(8):
            A(f"v_max_f32 v{t1[r]}, v{vEps}, v{t1[r]}")
        for r in range(8):
            A(f"v_add_f32 v{t1[r]}, v{t1[r]}, v{t2[r]}")
        return t1

    A("s_nop 7")
    A("s_nop 3" if nt == 3 else "s_nop 7")

    def ft_index(j):
        if typ == "A":
            A(f"s_mul_i32 s{sT3}, s{sFG}, 3")
            A(f"s_add_u32 s{sT3}, s{sT3}, {j}")
        else:
            jj = 0 if grp == 0 else j + 1
            A(f"s_lshl_b32 s{sT3}, s{sH}, 2")
            A(f"s_add_u32 s{sT3}, s{sT3}, {48 + jj}")

    if var == "A0":
        PK, PV, vOne = 48, 136, 152
        T = list(range(64, 88))
        A(f"v_mov_b32 v{vOne}, 0x3f803f80")
        for a in range(2):
            rs = [vR + 16 * a + r for r in range(16)]
            for half in range(2):
                t1 = phi8(acc(0, a) + 8 * half, rs[8 * half:8 * half + 8], None, T)
                for r in range(4):
                    A(f"v_cvt_pk_bf16_f32 v{PK+8*a+4*half+r}, v{t1[2*r]}, v{t1[2*r+1]}")
            d = acc(1, a)
            for r in range(0, 16, 2):
                A(f"v_pk_mul_f32 {vr(d+r,2)}, {vr(d+r,2)}, {vr(rs[r],2)}")
            for r in range(8):
                A(f"v_cvt_pk_bf16_f32 v{PV+8*a+r}, v{d+2*r}, v{d+2*r+1}")
            for r in range(8):
                A(f"v_cndmask_b32_e64 v{PV+8*a+r}, v{PV+8*a+r}, v{vOne}, s[{sMask24}:{sMask24+1}]")
        KV = acc(0, 0)
        A("s_nop 1")
        for a in range(2):
            for t in range(2):
                c = "0" if (a == 0 and t == 0) else vr(KV, 16)
                A(f"v_mfma_f32_32x32x16_bf16 {vr(KV,16)}, {vr(PK+8*a+4*t,4)}, {vr(PV+8*a+4*t,4)}, {c}")
        Lz, Lzo = "K1_A0_zslow", "K1_A0_zok"
        A(f"s_lshl_b32 s{sT2}, s{sH}, 12")
        A(f"s_add_u32 s{sT2}, s{sT2}, {OFF_KVS}")
        A(f"v_lshlrev_b32 v1, {4 if opts.get('kvx4') == 1 else 2}, v0")
        kvred = opts.get("kvred", 0)
        assert not (kvred and opts.get("p2", 0) and opts.get("early", 1))
        if kvred:
            A(f"s_lshl_b32 s{sT3}, s{sWp}, 12")
            A(f"s_add_u32 s{sT3}, s{sT3}, {KVR_OFF}")
            A(f"v_add_u32 v2, s{sT3}, v{vL16}")
            A(f"s_lshl_b32 s{sT3}, s{sWp}, 10")
            A(f"s_add_u32 s{sT2}, s{sT2}, s{sT3}")
            A(f"s_add_u32 s{sT3}, s{sT3}, {KVR_OFF}")
            A(f"v_add_u32 v3, s{sT3}, v1")
            A("s_nop 7")
            A("s_nop 1")
            for q in range(4):
                A(f"ds_write_b128 v2, {vr(KV+4*q,4)} offset:{q*1024}")
            A("s_waitcnt lgkmcnt(0)")
            A("s_barrier")
            RD = 64
            for p_ in range(4):
                for i in range(2):
                    A(f"ds_read2st64_b32 {vr(RD+4*p_+2*i,2)}, v3 offset0:{16*p_+2*i} offset1:{16*p_+2*i+1}")
        if not opts.get("znochk"):
            E("@wait zl")
            if opts.get("ztag", 1):
                for l in granule_check(vZ0, 2, sOk):
                    A(l)
                A(f"s_and_b32 s{sOk}, s{sOk}, 15")
                A(f"s_cmp_eq_u32 s{sOk}, 15")
            else:
                A(f"v_readfirstlane_b32 s{sT3}, v{vZ0+2}")
                A(f"s_cmp_eq_u32 s{sT3}, 4")
            A(f"s_cbranch_scc0 {Lz}")
        A.label(Lzo)
        if kvred:
            A("s_waitcnt lgkmcnt(4)")
            for i in range(4):
                A(f"v_add_f32 v{RD+i}, v{RD+i}, v{RD+4+i}")
            A("s_waitcnt lgkmcnt(0)")
            for i in range(4):
                A(f"v_add_f32 v{RD+8+i}, v{RD+8+i}, v{RD+12+i}")
            for i in range(4):
                A(f"v_add_f32 v{RD+i}, v{RD+i}, v{RD+8+i}")
            for i in range(4):
                A(f"buffer_atomic_add_f32 v{RD+i}, v1, s[{SRD_WS}:{SRD_WS+3}], s{sT2} offen offset:{i*256} sc1")
        else:
            A("s_nop 7")
        if opts.get("atw"):
            A(f"s_cmp_lt_u32 s{sWp}, {opts.get('atw')}")
            A("s_cbranch_scc0 K1_A0_noat")
        for r in range(16 if not kvred else 0):
            off = (r >> 2) * 1024 + (r & 3) * 4 if opts.get("kvx4") == 1 else r * 256
            A(f"buffer_atomic_add_f32 v{KV+r}, v1, s[{SRD_WS}:{SRD_WS+3}], s{sT2} offen offset:{off} sc1")
        if opts.get("atw"):
            A.label("K1_A0_noat")
    else:
        if var == "B0":
            ft_index(1)
            ffn_tile(1, sT3, 112)
            PQ = 120
            T = list(range(48, 64))
            for a in range(2):
                rs = [vR + a] * 8
                for half in range(2):
                    t1 = phi8(acc(0, a) + 8 * half, rs, None, T)
                    if half == 1:
                        for r in range(4, 8):
                            A(f"v_cndmask_b32_e64 v{t1[r]}, v{t1[r]}, 0, s[{sMaskLo32}:{sMaskLo32+1}]")
                    for r in range(4):
                        A(f"v_cvt_pk_bf16_f32 v{PQ+8*a+4*half+r}, v{t1[2*r]}, v{t1[2*r+1]}")
                A(f"s_add_u32 s{sT2}, s{sT0}, {a}")
                A(f"s_lshl_b32 s{sT2}, s{sT2}, 4")
                A(f"s_add_u32 s{sT2}, s{sT2}, s{sH}")
                A(f"s_lshl_b32 s{sT2}, s{sT2}, 11")
                A(f"s_add_u32 s{sT2}, s{sT2}, {OFF_PQ}")
                A(f"buffer_store_dwordx4 {vr(PQ+8*a,4)}, v{vL16}, s[{SRD_WS}:{SRD_WS+3}], s{sT2} offen{STSC}")
                A(f"buffer_store_dwordx4 {vr(PQ+8*a+4,4)}, v{vL16}, s[{SRD_WS}:{SRD_WS+3}], s{sT2} offen offset:1024{STSC}")
        else:
            for j in range(3):
                ft_index(j)
                ffn_tile(j, sT3, 48 + 8 * j)
    STM(3)
    if var == "A1" and opts.get("kvred", 0):
        A("s_barrier")
    if grp == 1:
        if prio:
            A("s_setprio 0")
        if opts.get("b6", 0):
            A("s_barrier")
    A("s_branch F_bridge")
    if var == "A0":
        A.label("K1_A0_zslow")
        A(f"s_mov_b32 s{sCnt}, 0")
        A.label("K1_A0_zspin")
        A("s_sleep 2")
        if opts.get("ztag", 1):
            A(f"buffer_load_dwordx4 {vr(vZ0,4)}, v{vZo}, s[{SRD_WS}:{SRD_WS+3}], s{sZo} offen sc1")
            A("s_waitcnt vmcnt(0)")
            for l in granule_check(vZ0, 2, sOk):
                A(l)
            A(f"s_and_b32 s{sOk}, s{sOk}, 15")
            A(f"s_cmp_eq_u32 s{sOk}, 15")
        else:
            A(f"buffer_load_dword v{vZ0+2}, v{vZ0}, s[{SRD_DBG}:{SRD_DBG+3}], s{sZo} offen sc1")
            A("s_waitcnt vmcnt(0)")
            A(f"v_readfirstlane_b32 s{sT3}, v{vZ0+2}")
            A(f"s_cmp_eq_u32 s{sT3}, 4")
        A("s_cbranch_scc1 K1_A0_zok")
        A(f"s_add_u32 s{sCnt}, s{sCnt}, 1")
        A(f"s_cmp_lt_u32 s{sCnt}, {SPINMAX}")
        A("s_cbranch_scc1 K1_A0_zspin")
        A("s_branch K1_A0_zok")
    G1, G2 = 96, 100
    Lfb = A.newlabel("K1_fb")
    A.label(Lslow)
    A(f"s_add_u32 s{sCnt}, s{sCnt}, 1")
    A(f"s_cmp_ge_u32 s{sCnt}, {0 if opts.get('forcefb') else NRETRY}")
    A(f"s_cbranch_scc1 {Lfb}")
    A("s_sleep 2")
    for u in gather(1):
        for l in u.split("\n"):
            if not l.startswith("@"):
                A(l)
    A("s_waitcnt vmcnt(0)")
    for l in granule_check(G1, 108, sOk) + granule_check(G2, 110, sOk2):
        A(l)
    A(check_tail())
    A(f"s_cbranch_scc0 {Lslow}")
    A(f"s_branch {Lok}")
    A.label(Lfb)
    if grp == 0:
        fb_rows(A, G1)
    else:
        A(f"s_lshl_b32 s{sT5}, s{sWp}, 6")
        fb_cols(A, typ, G1, sT5)
    A(f"s_lshl_b32 s{sT5}, s{sW}, 6")
    A(f"s_add_u32 s{sT5}, s{sT5}, 256")
    fb_cols(A, typ, G2, sT5)
    A(f"s_branch {Lok}")


LBW = 20480
pL16, pT0, pT1, pW, pWsp, pL4, pOut, pStg = 8, 9, 10, 11, 12, 13, 14, 15
RING = 16
WF = [96, 104]
pX = 112
pIr = 116
pRf = 118
pTmp = 120
WRAW = 128
ACC2 = 192
qLB, qWD, qWO, qH0, qH1, qP0, qP1, qKV, qXo, qST, qRB = 37, 38, 39, 40, 41, 42, 43, 44, 45, 46, 47


def acc2(ci, ri):
    return ACC2 + (ci * 2 + ri) * 16


def final_reduce(A, opts):
    A("v_and_b32 v4, 31, v0")
    A("v_mul_u32_u24 v4, 272, v4")
    A("v_lshrrev_b32 v5, 5, v0")
    A("v_lshl_add_u32 v4, v5, 4, v4")
    A(f"v_add_u32 v4, s{qLB}, v4")
    A(f"s_lshl_b32 s{sT0}, s{sW}, 3")
    A("v_lshrrev_b32 v5, 3, v0")
    A(f"v_add_u32 v5, s{sT0}, v5")
    A("v_mul_u32_u24 v5, 272, v5")
    A("v_and_b32 v6, 7, v0")
    A("v_lshl_add_u32 v5, v6, 5, v5")
    A(f"v_add_u32 v6, {3*LBW}, v5")
    A(f"v_add_u32 v7, {6*LBW}, v5")
    A("s_nop 3")
    for ri in range(2):
        for ci in range(2):
            d = acc2(ci, ri)
            for j in range(4):
                A(f"ds_write_b128 v4, {vr(d+4*j,4)} offset:{ri*32*272 + ci*128 + j*32}")
    X = 96
    for i in range(4):
        A(f"v_lshlrev_b32 v{X+2*i}, 16, v{pX+i}")
        A(f"v_and_b32 v{X+2*i+1}, s{sHi}, v{pX+i}")
    A("s_waitcnt lgkmcnt(0)")
    A("s_barrier")
    R = 16
    for p_ in range(8):
        va = (5, 6, 7)[p_ // 3]
        for i in range(2):
            A(f"ds_read_b128 {vr(R+8*p_+4*i,4)}, v{va} offset:{(p_%3)*LBW + i*16}")
    for p_ in range(0, 8, 2):
        A(f"s_waitcnt lgkmcnt({12 - 2*p_})")
        for r in range(8):
            A(f"v_add_f32 v{R+8*p_+r}, v{R+8*p_+r}, v{R+8*p_+8+r}")
    for r in range(8):
        A(f"v_add_f32 v{R+r}, v{R+r}, v{R+16+r}")
        A(f"v_add_f32 v{R+32+r}, v{R+32+r}, v{R+48+r}")
    for r in range(8):
        A(f"v_add_f32 v{R+r}, v{R+r}, v{R+32+r}")
    for r in range(8):
        A(f"v_fma_f32 v{R+r}, v{R+r}, v{pRf}, v{X+r}")
    for r in range(4):
        A(f"v_cvt_pk_bf16_f32 v{104+r}, v{R+2*r}, v{R+2*r+1}")
    A("s_waitcnt lgkmcnt(0)")
    A(f"buffer_store_dwordx4 v[104:107], v{pOut}, s[{SRD_OUT}:{SRD_OUT+3}], s{qXo} offen" + {0: "", 1: " sc1", 2: " nt", 3: " sc0 sc1", 4: " sc1 nt"}[opts.get("osc", 0)])
    ST.dump(sW, SRD_WS, sT2)
    A("s_endpgm")


def phase2_opre(A, opts, flag, poll_code, POLLW):
    prio = opts.get("prio", 1)
    HD = opts.get("hd", 6)
    IP, IO = opts.get("ip", 9), opts.get("io", 11)
    assert HD + IO > 13 and 5 <= IO <= 13 and IP < IO
    vPA, vPR = pTmp, pTmp + 1
    OFR = WRAW
    WOF = [RING + 32 + 8 * k for k in range(4)]
    issued = []

    def ld(tag, ins):
        A(ins)
        issued.append(tag)

    def wait_for(tag):
        idx = max(i for i, t in enumerate(issued) if t == tag)
        A(f"s_waitcnt vmcnt({min(63, len(issued) - 1 - idx)})")

    def hslot(ks):
        return RING + (ks % 10) * 8

    def h_loads(ks):
        if ks % 4 == 0 and ks > 0:
            A(f"s_add_u32 s{qH0}, s{qH0}, 4096")
            A(f"s_add_u32 s{qH1}, s{qH1}, 4096")
        for ri, so in enumerate((qH0, qH1)):
            ld(("h", ks), f"buffer_load_dwordx4 {vr(hslot(ks)+4*ri,4)}, v{pL16}, s[{SRD_WS}:{SRD_WS+3}], s{so} offen offset:{(ks%4)*1024}")

    def wslot(ks):
        return ks if ks < 6 else (ks - 6) % 6

    def tr_reads(dst, slot):
        o = []
        for ci, va in enumerate((pT0, pT1)):
            o.append(f"ds_read_b64_tr_b16 {vr(dst+4*ci,2)}, v{va} offset:{slot*2048}")
            o.append(f"ds_read_b64_tr_b16 {vr(dst+4*ci+2,2)}, v{va} offset:{slot*2048+1024}")
        return o

    def o_loads():
        for k in range(8):
            ld("o", f"buffer_load_dwordx4 {vr(OFR+4*k,4)}, v{pL16}, s[{SRD_WS}:{SRD_WS+3}], s{qP0 if k < 4 else qP1} offen offset:{(k%4)*1024} sc1")

    def probe():
        ld("p", f"buffer_load_dword v{vPR}, v{vPA}, s[{SRD_WS}:{SRD_WS+3}], s{qP0} offen sc1")

    def probe_check():
        A(f"v_readfirstlane_b32 s{sT0}, v{vPR}")
        A(f"s_lshr_b32 s{sT0}, s{sT0}, 16")
        A(f"s_cmp_eq_u32 s{sT0}, 0x{OMARK:x}")

    def run(mf, fills):
        n = len(mf)
        for i, m in enumerate(mf):
            A(m)
            for u in fills[i * len(fills) // n:(i + 1) * len(fills) // n]:
                if callable(u):
                    u()
                else:
                    A(u)

    def iteration(i):
        A("s_waitcnt lgkmcnt(0)")
        wait_for(("h", i))
        if opts.get("p2it") is not None:
            b_ = opts.get("p2it")
            if i in [b_ + 2 * k for k in range(6)]:
                ST.mark(1 + (i - b_) // 2)
        wf = WF[i & 1]
        hs = hslot(i)
        mf = []
        for ci in range(2):
            for ri in range(2):
                c = "0" if i == 0 else vr(acc2(ci, ri), 16)
                mf.append(f"v_mfma_f32_32x32x16_bf16 {vr(acc2(ci,ri),16)}, {vr(wf+4*ci,4)}, {vr(hs+4*ri,4)}, {c}")
        fills = []
        if i < 13:
            fills += tr_reads(WF[(i + 1) & 1], wslot(i + 1))
        if i <= 7:
            for j in range(2):
                fills.append(f"ds_write_b128 v{pStg}, {vr(WRAW+8*i+4*j,4)} offset:{(i%6)*2048+j*1024}")
        if i == 1:
            fills.append(f"v_mul_f32 v{pRf}, v{pRf}, v{pRf}")
        if i == IP:
            fills.append(probe)
        if i in (10, 11, 12, 13):
            fills += tr_reads(WOF[i - 10], 6 + i - 10)
        run(mf, fills)
        if i + HD < 14:
            h_loads(i + HD)

    A(f"v_mov_b32 v{vPA}, 0x{OOB:x}")
    A(f"v_mov_b32 v1, {7*1024 + 63*16 + 12}")
    A("v_cmp_eq_u32 vcc, 0, v0")
    A(f"v_cndmask_b32 v{vPA}, v{vPA}, v1, vcc")
    for s_ in tr_reads(WF[0], 0):
        A(s_)
    for ks in range(HD):
        h_loads(ks)
        if ks == 0:
            ld("r", f"buffer_load_dword v{pRf}, v7, s[{SRD_WS}:{SRD_WS+3}], s{qST} offen sc1")
    for i in range(IO):
        iteration(i)
    wait_for("p")
    probe_check()
    A("s_cbranch_scc0 F_olate")
    saved = list(issued)
    o_loads()
    for i in range(IO, 14):
        iteration(i)
    STM(6)
    A(f"s_mov_b32 s{sCnt}, 0")
    A("s_waitcnt vmcnt(0)")
    A.label("F_ocheck")
    t = pTmp + 2
    A(f"v_and_b32 v{t}, v{OFR+3}, v{OFR+7}")
    for k in range(2, 8):
        A(f"v_and_b32 v{t}, v{t}, v{OFR+4*k+3}")
    A(f"v_lshrrev_b32 v{t}, 16, v{t}")
    A(f"v_cmp_eq_u32 vcc, 0x{OMARK:x}, v{t}")
    A("s_waitcnt lgkmcnt(0)")
    A("s_nop 0")
    A("s_cmp_eq_u64 vcc, -1")
    A("s_cbranch_scc0 F_oretry")
    A.label("F_ook")
    for hh in range(2):
        for t_ in range(2):
            for ci in range(2):
                for ri in range(2):
                    d = acc2(ci, ri)
                    A(f"v_mfma_f32_32x32x16_bf16 {vr(d,16)}, {vr(WOF[2*hh+t_]+4*ci,4)}, {vr(OFR+4*(hh*4+t_*2+ri),4)}, {vr(d,16)}")
    final_reduce(A, opts)
    A.label("F_olate")
    issued[:] = saved
    for i in range(IO, 14):
        iteration(i)
    STM(6)
    A(f"s_mov_b32 s{sCnt}, 0")
    A.label("F_opoll")
    probe()
    A("s_waitcnt vmcnt(0)")
    probe_check()
    A("s_cbranch_scc1 F_oretry1")
    A(f"s_add_u32 s{sCnt}, s{sCnt}, 1")
    A(f"s_sleep {opts.get('osleep', 2)}")
    A(f"s_cmp_lt_u32 s{sCnt}, {SPINMAX}")
    A("s_cbranch_scc1 F_opoll")
    A("s_branch F_oretry1")
    A.label("F_oretry")
    A(f"s_add_u32 s{sCnt}, s{sCnt}, 1")
    A(f"s_cmp_ge_u32 s{sCnt}, {SPINMAX}")
    A("s_cbranch_scc1 F_ook")
    A("s_sleep 2")
    A.label("F_oretry1")
    o_loads()
    A("s_waitcnt vmcnt(0)")
    A("s_branch F_ocheck")

    A.label("F_spare")
    if opts.get("rbmap", 1) and not opts.get("xmap", 0):
        A(f"s_and_b32 s{sT4}, s{sT0}, 1")
        A(f"s_lshl_b32 s{sT4}, s{sT4}, 2")
        A(f"s_lshr_b32 s{sT0}, s{sT0}, 1")
        A(f"s_add_u32 s{sT0}, s{sT0}, s{sT4}")
    A(f"s_mov_b32 s{qRB}, s{sT0}")
    A(f"s_lshl_b32 s{sT4}, s{sT0}, 2")
    A(f"s_add_u32 s{sT4}, s{sT4}, s{sT1}")
    A(f"v_lshlrev_b32 v{pL16}, 4, v0")
    A("v_and_b32 v6, 31, v0")
    A("v_mov_b32 v7, v6")
    for th in (11, 15, 27):
        A(f"v_cmp_lt_u32 vcc, {th}, v6")
        A("v_cndmask_b32 v9, 0, 1, vcc")
        A("v_sub_u32 v7, v7, v9")
    A("v_cmp_le_u32 vcc, 24, v7")
    A("v_cndmask_b32 v9, 0, 4, vcc")
    A("v_add_u32 v7, v7, v9")
    A("v_and_b32 v9, 11, v6")
    A("v_cmp_eq_u32 vcc, 11, v9")
    A("v_mov_b32 v9, 24")
    A("v_cndmask_b32 v7, v7, v9, vcc")
    A("v_and_b32 v9, 32, v0")
    A("v_add_u32 v7, v7, v9")
    A("v_lshlrev_b32 v7, 4, v7")
    A("v_lshlrev_b32 v6, 4, v6")
    A(f"s_lshl_b32 s{sT0}, s{sW}, 12")
    A(f"s_lshl_b32 s{qP0}, s{sT4}, 16")
    A(f"s_lshl_b32 s{qH0}, s{sW}, 13")
    A(f"s_add_u32 s{qH0}, s{qH0}, s{qP0}")
    A(f"s_add_u32 s{qH0}, s{qH0}, {OFF_O}")
    A(f"s_add_u32 s{qH1}, s{qH0}, 4096")
    A(f"s_add_u32 s{qP0}, s{qP0}, s{sT0}")
    A(f"s_add_u32 s{qP0}, s{qP0}, {OFF_PQ}")
    A(f"s_add_u32 s{qP1}, s{qP0}, 32768")
    A(f"s_lshl_b32 s{qKV}, s{sW}, 13")
    A(f"s_add_u32 s{qKV}, s{qKV}, {OFF_KVS}")
    A(f"s_add_u32 s{qWD}, s{qKV}, 4096")
    A(f"s_lshl_b32 s{qST}, s{sT4}, 10")
    A(f"s_add_u32 s{qST}, s{qST}, {OFF_ST + 4}")
    A(f"s_mov_b32 s{sT5}, 0x{EPS6:x}")
    fpre = opts.get("fpre", 0)
    if fpre:
        flag(1)
    A("s_waitcnt vmcnt(0) lgkmcnt(0)")
    A("s_barrier")
    STM(4)
    KVR = [16, 32]
    PQR = [48, 64]
    DB = [128, 160]
    def kv_loads(hh):
        for q in range(4):
            ld(("kv", hh), f"buffer_load_dwordx4 {vr(KVR[hh]+4*q,4)}, v7, s[{SRD_WS}:{SRD_WS+3}], s{qKV if hh == 0 else qWD} offen offset:{q*1024}")

    def pq_loads(hh):
        for t_ in range(2):
            for ri, so in enumerate((qP0, qP1)):
                ld(("pq", hh), f"buffer_load_dwordx4 {vr(PQR[hh]+8*t_+4*ri,4)}, v{pL16}, s[{SRD_WS}:{SRD_WS+3}], s{so} offen offset:{(hh*2+t_)*1024}")

    def r_loads():
        ld("r", f"buffer_load_dword v{pIr}, v6, s[{SRD_WS}:{SRD_WS+3}], s{qST} offen sc1")
        ld("r", f"buffer_load_dword v{pIr+1}, v6, s[{SRD_WS}:{SRD_WS+3}], s{qST} offen offset:512 sc1")
    sp2 = opts.get("sp2", 1)
    A(f"s_cmp_lg_u32 s{sW}, {POLLW}")
    A("s_cbranch_scc1 S_wait")
    if fpre:
        flag(2)
    if prio:
        A("s_setprio 3")
    if not fpre:
        flag()
    issued[:] = []
    if sp2:
        sp3 = opts.get("sp3", 1)

        def stage1():
            A("s_barrier")
            if not sp3:
                pq_loads(0)
                pq_loads(1)
                r_loads()
        poll_code("S", "S_wait3", stage1)
        A.label("S_wait3")
        if sp3:
            A("s_barrier")
            STM(5)
            for hh in range(2):
                for q in range(4):
                    A(f"buffer_load_dwordx4 {vr(KVR[hh]+4*q,4)}, v7, s[{SRD_WS}:{SRD_WS+3}], s{qKV if hh == 0 else qWD} offen offset:{q*1024}")
            for hh in range(2):
                for t_ in range(2):
                    for ri, so in enumerate((qP0, qP1)):
                        A(f"buffer_load_dwordx4 {vr(PQR[hh]+8*t_+4*ri,4)}, v{pL16}, s[{SRD_WS}:{SRD_WS+3}], s{so} offen offset:{(hh*2+t_)*1024}")
            A(f"buffer_load_dword v{pIr}, v6, s[{SRD_WS}:{SRD_WS+3}], s{qST} offen sc1")
            A(f"buffer_load_dword v{pIr+1}, v6, s[{SRD_WS}:{SRD_WS+3}], s{qST} offen offset:512 sc1")
            A("s_waitcnt vmcnt(0)")
            A("s_branch S_go")
        else:
            A("s_branch S_wait2")
        A.label("S_wait")
        A("s_barrier")
        if not sp3:
            issued[:] = []
        pq_loads(0)
        pq_loads(1)
        if not sp3:
            r_loads()
        A.label("S_wait2")
        A("s_barrier")
        STM(5)
        kv_loads(0)
        kv_loads(1)
        if sp3:
            r_loads()
        A.label("S_go")
    else:
        poll_code("S", "S_wait")
        A.label("S_wait")
        A("s_barrier")
        STM(5)
        kv_loads(0)
        pq_loads(0)
        kv_loads(1)
        pq_loads(1)
        r_loads()
    for hh in range(2):
        wait_for(("kv", hh))
        for r in range(8):
            A(f"v_cvt_pk_bf16_f32 v{KVR[hh]+r}, v{KVR[hh]+2*r}, v{KVR[hh]+2*r+1}")
        wait_for(("pq", hh))
        A("s_nop 0")
        for ri in range(2):
            for t_ in range(2):
                c = "0" if t_ == 0 else vr(DB[hh] + 16 * ri, 16)
                A(f"v_mfma_f32_32x32x16_bf16 {vr(DB[hh]+16*ri,16)}, {vr(KVR[hh]+4*t_,4)}, {vr(PQR[hh]+8*t_+4*ri,4)}, {c}")
    wait_for("r")
    for ri in range(2):
        A(f"v_mul_f32 v{pIr+ri}, v{pIr+ri}, v{pIr+ri}")
    for ri in range(2):
        A(f"v_rcp_f32 v{pIr+ri}, v{pIr+ri}")
    A("s_nop 3")
    for hh in range(2):
        if hh == 1:
            A("s_nop 3")
        D_ = DB[hh]
        for ri in range(2):
            A(f"v_mov_b32 v{pTmp+2*ri}, v{D_+16*ri+7}")
            A(f"v_mov_b32 v{pTmp+2*ri+1}, v{D_+16*ri+7}")
        A("s_nop 1")
        for ri in range(2):
            A(f"v_permlane32_swap_b32 v{pTmp+2*ri}, v{pTmp+2*ri+1}")
        A("s_nop 0")
        for ri in range(2):
            A(f"v_add_f32 v{pTmp+2*ri}, s{sT5}, v{pTmp+2*ri}")
        for ri in range(2):
            A(f"v_rcp_f32 v{pTmp+2*ri}, v{pTmp+2*ri}")
        A("s_nop 0")
        for ri in range(2):
            A(f"v_mul_f32 v{pTmp+2*ri}, v{pTmp+2*ri}, v{pIr+ri}")
        for ri in range(2):
            d = D_ + 16 * ri
            t0 = pTmp + 2 * ri
            for r in range(8):
                A(f"v_mul_f32 v{d+2*r}, v{d+2*r}, v{t0}")
                if r % 4 == 3:
                    A(f"v_cvt_pk_bf16_f32 v{d+r}, v{d+2*r}, 1.0")
                else:
                    A(f"v_mul_f32 v{d+2*r+1}, v{d+2*r+1}, v{t0}")
                    A(f"v_cvt_pk_bf16_f32 v{d+r}, v{d+2*r}, v{d+2*r+1}")
        for t_ in range(2):
            for ri in range(2):
                A(f"buffer_store_dwordx4 {vr(D_+16*ri+4*t_,4)}, v{pL16}, s[{SRD_WS}:{SRD_WS+3}], s{qH0 if hh == 0 else qH1} offen offset:{(t_*2+ri)*1024} sc1")
    STM(6)
    ST.dump(sW, SRD_WS, sT2)
    A("s_endpgm")


def phase2(A, opts):
    prio = opts.get("prio", 1)
    A.label("F_bridge")
    A(f"s_load_dwordx2 s[{SRD_OUT}:{SRD_OUT+1}], s[0:1], 56")
    A(f"s_and_b32 s{sT0}, s2, 7")
    A(f"s_lshr_b32 s{sT1}, s2, 3")
    A(f"s_cmp_lt_u32 s{sT1}, 4")
    A("s_cbranch_scc1 F_spare")
    A(f"s_sub_u32 s{sT1}, s{sT1}, 4")
    A(f"s_mul_i32 s{sT2}, s{sT1}, 37")
    A(f"s_lshr_b32 s{sT2}, s{sT2}, 8")
    A(f"s_mul_i32 s{sT3}, s{sT2}, 7")
    A(f"s_sub_u32 s{sT3}, s{sT1}, s{sT3}")
    if opts.get("half"):
        A(f"s_cmp_ge_u32 s{sT3}, {opts.get('half')}")
        A("s_cbranch_scc1 F_spare")
    if opts.get("rbmap", 1) and not opts.get("xmap", 0):
        A(f"s_and_b32 s{sT4}, s{sT0}, 1")
        A(f"s_lshl_b32 s{sT4}, s{sT4}, 2")
        A(f"s_lshr_b32 s{sT0}, s{sT0}, 1")
        A(f"s_add_u32 s{sT0}, s{sT0}, s{sT4}")
    A(f"s_mov_b32 s{qRB}, s{sT0}")
    A(f"s_lshl_b32 s{sT4}, s{sT0}, 2")
    A(f"s_add_u32 s{sT4}, s{sT4}, s{sT2}")
    A(f"s_lshl_b32 s{sT3}, s{sT3}, 7")
    A(f"s_mul_i32 s{qLB}, s{sW}, {LBW}")
    A(f"s_mul_i32 s{qWD}, s{sW}, {224*896}")
    A(f"s_add_u32 s{qWD}, s{qWD}, s{sT3}")
    A(f"s_mul_i32 s{qWO}, s{sW}, {56*896}")
    A(f"s_add_u32 s{qWO}, s{qWO}, s{sT3}")
    if opts.get("wearly"):
        assert opts.get("wpos", 1) == 2
    A("v_lshrrev_b32 v1, 3, v0")
    A("v_lshrrev_b32 v2, 4, v0")
    A("v_and_b32 v2, 1, v2")
    A("v_lshlrev_b32 v2, 2, v2")
    A("v_and_b32 v3, 7, v0")
    A("v_xor_b32 v3, v3, v2")
    A("v_lshlrev_b32 v3, 4, v3")
    A(f"v_mul_u32_u24 v{pW}, 896, v1")
    A(f"v_add_u32 v{pW}, v{pW}, v3")
    A(f"v_lshlrev_b32 v{pL16}, 4, v0")
    opre = opts.get("opre", 0)
    if opre:
        A("v_and_b32 v2, 3, v1")
        A(f"v_subrev_u32 v{pWsp}, 896, v{pW}")
        A("v_cmp_gt_u32 vcc, 32, v0")
        A(f"v_cndmask_b32 v{pWsp}, v{pWsp}, v{pW}, vcc")
        A(f"v_mov_b32 v3, 0x{OOB:x}")
        A("v_cmp_eq_u32 vcc, 3, v2")
        A(f"v_cndmask_b32 v{pWsp}, v{pWsp}, v3, vcc")
    else:
        A(f"v_subrev_u32 v{pWsp}, {4*896}, v{pW}")
        A(f"v_mov_b32 v1, 0x{OOB:x}")
        A("v_cmp_gt_u32 vcc, 32, v0")
        A(f"v_cndmask_b32 v{pWsp}, v{pWsp}, v1, vcc")

    def w_loads(lo=0, hi=36):
        units = []
        for i in range(12):
            units.append([f"s_add_u32 m0, s{qLB}, {i*1024}",
                          f"s_add_u32 s{sT1}, s{qWD}, {i*7168}",
                          f"buffer_load_dwordx4 v{pW}, s[{SRD_WD}:{SRD_WD+3}], s{sT1} offen lds"])
        for hh in range(2):
            for j in range(4):
                if opre:
                    rows, sp = hh * 28 + (0, 8, 14, 22)[j], j in (1, 3)
                else:
                    rows, sp = hh * 28 + 8 * j, j == 3
                units.append([f"s_add_u32 m0, s{qLB}, {(12 + hh*4 + j)*1024}",
                              f"s_add_u32 s{sT1}, s{qWO}, {rows*896}",
                              f"buffer_load_dwordx4 v{pWsp if sp else pW}, s[{SRD_WO}:{SRD_WO+3}], s{sT1} offen lds"])
        for i in range(16):
            units.append([f"s_add_u32 s{sT1}, s{qWD}, {(12+i)*7168}",
                          f"buffer_load_dwordx4 {vr(WRAW+4*i,4)}, v{pW}, s[{SRD_WD}:{SRD_WD+3}], s{sT1} offen"])
        skip = None
        wen = opts.get("wen", 20)
        if opts.get("wearly") and lo == 0:
            skip = A.newlabel("F_wraw")
            A(f"s_cmp_ge_u32 s{sW}, 4")
            A(f"s_cbranch_scc1 {skip}")
        for i, u in enumerate(units[lo:hi]):
            if skip and lo + i == wen:
                A.label(skip)
            for l in u:
                A(l)
        return len(units[lo:hi])
    wpos = opts.get("wpos", 1)
    nld = 0
    if wpos == 1:
        if not opts.get("b6", 0):
            A("s_barrier")
        nld = w_loads()
    A(f"s_lshl_b32 s{sT5}, s{sW}, 3")
    A("v_lshrrev_b32 v1, 3, v0")
    A(f"v_add_u32 v1, s{sT5}, v1")
    A("v_and_b32 v2, 7, v0")
    A(f"v_mul_u32_u24 v{pOut}, 896, v1")
    A(f"v_lshl_add_u32 v{pOut}, v2, 4, v{pOut}")
    A(f"s_mul_i32 s{qXo}, s{sT4}, {64*896}")
    A(f"s_add_u32 s{qXo}, s{qXo}, s{sT3}")
    A(f"buffer_load_dwordx4 {vr(pX,4)}, v{pOut}, s[{SRD_X}:{SRD_X+3}], s{qXo} offen")
    nld += 1
    A("v_lshlrev_b32 v7, 4, v1")
    A("v_and_b32 v6, 31, v0")
    A("v_lshlrev_b32 v6, 4, v6")
    A(f"v_lshlrev_b32 v{pL4}, 2, v0")
    A(f"v_add_u32 v{pStg}, s{qLB}, v{pL16}")
    A("v_lshrrev_b32 v1, 2, v0")
    A("v_and_b32 v1, 3, v1")
    A("v_and_b32 v2, 3, v0")
    A("v_lshrrev_b32 v3, 5, v0")
    A("v_lshrrev_b32 v4, 4, v0")
    A("v_and_b32 v4, 1, v4")
    A("v_lshl_add_u32 v5, v3, 2, v1")
    A("v_lshrrev_b32 v1, 1, v1")
    A("v_lshrrev_b32 v3, 1, v2")
    A("v_lshl_add_u32 v3, v4, 1, v3")
    A("v_lshlrev_b32 v1, 2, v1")
    A("v_xor_b32 v3, v3, v1")
    A("v_lshlrev_b32 v3, 4, v3")
    A("v_and_b32 v2, 1, v2")
    A("v_lshl_add_u32 v3, v2, 3, v3")
    A("v_lshl_add_u32 v3, v5, 7, v3")
    A(f"v_add_u32 v{pT0}, s{qLB}, v3")
    A(f"v_xor_b32 v{pT1}, 64, v{pT0}")
    A(f"s_mul_i32 s{qH0}, s{sT4}, {2*112*1024}")
    A(f"s_mul_i32 s{sT0}, s{sW}, {14*1024}")
    A(f"s_add_u32 s{qH0}, s{qH0}, s{sT0}")
    if OFF_H:
        A(f"s_add_u32 s{qH0}, s{qH0}, {OFF_H}")
    A(f"s_add_u32 s{qH1}, s{qH0}, {112*1024}")
    A(f"s_lshl_b32 s{sT0}, s{sW}, 12")
    A(f"s_lshl_b32 s{qP0}, s{sT4}, 16")
    A(f"s_add_u32 s{qP0}, s{qP0}, s{sT0}")
    A(f"s_add_u32 s{qP0}, s{qP0}, {OFF_PQ}")
    A(f"s_add_u32 s{qP1}, s{qP0}, 32768")
    A(f"s_lshl_b32 s{qKV}, s{sW}, 13")
    A(f"s_add_u32 s{qKV}, s{qKV}, {OFF_KVS}")
    if opre:
        A(f"s_lshl_b32 s{qP0}, s{sT4}, 16")
        A(f"s_lshl_b32 s{sT0}, s{sW}, 13")
        A(f"s_add_u32 s{qP0}, s{qP0}, s{sT0}")
        A(f"s_add_u32 s{qP0}, s{qP0}, {OFF_O}")
        A(f"s_add_u32 s{qP1}, s{qP0}, 4096")
    A(f"s_lshl_b32 s{qST}, s{sT4}, 10")
    A(f"s_add_u32 s{qST}, s{qST}, {OFF_ST + 4}")
    if opts.get("htouch"):
        A(f"s_mul_i32 s{sT0}, s{sT4}, {2*112*1024}")
        A(f"s_lshl_b32 s{sT1}, s{sT3}, 8")
        A(f"s_add_u32 s{sT0}, s{sT0}, s{sT1}")
        A(f"s_lshl_b32 s{sT1}, s{sW}, 12")
        A(f"s_add_u32 s{sT0}, s{sT0}, s{sT1}")
        if OFF_H:
            A(f"s_add_u32 s{sT0}, s{sT0}, {OFF_H}")
        A("v_lshlrev_b32 v1, 7, v0")
        A(f"v_add_u32 v1, s{sT0}, v1")
        A(f"v_mov_b32 v{pL4}, 0x{OOB:x}")
        A("v_cmp_gt_u32 vcc, 32, v0")
        A(f"v_cndmask_b32 v{pL4}, v{pL4}, v1, vcc")
    A(f"s_mov_b32 s{SRD_OUT+2}, {X_BYTES}")
    A(f"s_mov_b32 s{SRD_OUT+3}, 0x20000")
    A(f"s_mov_b32 s{sT5}, 0x{EPS6:x}")
    fmode = opts.get("fmode", 0)

    def flag(part=3):
        if part != 3:
            assert fmode >= 2
            FG = 124
            if part == 1:
                A(f"v_mov_b32 v123, 0x{OOB:x}")
                A("v_cmp_eq_u32 vcc, 0, v0")
                A(f"s_lshl_b32 s{sT0}, s{sRB}, 5")
                A(f"s_add_u32 s{sT0}, s{sT0}, s{sCB}")
                A(f"s_lshl_b32 s{sT0}, s{sT0}, 4")
                A(f"s_add_u32 s{sT0}, s{sT0}, {OFF_FL}")
                A(f"v_mov_b32 v{FG}, s{sT0}")
                A(f"v_cndmask_b32 v123, v123, v{FG}, vcc")
                A(f"v_mov_b32 v{FG}, 1")
                A(f"v_mov_b32 v{FG+1}, 2")
                for l in granule_finish(FG):
                    A(l)
            else:
                A(f"buffer_store_dwordx4 {vr(FG,4)}, v123, s[{SRD_WS}:{SRD_WS+3}], 0 offen sc1")
            return
        A(f"v_mov_b32 v1, 0x{OOB:x}")
        A("v_cmp_eq_u32 vcc, 0, v0")
        if fmode == 0:
            A(f"s_lshl_b32 s{sT0}, s{sRB}, 2")
            A(f"v_mov_b32 v2, s{sT0}")
            A("v_cndmask_b32 v1, v1, v2, vcc")
            A(f"s_lshl_b32 s{sT0}, 1, s{sCB}")
            A(f"v_mov_b32 v2, s{sT0}")
            A(f"buffer_atomic_or v2, v1, s[{SRD_DBG}:{SRD_DBG+3}], 0 offen sc1")
        elif fmode == 1:
            A(f"s_lshl_b32 s{sT0}, s{sRB}, 5")
            A(f"s_add_u32 s{sT0}, s{sT0}, s{sCB}")
            A(f"v_mov_b32 v2, s{sT0}")
            A("v_cndmask_b32 v1, v1, v2, vcc")
            A("v_mov_b32 v2, 1")
            A(f"buffer_store_byte v2, v1, s[{SRD_DBG}:{SRD_DBG+3}], 0 offen sc1")
        else:
            A(f"s_lshl_b32 s{sT0}, s{sRB}, 5")
            A(f"s_add_u32 s{sT0}, s{sT0}, s{sCB}")
            A(f"s_lshl_b32 s{sT0}, s{sT0}, 4")
            A(f"s_add_u32 s{sT0}, s{sT0}, {OFF_FL}")
            A(f"v_mov_b32 v2, s{sT0}")
            A("v_cndmask_b32 v1, v1, v2, vcc")
            A("v_mov_b32 v2, 1")
            A("v_mov_b32 v3, 2")
            for l in granule_finish(2):
                A(l)
            A(f"buffer_store_dwordx4 v[2:5], v1, s[{SRD_WS}:{SRD_WS+3}], 0 offen sc1")
    POLLW = opts.get("pollw", 4)
    fpre = opts.get("fpre", 0)
    if fpre:
        flag(1)
        if prio:
            A(f"s_cmp_lg_u32 s{sW}, {POLLW}")
            A("s_cbranch_scc1 F_nfp")
            A("s_setprio 3")
            A.label("F_nfp")
    assert nld <= 63
    if wpos == 3:
        A(f"s_cmp_ge_u32 s{sW}, 4")
        A("s_cbranch_scc0 F_g0ack")
        WPRE = opts.get("wpre", 36)
        n1 = w_loads(0, WPRE)
        A(f"s_waitcnt vmcnt({nld + n1})")
        A("s_branch F_b7")
        A.label("F_g0ack")
        A(f"s_waitcnt vmcnt({nld})")
        A.label("F_b7")
    else:
        A(f"s_waitcnt vmcnt({nld})")
    A("s_barrier")
    STM(4)
    A(f"s_cmp_lg_u32 s{sW}, {POLLW}")
    A("s_cbranch_scc1 F_wait")

    if fpre:
        flag(2)
    else:
        if prio:
            A("s_setprio 3")
        flag()
    if wpos == 2 or (wpos == 3 and POLLW < 4):
        w_loads()
    elif wpos == 3:
        w_loads(WPRE, 36)
    DONE = "F_wait2" if wpos in (2, 3) else "F_wait"

    def poll_code(PX, DONE, stage1=None):
        psl = opts.get("psleep") if PX == "F" else opts.get("spsleep", opts.get("psleep"))
        if PX == "S" and opts.get("spinit"):
            A(f"s_sleep {opts.get('spinit')}")
        if fmode == 0:
            A(f"v_mov_b32 v1, 0x{OOB:x}")
            A("v_cmp_gt_u32 vcc, 8, v0")
            A(f"v_cndmask_b32 v1, v1, v{pL4}, vcc")
        A(f"s_mov_b32 s{sCnt}, 0")
        A.label(f"{PX}_poll")
        if fmode == 0:
            A(f"buffer_load_dword v2, v1, s[{SRD_DBG}:{SRD_DBG+3}], 0 offen sc1")
            A("s_waitcnt vmcnt(0)")
            A("v_cmp_eq_u32 vcc, -1, v2")
            A("s_nop 1")
            A(f"s_and_b32 s{sT0}, vcc_lo, 0xff")
            A(f"s_cmp_eq_u32 s{sT0}, 0xff")
        elif fmode == 1:
            A(f"buffer_load_dword v2, v{pL4}, s[{SRD_DBG}:{SRD_DBG+3}], 0 offen sc1")
            A("s_waitcnt vmcnt(0)")
            A("v_and_b32 v2, 0x01010101, v2")
            A("v_cmp_eq_u32 vcc, 0x01010101, v2")
            A("s_nop 1")
            A("s_cmp_eq_u64 vcc, -1")
        else:
            if fmode == 3:
                A(f"s_lshl_b32 s{sT0}, s{qRB}, 9")
                A(f"s_add_u32 s{sT0}, s{sT0}, {OFF_FL}")
                A(f"v_mov_b32 v1, 0x{OOB:x}")
                A("v_cmp_gt_u32 vcc, 32, v0")
                A(f"v_cndmask_b32 v1, v1, v{pL16}, vcc")
                A.label(f"{PX}_poll0")
                A(f"buffer_load_dwordx4 {vr(96,4)}, v1, s[{SRD_WS}:{SRD_WS+3}], s{sT0} offen sc1")
                A("s_waitcnt vmcnt(0)")
                for l in granule_check(96, 2, sOk):
                    A(l)
                only1 = PX == "F" and opts.get("c1only")
                if only1:
                    assert opts.get("opre") and not opts.get("ozall")
                if PX == "S" and opts.get("sp3", 1):
                    A(f"s_lshr_b32 s{sOk}, s{sOk}, 16")
                    A(f"s_cmp_eq_u32 s{sOk}, 0xffff")
                else:
                    A(f"s_cmp_eq_u32 s{sOk}, -1")
                if only1 and opts.get("pokst"):
                    A("s_cbranch_scc0 F_pnok")
                    ST.mark(3)
                    A(f"s_mov_b32 s{ST.base+4}, s{sCnt}")
                    A(f"s_branch {DONE}")
                    A.label("F_pnok")
                else:
                    A(f"s_cbranch_scc1 {DONE if only1 else PX + '_poll1'}")
                A(f"s_add_u32 s{sCnt}, s{sCnt}, 1")
                if psl:
                    A(f"s_sleep {psl}")
                A(f"s_cmp_lt_u32 s{sCnt}, {SPINMAX}")
                A(f"s_cbranch_scc1 {PX}_poll0")
                if only1:
                    return
                A.label(f"{PX}_poll1")
                if stage1:
                    stage1()
                    A.label(f"{PX}_poll2")
            A(f"s_mov_b32 s{sT0}, {OFF_FL}")
            for j in range(4):
                A(f"buffer_load_dwordx4 {vr(96+4*j,4)}, v{pL16}, s[{SRD_WS}:{SRD_WS+3}], s{sT0} offen offset:{j*1024} sc1")
            A(f"s_mov_b64 s[{sOk2}:{sOk2+1}], -1")
            for j in range(4):
                A(f"s_waitcnt vmcnt({3-j})")
                for l in granule_check(96 + 4 * j, 2, sOk):
                    A(l)
                A(f"s_and_b64 s[{sOk2}:{sOk2+1}], s[{sOk2}:{sOk2+1}], s[{sOk}:{sOk+1}]")
            A(f"s_cmp_eq_u64 s[{sOk2}:{sOk2+1}], -1")
        A(f"s_cbranch_scc1 {DONE}")
        A(f"s_add_u32 s{sCnt}, s{sCnt}, 1")
        if psl:
            A(f"s_sleep {psl}")
        A(f"s_cmp_lt_u32 s{sCnt}, {SPINMAX}")
        A(f"s_cbranch_scc1 {PX}_poll{'2' if stage1 else '1'}" if fmode == 3 else f"s_cbranch_scc1 {PX}_poll")
    poll_code("F", DONE)
    if wpos in (2, 3):
        A("s_branch F_wait2")
    A.label("F_wait")
    if wpos == 3:
        A(f"s_cmp_ge_u32 s{sW}, 4")
        A("s_cbranch_scc0 F_wg0")
        w_loads(WPRE, 36)
        A("s_branch F_wait2")
        A.label("F_wg0")
    if wpos in (2, 3):
        w_loads()
        A.label("F_wait2")
    if opts.get("b8w", 1):
        A("s_waitcnt vmcnt(0) lgkmcnt(0)")
    if prio:
        A("s_setprio 0")
    A("s_barrier")
    STM(5)
    if opts.get("p2it") is not None:
        ST.mark(0)
    if wpos == 0:
        w_loads()
        A("s_waitcnt vmcnt(0)")

    if opts.get("htouch"):
        assert opts.get("kvred") and fmode >= 2
        A(f"buffer_load_dword v{pStg}x, v{pL4}, s[{SRD_WS}:{SRD_WS+3}], 0 offen".replace(f"v{pStg}x", "v3"))
    if opre:
        phase2_opre(A, opts, flag, poll_code, POLLW)
        return
    issued = []

    def ld(tag, ins):
        A(ins)
        issued.append(tag)

    def wait_for(tag):
        if tag not in issued:
            return
        idx = max(i for i, t in enumerate(issued) if t == tag)
        A(f"s_waitcnt vmcnt({min(63, len(issued) - 1 - idx)})")

    def hslot(ks):
        return RING + (ks % 10) * 8

    def h_loads(ks):
        if ks % 4 == 0 and ks > 0:
            A(f"s_add_u32 s{qH0}, s{qH0}, 4096")
            A(f"s_add_u32 s{qH1}, s{qH1}, 4096")
        for ri, so in enumerate((qH0, qH1)):
            ld(("h", ks), f"buffer_load_dwordx4 {vr(hslot(ks)+4*ri,4)}, v{pL16}, s[{SRD_WS}:{SRD_WS+3}], s{so} offen offset:{(ks%4)*1024}")

    def wslot(ks):
        return ks if ks < 6 else (ks - 6) % 6

    def tr_reads(dst, slot):
        o = []
        for ci, va in enumerate((pT0, pT1)):
            o.append(f"ds_read_b64_tr_b16 {vr(dst+4*ci,2)}, v{va} offset:{slot*2048}")
            o.append(f"ds_read_b64_tr_b16 {vr(dst+4*ci+2,2)}, v{va} offset:{slot*2048+1024}")
        return o

    if opts.get("prio2"):
        A(f"s_cmp_ge_u32 s{sW}, 4")
        A(f"s_cselect_b32 s{sT0}, 1, 0")
        A("s_setprio 1")
        A("s_cbranch_scc0 F_pr2")
        A(f"s_setprio {opts.get('prio2')}")
        A.label("F_pr2")
    for s_ in tr_reads(WF[0], 0):
        A(s_)
    HD = opts.get("hd", 10)
    for ks in range(HD):
        h_loads(ks)
        if ks == 0:
            ld("r", f"buffer_load_dword v{pIr}, v6, s[{SRD_WS}:{SRD_WS+3}], s{qST} offen sc1")
            ld("r", f"buffer_load_dword v{pIr+1}, v6, s[{SRD_WS}:{SRD_WS+3}], s{qST} offen offset:512 sc1")
            ld("r", f"buffer_load_dword v{pRf}, v7, s[{SRD_WS}:{SRD_WS+3}], s{qST} offen sc1")
    KVR = [WRAW, WRAW + 16]
    PQR = [WRAW + 32, WRAW + 48]
    DB = [RING + 32, RING]
    OP = [RING + 64, WRAW + 32]
    WOF = [None, WRAW]

    def extra_loads(i):
        o = []
        if 1 <= i <= 4:
            hh, half = (i - 1) >> 1, (i - 1) & 1
            if i == 3:
                o.append((None, f"s_add_u32 s{qKV}, s{qKV}, 4096"))
            if opts.get("kvx4") or opts.get("kvred"):
                for q in range(2 * half, 2 * half + 2):
                    o.append((("kv", hh), f"buffer_load_dwordx4 {vr(KVR[hh]+4*q,4)}, v{pL16}, s[{SRD_WS}:{SRD_WS+3}], s{qKV} offen offset:{q*1024}"))
            else:
                for r in range(8 * half, 8 * half + 8):
                    o.append((("kv", hh), f"buffer_load_dword v{KVR[hh]+r}, v{pL4}, s[{SRD_WS}:{SRD_WS+3}], s{qKV} offen offset:{r*256}"))
        if 5 <= i <= 8:
            hh, t = (i - 5) >> 1, (i - 5) & 1
            for ri, so in enumerate((qP0, qP1)):
                o.append((("pq", hh), f"buffer_load_dwordx4 {vr(PQR[hh]+8*t+4*ri,4)}, v{pL16}, s[{SRD_WS}:{SRD_WS+3}], s{so} offen offset:{(hh*2+t)*1024}"))
        return o

    def att_kv(hh):
        o = []
        for ri in range(2):
            for t in range(2):
                c = "0" if t == 0 else vr(DB[hh] + 16 * ri, 16)
                o.append(f"v_mfma_f32_32x32x16_bf16 {vr(DB[hh]+16*ri,16)}, {vr(KVR[hh]+4*t,4)}, {vr(PQR[hh]+8*t+4*ri,4)}, {c}")
        return o

    def att_norm(hh):
        o = []
        D_ = DB[hh]
        for ri in range(2):
            t0, t1 = pTmp + 2 * ri, pTmp + 2 * ri + 1
            o.append(f"v_mov_b32 v{t0}, v{D_+16*ri+12}\nv_mov_b32 v{t1}, v{D_+16*ri+12}")
        o.append("s_nop 0\n" + "\n".join(f"v_permlane32_swap_b32 v{pTmp+2*ri}, v{pTmp+2*ri+1}" for ri in range(2)))
        o.append("s_nop 0\n" + "\n".join(f"v_add_f32 v{pTmp+2*ri}, s{sT5}, v{pTmp+2*ri}" for ri in range(2)))
        o.append("\n".join(f"v_rcp_f32 v{pTmp+2*ri}, v{pTmp+2*ri}" for ri in range(2)))
        o.append("s_nop 0\n" + "\n".join(f"v_mul_f32 v{pTmp+2*ri}, v{pTmp+2*ri}, v{pIr+ri}" for ri in range(2)))
        for ri in range(2):
            d = D_ + 16 * ri
            t0 = pTmp + 2 * ri
            for r in range(8):
                o.append(f"v_mul_f32 v{d+2*r}, v{d+2*r}, v{t0}\nv_mul_f32 v{d+2*r+1}, v{d+2*r+1}, v{t0}\n"
                         f"v_cvt_pk_bf16_f32 v{OP[hh]+8*ri+r}, v{d+2*r}, v{d+2*r+1}")
        return o

    def att_wo(hh, wf):
        o = []
        for t in range(2):
            for ci in range(2):
                for ri in range(2):
                    d = acc2(ci, ri)
                    o.append(f"v_mfma_f32_32x32x16_bf16 {vr(d,16)}, {vr(wf[t]+4*ci,4)}, {vr(OP[hh]+8*ri+4*t,4)}, {vr(d,16)}")
        return o

    def run(mf, fills):
        n = len(mf)
        for i, m in enumerate(mf):
            A(m)
            for u in fills[i * len(fills) // n:(i + 1) * len(fills) // n]:
                if isinstance(u, tuple):
                    if u[0] is None:
                        A(u[1])
                    else:
                        ld(u[0], u[1])
                else:
                    A(u)

    def kv_cvt(hh):
        return [f"v_cvt_pk_bf16_f32 v{KVR[hh]+r}, v{KVR[hh]+2*r}, v{KVR[hh]+2*r+1}" for r in range(8)]

    for i in range(14):
        if opts.get("prio2") and i == opts.get("prsw", 7):
            A(f"s_cmp_ge_u32 s{sW}, 4")
            A("s_cbranch_scc0 F_pr3")
            A(f"s_setprio {opts.get('prio3', 0)}")
            A.label("F_pr3")
        A("s_waitcnt lgkmcnt(0)")
        wait_for(("h", i))
        if opts.get("p2it") is not None:
            b_ = opts.get("p2it")
            if b_ == 0 and i == 0:
                pass
            if i in [b_ + 2 * k for k in range(6)]:
                ST.mark(1 + (i - b_) // 2)
        wf = WF[i & 1]
        hs = hslot(i)
        mf = []
        for ci in range(2):
            for ri in range(2):
                c = "0" if i == 0 else vr(acc2(ci, ri), 16)
                mf.append(f"v_mfma_f32_32x32x16_bf16 {vr(acc2(ci,ri),16)}, {vr(wf+4*ci,4)}, {vr(hs+4*ri,4)}, {c}")
        fills = []
        if not opts.get("notr"):
            fills += tr_reads(WF[(i + 1) & 1], wslot(i + 1) if i < 13 else 6)
        if i <= 7 and not opts.get("nostg"):
            for j in range(2):
                fills.append(f"ds_write_b128 v{pStg}, {vr(WRAW+8*i+4*j,4)} offset:{(i%6)*2048+j*1024}")
        if not opts.get("noex"):
            fills += extra_loads(i)
        if i == 1:
            fills.append(f"v_mul_f32 v{pIr}, v{pIr}, v{pIr}\nv_mul_f32 v{pIr+1}, v{pIr+1}, v{pIr+1}\nv_mul_f32 v{pRf}, v{pRf}, v{pRf}")
            fills.append(f"v_rcp_f32 v{pIr}, v{pIr}\nv_rcp_f32 v{pIr+1}, v{pIr+1}")
        if i == 11:
            fills += kv_cvt(0)
        if i == 12:
            fills += att_norm(0)[:8]
        if i == 13:
            fills += att_norm(0)[8:] + kv_cvt(1)
        if opts.get("hearly") and i + HD < 14:
            h_loads(i + HD)
        run(mf, fills)
        if not opts.get("hearly") and i + HD < 14:
            h_loads(i + HD)
        if i == 10:
            wait_for(("kv", 1))
        if i == 11:
            wait_for(("pq", 0))
            A("s_nop 1")
            run(att_kv(0), [])
            A("s_nop 7")
            A("s_nop 3")
    STM(6)
    wait_for(("pq", 1))
    run(att_kv(1), tr_reads(WF[1], 7) + tr_reads(WOF[1], 8) + tr_reads(WOF[1] + 8, 9))
    A("s_waitcnt lgkmcnt(0)")
    n1 = att_norm(1)
    mf = att_wo(0, WF)
    for i, m in enumerate(mf):
        A(m)
        if i >= 2:
            k0 = (i - 2) * len(n1) // 6
            k1 = (i - 1) * len(n1) // 6
            for u in n1[k0:k1]:
                A(u)
    A("s_nop 1")
    run(att_wo(1, [WOF[1], WOF[1] + 8]), [])
    A("v_and_b32 v4, 31, v0")
    A("v_mul_u32_u24 v4, 272, v4")
    A("v_lshrrev_b32 v5, 5, v0")
    A("v_lshl_add_u32 v4, v5, 4, v4")
    A(f"v_add_u32 v4, s{qLB}, v4")
    A(f"s_lshl_b32 s{sT0}, s{sW}, 3")
    A("v_lshrrev_b32 v5, 3, v0")
    A(f"v_add_u32 v5, s{sT0}, v5")
    A("v_mul_u32_u24 v5, 272, v5")
    A("v_and_b32 v6, 7, v0")
    A("v_lshl_add_u32 v5, v6, 5, v5")
    A(f"v_add_u32 v6, {3*LBW}, v5")
    A(f"v_add_u32 v7, {6*LBW}, v5")
    A("s_nop 3")
    for ri in range(2):
        for ci in range(2):
            d = acc2(ci, ri)
            for j in range(4):
                A(f"ds_write_b128 v4, {vr(d+4*j,4)} offset:{ri*32*272 + ci*128 + j*32}")
    X = 96
    for i in range(4):
        A(f"v_lshlrev_b32 v{X+2*i}, 16, v{pX+i}")
        A(f"v_and_b32 v{X+2*i+1}, s{sHi}, v{pX+i}")
    A("s_waitcnt lgkmcnt(0)")
    A("s_barrier")
    R = 16
    for p_ in range(8):
        va = (5, 6, 7)[p_ // 3]
        for i in range(2):
            A(f"ds_read_b128 {vr(R+8*p_+4*i,4)}, v{va} offset:{(p_%3)*LBW + i*16}")
    for st_, wl in ((1, 12), (1, 8), (1, 4), (1, 0)):
        pass
    for p_ in range(0, 8, 2):
        A(f"s_waitcnt lgkmcnt({12 - 2*p_})")
        for r in range(8):
            A(f"v_add_f32 v{R+8*p_+r}, v{R+8*p_+r}, v{R+8*p_+8+r}")
    for r in range(8):
        A(f"v_add_f32 v{R+r}, v{R+r}, v{R+16+r}")
        A(f"v_add_f32 v{R+32+r}, v{R+32+r}, v{R+48+r}")
    for r in range(8):
        A(f"v_add_f32 v{R+r}, v{R+r}, v{R+32+r}")
    for r in range(8):
        A(f"v_fma_f32 v{R+r}, v{R+r}, v{pRf}, v{X+r}")
    for r in range(4):
        A(f"v_cvt_pk_bf16_f32 v{104+r}, v{R+2*r}, v{R+2*r+1}")
    A("s_waitcnt lgkmcnt(0)")
    A(f"buffer_store_dwordx4 v[104:107], v{pOut}, s[{SRD_OUT}:{SRD_OUT+3}], s{qXo} offen" + {0: "", 1: " sc1", 2: " nt", 3: " sc0 sc1", 4: " sc1 nt"}[opts.get("osc", 0)])
    ST.dump(sW, SRD_WS, sT2)
    A("s_endpgm")
    A.label("F_spare")
    A("s_waitcnt vmcnt(0) lgkmcnt(0)")
    A("s_barrier")
    A(f"s_cmp_lg_u32 s{sW}, {POLLW}")
    A("s_cbranch_scc1 F_spare_end")
    flag()
    A.label("F_spare_end")
    ST.dump(sW, SRD_WS, sT2)
    A("s_endpgm")


pTB = [(9, 10), (124, 125), (126, 127)]
pStg1, pStg2, pTch = 15, 119, 120
qKh, qKw, qA0, qA1, qRB64 = 48, 28, 30, 31, 29


def phase2b(A, opts):
    prio = opts.get("prio", 1)
    POLLW = opts.get("pollw", 4)
    rot2 = opts.get("rot2", 1)
    A.label("F_bridge")
    A(f"s_load_dwordx2 s[{SRD_OUT}:{SRD_OUT+1}], s[0:1], 56")
    A(f"s_and_b32 s{sT0}, s2, 7")
    A(f"s_lshr_b32 s{sT1}, s2, 3")
    A(f"s_cmp_lt_u32 s{sT1}, 4")
    A("s_cbranch_scc1 F_spare")
    A(f"s_sub_u32 s{sT1}, s{sT1}, 4")
    A(f"s_mul_i32 s{sT2}, s{sT1}, 37")
    A(f"s_lshr_b32 s{sT2}, s{sT2}, 8")
    A(f"s_mul_i32 s{sT3}, s{sT2}, 7")
    A(f"s_sub_u32 s{sT3}, s{sT1}, s{sT3}")
    if opts.get("rbmap", 1) and not opts.get("xmap", 0):
        A(f"s_and_b32 s{sT4}, s{sT0}, 1")
        A(f"s_lshl_b32 s{sT4}, s{sT4}, 2")
        A(f"s_lshr_b32 s{sT0}, s{sT0}, 1")
        A(f"s_add_u32 s{sT0}, s{sT0}, s{sT4}")
    A(f"s_mov_b32 s{qRB}, s{sT0}")
    A(f"s_lshl_b32 s{qRB64}, s{sT0}, 2")
    A(f"s_add_u32 s{qRB64}, s{qRB64}, s{sT2}")
    A(f"s_mul_i32 s{qKh}, s{sT3}, {2048 if rot2 else 0}")
    A(f"s_mul_i32 s{qKw}, s{sT3}, {2 if rot2 else 0}")
    A(f"s_add_u32 s{qKw}, s{qKw}, 6")
    A(f"s_cmp_ge_u32 s{qKw}, 14")
    A(f"s_cselect_b32 s{sT5}, 14, 0")
    A(f"s_sub_u32 s{qKw}, s{qKw}, s{sT5}")
    A(f"s_mul_i32 s{qKw}, s{qKw}, 14336")
    A(f"s_lshl_b32 s{sT5}, s{sT3}, 3")
    A(f"s_add_u32 s{sT5}, s{sT5}, s{sW}")
    A(f"s_mul_i32 s{sT0}, s{sT5}, 10")
    A(f"v_add_u32 v1, s{sT0}, v0")
    A("v_cmp_gt_u32 vcc, 512, v1")
    A(f"v_mov_b32 v3, 0x{OOB:x}")
    A(f"s_lshl_b32 s{sT0}, s{qRB64}, 16")
    A(f"s_add_u32 s{sT0}, s{sT0}, {OFF_PQ}")
    A("v_lshlrev_b32 v1, 7, v1")
    A(f"v_add_u32 v1, s{sT0}, v1")
    A("v_cndmask_b32 v1, v3, v1, vcc")
    A("v_cmp_gt_u32 vcc, 10, v0")
    A(f"v_cndmask_b32 v{pTch}, v3, v1, vcc")
    A(f"s_mul_i32 s{sT0}, s{sT5}, 3")
    A(f"s_sub_u32 s{sT0}, s{sT0}, 10")
    A(f"v_add_u32 v1, s{sT0}, v0")
    A(f"s_and_b32 s{sT0}, s{qRB64}, 3")
    A(f"s_lshl_b32 s{sT0}, s{sT0}, 14")
    A(f"s_add_u32 s{sT0}, s{sT0}, {OFF_KVS}")
    A("v_cmp_gt_u32 vcc, 128, v1")
    A("v_lshlrev_b32 v1, 7, v1")
    A(f"v_add_u32 v1, s{sT0}, v1")
    A("v_cndmask_b32 v1, v3, v1, vcc")
    A("v_subrev_u32 v2, 10, v0")
    A("v_cmp_gt_u32 vcc, 3, v2")
    A(f"v_cndmask_b32 v{pTch}, v{pTch}, v1, vcc")
    A(f"s_lshl_b32 s{sT3}, s{sT3}, 7")
    A(f"s_lshl_b32 s{qLB}, s{sW}, 10")
    A(f"s_mul_i32 s{qWD}, s{sW}, {224*896}")
    A(f"s_add_u32 s{qWD}, s{qWD}, s{sT3}")
    A(f"s_mul_i32 s{qWO}, s{sW}, {56*896}")
    A(f"s_add_u32 s{qWO}, s{qWO}, s{sT3}")
    A("v_lshrrev_b32 v1, 3, v0")
    A("v_lshrrev_b32 v2, 4, v0")
    A("v_and_b32 v2, 1, v2")
    A("v_lshlrev_b32 v2, 2, v2")
    A("v_and_b32 v3, 7, v0")
    A("v_xor_b32 v3, v3, v2")
    A("v_lshlrev_b32 v3, 4, v3")
    A(f"v_mul_u32_u24 v{pW}, 896, v1")
    A(f"v_add_u32 v{pW}, v{pW}, v3")
    A(f"v_lshlrev_b32 v{pL16}, 4, v0")
    A(f"v_subrev_u32 v{pWsp}, {4*896}, v{pW}")
    A(f"v_mov_b32 v1, 0x{OOB:x}")
    A("v_cmp_gt_u32 vcc, 32, v0")
    A(f"v_cndmask_b32 v{pWsp}, v{pWsp}, v1, vcc")

    def w_late():
        if not opts.get("early", 1):
            A(f"s_mul_i32 s{sT0}, s{qKh}, 14")
            for s_ in range(6):
                for h_ in range(2):
                    A(f"s_add_u32 m0, s{qLB}, {(8 + 2*s_ + h_)*8192}")
                    A(f"s_add_u32 s{sT1}, s{qWD}, s{sT0}")
                    if h_:
                        A(f"s_add_u32 s{sT1}, s{sT1}, 7168")
                    A(f"buffer_load_dwordx4 v{pW}, s[{SRD_WD}:{SRD_WD+3}], s{sT1} offen lds")
                A(f"s_add_u32 s{sT0}, s{sT0}, 14336")
                A(f"s_cmp_eq_u32 s{sT0}, {14*14336}")
                A(f"s_cselect_b32 s{sT0}, 0, s{sT0}")

        def wo_loads():
            A(f"s_mov_b32 m0, s{qLB}")
            A(f"s_mov_b32 s{sT1}, s{qWO}")
            for hh in range(2):
                for j in range(4):
                    if hh or j:
                        A("s_add_u32 m0, m0, 8192")
                        A(f"s_add_u32 s{sT1}, s{sT1}, {7168 if j else 4*896}")
                    else:
                        A("s_nop 0")
                    A(f"buffer_load_dwordx4 v{pWsp if j == 3 else pW}, s[{SRD_WO}:{SRD_WO+3}], s{sT1} offen lds")

        def raw_loads():
            A(f"s_mov_b32 s{sT2}, s{qKw}")
            for i in range(8):
                A(f"s_add_u32 s{sT1}, s{qWD}, s{sT2}")
                A(f"buffer_load_dwordx4 {vr(WRAW+8*i,4)}, v{pW}, s[{SRD_WD}:{SRD_WD+3}], s{sT1} offen")
                A(f"s_add_u32 s{sT1}, s{sT1}, 7168")
                A(f"buffer_load_dwordx4 {vr(WRAW+8*i+4,4)}, v{pW}, s[{SRD_WD}:{SRD_WD+3}], s{sT1} offen")
                if i < 7:
                    A(f"s_add_u32 s{sT2}, s{sT2}, 14336")
                    A(f"s_cmp_eq_u32 s{sT2}, {14*14336}")
                    A(f"s_cselect_b32 s{sT2}, 0, s{sT2}")
        if opts.get("wofirst", 0):
            wo_loads()
            raw_loads()
        else:
            raw_loads()
            wo_loads()

    A(f"s_lshl_b32 s{sT5}, s{sW}, 3")
    A("v_lshrrev_b32 v1, 3, v0")
    A(f"v_add_u32 v1, s{sT5}, v1")
    A("v_and_b32 v2, 7, v0")
    A(f"v_mul_u32_u24 v{pOut}, 896, v1")
    A(f"v_lshl_add_u32 v{pOut}, v2, 4, v{pOut}")
    A(f"s_mul_i32 s{qXo}, s{qRB64}, {64*896}")
    A(f"s_add_u32 s{qXo}, s{qXo}, s{sT3}")
    A(f"buffer_load_dwordx4 {vr(pX,4)}, v{pOut}, s[{SRD_X}:{SRD_X+3}], s{qXo} offen")
    A("v_lshlrev_b32 v7, 4, v1")
    A("v_and_b32 v6, 31, v0")
    A("v_lshlrev_b32 v6, 4, v6")
    A(f"v_lshlrev_b32 v{pL4}, 2, v0")
    A(f"v_add_u32 v{pStg1}, s{qLB}, v{pL16}")
    A(f"v_add_u32 v{pStg2}, {2*65536}, v{pStg1}")
    A(f"v_add_u32 v{pStg1}, {65536}, v{pStg1}")
    A("v_lshrrev_b32 v1, 2, v0")
    A("v_and_b32 v1, 3, v1")
    A("v_and_b32 v2, 3, v0")
    A("v_lshrrev_b32 v3, 5, v0")
    A("v_lshrrev_b32 v4, 4, v0")
    A("v_and_b32 v4, 1, v4")
    A("v_lshl_add_u32 v5, v3, 2, v1")
    A("v_lshrrev_b32 v1, 1, v1")
    A("v_lshrrev_b32 v3, 1, v2")
    A("v_lshl_add_u32 v3, v4, 1, v3")
    A("v_lshlrev_b32 v1, 2, v1")
    A("v_xor_b32 v3, v3, v1")
    A("v_lshlrev_b32 v3, 4, v3")
    A("v_and_b32 v2, 1, v2")
    A("v_lshl_add_u32 v3, v2, 3, v3")
    A("v_lshl_add_u32 v3, v5, 7, v3")
    A(f"v_add_u32 v{pTB[0][0]}, s{qLB}, v3")
    A(f"v_xor_b32 v{pTB[0][1]}, 64, v{pTB[0][0]}")
    for b in (1, 2):
        for ci in range(2):
            A(f"v_add_u32 v{pTB[b][ci]}, {b*65536}, v{pTB[0][ci]}")
    A(f"s_mul_i32 s{qH0}, s{qRB64}, {2*112*1024}")
    A(f"s_mul_i32 s{sT0}, s{sW}, {14*1024}")
    A(f"s_add_u32 s{qH0}, s{qH0}, s{sT0}")
    if OFF_H:
        A(f"s_add_u32 s{qH0}, s{qH0}, {OFF_H}")
    A(f"s_add_u32 s{qH1}, s{qH0}, {112*1024}")
    A(f"s_lshl_b32 s{sT0}, s{sW}, 12")
    A(f"s_lshl_b32 s{qP0}, s{qRB64}, 16")
    A(f"s_add_u32 s{qP0}, s{qP0}, s{sT0}")
    A(f"s_add_u32 s{qP0}, s{qP0}, {OFF_PQ}")
    A(f"s_add_u32 s{qP1}, s{qP0}, 32768")
    A(f"s_lshl_b32 s{qKV}, s{sW}, 13")
    A(f"s_add_u32 s{qKV}, s{qKV}, {OFF_KVS}")
    A(f"s_lshl_b32 s{qST}, s{qRB64}, 10")
    A(f"s_add_u32 s{qST}, s{qST}, {OFF_ST + 4}")
    A(f"s_mov_b32 s{SRD_OUT+2}, {X_BYTES}")
    A(f"s_mov_b32 s{SRD_OUT+3}, 0x20000")
    A(f"s_mov_b32 s{sT5}, 0x{EPS6:x}")
    A("s_waitcnt vmcnt(0)")
    A("s_barrier")
    STM(4)
    P2M(0)
    A(f"s_cmp_eq_u32 s{sW}, {POLLW}")
    A("s_cbranch_scc1 F_pollw")
    w_late()
    A("s_barrier")
    A("s_branch F_go")

    def flag():
        A(f"v_mov_b32 v1, 0x{OOB:x}")
        A("v_cmp_eq_u32 vcc, 0, v0")
        A(f"s_lshl_b32 s{sT0}, s{sRB}, 5")
        A(f"s_add_u32 s{sT0}, s{sT0}, s{sCB}")
        A(f"s_lshl_b32 s{sT0}, s{sT0}, 4")
        A(f"s_add_u32 s{sT0}, s{sT0}, {OFF_FL}")
        A(f"v_mov_b32 v2, s{sT0}")
        A("v_cndmask_b32 v1, v1, v2, vcc")
        A("v_mov_b32 v2, 1")
        A("v_mov_b32 v3, 2")
        for l in granule_finish(2):
            A(l)
        A(f"buffer_store_dwordx4 v[2:5], v1, s[{SRD_WS}:{SRD_WS+3}], 0 offen sc1")
    A.label("F_pollw")
    if prio:
        A("s_setprio 3")
    flag()
    A(f"s_mov_b32 s{sCnt}, 0")
    A(f"s_lshl_b32 s{sT0}, s{qRB}, 9")
    A(f"s_add_u32 s{sT0}, s{sT0}, {OFF_FL}")
    A(f"v_mov_b32 v1, 0x{OOB:x}")
    A("v_cmp_gt_u32 vcc, 32, v0")
    A(f"v_cndmask_b32 v1, v1, v{pL16}, vcc")
    A.label("F_poll0")
    A(f"buffer_load_dwordx4 {vr(96,4)}, v1, s[{SRD_WS}:{SRD_WS+3}], s{sT0} offen sc1")
    A("s_waitcnt vmcnt(0)")
    for l in granule_check(96, 2, sOk):
        A(l)
    A(f"s_cmp_eq_u32 s{sOk}, -1")
    A("s_cbranch_scc1 F_poll1")
    A(f"s_add_u32 s{sCnt}, s{sCnt}, 1")
    if opts.get("psleep", 4):
        A(f"s_sleep {opts.get('psleep', 4)}")
    A(f"s_cmp_lt_u32 s{sCnt}, {SPINMAX}")
    A("s_cbranch_scc1 F_poll0")
    A.label("F_poll1")
    A(f"s_mov_b32 s{sT0}, {OFF_FL}")
    for j in range(4):
        A(f"buffer_load_dwordx4 {vr(96+4*j,4)}, v{pL16}, s[{SRD_WS}:{SRD_WS+3}], s{sT0} offen offset:{j*1024} sc1")
    A(f"s_mov_b64 s[{sOk2}:{sOk2+1}], -1")
    for j in range(4):
        A(f"s_waitcnt vmcnt({3-j})")
        for l in granule_check(96 + 4 * j, 2, sOk):
            A(l)
        A(f"s_and_b64 s[{sOk2}:{sOk2+1}], s[{sOk2}:{sOk2+1}], s[{sOk}:{sOk+1}]")
    A(f"s_cmp_eq_u64 s[{sOk2}:{sOk2+1}], -1")
    A("s_cbranch_scc1 F_polled")
    A(f"s_add_u32 s{sCnt}, s{sCnt}, 1")
    if opts.get("psleep", 4):
        A(f"s_sleep {opts.get('psleep', 4)}")
    A(f"s_cmp_lt_u32 s{sCnt}, {SPINMAX}")
    A("s_cbranch_scc1 F_poll1")
    A.label("F_polled")
    if prio:
        A("s_setprio 0")
    A("s_barrier")
    w_late()
    A.label("F_go")
    STM(5)
    P2M(1)

    issued = []

    def ld(tag, ins):
        A(ins)
        issued.append(tag)

    def wait_for(tag):
        idx = max(i for i, t in enumerate(issued) if t == tag)
        A(f"s_waitcnt vmcnt({min(63, len(issued) - 1 - idx)})")

    NR = opts.get("ring", 10)

    def hslot(ks):
        return RING + (ks % NR) * 8

    def h_loads(ks):
        A(f"s_add_u32 s{qA0}, s{qH0}, s{qKh}")
        A(f"s_add_u32 s{qA1}, s{qH1}, s{qKh}")
        for ri, so in enumerate((qA0, qA1)):
            ld(("h", ks), f"buffer_load_dwordx4 {vr(hslot(ks)+4*ri,4)}, v{pL16}, s[{SRD_WS}:{SRD_WS+3}], s{so} offen")
        if ks < 13:
            A(f"s_add_u32 s{qKh}, s{qKh}, 1024")
            A(f"s_cmp_eq_u32 s{qKh}, 14336")
            A(f"s_cselect_b32 s{qKh}, 0, s{qKh}")

    def wslot(ks):
        return ks if ks < 6 else (ks - 6) % 6

    def rowof(slot, h):
        return 8 + 2 * slot + h if slot < 6 else 2 * (slot - 6) + h

    def tr_reads(dst, slot):
        o = []
        for ci in range(2):
            for h in range(2):
                r = rowof(slot, h)
                o.append(f"ds_read_b64_tr_b16 {vr(dst+4*ci+2*h,2)}, v{pTB[r//8][ci]} offset:{(r%8)*8192}")
        return o

    if opts.get("touch", 1):
        ld("t", f"buffer_load_dword v1, v{pTch}, s[{SRD_WS}:{SRD_WS+3}], 0 offen")
    for s_ in tr_reads(WF[0], 0):
        A(s_)
    for ks in range(NR):
        h_loads(ks)
        if ks == 0:
            ld("r", f"buffer_load_dword v{pIr}, v6, s[{SRD_WS}:{SRD_WS+3}], s{qST} offen sc1")
            ld("r", f"buffer_load_dword v{pIr+1}, v6, s[{SRD_WS}:{SRD_WS+3}], s{qST} offen offset:512 sc1")
            ld("r", f"buffer_load_dword v{pRf}, v7, s[{SRD_WS}:{SRD_WS+3}], s{qST} offen sc1")
    KVR = [WRAW, WRAW + 16]
    PQR = [WRAW + 32, WRAW + 48]
    DB = [RING + 32, RING]
    OP = [RING + 64, WRAW + 32]
    WOF = [None, WRAW]

    def extra_loads(i):
        o = []
        if 1 <= i <= 4:
            hh, half = (i - 1) >> 1, (i - 1) & 1
            if i == 3:
                o.append((None, f"s_add_u32 s{qKV}, s{qKV}, 4096"))
            if opts.get("kvx4") or opts.get("kvred"):
                for q in range(2 * half, 2 * half + 2):
                    o.append((("kv", hh), f"buffer_load_dwordx4 {vr(KVR[hh]+4*q,4)}, v{pL16}, s[{SRD_WS}:{SRD_WS+3}], s{qKV} offen offset:{q*1024}"))
            else:
                for r in range(8 * half, 8 * half + 8):
                    o.append((("kv", hh), f"buffer_load_dword v{KVR[hh]+r}, v{pL4}, s[{SRD_WS}:{SRD_WS+3}], s{qKV} offen offset:{r*256}"))
        if 5 <= i <= 8:
            hh, t = (i - 5) >> 1, (i - 5) & 1
            for ri, so in enumerate((qP0, qP1)):
                o.append((("pq", hh), f"buffer_load_dwordx4 {vr(PQR[hh]+8*t+4*ri,4)}, v{pL16}, s[{SRD_WS}:{SRD_WS+3}], s{so} offen offset:{(hh*2+t)*1024}"))
        return o

    def att_kv(hh):
        o = []
        for ri in range(2):
            for t in range(2):
                c = "0" if t == 0 else vr(DB[hh] + 16 * ri, 16)
                o.append(f"v_mfma_f32_32x32x16_bf16 {vr(DB[hh]+16*ri,16)}, {vr(KVR[hh]+4*t,4)}, {vr(PQR[hh]+8*t+4*ri,4)}, {c}")
        return o

    def att_norm(hh):
        o = []
        D_ = DB[hh]
        for ri in range(2):
            t0, t1 = pTmp + 2 * ri, pTmp + 2 * ri + 1
            o.append(f"v_mov_b32 v{t0}, v{D_+16*ri+12}\nv_mov_b32 v{t1}, v{D_+16*ri+12}")
        o.append("s_nop 0\n" + "\n".join(f"v_permlane32_swap_b32 v{pTmp+2*ri}, v{pTmp+2*ri+1}" for ri in range(2)))
        o.append("s_nop 0\n" + "\n".join(f"v_add_f32 v{pTmp+2*ri}, s{sT5}, v{pTmp+2*ri}" for ri in range(2)))
        o.append("\n".join(f"v_rcp_f32 v{pTmp+2*ri}, v{pTmp+2*ri}" for ri in range(2)))
        o.append("s_nop 0\n" + "\n".join(f"v_mul_f32 v{pTmp+2*ri}, v{pTmp+2*ri}, v{pIr+ri}" for ri in range(2)))
        for ri in range(2):
            d = D_ + 16 * ri
            t0 = pTmp + 2 * ri
            for r in range(8):
                o.append(f"v_mul_f32 v{d+2*r}, v{d+2*r}, v{t0}\nv_mul_f32 v{d+2*r+1}, v{d+2*r+1}, v{t0}\n"
                         f"v_cvt_pk_bf16_f32 v{OP[hh]+8*ri+r}, v{d+2*r}, v{d+2*r+1}")
        return o

    def att_wo(hh, wf):
        o = []
        for t in range(2):
            for ci in range(2):
                for ri in range(2):
                    d = acc2(ci, ri)
                    o.append(f"v_mfma_f32_32x32x16_bf16 {vr(d,16)}, {vr(wf[t]+4*ci,4)}, {vr(OP[hh]+8*ri+4*t,4)}, {vr(d,16)}")
        return o

    def run(mf, fills):
        n = len(mf)
        for i, m in enumerate(mf):
            A(m)
            for u in fills[i * len(fills) // n:(i + 1) * len(fills) // n]:
                if isinstance(u, tuple):
                    if u[0] is None:
                        A(u[1])
                    else:
                        ld(u[0], u[1])
                else:
                    A(u)

    def kv_cvt(hh):
        return [f"v_cvt_pk_bf16_f32 v{KVR[hh]+r}, v{KVR[hh]+2*r}, v{KVR[hh]+2*r+1}" for r in range(8)]

    assert NR == 10
    P2M(2)
    for i in range(14):
        A("s_waitcnt lgkmcnt(0)")
        wait_for(("h", i))
        if i in (0, 4, 8):
            P2M(3 + i // 4)
        wf = WF[i & 1]
        hs = hslot(i)
        mf = []
        for ci in range(2):
            for ri in range(2):
                c = "0" if i == 0 else vr(acc2(ci, ri), 16)
                mf.append(f"v_mfma_f32_32x32x16_bf16 {vr(acc2(ci,ri),16)}, {vr(wf+4*ci,4)}, {vr(hs+4*ri,4)}, {c}")
        fills = []
        fills += tr_reads(WF[(i + 1) & 1], wslot(i + 1) if i < 13 else 6)
        if i <= 7:
            for j in range(2):
                r = rowof(i % 6, j)
                fills.append(f"ds_write_b128 v{pStg1 if r < 16 else pStg2}, {vr(WRAW+8*i+4*j,4)} offset:{(r%8)*8192}")
        fills += extra_loads(i)
        if i == 1:
            fills.append(f"v_mul_f32 v{pIr}, v{pIr}, v{pIr}\nv_mul_f32 v{pIr+1}, v{pIr+1}, v{pIr+1}\nv_mul_f32 v{pRf}, v{pRf}, v{pRf}")
            fills.append(f"v_rcp_f32 v{pIr}, v{pIr}\nv_rcp_f32 v{pIr+1}, v{pIr+1}")
        if i == 11:
            fills += kv_cvt(0)
        if i == 12:
            fills += att_norm(0)[:8]
        if i == 13:
            fills += att_norm(0)[8:] + kv_cvt(1)
        run(mf, fills)
        if i + NR < 14:
            h_loads(i + NR)
        if i == 10:
            wait_for(("kv", 1))
        if i == 11:
            wait_for(("pq", 0))
            A("s_nop 1")
            run(att_kv(0), [])
            A("s_nop 7")
            A("s_nop 3")
    STM(6)
    wait_for(("pq", 1))
    run(att_kv(1), tr_reads(WF[1], 7) + tr_reads(WOF[1], 8) + tr_reads(WOF[1] + 8, 9))
    A("s_waitcnt lgkmcnt(0)")
    n1 = att_norm(1)
    mf = att_wo(0, WF)
    for i, m in enumerate(mf):
        A(m)
        if i >= 2:
            k0 = (i - 2) * len(n1) // 6
            k1 = (i - 1) * len(n1) // 6
            for u in n1[k0:k1]:
                A(u)
    A("s_nop 1")
    run(att_wo(1, [WOF[1], WOF[1] + 8]), [])
    A("v_and_b32 v4, 31, v0")
    A("v_lshrrev_b32 v5, 2, v4")
    A("v_lshlrev_b32 v5, 14, v5")
    A("v_and_b32 v6, 3, v0")
    A("v_lshl_add_u32 v5, v6, 8, v5")
    A("v_lshrrev_b32 v6, 5, v0")
    A("v_and_b32 v4, 15, v4")
    A("v_xor_b32 v4, v4, v6")
    A("v_lshl_add_u32 v4, v4, 4, v5")
    A(f"v_add_u32 v4, s{qLB}, v4")
    for k in range(1, 8):
        A(f"v_xor_b32 v{RING+k}, {k << 5}, v4")
    wa = [4] + [RING + k for k in range(1, 8)]
    A(f"s_and_b32 s{sT0}, s{sW}, 3")
    A(f"s_lshl_b32 s{sT0}, s{sT0}, 15")
    A(f"s_lshr_b32 s{sT1}, s{sW}, 2")
    A(f"s_lshl_b32 s{sT1}, s{sT1}, 13")
    A(f"s_add_u32 s{sT0}, s{sT0}, s{sT1}")
    A("v_lshrrev_b32 v5, 5, v0")
    A("v_lshlrev_b32 v5, 14, v5")
    A("v_lshrrev_b32 v6, 3, v0")
    A("v_and_b32 v7, 3, v6")
    A("v_lshl_add_u32 v5, v7, 8, v5")
    A(f"s_and_b32 s{sT1}, s{sW}, 1")
    A(f"s_lshl_b32 s{sT1}, s{sT1}, 3")
    A(f"v_add_u32 v6, s{sT1}, v6")
    A("v_and_b32 v7, 7, v0")
    A("v_lshlrev_b32 v7, 1, v7")
    A("v_xor_b32 v6, v6, v7")
    A("v_lshl_add_u32 v5, v6, 4, v5")
    A(f"v_add_u32 v5, s{sT0}, v5")
    A("v_xor_b32 v6, 16, v5")
    for ri in range(2):
        for ci in range(2):
            d = acc2(ci, ri)
            for j in range(4):
                A(f"ds_write_b128 v{wa[ci*4+j]}, {vr(d+4*j,4)} offset:{ri*8192}")
    X = 96
    for i in range(4):
        A(f"v_lshlrev_b32 v{X+2*i}, 16, v{pX+i}")
        A(f"v_and_b32 v{X+2*i+1}, s{sHi}, v{pX+i}")
    A("s_waitcnt lgkmcnt(0)")
    A("s_barrier")
    R = 24
    for p_ in range(8):
        for i in range(2):
            A(f"ds_read_b128 {vr(R+8*p_+4*i,4)}, v{5+i} offset:{p_*1024}")
    for p_ in range(0, 8, 2):
        A(f"s_waitcnt lgkmcnt({12 - 2*p_})")
        for r in range(8):
            A(f"v_add_f32 v{R+8*p_+r}, v{R+8*p_+r}, v{R+8*p_+8+r}")
    for r in range(8):
        A(f"v_add_f32 v{R+r}, v{R+r}, v{R+16+r}")
        A(f"v_add_f32 v{R+32+r}, v{R+32+r}, v{R+48+r}")
    for r in range(8):
        A(f"v_add_f32 v{R+r}, v{R+r}, v{R+32+r}")
    for r in range(8):
        A(f"v_fma_f32 v{R+r}, v{R+r}, v{pRf}, v{X+r}")
    for r in range(4):
        A(f"v_cvt_pk_bf16_f32 v{104+r}, v{R+2*r}, v{R+2*r+1}")
    A("s_waitcnt lgkmcnt(0)")
    A(f"buffer_store_dwordx4 v[104:107], v{pOut}, s[{SRD_OUT}:{SRD_OUT+3}], s{qXo} offen" + {0: "", 1: " sc1", 2: " nt", 3: " sc0 sc1", 4: " sc1 nt"}[opts.get("osc", 0)])
    ST.dump(sW, SRD_WS, sT2)
    A("s_endpgm")
    A.label("F_spare")
    A("s_waitcnt vmcnt(0) lgkmcnt(0)")
    A("s_barrier")
    A(f"s_cmp_lg_u32 s{sW}, {POLLW}")
    A("s_cbranch_scc1 F_spare_end")
    flag()
    A.label("F_spare_end")
    ST.dump(sW, SRD_WS, sT2)
    A("s_endpgm")


pKVF, pPol, pRfA = 7, 121, 120
pRl = 6
qKF, qPF = 56, 57


def phase2c(A, opts):
    prio = opts.get("prio", 1)
    POLLW = opts.get("pollw", 0)
    rot2 = opts.get("rot2", 1)
    A.label("F_bridge")
    A(f"s_load_dwordx2 s[{SRD_OUT}:{SRD_OUT+1}], s[0:1], 56")
    A(f"s_and_b32 s{sT0}, s2, 7")
    A(f"s_lshr_b32 s{sT1}, s2, 3")
    A(f"s_cmp_lt_u32 s{sT1}, 4")
    A("s_cbranch_scc1 F_spare")
    A(f"s_sub_u32 s{sT1}, s{sT1}, 4")
    A(f"s_mul_i32 s{sT2}, s{sT1}, 37")
    A(f"s_lshr_b32 s{sT2}, s{sT2}, 8")
    A(f"s_mul_i32 s{sT3}, s{sT2}, 7")
    A(f"s_sub_u32 s{sT3}, s{sT1}, s{sT3}")
    if opts.get("rbmap", 1) and not opts.get("xmap", 0):
        A(f"s_and_b32 s{sT4}, s{sT0}, 1")
        A(f"s_lshl_b32 s{sT4}, s{sT4}, 2")
        A(f"s_lshr_b32 s{sT0}, s{sT0}, 1")
        A(f"s_add_u32 s{sT0}, s{sT0}, s{sT4}")
    A(f"s_mov_b32 s{qRB}, s{sT0}")
    A(f"s_lshl_b32 s{qRB64}, s{sT0}, 2")
    A(f"s_add_u32 s{qRB64}, s{qRB64}, s{sT2}")
    A(f"s_mul_i32 s{qKh}, s{sT3}, {2048 if rot2 else 0}")
    A(f"s_mul_i32 s{qKw}, s{sT3}, {2 if rot2 else 0}")
    A(f"s_add_u32 s{qKw}, s{qKw}, 6")
    A(f"s_cmp_ge_u32 s{qKw}, 14")
    A(f"s_cselect_b32 s{sT5}, 14, 0")
    A(f"s_sub_u32 s{qKw}, s{qKw}, s{sT5}")
    A(f"s_mul_i32 s{qKw}, s{qKw}, 14336")
    A(f"s_lshl_b32 s{sT3}, s{sT3}, 7")
    A(f"s_lshl_b32 s{qLB}, s{sW}, 10")
    A(f"s_mul_i32 s{qWD}, s{sW}, {224*896}")
    A(f"s_add_u32 s{qWD}, s{qWD}, s{sT3}")
    A(f"s_mul_i32 s{qWO}, s{sW}, {56*896}")
    A(f"s_add_u32 s{qWO}, s{qWO}, s{sT3}")
    A("v_lshrrev_b32 v1, 3, v0")
    A("v_lshrrev_b32 v2, 4, v0")
    A("v_and_b32 v2, 1, v2")
    A("v_lshlrev_b32 v2, 2, v2")
    A("v_and_b32 v3, 7, v0")
    A("v_xor_b32 v3, v3, v2")
    A("v_lshlrev_b32 v3, 4, v3")
    A(f"v_mul_u32_u24 v{pW}, 896, v1")
    A(f"v_add_u32 v{pW}, v{pW}, v3")
    A(f"v_lshlrev_b32 v{pL16}, 4, v0")
    A(f"v_subrev_u32 v{pWsp}, {4*896}, v{pW}")
    A(f"v_mov_b32 v1, 0x{OOB:x}")
    A("v_cmp_gt_u32 vcc, 32, v0")
    A(f"v_cndmask_b32 v{pWsp}, v{pWsp}, v1, vcc")

    def w_late():
        if not opts.get("early", 1):
            A(f"s_mul_i32 s{sT0}, s{qKh}, 14")
            for s_ in range(6):
                for h_ in range(2):
                    A(f"s_add_u32 m0, s{qLB}, {(8 + 2*s_ + h_)*8192}")
                    A(f"s_add_u32 s{sT1}, s{qWD}, s{sT0}")
                    if h_:
                        A(f"s_add_u32 s{sT1}, s{sT1}, 7168")
                    A(f"buffer_load_dwordx4 v{pW}, s[{SRD_WD}:{SRD_WD+3}], s{sT1} offen lds")
                A(f"s_add_u32 s{sT0}, s{sT0}, 14336")
                A(f"s_cmp_eq_u32 s{sT0}, {14*14336}")
                A(f"s_cselect_b32 s{sT0}, 0, s{sT0}")

        def wo_loads():
            A(f"s_mov_b32 m0, s{qLB}")
            A(f"s_mov_b32 s{sT1}, s{qWO}")
            for hh in range(2):
                for j in range(4):
                    if hh or j:
                        A("s_add_u32 m0, m0, 8192")
                        A(f"s_add_u32 s{sT1}, s{sT1}, {7168 if j else 4*896}")
                    else:
                        A("s_nop 0")
                    A(f"buffer_load_dwordx4 v{pWsp if j == 3 else pW}, s[{SRD_WO}:{SRD_WO+3}], s{sT1} offen lds")

        def raw_loads():
            A(f"s_mov_b32 s{sT2}, s{qKw}")
            for i in range(8):
                A(f"s_add_u32 s{sT1}, s{qWD}, s{sT2}")
                A(f"buffer_load_dwordx4 {vr(WRAW+8*i,4)}, v{pW}, s[{SRD_WD}:{SRD_WD+3}], s{sT1} offen")
                A(f"s_add_u32 s{sT1}, s{sT1}, 7168")
                A(f"buffer_load_dwordx4 {vr(WRAW+8*i+4,4)}, v{pW}, s[{SRD_WD}:{SRD_WD+3}], s{sT1} offen")
                if i < 7:
                    A(f"s_add_u32 s{sT2}, s{sT2}, 14336")
                    A(f"s_cmp_eq_u32 s{sT2}, {14*14336}")
                    A(f"s_cselect_b32 s{sT2}, 0, s{sT2}")
        if opts.get("wofirst", 0):
            wo_loads()
            raw_loads()
        else:
            raw_loads()
            wo_loads()

    A(f"s_lshl_b32 s{sT5}, s{sW}, 3")
    A("v_lshrrev_b32 v1, 3, v0")
    A(f"v_add_u32 v1, s{sT5}, v1")
    A("v_and_b32 v2, 7, v0")
    A(f"v_mul_u32_u24 v{pOut}, 896, v1")
    A(f"v_lshl_add_u32 v{pOut}, v2, 4, v{pOut}")
    A(f"s_mul_i32 s{qXo}, s{qRB64}, {64*896}")
    A(f"s_add_u32 s{qXo}, s{qXo}, s{sT3}")
    A(f"buffer_load_dwordx4 {vr(pX,4)}, v{pOut}, s[{SRD_X}:{SRD_X+3}], s{qXo} offen")
    A(f"v_lshlrev_b32 v{pRfA}, 4, v1")
    A("v_and_b32 v6, 31, v0")
    A("v_lshlrev_b32 v6, 4, v6")
    A(f"v_lshlrev_b32 v{pL4}, 2, v0")
    A(f"v_add_u32 v{pStg1}, s{qLB}, v{pL16}")
    A(f"v_add_u32 v{pStg2}, {2*65536}, v{pStg1}")
    A(f"v_add_u32 v{pStg1}, {65536}, v{pStg1}")
    A("v_lshrrev_b32 v1, 2, v0")
    A("v_and_b32 v1, 3, v1")
    A("v_and_b32 v2, 3, v0")
    A("v_lshrrev_b32 v3, 5, v0")
    A("v_lshrrev_b32 v4, 4, v0")
    A("v_and_b32 v4, 1, v4")
    A("v_lshl_add_u32 v5, v3, 2, v1")
    A("v_lshrrev_b32 v1, 1, v1")
    A("v_lshrrev_b32 v3, 1, v2")
    A("v_lshl_add_u32 v3, v4, 1, v3")
    A("v_lshlrev_b32 v1, 2, v1")
    A("v_xor_b32 v3, v3, v1")
    A("v_lshlrev_b32 v3, 4, v3")
    A("v_and_b32 v2, 1, v2")
    A("v_lshl_add_u32 v3, v2, 3, v3")
    A("v_lshl_add_u32 v3, v5, 7, v3")
    A(f"v_add_u32 v{pTB[0][0]}, s{qLB}, v3")
    A(f"v_xor_b32 v{pTB[0][1]}, 64, v{pTB[0][0]}")
    for b in (1, 2):
        for ci in range(2):
            A(f"v_add_u32 v{pTB[b][ci]}, {b*65536}, v{pTB[0][ci]}")
    A(f"s_mul_i32 s{qH0}, s{qRB64}, {2*112*1024}")
    A(f"s_mul_i32 s{sT0}, s{sW}, {14*1024}")
    A(f"s_add_u32 s{qH0}, s{qH0}, s{sT0}")
    if OFF_H:
        A(f"s_add_u32 s{qH0}, s{qH0}, {OFF_H}")
    A(f"s_add_u32 s{qH1}, s{qH0}, {112*1024}")
    A(f"s_lshl_b32 s{sT0}, s{sW}, 12")
    A(f"s_lshl_b32 s{qP0}, s{qRB64}, 16")
    A(f"s_add_u32 s{qP0}, s{qP0}, s{sT0}")
    A(f"s_add_u32 s{qP0}, s{qP0}, {OFF_PQ}")
    A(f"s_add_u32 s{qP1}, s{qP0}, 32768")
    A(f"s_lshl_b32 s{qKV}, s{sW}, 13")
    A(f"s_add_u32 s{qKV}, s{qKV}, {OFF_KVS}")
    A(f"s_lshl_b32 s{qST}, s{qRB64}, 10")
    A(f"s_add_u32 s{qST}, s{qST}, {OFF_ST + 4}")
    A(f"s_mov_b32 s{SRD_OUT+2}, {X_BYTES}")
    A(f"s_mov_b32 s{SRD_OUT+3}, 0x20000")
    A(f"s_mov_b32 s{sT5}, 0x{EPS6:x}")
    rpre = opts.get("rpre", 1)
    RG = [64, 68, 72]
    sRok = 70

    def r_loads():
        A(f"s_sub_u32 s{sT0}, s{qST}, 4")
        A(f"buffer_load_dwordx4 {vr(RG[0],4)}, v{pRl}, s[{SRD_WS}:{SRD_WS+3}], s{sT0} offen sc1")
        A(f"buffer_load_dwordx4 {vr(RG[1],4)}, v{pRl}, s[{SRD_WS}:{SRD_WS+3}], s{sT0} offen offset:512 sc1")
        A(f"buffer_load_dwordx4 {vr(RG[2],4)}, v{pRfA}, s[{SRD_WS}:{SRD_WS+3}], s{sT0} offen sc1")

    def r_check():
        A(f"s_mov_b64 s[{sNeed}:{sNeed+1}], -1")
        for g in RG:
            for l in granule_check(g, 2, sOk):
                A(l)
            A(f"s_and_b64 s[{sNeed}:{sNeed+1}], s[{sNeed}:{sNeed+1}], s[{sOk}:{sOk+1}]")
        A(f"s_cmp_eq_u64 s[{sNeed}:{sNeed+1}], -1")
        A(f"s_cselect_b32 s{sRok}, {0 if opts.get('rfail') else 1}, 0")
    if rpre:
        r_loads()
    A(f"v_mov_b32 v1, 0x{OOB:x}")
    A("v_cmp_gt_u32 vcc, 16, v0")
    A(f"v_cndmask_b32 v{pKVF}, v1, v{pL16}, vcc")
    kvpoll = opts.get("kvpoll", 1)
    if kvpoll:
        A(f"s_mov_b32 s{qKF}, {OFF_FL + 4096}")
    else:
        A(f"s_lshl_b32 s{qKF}, s{sW}, 8")
        A(f"s_add_u32 s{qKF}, s{qKF}, {OFF_FL + 4096}")

    def flag_prep():
        A(f"s_lshl_b32 s{sT0}, s{sRB}, 5")
        A(f"s_add_u32 s{sT0}, s{sT0}, s{sCB}")
        A(f"s_lshl_b32 s{sT0}, s{sT0}, 4")
        A(f"s_add_u32 s{sT0}, s{sT0}, {OFF_FL}")
        A(f"s_lshl_b32 s{sT1}, s{sCB}, 3")
        A(f"s_add_u32 s{sT1}, s{sT1}, s{sRB}")
        A(f"s_lshl_b32 s{sT1}, s{sT1}, 4")
        A(f"s_add_u32 s{sT1}, s{sT1}, {OFF_FL + 4096}")
        A(f"s_cmp_lt_u32 s{sCB}, 16")
        A(f"s_cselect_b32 s{sT1}, s{sT1}, 0x{OOB:x}")
        A(f"v_mov_b32 v1, 0x{OOB:x}")
        A(f"v_mov_b32 v2, s{sT0}")
        A("v_cmp_eq_u32 vcc, 0, v0")
        A("v_cndmask_b32 v1, v1, v2, vcc")
        A(f"v_mov_b32 v2, s{sT1}")
        A("v_cmp_eq_u32 vcc, 1, v0")
        A("v_cndmask_b32 v1, v1, v2, vcc")
        A("v_mov_b32 v2, 1")
        A("v_mov_b32 v3, 2")
        for l in granule_finish(2):
            A(l)

    def flag_store():
        A(f"buffer_store_dwordx4 v[2:5], v1, s[{SRD_WS}:{SRD_WS+3}], 0 offen sc1")
    flag_prep()
    A(f"s_lshl_b32 s{qPF}, s{qRB}, 9")
    A(f"s_add_u32 s{qPF}, s{qPF}, {OFF_FL}")
    A(f"v_mov_b32 v{pPol}, 0x{OOB:x}")
    A("v_cmp_gt_u32 vcc, 32, v0")
    A(f"v_cndmask_b32 v{pPol}, v{pPol}, v{pL16}, vcc")
    A(f"s_cmp_eq_u32 s{sW}, {POLLW}")
    A("s_cbranch_scc0 F_np0")
    if prio:
        A("s_setprio 3")
    A.label("F_np0")
    A("s_waitcnt vmcnt(0)")
    A("s_barrier")
    A(f"s_cmp_eq_u32 s{sW}, {POLLW}")
    A("s_cbranch_scc1 F_pollw")
    STM(4)
    P2M(0)
    if opts.get("wdelay"):
        A(f"s_sleep {opts.get('wdelay')}")
    w_late()
    if rpre:
        r_check()
    A("s_barrier")
    A("s_branch F_go")
    A.label("F_pollw")
    flag_store()
    STM(4)
    P2M(0)
    if opts.get("polw"):
        w_late()
    A(f"s_mov_b32 s{sCnt}, 0")
    NP = opts.get("npoll", 3)
    NL = 3 if kvpoll else 1
    PR = [RING + 4 * NL * k for k in range(NP)]

    def poll(k):
        A(f"buffer_load_dwordx4 {vr(PR[k],4)}, v{pPol}, s[{SRD_WS}:{SRD_WS+3}], s{qPF} offen sc1")
        if kvpoll:
            A(f"buffer_load_dwordx4 {vr(PR[k]+4,4)}, v{pL16}, s[{SRD_WS}:{SRD_WS+3}], s{qKF} offen sc1")
            A(f"buffer_load_dwordx4 {vr(PR[k]+8,4)}, v{pL16}, s[{SRD_WS}:{SRD_WS+3}], s{qKF} offen offset:1024 sc1")
    for k in range(NP):
        poll(k)
        if k < NP - 1:
            A(f"s_sleep {opts.get('pgap', 4)}")
    if rpre:
        r_check()
    A.label("F_poll0")
    for k in range(NP):
        A(f"s_waitcnt vmcnt({NL*(NP-1)})")
        for l in granule_check(PR[k], 2, sOk):
            A(l)
        if kvpoll:
            A(f"s_mov_b32 s{sOk+1}, -1")
            for j in (1, 2):
                for l in granule_check(PR[k] + 4 * j, 2, sOk2):
                    A(l)
                A(f"s_and_b64 s[{sOk}:{sOk+1}], s[{sOk}:{sOk+1}], s[{sOk2}:{sOk2+1}]")
            A(f"s_cmp_eq_u64 s[{sOk}:{sOk+1}], -1")
        else:
            A(f"s_cmp_eq_u32 s{sOk}, -1")
        A("s_cbranch_scc1 F_polled")
        if NP == 1 and opts.get("psleep", 4):
            A(f"s_sleep {opts.get('psleep', 4)}")
        poll(k)
    A(f"s_add_u32 s{sCnt}, s{sCnt}, 1")
    A(f"s_cmp_lt_u32 s{sCnt}, {SPINMAX}")
    A("s_cbranch_scc1 F_poll0")
    A.label("F_polled")
    if prio:
        A("s_setprio 0")
    A("s_barrier")
    if not opts.get("polw"):
        w_late()
    A.label("F_go")
    STM(5)
    P2M(1)
    if rpre:
        A(f"s_cmp_eq_u32 s{sRok}, 1")
        A("s_cbranch_scc0 F_rslow")
        A.label("F_rok")

    issued = []

    def ld(tag, ins):
        A(ins)
        issued.append(tag)

    def wait_for(tag):
        idx = max(i for i, t in enumerate(issued) if t == tag)
        A(f"s_waitcnt vmcnt({min(63, len(issued) - 1 - idx)})")

    NR = 6
    D = opts.get("hd", 5)

    def hslot(ks):
        return RING + (ks % NR) * 8

    def h_loads(ks):
        A(f"s_add_u32 s{qA0}, s{qH0}, s{qKh}")
        A(f"s_add_u32 s{qA1}, s{qH1}, s{qKh}")
        for ri, so in enumerate((qA0, qA1)):
            ld(("h", ks), f"buffer_load_dwordx4 {vr(hslot(ks)+4*ri,4)}, v{pL16}, s[{SRD_WS}:{SRD_WS+3}], s{so} offen")
        if ks < 13:
            A(f"s_add_u32 s{qKh}, s{qKh}, 1024")
            A(f"s_cmp_eq_u32 s{qKh}, 14336")
            A(f"s_cselect_b32 s{qKh}, 0, s{qKh}")

    def wslot(ks):
        return ks if ks < 6 else (ks - 6) % 6

    def rowof(slot, h):
        return 8 + 2 * slot + h if slot < 6 else 2 * (slot - 6) + h

    def tr_reads(dst, slot):
        o = []
        for ci in range(2):
            for h in range(2):
                r = rowof(slot, h)
                o.append(f"ds_read_b64_tr_b16 {vr(dst+4*ci+2*h,2)}, v{pTB[r//8][ci]} offset:{(r%8)*8192}")
        return o

    for s_ in tr_reads(WF[0], 0):
        A(s_)
    for ks in range(D):
        h_loads(ks)
        if ks == 0 and not rpre:
            ld("r", f"buffer_load_dword v{pIr}, v6, s[{SRD_WS}:{SRD_WS+3}], s{qST} offen sc1")
            ld("r", f"buffer_load_dword v{pIr+1}, v6, s[{SRD_WS}:{SRD_WS+3}], s{qST} offen offset:512 sc1")
            ld("r", f"buffer_load_dword v{pRf}, v{pRfA}, s[{SRD_WS}:{SRD_WS+3}], s{qST} offen sc1")
    KVR = [64, 80]
    PQR = [WRAW, WRAW + 16]
    DB = [[WRAW + 32, WRAW + 48], [KVR[0], PQR[0]]]

    def kv_loads(hh):
        o = []
        if hh == 1:
            o.append((None, f"s_add_u32 s{qKV}, s{qKV}, 4096"))
        if opts.get("kvx4") or opts.get("kvred"):
            for q in range(4):
                o.append((("kv", hh), f"buffer_load_dwordx4 {vr(KVR[hh]+4*q,4)}, v{pL16}, s[{SRD_WS}:{SRD_WS+3}], s{qKV} offen offset:{q*1024}"))
            return o
        for r in range(16):
            o.append((("kv", hh), f"buffer_load_dword v{KVR[hh]+r}, v{pL4}, s[{SRD_WS}:{SRD_WS+3}], s{qKV} offen offset:{r*256}"))
        return o

    def pq_loads(hh):
        o = []
        for t in range(2):
            for ri, so in enumerate((qP0, qP1)):
                o.append((("pq", hh), f"buffer_load_dwordx4 {vr(PQR[hh]+8*t+4*ri,4)}, v{pL16}, s[{SRD_WS}:{SRD_WS+3}], s{so} offen offset:{(hh*2+t)*1024}"))
        return o

    def att_kv(hh):
        o = []
        for ri in range(2):
            for t in range(2):
                c = "0" if t == 0 else vr(DB[hh][ri], 16)
                o.append(f"v_mfma_f32_32x32x16_bf16 {vr(DB[hh][ri],16)}, {vr(KVR[hh]+4*t,4)}, {vr(PQR[hh]+8*t+4*ri,4)}, {c}")
        return o

    def att_norm(hh):
        o = []
        for ri in range(2):
            t0, t1 = pTmp + 2 * ri, pTmp + 2 * ri + 1
            o.append(f"v_mov_b32 v{t0}, v{DB[hh][ri]+12}\nv_mov_b32 v{t1}, v{DB[hh][ri]+12}")
        o.append("s_nop 0\n" + "\n".join(f"v_permlane32_swap_b32 v{pTmp+2*ri}, v{pTmp+2*ri+1}" for ri in range(2)))
        o.append("s_nop 0\n" + "\n".join(f"v_add_f32 v{pTmp+2*ri}, s{sT5}, v{pTmp+2*ri}" for ri in range(2)))
        o.append("\n".join(f"v_rcp_f32 v{pTmp+2*ri}, v{pTmp+2*ri}" for ri in range(2)))
        o.append("s_nop 0\n" + "\n".join(f"v_mul_f32 v{pTmp+2*ri}, v{pTmp+2*ri}, v{pIr+ri}" for ri in range(2)))
        for ri in range(2):
            d = DB[hh][ri]
            t0 = pTmp + 2 * ri
            for r in range(8):
                o.append(f"v_mul_f32 v{d+2*r}, v{d+2*r}, v{t0}\nv_mul_f32 v{d+2*r+1}, v{d+2*r+1}, v{t0}\n"
                         f"v_cvt_pk_bf16_f32 v{d+r}, v{d+2*r}, v{d+2*r+1}")
        return o

    def wo_reads(hh):
        o = []
        for t in range(2):
            o += tr_reads(DB[hh][t] + 8, 6 + 2 * hh + t)
        return o

    def att_wo(hh):
        o = []
        for t in range(2):
            for ci in range(2):
                for ri in range(2):
                    d = acc2(ci, ri)
                    o.append(f"v_mfma_f32_32x32x16_bf16 {vr(d,16)}, {vr(DB[hh][t]+8+4*ci,4)}, {vr(DB[hh][ri]+4*t,4)}, {vr(d,16)}")
        return o

    def run(mf, fills):
        n = len(mf)
        for i, m in enumerate(mf):
            A(m)
            for u in fills[i * len(fills) // n:(i + 1) * len(fills) // n]:
                if isinstance(u, tuple):
                    if u[0] is None:
                        A(u[1])
                    else:
                        ld(u[0], u[1])
                elif callable(u):
                    u()
                else:
                    A(u)

    def kv_cvt(hh):
        return [f"v_cvt_pk_bf16_f32 v{KVR[hh]+r}, v{KVR[hh]+2*r}, v{KVR[hh]+2*r+1}" for r in range(8)]

    def kvf_check():
        wait_for("kvf")
        for l in granule_check(pTmp, 2, sOk):
            A(l)
        A(f"s_and_b32 s{sOk}, s{sOk}, 0xffff")
        A(f"s_cmp_eq_u32 s{sOk}, 0xffff")
        A("s_cbranch_scc0 F_kvslow")
        A.label("F_kvok")

    red_setup = []
    red_setup.append("v_and_b32 v4, 31, v0\nv_lshrrev_b32 v5, 2, v4\nv_lshlrev_b32 v5, 14, v5\nv_and_b32 v6, 3, v0\nv_lshl_add_u32 v5, v6, 8, v5")
    red_setup.append(f"v_lshrrev_b32 v6, 5, v0\nv_and_b32 v4, 15, v4\nv_xor_b32 v4, v4, v6\nv_lshl_add_u32 v4, v4, 4, v5\nv_add_u32 v4, s{qLB}, v4")
    red_setup.append(f"s_and_b32 s{sT0}, s{sW}, 3\ns_lshl_b32 s{sT0}, s{sT0}, 15\ns_lshr_b32 s{sT1}, s{sW}, 2\ns_lshl_b32 s{sT1}, s{sT1}, 13\n"
                     f"s_add_u32 s{sT0}, s{sT0}, s{sT1}\nv_lshrrev_b32 v5, 5, v0\nv_lshlrev_b32 v5, 14, v5\nv_lshrrev_b32 v6, 3, v0\n"
                     f"v_and_b32 v7, 3, v6\nv_lshl_add_u32 v5, v7, 8, v5\nv_add_u32 v5, s{sT0}, v5")
    red_setup.append(f"s_and_b32 s{sT1}, s{sW}, 1\ns_lshl_b32 s{sT1}, s{sT1}, 3\nv_add_u32 v6, s{sT1}, v6\nv_and_b32 v7, 7, v0\n"
                     f"v_lshlrev_b32 v7, 1, v7\nv_xor_b32 v6, v6, v7\nv_lshl_add_u32 v5, v6, 4, v5\nv_xor_b32 v6, 16, v5")

    lpipe = opts.get("lpipe", 1)
    IT_PQ = (opts.get("itpq0", 3 if lpipe else 2), opts.get("itpq1", 5 if lpipe else 4))
    IT_KVF, IT_KV = opts.get("itkvf", 1), (opts.get("itkv0", 4 if lpipe else 3), opts.get("itkv1", 6 if lpipe else 5))
    if lpipe:
        assert IT_PQ[0] >= 3 and IT_PQ[1] >= 5
    P2M(2)
    if opts.get("prio2"):
        A(f"s_cmp_ge_u32 s{sW}, 4")
        A("s_cbranch_scc0 F_pr2")
        A(f"s_setprio {opts.get('prio2')}")
        A.label("F_pr2")
    for i in range(14):
        lock = opts.get("lock", 0)
        if lock and i % lock == 0 and i <= opts.get("lockmax", 13):
            A("s_barrier")
        A(f"s_waitcnt lgkmcnt({2 if lpipe and 1 <= i <= 8 else 0})")
        if lpipe and i < 13:
            for s_ in tr_reads(WF[(i + 1) & 1], wslot(i + 1)):
                A(s_)
        wait_for(("h", i))
        if opts.get("p2it") is not None:
            b_ = opts.get("p2it")
            if b_ <= i < b_ + 7:
                ST.mark(i - b_)
        elif i in (0, 4, 8):
            P2M(3 + i // 4)
        wf = WF[i & 1]
        hs = hslot(i)
        mf = []
        for ci in range(2):
            for ri in range(2):
                c = "0" if i == 0 else vr(acc2(ci, ri), 16)
                mf.append(f"v_mfma_f32_32x32x16_bf16 {vr(acc2(ci,ri),16)}, {vr(wf+4*ci,4)}, {vr(hs+4*ri,4)}, {c}")
        fills = []
        if i + D < 14:
            fills.append(lambda ks=i + D: h_loads(ks))
        if i < 13 and not lpipe:
            fills += tr_reads(WF[(i + 1) & 1], wslot(i + 1))
        if i <= 7:
            for j in range(2):
                r = rowof(i % 6, j)
                fills.append(f"ds_write_b128 v{pStg1 if r < 16 else pStg2}, {vr(WRAW+8*i+4*j,4)} offset:{(r%8)*8192}")
        if i == IT_KVF and not kvpoll:
            fills.append(("kvf", f"buffer_load_dwordx4 {vr(pTmp,4)}, v{pKVF}, s[{SRD_WS}:{SRD_WS+3}], s{qKF} offen sc1"))
        if i in IT_PQ:
            fills += pq_loads(IT_PQ.index(i))
        if i == IT_KV[0] and not kvpoll:
            fills.append(kvf_check)
        if i in IT_KV:
            fills += kv_loads(IT_KV.index(i))
        if i == opts.get("itr", 1):
            if rpre:
                fills.append(f"v_mul_f32 v{pIr}, v{RG[0]+1}, v{RG[0]+1}\nv_mul_f32 v{pIr+1}, v{RG[1]+1}, v{RG[1]+1}\nv_mul_f32 v{pRf}, v{RG[2]+1}, v{RG[2]+1}")
            else:
                fills.append(lambda: wait_for("r"))
                fills.append(f"v_mul_f32 v{pIr}, v{pIr}, v{pIr}\nv_mul_f32 v{pIr+1}, v{pIr+1}, v{pIr+1}\nv_mul_f32 v{pRf}, v{pRf}, v{pRf}")
            fills.append(f"v_rcp_f32 v{pIr}, v{pIr}\nv_rcp_f32 v{pIr+1}, v{pIr+1}")
        if i == 6:
            fills += red_setup
        if i == 7:
            X = pX
        if i == 8:
            fills.append(lambda: wait_for(("kv", 0)))
            fills += kv_cvt(0)
            mf2 = att_kv(0)
        elif i == 9:
            n0 = att_norm(0)
            fills += ["s_nop 3"] + n0[:9]
            fills.append(lambda: wait_for(("kv", 1)))
            fills += kv_cvt(1)
            mf2 = att_kv(1)
        elif i == 10:
            fills += n0[9:] + wo_reads(0)
            mf2 = []
        elif i == 11:
            n1 = att_norm(1)
            fills += n1[:10]
            mf2 = att_wo(0)
        elif i == 12:
            fills += n1[10:] + wo_reads(1)
            mf2 = []
        elif i == 13:
            mf2 = att_wo(1)
        else:
            mf2 = []
        if i in (8, 9):
            run(mf, fills)
            wait_for(("pq", i - 8))
            if lpipe and i == 8:
                A("s_waitcnt lgkmcnt(4)")
            A("s_nop 1")
            run(mf2, [])
        else:
            run(mf + mf2, fills)
    (P2M(6) if opts.get("p2st") else STM(6))
    for k in range(1, 8):
        A(f"v_xor_b32 v{RING+k}, {k << 5}, v4")
    wa = [4] + [RING + k for k in range(1, 8)]
    A("s_nop 3")
    for ri in range(2):
        for ci in range(2):
            d = acc2(ci, ri)
            for j in range(4):
                A(f"ds_write_b128 v{wa[ci*4+j]}, {vr(d+4*j,4)} offset:{ri*8192}")
    X = 96
    for i in range(4):
        A(f"v_lshlrev_b32 v{X+2*i}, 16, v{pX+i}")
        A(f"v_and_b32 v{X+2*i+1}, s{sHi}, v{pX+i}")
    A("s_waitcnt lgkmcnt(0)")
    A("s_barrier")
    R = 24
    for p_ in range(8):
        for i in range(2):
            A(f"ds_read_b128 {vr(R+8*p_+4*i,4)}, v{5+i} offset:{p_*1024}")
    for p_ in range(0, 8, 2):
        A(f"s_waitcnt lgkmcnt({12 - 2*p_})")
        for r in range(8):
            A(f"v_add_f32 v{R+8*p_+r}, v{R+8*p_+r}, v{R+8*p_+8+r}")
    for r in range(8):
        A(f"v_add_f32 v{R+r}, v{R+r}, v{R+16+r}")
        A(f"v_add_f32 v{R+32+r}, v{R+32+r}, v{R+48+r}")
    for r in range(8):
        A(f"v_add_f32 v{R+r}, v{R+r}, v{R+32+r}")
    for r in range(8):
        A(f"v_fma_f32 v{R+r}, v{R+r}, v{pRf}, v{X+r}")
    for r in range(4):
        A(f"v_cvt_pk_bf16_f32 v{104+r}, v{R+2*r}, v{R+2*r+1}")
    A("s_waitcnt lgkmcnt(0)")
    A(f"buffer_store_dwordx4 v[104:107], v{pOut}, s[{SRD_OUT}:{SRD_OUT+3}], s{qXo} offen" + {0: "", 1: " sc1", 2: " nt", 3: " sc0 sc1", 4: " sc1 nt"}[opts.get("osc", 0)])
    ST.dump(sW, SRD_WS, sT2)
    A("s_endpgm")
    if rpre:
        A.label("F_rslow")
        r_loads()
        A("s_waitcnt vmcnt(0)")
        A("s_branch F_rok")
    if not kvpoll:
        A.label("F_kvslow")
        A(f"s_mov_b32 s{sCnt}, 0")
        A.label("F_kvspin")
        A("s_sleep 2")
        A(f"buffer_load_dwordx4 {vr(pTmp,4)}, v{pKVF}, s[{SRD_WS}:{SRD_WS+3}], s{qKF} offen sc1")
        A("s_waitcnt vmcnt(0)")
        for l in granule_check(pTmp, 2, sOk):
            A(l)
        A(f"s_and_b32 s{sOk}, s{sOk}, 0xffff")
        A(f"s_cmp_eq_u32 s{sOk}, 0xffff")
        A("s_cbranch_scc1 F_kvok")
        A(f"s_add_u32 s{sCnt}, s{sCnt}, 1")
        A(f"s_cmp_lt_u32 s{sCnt}, {SPINMAX}")
        A("s_cbranch_scc1 F_kvspin")
        A("s_branch F_kvok")
    A.label("F_spare")
    flag_prep()
    A("s_waitcnt vmcnt(0) lgkmcnt(0)")
    A("s_barrier")
    A(f"s_cmp_lg_u32 s{sW}, {POLLW}")
    A("s_cbranch_scc1 F_spare_end")
    flag_store()
    A.label("F_spare_end")
    ST.dump(sW, SRD_WS, sT2)
    A("s_endpgm")
```
